```python
import torch

def _softmax(x, axis=-1):
    return torch.softmax(x, dim=axis)
def _gelu(x):
    return torch.nn.functional.gelu(x, approximate="tanh")
def _silu(x):
    return torch.nn.functional.silu(x)
def _sigmoid(x):
    return torch.sigmoid(x)
def _layernorm(x, axis=-1, eps=1e-5):
    m = x.mean(dim=axis, keepdim=True)
    v = x.var(dim=axis, keepdim=True, unbiased=False)
    return (x - m) / torch.sqrt(v + eps)
def _scatter_add(tgt, idx, src, axis=0):
    return tgt.clone().index_add_(axis, idx, src)
def _segment_sum(src, seg, n):
    out = torch.zeros((n,) + src.shape[1:], dtype=src.dtype)
    return out.index_add_(0, seg, src)
def _pad(x, pw):
    flat = tuple(v for pair in reversed(pw) for v in pair)
    return torch.nn.functional.pad(x, flat)

kernel_name = 'concat_heads__gqa_block_cached__compressed_kv_cla__decode'

def setup_inputs():

    _w = (lambda a: (lambda t: t.to(torch.bfloat16) if t.is_floating_point() else t)(torch.as_tensor(a)))
    def _A_setup():
        B, Sq, D = 2, 1, 512
        Hq, Hkv, Sk, Dh = 32, 32, 8192, 128
        assert Hq % Hkv == 0, (Hq, Hkv)
        return {
            "x": _w((lambda *s: torch.randn(*s, dtype=torch.bfloat16) * 1.6)(B, Sq, D)),
            "k_cache": _w((lambda *s: torch.randn(*s, dtype=torch.bfloat16) * 1.6)(B, Hkv, Sk, Dh)),
            "v_cache": _w((lambda *s: torch.randn(*s, dtype=torch.bfloat16) * 0.05)(B, Hkv, Sk, Dh)),
            "wq": _w((lambda *s: torch.randn(*s, dtype=torch.bfloat16) * 1.6)(D, Hq * Dh) * (D ** -0.5)),
            "wo": _w((lambda *s: torch.randn(*s, dtype=torch.bfloat16) * 0.05)(Hq * Dh, D) * ((Hq * Dh) ** -0.5)),
        }
    _A_in = _A_setup()

    def _B_setup():
        B, H, Sq, Sk, D, M = 2, 32, 1, 8192, 128, 512
        Dc = 4 * D
        return {
            "x": _w((lambda *s: torch.randn(*s, dtype=torch.bfloat16) * 3.2)(B, Sq, M)),
            "c_kv": _w((lambda *s: torch.randn(*s, dtype=torch.bfloat16) * 0.1)(B, Sk, Dc)),
            "w_q": _w((lambda *s: torch.randn(*s, dtype=torch.bfloat16) * 6.4)(M, H, D) * (M ** -0.5)),
            "w_uk": _w((lambda *s: torch.randn(*s, dtype=torch.bfloat16) * 6.4)(Dc, H, D) * (Dc ** -0.5)),
            "w_uv": _w((lambda *s: torch.randn(*s, dtype=torch.bfloat16) * 0.1)(Dc, H, D) * (Dc ** -0.5)),
            "w_o": _w((lambda *s: torch.randn(*s, dtype=torch.bfloat16) * 0.1)(H, D, M) * ((H * D) ** -0.5)),
        }
    _B_in = _B_setup()

    return {
        "A_x": _A_in["x"],
        "A_k_cache": _A_in["k_cache"],
        "A_v_cache": _A_in["v_cache"],
        "A_wq": _A_in["wq"],
        "A_wo": _A_in["wo"],
        "B_x": _B_in["x"],
        "B_c_kv": _B_in["c_kv"],
        "B_w_q": _B_in["w_q"],
        "B_w_uk": _B_in["w_uk"],
        "B_w_uv": _B_in["w_uv"],
        "B_w_o": _B_in["w_o"],
    }

def reference(A_x, A_k_cache, A_v_cache, A_wq, A_wo, B_x, B_c_kv, B_w_q, B_w_uk, B_w_uv, B_w_o):
    def _A_ref(x, k_cache, v_cache, wq, wo):
        B, Sq, D = x.shape
        Hq, Dh = 32, 128
        Hkv = k_cache.shape[1]
        rep = Hq // Hkv
        q = (lambda x, *d: x.permute(*d))((x @ wq).reshape(B, Sq, Hq, Dh), 0, 2, 1, 3)
        k = (lambda x, n, axis: torch.repeat_interleave(x, n, dim=axis))(k_cache, rep, axis=1)
        v = (lambda x, n, axis: torch.repeat_interleave(x, n, dim=axis))(v_cache, rep, axis=1)
        scores = torch.einsum("bhqd,bhkd->bhqk", q, k) * (Dh ** -0.5)
        p = _softmax(scores, axis=-1)
        o = torch.einsum("bhqk,bhkd->bhqd", p, v)
        return (lambda x, *d: x.permute(*d))(o, 0, 2, 1, 3).reshape(B, Sq, Hq * Dh) @ wo

    def _B_ref(x, c_kv, w_q, w_uk, w_uv, w_o):
        B, Sq, M = x.shape[0], x.shape[1], x.shape[2]
        Sk = c_kv.shape[1]
        H, D = w_q.shape[1], w_q.shape[2]
        q = torch.einsum("bqm,mhd->bhqd", x, w_q)
        k = torch.einsum("bkc,chd->bhkd", c_kv, w_uk)
        v = torch.einsum("bkc,chd->bhkd", c_kv, w_uv)
        scores = torch.einsum("bhqd,bhkd->bhqk", q, k) * (D ** -0.5)
        off = Sk - Sq
        qi = torch.arange(Sq)[:, None]
        kj = torch.arange(Sk)[None, :]
        cmask = kj <= (qi + off)
        scores = torch.where(cmask[None, None], scores, -1e9)
        p = _softmax(scores, axis=-1)
        ctx = torch.einsum("bhqk,bhkd->bhqd", p, v)
        return torch.einsum("bhqd,hdm->bqm", ctx, w_o)

    a = _A_ref(A_x, A_k_cache, A_v_cache, A_wq, A_wo)
    b = _B_ref(B_x, B_c_kv, B_w_q, B_w_uk, B_w_uv, B_w_o)
    return torch.concatenate([a, b], axis=-1)
```

```python
import re

class Asm:
    def __init__(self):
        self.lines = []
    def __call__(self, s=''):
        for l in s.split('\n'):
            self.lines.append(l)
    def label(self, name):
        self.lines.append(name + ':')
    def nop(self, n):
        while n > 0:
            k = min(n, 16)
            self.lines.append(f's_nop {k-1}')
            n -= k
    def text(self):
        return '\n'.join(self.lines) + '\n'

def vr(a, n=1):
    return f'v{a}' if n == 1 else f'v[{a}:{a+n-1}]'
def sr(a, n=1):
    return f's{a}' if n == 1 else f's[{a}:{a+n-1}]'

REG = re.compile(r'^(-|\|)?(v|s|a)(\d+)\|?$')
RNG = re.compile(r'^(v|s|a)\[(\d+):(\d+)\]$')
def regs(op):
    op = op.strip()
    for pre in ('-', 'abs(', 'neg('):
        if op.startswith(pre): op = op[len(pre):]
    op = op.rstrip(')')
    m = RNG.match(op)
    if m: return {(m.group(1), i) for i in range(int(m.group(2)), int(m.group(3)) + 1)}
    m = REG.match(op)
    if m: return {(m.group(2), int(m.group(3)))}
    if op == 'vcc': return {('s', 'vcc')}
    if op in ('vcc_lo', 'vcc_hi'): return {('s', 'vcc')}
    if op == 'exec' or op in ('exec_lo', 'exec_hi'): return {('s', 'exec')}
    if op == 'm0': return {('s', 'm0')}
    return set()

TRANS = ('v_exp_f32', 'v_log_f32', 'v_rcp_f32', 'v_rsq_f32', 'v_sqrt_f32', 'v_sin_f32', 'v_cos_f32')
def parse(line):
    line = line.split(';')[0].split('//')[0].strip()
    if not line or line.endswith(':') or line.startswith('.'): return None
    parts = line.split(None, 1)
    mn = parts[0]
    rest = parts[1] if len(parts) > 1 else ''
    ops = [o.strip() for o in re.split(r',(?![^\[]*\])', rest)]
    mods = ''
    if ops and ops[-1]:
        toks = ops[-1].split()
        ops[-1] = toks[0]
        mods = ' '.join(toks[1:])
    I = dict(mn=mn, ops=ops, mods=mods, line=line)
    base = mn.replace('_e32', '').replace('_e64', '').replace('_dpp', '').replace('_sdwa', '')
    I['base'] = base
    isv = mn.startswith('v_')
    I['mfma'] = mn.startswith('v_mfma')
    I['valu'] = isv and not I['mfma']
    I['dpp'] = ('_dpp' in mn) or ('row_' in mods) or ('quad_perm' in mods)
    I['trans'] = base in TRANS
    I['dot'] = base.startswith('v_dot')
    I['vmem'] = mn.startswith(('buffer_', 'global_', 'flat_'))
    I['ds'] = mn.startswith('ds_')
    I['salu'] = mn.startswith('s_')
    dst, src = set(), set()
    R = [regs(o) for o in ops]
    if isv:
        if base.startswith('v_cmp'):
            dst = R[0]; src = set().union(*R[1:]) if len(R) > 1 else set()
            if base.startswith('v_cmpx'): dst = dst | {('s', 'exec')}
        elif base in ('v_readlane_b32', 'v_readfirstlane_b32'):
            dst = R[0]; src = set().union(*R[1:])
        elif base in ('v_permlane16_swap_b32', 'v_permlane32_swap_b32'):
            dst = R[0] | R[1]; src = R[0] | R[1]
        elif base in ('v_add_co_u32', 'v_sub_co_u32', 'v_addc_co_u32', 'v_subb_co_u32'):
            dst = R[0] | R[1]; src = set().union(*R[2:])
        else:
            dst = R[0]; src = set().union(*R[1:]) if len(R) > 1 else set()
            if base in ('v_fmac_f32', 'v_dot2c_f32_bf16', 'v_writelane_b32') or I['dpp']: src |= R[0]
            if base == 'v_cndmask_b32' and len(ops) == 3: src |= {('s', 'vcc')}
    elif I['vmem']:
        lds = 'lds' in mods.split()
        if 'load' in mn and not lds:
            dst = R[0]; src = set().union(*R[1:])
        elif 'atomic' in mn and 'sc0' in mods.split():
            dst = R[0]; src = set().union(*R[1:])
        else:
            src = set().union(*R) if R else set()
        if lds: src |= {('s', 'm0')}
        I['lds'] = lds
        I['store'] = 'store' in mn
        I['wide_store'] = I['store'] and ('x4' in mn or 'x3' in mn)
        if I['store']:
            I['sdata'] = R[1] if mn.startswith('global') else R[0]
    elif I['ds']:
        if mn.startswith(('ds_read', 'ds_bpermute', 'ds_permute', 'ds_swizzle')):
            dst = R[0]; src = set().union(*R[1:]) if len(R) > 1 else set()
        else:
            src = set().union(*R)
    elif I['salu']:
        if mn.startswith(('s_cmp', 's_cbranch', 's_branch', 's_waitcnt', 's_nop', 's_barrier', 's_endpgm', 's_sleep', 's_setprio', 's_bitcmp')):
            src = set().union(*R) if R else set()
        else:
            dst = R[0] if R else set(); src = set().union(*R[1:]) if len(R) > 1 else set()
            if 'saveexec' in mn: dst |= {('s', 'exec')}; src |= {('s', 'exec')}
    I['dst'], I['src'] = dst, src
    if I['mfma']:
        I['passes'] = 8 if '32x32' in mn else 4
        I['A'], I['B'], I['C'] = R[1], R[2], R[3]
    I['ws'] = 1
    if mn == 's_nop': I['ws'] = int(ops[0], 0) + 1
    return I

def need(p, c):
    n = 0
    vd = {r for r in p['dst'] if r[0] in 'va'}
    sd = {r for r in p['dst'] if r[0] == 's'}
    if p['valu']:
        if vd & c['src']:
            if c['dpp']: n = max(n, 2)
            if c['mfma']: n = max(n, 2)
            if c['base'] in ('v_readlane_b32', 'v_readfirstlane_b32'): n = max(n, 1)
            if c['base'].startswith('v_permlane'): n = max(n, 2)
            if p['trans'] and (c['valu'] or c['mfma']) and not c['trans']: n = max(n, 1)
            if p['trans'] and (c['vmem'] or c['ds']): n = max(n, 1)
        if p['dot'] and (vd & (c['src'] | c['dst'])):
            same = c['base'] == p['base']
            if same:
                if len(c['ops']) >= 3 and (vd & (regs(c['ops'][1]) | regs(c['ops'][2]))): n = max(n, 3)
            else: n = max(n, 3)
        if sd & c['src']:
            if c['vmem']: n = max(n, 5)
            if c['valu'] or c['mfma']:
                if c['base'] in ('v_readlane_b32', 'v_writelane_b32'): n = max(n, 4)
                else: n = max(n, 2)
            if ('s', 'exec') in sd and c['dpp']: n = max(n, 5)
        if ('s', 'exec') in sd:
            if c['mfma']: n = max(n, 4)
            if c['dpp']: n = max(n, 5)
            if c['base'] in ('v_readlane_b32', 'v_readfirstlane_b32', 'v_writelane_b32') or c['base'].startswith('v_permlane'): n = max(n, 4)
    if p['mfma']:
        P = p['passes']
        d = p['dst']
        if c['mfma']:
            if d & (c['A'] | c['B']): n = max(n, 8 if P == 4 else 12)
            if d & c['C']:
                if not (c['C'] == d and c['passes'] == P): n = max(n, 6 if P == 4 else 10)
            elif d & c['dst']: n = max(n, 6 if P == 4 else 10)
        elif c['valu'] or c['vmem'] or c['ds']:
            if d & (c['src'] | c['dst']): n = max(n, 8 if P == 4 else 12)
            if c['valu'] and (p['C'] & c['dst']): n = max(n, 3 if P == 4 else 7)
    if p['vmem'] and p.get('wide_store'):
        if p['sdata'] & c['dst']: n = max(n, 2)
    if p['salu'] and ('s', 'm0') in p['dst'] and c['vmem'] and c.get('lds'): n = max(n, 1)
    if p['salu'] and ('s', 'exec') in p['dst'] and c['dpp']: n = max(n, 0)
    return n

def lint(text):
    lines = text.split('\n')
    ins = []; labels = {}
    for ln, l in enumerate(lines):
        s = l.split(';')[0].strip()
        if s.endswith(':') and not s.startswith('.'):
            labels[s[:-1]] = len(ins); continue
        I = parse(l)
        if I: I['ln'] = ln + 1; ins.append(I)
    probs = []
    W = 20
    def check_seq(seq):
        for j in range(len(seq)):
            c = seq[j]; dist = 0
            for i in range(j - 1, max(-1, j - W - 1), -1):
                p = seq[i]
                n = need(p, c)
                if n > dist:
                    probs.append((p['ln'], c['ln'], n, dist, p['line'], c['line']))
                dist += p['ws']
                if dist >= 13: break
    segs = []; cur = []
    for I in ins:
        cur.append(I)
        if I['mn'] in ('s_branch', 's_endpgm'): segs.append(cur); cur = []
    if cur: segs.append(cur)
    for s in segs: check_seq(s)
    for k, I in enumerate(ins):
        if I['mn'].startswith(('s_cbranch', 's_branch')):
            t = labels.get(I['ops'][0])
            if t is None: continue
            check_seq(ins[max(0, k - W):k + 1] + ins[t:t + W])
    seen = set(); out = []
    for p in probs:
        if (p[0], p[1]) not in seen:
            seen.add((p[0], p[1])); out.append(p)
    return out
```

```python
from asmlib import vr, sr
import gen as G
from gen import *

def bitrev4(c): return int(f'{c:04b}'[::-1], 2)

L_FLAGQ, L_FLAGS, L_CTL, L_STAT, L_PROG, L_QP, L_OB = 0, 4, 8, 64, 256, 1024, 8192
OB_RS = 272
STEP = 24 * 4096
REM = 21 * STEP
NREG, NLD = 168, 172
POS = {168: 8, 169: 9, 170: 12, 171: 13}
def pos(n): return POS.get(n, n % 16)
def batch(n): return (pos(n) >> 2) & 1

def lds_spin(a, tag, vt, vz, off, target, sleep):
    a('s_mov_b32 s64, 0')
    a.label(f'L_{tag}')
    a(f'ds_read_b32 v{vt}, v{vz} offset:{off}')
    a('s_waitcnt lgkmcnt(0)')
    a(f'v_readfirstlane_b32 s65, v{vt}')
    a('s_add_u32 s64, s64, 1')
    a('s_nop 2')
    a(f's_cmp_ge_u32 s65, {target}\ns_cbranch_scc1 L_{tag}_ok')
    if sleep: a(f's_sleep {sleep}')
    a(f's_cmp_lt_u32 s64, {1 << 20}\ns_cbranch_scc1 L_{tag}')
    a.label(f'L_{tag}_ok')

def role_A4(a, cfg):
    a.label('L_roleA')
    stamp(a, cfg, 0)
    a(f's_cmp_ge_u32 s{S_W}, 4\ns_cbranch_scc1 L_A_helper')
    streamer(a, cfg)
    a.label('L_A_helper')
    helper(a, cfg)

def streamer(a, cfg):
    SRD_K, SRD_V = 40, 44
    S_OFF, S_A, S_REM, S_IT = 35, 36, 37, 38
    S_M3, S_M4, S_VAL = 48, 50, 52
    R = cfg.R
    V_OFF = [8, 9]; V_SP = [10, 11]
    V_MK = [V_MASK, 12]
    V_Q = [16, 20]
    V_T, V_M1, V_M2, V_M3, V_TA, V_TB = 24, 28, 30, 32, 34, 35
    V_S = 36
    V_ZERO = 47
    V_ACC, V_A = 48, 52
    V_X, V_Y, V_Z, V_F = 60, 61, 62, 63
    V_R = 64
    V_TMP = V_R + 4 * max(R, 32)
    assert R % 16 == 0 and V_R + 4 * R <= 249
    if cfg.sprio: a(f's_setprio {cfg.sprio}')
    a(f's_lshl_b32 s62, s{S_H}, 21')
    a(f's_sub_u32 s63, {128 << 20:#x}, s62')
    srd(a, SRD_K, P_AK, off_s=62, nrec_s=63)
    a(f's_lshl_b32 s{S_OFF}, s{S_R}, 2\ns_add_u32 s{S_OFF}, s{S_OFF}, s{S_W}\ns_lshl_b32 s{S_OFF}, s{S_OFF}, 12')
    a(f's_mov_b32 s{S_A}, s{S_OFF}')
    a(f'v_lshlrev_b32 v{V_OFF[0]}, 4, v{V_LANE}')
    a(f'v_add_u32 v{V_OFF[1]}, {64 << 20:#x}, v{V_OFF[0]}')
    def slotK(n): return n if n < R else n % 16
    def slotV(n): return (n + NLD) % 16
    V_PA, V_ONE, V_CTL = V_TMP, V_TMP + 1, V_TMP + 2
    nlab = [0]
    def wait2(lo, hi=None):
        if cfg.mon and hi and hi > lo:
            nlab[0] += 1
            a(f's_cbranch_vccnz L_A_w{nlab[0]}')
            a(f's_waitcnt vmcnt({lo-1})')
            a.label(f'L_A_w{nlab[0]}')
            a(f's_waitcnt vmcnt({hi-1})')
        else: a(f's_waitcnt vmcnt({lo-1})')
    def ctl(i):
        if not cfg.mon: return
        if i % 8 == 0: a(f'ds_read_b32 v{V_CTL}, v{V_ZERO} offset:{L_CTL}')
        if i % 8 == 1:
            a('s_waitcnt lgkmcnt(1)')
            a(f'v_cmp_ne_u32 vcc, 0, v{V_CTL}')
    def issue(isv, n):
        issue0(isv, n)
        if cfg.mon and n % 2 and (isv or n >= 8): a(f'ds_add_u32 v{V_PA}, v{V_ONE} offset:{L_PROG}')
    def issue0(isv, n):
        srd_ = SRD_V if isv else SRD_K
        pol = cfg.vpol if isv else cfg.kpol
        dst = V_R + 4 * (slotV(n) if isv else slotK(n))
        if n < NREG:
            if n % 8 == 0:
                if n > 0: a(f's_add_u32 s{S_A}, s{S_A}, {STEP:#x}')
                elif isv: a(f's_mov_b32 s{S_A}, s{S_OFF}')
            a(f'buffer_load_dwordx4 {vr(dst,4)}, v{V_OFF[batch(n)]}, s[{srd_}:{srd_+3}], s{S_A} offen offset:{1024*(n%4)} {pol}')
        else:
            v = (V_SP if n % 2 else V_OFF)[batch(n)]
            a(f'buffer_load_dwordx4 {vr(dst,4)}, v{v}, s[{srd_}:{srd_+3}], s{S_REM} offen {pol}')
    L0, L1, L2, L3 = cfg.L0, cfg.La, cfg.Lb, cfg.Lc
    seq = []
    S_I = 54
    rot = [0]
    def job(kind, sb):
        def setup():
            if kind[0] == 'c':
                t0, t1 = int(kind[1]), int(kind[2]) if len(kind) > 2 else 8
                a(f's_lshl_b32 s60, s{S_H}, 19\ns_add_u32 s60, s60, {t0 << 16:#x}\ns_mov_b32 s61, {(t1 - t0) << 16:#x}')
                srd(a, sb, P_BC, off_s=60, nrec_s=61)
            elif kind in 'ow':
                a(f's_lshl_b32 s60, s{S_H}, 17\ns_mov_b32 s61, {128*1024:#x}')
                srd(a, sb, P_BWO if kind == 'o' else P_AWO, off_s=60, nrec_s=61)
            else:
                a(f's_lshl_b32 s60, s{S_H}, 8\ns_sub_u32 s61, {512*8192:#x}, s60')
                srd(a, sb, {'v': P_BWUV, 'k': P_BWUK, 'q': P_BWQ, 'a': P_AWQ}[kind], off_s=60, nrec_s=61)
        rows = kind in 'vkqa'
        sh = (15 if rows else 10) + cfg.spw
        nl = (128 if kind[0] != 'c' else 64 * ((int(kind[2]) if len(kind) > 2 else 8) - int(kind[1]))) >> cfg.spw
        r = rot[0]; rot[0] = (r + (nl % 24) // 8) % 3
        base, ex = nl // 24, (nl % 24) // 4
        for m in range((nl + 23) // 24):
            def ld(m=m, slot=len(seq) % 8):
                if m == 0: setup()
                if cfg.spm:
                    if m == 0:
                        a(f's_lshr_b32 s58, s{S_I + r}, 2\ns_min_u32 s60, s58, {ex}\ns_mul_i32 s59, s58, {base}\ns_add_u32 s59, s59, s60')
                        a(f's_lshl_b32 s59, s59, 2\ns_add_u32 s59, s59, s{S_W}')
                    else: a('s_add_u32 s59, s59, 4')
                    if m == base: a(f's_cmp_lt_u32 s58, {ex}\ns_cselect_b32 s59, s59, {nl}')
                    if rows:
                        b = 4 - cfg.spw
                        a(f's_lshr_b32 s60, s59, 1\ns_xor_b32 s60, s60, s59\ns_and_b32 s60, s60, {1 << b}\ns_mul_i32 s60, s60, 3')
                        a(f's_xor_b32 s60, s60, s59\ns_lshl_b32 s39, s60, {sh}')
                    else: a(f's_lshl_b32 s39, s59, {sh}')
                elif m == 0: a(f's_lshl_b32 s39, s{S_I + r}, {sh}')
                else: a(f's_add_u32 s39, s39, {24 << sh:#x}')
                if cfg.spw: a(f'buffer_load_dword v{V_R + 4*(16 + slot)}, v{V_Y if rows else V_X}, s[{sb}:{sb+3}], s39 offen {cfg.spol.replace("+", " ")}')
                else: a(f'buffer_load_dwordx4 {vr(V_R + 4*(16 + slot),4)}, v{V_Y if rows else V_OFF[0]}, s[{sb}:{sb+3}], s39 offen {cfg.spol.replace("+", " ")}')
            seq.append(ld)
    if cfg.spf:
        a(f's_lshr_b32 s{S_I}, s{S_OFF}, 12\ns_mov_b32 s57, 0xff')
        for r in (1, 2):
            a(f's_sub_u32 s{S_I+r}, s{S_I+r-1}, 8')
            a(f's_cselect_b32 s60, 24, 0')
            a(f's_add_u32 s{S_I+r}, s{S_I+r}, s60')
        if cfg.spw:
            a(f'v_lshlrev_b32 v{V_X}, {4 + cfg.spw}, v{V_LANE}')
            a(f'v_lshrrev_b32 v{V_Y}, 8, v{V_X}')
            a(f'v_lshlrev_b32 v{V_Y}, 13, v{V_Y}')
            a(f'v_bfi_b32 v{V_Y}, s57, v{V_X}, v{V_Y}')
        else:
            a(f'v_lshlrev_b32 v{V_Y}, 4, v{V_C}')
            a(f'v_lshl_add_u32 v{V_Y}, v{V_G}, 13, v{V_Y}')
        for i, k in enumerate(cfg.spf.split(',')): job(k, 68 + 4 * (i % 4))
    npre = len(seq)
    for n in range(R): seq.append(lambda n=n: issue(False, n))
    for f in seq[:L0]: f()
    a(f's_lshl_b32 s62, s{S_H}, 21')
    a(f's_sub_u32 s63, {128 << 20:#x}, s62')
    srd(a, SRD_V, P_AV, off_s=62, nrec_s=63)
    a(f's_mul_i32 s60, s{S_W}, 6\ns_add_u32 s60, s60, s{S_R}')
    a(f's_lshl_b32 s{S_REM}, s60, 10\ns_add_u32 s{S_REM}, s{S_REM}, {REM:#x}')
    base_valid = sum(1 << bitrev4(c) for c in list(range(9)) + [12])
    a(f's_mov_b32 s{S_VAL}, {base_valid:#x}')
    a(f's_cmp_lt_u32 s60, 8')
    a(f's_cselect_b32 s61, {24*1024}, 0x80000000' if False else f's_cselect_b32 s61, 0, 1')
    a(f's_cselect_b32 s62, {1 << bitrev4(9):#x}, 0')
    a(f's_or_b32 s{S_VAL}, s{S_VAL}, s62')
    a(f's_lshl_b32 s61, s61, 31\ns_add_u32 s61, s61, {24*1024}')
    a(f'v_add_u32 v{V_SP[0]}, s61, v{V_OFF[0]}')
    a(f's_sub_u32 s60, s60, 8\ns_cmp_lt_u32 s60, 8')
    a(f's_cselect_b32 s61, 0, 1')
    a(f's_cselect_b32 s62, {1 << bitrev4(13):#x}, 0')
    a(f's_or_b32 s{S_VAL}, s{S_VAL}, s62')
    a(f's_lshl_b32 s61, s61, 31\ns_add_u32 s61, s61, {16*1024}')
    a(f'v_add_u32 v{V_SP[1]}, s61, v{V_OFF[1]}')
    a(f's_mul_i32 s{S_VAL}, s{S_VAL}, 0x10001\ns_mov_b32 s{S_VAL+1}, s{S_VAL}')
    a(f's_mov_b32 s{S_M3}, 0xcccccccc\ns_mov_b32 s{S_M3+1}, 0xcccccccc')
    a(f's_mov_b32 s{S_M4}, 0xaaaaaaaa\ns_mov_b32 s{S_M4+1}, 0xaaaaaaaa')
    a(f'v_cmp_gt_u32 vcc, 8, v{V_C}')
    a(f'v_mov_b32 v{V_ZERO}, 0')
    for k in range(4): a(f'v_mov_b32 v{V_ACC+k}, 0')
    for k in range(4): a(f'v_cndmask_b32 v{V_MK[1]+k}, v{V_MASK+k}, v{V_ZERO}, vcc')
    for k in range(4): a(f'v_cndmask_b32 v{V_MK[0]+k}, v{V_ZERO}, v{V_MASK+k}, vcc')
    if cfg.mon:
        a(f'v_lshlrev_b32 v{V_PA}, 2, v{V_LANE}')
        a(f'v_mov_b32 v{V_ONE}, 1')
        a('s_mov_b64 vcc, 0')
    nbar = max(L0, min(npre + 8, cfg.wlate))
    for i in range(L0, len(seq)):
        if i == nbar: a('s_barrier')
        if cfg.st0 and i in (L0 + 1, 18, npre): stamp(a, cfg, {L0 + 1: 7, 18: 3, npre: 5}[i])
        a(f's_waitcnt vmcnt({(L0 if i < npre or not cfg.L0k else cfg.L0k) - 1})')
        seq[i]()
    L0 = cfg.L0k or L0
    if cfg.fine: stamp(a, cfg, 4)
    qc = cfg.tag and cfg.qc
    a(f'v_lshlrev_b32 v{V_Y}, 4, v{V_C}')
    lds_spin(a, 'A_qw', V_X, V_ZERO, L_FLAGQ, 1 if qc else 4, 1)
    a(f'v_lshlrev_b32 v{V_X}, 5, v{V_C}')
    QT = [24, 28, 36, 40]
    if qc:
        for b in range(2): a(f'ds_read_b128 {vr(V_Q[b],4)}, v{V_Y} offset:{L_QP + 256*b}')
        a('s_waitcnt lgkmcnt(0)')
    for b in range(0 if qc else 2):
        for hf in range(2):
            for k in range(4):
                a(f'ds_read_b128 {vr(QT[k],4)}, v{V_X} offset:{L_QP + 1024*k + 512*b + 16*hf}')
            a('s_waitcnt lgkmcnt(2)')
            for e in range(4): a(f'v_add_f32 v{QT[0]+e}, v{QT[0]+e}, v{QT[1]+e}')
            a('s_waitcnt lgkmcnt(0)')
            for e in range(4): a(f'v_add_f32 v{QT[2]+e}, v{QT[2]+e}, v{QT[3]+e}')
            for e in range(4): a(f'v_add_f32 v{QT[0]+e}, v{QT[0]+e}, v{QT[2]+e}')
            for e in range(2): a(f'v_cvt_pk_bf16_f32 v{V_Q[b]+2*hf+e}, v{QT[0]+2*e}, v{QT[0]+2*e+1}')
    stamp(a, cfg, 1)

    class Merge:
        def __init__(s, carry): s.q = [('l1', 7, V_T + 2, V_T + 3, False)] if carry else []
        def pre(s):
            for t in s.q:
                if t[0] == 'l1': a(f'v_add_f32_dpp v{V_M1 + (t[1] & 1)}, v{t[2]}, v{t[2]} row_ror:8 row_mask:0xf bank_mask:0x3')
                if t[0] == 'l2' and not t[2]: a(f'v_add_f32_dpp v{V_M2 + (t[1] & 1)}, v{V_M1}, v{V_M1} row_shl:4 row_mask:0xf bank_mask:0x5')
                if t[0] == 'l3': a(f'v_add_f32_dpp v{V_TA}, v{V_M2}, v{V_M2} quad_perm:[2,3,0,1] row_mask:0xf bank_mask:0xf')
                if t[0] == 'l4':
                    a(f'v_add_f32_dpp v{V_TA}, v{V_M3}, v{V_M3} quad_perm:[1,0,3,2] row_mask:0xf bank_mask:0xf')
                    for k in range(10): a(f'v_mov_b32 v{V_S+k}, v{V_S+k+1}')
        def post(s, n):
            nxt = []
            for t in s.q:
                if t[0] == 'l1':
                    a(f'v_add_f32_dpp v{V_M1 + (t[1] & 1)}, v{t[3]}, v{t[3]} row_ror:8 row_mask:0xf bank_mask:0xc')
                    if t[1] & 1 or t[4]: nxt.append(('l2', t[1] >> 1, t[4]))
                if t[0] == 'l2':
                    if t[2]: a(f'v_add_f32_dpp v{V_M2 + (t[1] & 1)}, v{V_M1}, v{V_M1} row_shl:4 row_mask:0xf bank_mask:0x5')
                    else: a(f'v_add_f32_dpp v{V_M2 + (t[1] & 1)}, v{V_M1+1}, v{V_M1+1} row_shr:4 row_mask:0xf bank_mask:0xa')
                    if t[1] & 1: nxt.append(('l3', t[1] >> 1))
                if t[0] == 'l3':
                    a(f'v_add_f32_dpp v{V_TB}, v{V_M2+1}, v{V_M2+1} quad_perm:[2,3,0,1] row_mask:0xf bank_mask:0xf')
                    a(f'v_cndmask_b32 v{V_M3 + t[1]}, v{V_TA}, v{V_TB}, s[{S_M3}:{S_M3+1}]')
                    if t[1]: nxt.append(('l4',))
                if t[0] == 'l4':
                    a(f'v_add_f32_dpp v{V_TB}, v{V_M3+1}, v{V_M3+1} quad_perm:[1,0,3,2] row_mask:0xf bank_mask:0xf')
                    a(f'v_cndmask_b32 v{V_S+10}, v{V_TA}, v{V_TB}, s[{S_M4}:{S_M4+1}]')
            if n is not None and n % 2: nxt.append(('l1', pos(n) >> 1, V_T + (n - 1) % 4, V_T + n % 4, n >= NREG))
            s.q = nxt
    def consumeK(mg, n):
        src = V_R + 4 * slotK(n); t = V_T + n % 4; q = V_Q[batch(n)]
        mg.pre()
        a(f'v_dot2_f32_bf16 v{t}, v{src}, v{q}, 0')
        for k in range(1, 4): a(f'v_dot2_f32_bf16 v{t}, v{src+k}, v{q+k}, v{t}')
        mg.post(n)
    D = 8
    mg = Merge(False)
    G0 = R // 16 + 1
    issued, landed, n = R, R - L0, 0
    def occupant(m): return m % 16 if m < R + 16 else m - 16
    since = 0; nissue = 0
    while n < 16 * G0:
        free = occupant(issued) < n
        want = issued - n <= D or nissue < L1 or since >= cfg.catch
        if free and want and issued < 16 * G0 + D and (issued - n < D + 1 or True):
            if issued - n <= D or issued - n > D:
                a(f's_waitcnt vmcnt({L1-1})'); landed = max(landed, issued - (L1 - 1))
                issue(False, issued); issued += 1; since = 0; nissue += 1
        if n >= landed:
            a(f's_waitcnt vmcnt({issued - 1 - n})'); landed = n + 1
        consumeK(mg, n); n += 1; since += 1
    while issued < 16 * G0 + D:
        a(f's_waitcnt vmcnt({L1-1})'); issue(False, issued); issued += 1
    def kloop(tag, L, count):
        if count <= 0: return
        a(f's_mov_b32 s{S_IT}, {count}')
        a('.p2align 6')
        a.label(f'L_A_k{tag}')
        m = Merge(True)
        for i in range(16):
            nn = 16 * G0 + i
            wait2(L, cfg.HK)
            issue(False, nn + D)
            ctl(i)
            consumeK(m, nn)
        a(f's_sub_u32 s{S_IT}, s{S_IT}, 1\ns_cmp_lg_u32 s{S_IT}, 0\ns_cbranch_scc1 L_A_k{tag}')
    na = min(cfg.NKa, 10 - G0)
    kloop('a', L1, na)
    if cfg.fine and not cfg.st0: stamp(a, cfg, 5)
    kloop('b', L2, 10 - G0 - na)
    mg = Merge(True)
    for nn in range(160, NLD):
        wait2(L2, cfg.HK)
        m = nn + D
        if m < NLD: issue(False, m)
        else: issue(True, m - NLD)
        consumeK(mg, nn)
    DV = 12
    extra = list(range(D, DV))
    def vissue():
        if extra:
            a(f's_waitcnt vmcnt({L2-1})')
            issue(True, extra.pop(0))
    while mg.q:
        a.nop(3); mg.pre(); a.nop(2); mg.post(None)
    if cfg.fine: stamp(a, cfg, 6)
    a(f'v_mov_b32 v{V_X}, 0xff800000')
    a(f'v_cndmask_b32 v{V_S+10}, v{V_X}, v{V_S+10}, s[{S_VAL}:{S_VAL+1}]')
    a(f'v_max3_f32 v{V_X}, v{V_S}, v{V_S+1}, v{V_S+2}')
    for k in range(3, 11, 2): a(f'v_max3_f32 v{V_X}, v{V_X}, v{V_S+k}, v{V_S+k+1}')
    def batch_allreduce(op, x):
        for ctl in ('quad_perm:[1,0,3,2]', 'row_ror:4', 'row_ror:8'):
            a.nop(2)
            a(f'{op}_dpp v{x}, v{x}, v{x} {ctl} row_mask:0xf bank_mask:0xf')
        xrow_allreduce(a, op, x, V_TA)
    vissue()
    batch_allreduce('v_max_f32', V_X)
    a(f's_mov_b32 s62, {f2u(SCALE):#x}')
    a(f'v_mul_f32 v{V_X}, s62, v{V_X}')
    vissue()
    for k in range(11): a(f'v_fma_f32 v{V_S+k}, v{V_S+k}, s62, -v{V_X}')
    for k in range(11): a(f'v_exp_f32 v{V_S+k}, v{V_S+k}')
    vissue()
    a(f'v_add_f32 v{V_Y}, v{V_S}, v{V_S+1}')
    for k in range(2, 11): a(f'v_add_f32 v{V_Y}, v{V_Y}, v{V_S+k}')
    for k in range(11): a(f'v_cvt_pk_bf16_f32 v{V_S+k}, v{V_S+k}, v{V_S+k}')
    vissue()
    batch_allreduce('v_add_f32', V_Y)
    a(f's_lshl_b32 s62, s{S_W}, 2')
    a(f'v_lshl_add_u32 v{V_Z}, v{V_LANE}, 3, s62')
    a(f'v_mov_b32 v{V_F}, 1')
    a('s_mov_b64 exec, 5')
    a(f'ds_write_b32 v{V_Z}, v{V_X} offset:{L_STAT}')
    a(f'ds_write_b32 v{V_Z}, v{V_Y} offset:{L_STAT + 32}')
    a('s_mov_b64 exec, 1')
    a(f'ds_add_u32 v{V_ZERO}, v{V_F} offset:{L_FLAGS}')
    a('s_mov_b64 exec, -1')
    assert not extra
    if cfg.fine and not cfg.st7 and not cfg.st0: stamp(a, cfg, 7)
    def prepA(n):
        if n % 16 == 0 and n > 0:
            for k in range(10): a(f'v_mov_b32 v{V_S+k}, v{V_S+k+1}')
        for k in range(4):
            a(f'v_and_b32_dpp v{V_A + 4*(n&1) + k}, v{V_S}, v{V_MK[batch(n)]+k} row_newbcast:{bitrev4(pos(n))} row_mask:0xf bank_mask:0xf')
    def mfma(n):
        a(f'v_mfma_f32_16x16x32_bf16 {vr(V_ACC,4)}, {vr(V_A + 4*(n&1),4)}, {vr(V_R + 4*slotV(n),4)}, {vr(V_ACC,4)}')
    prepA(0)
    def vloop(tag, L, count):
        if count <= 0: return
        a(f's_mov_b32 s{S_IT}, {count}')
        a('.p2align 6')
        a.label(f'L_A_v{tag}')
        for i in range(16):
            wait2(L, cfg.HV)
            issue(True, 16 + i + DV)
            mfma(16 + i); ctl(i); prepA(16 + i + 1)
        a(f's_sub_u32 s{S_IT}, s{S_IT}, 1\ns_cmp_lg_u32 s{S_IT}, 0\ns_cbranch_scc1 L_A_v{tag}')
    nva = min(cfg.NVa, 9)
    if cfg.Lj:
        a(f's_cmp_lg_u32 s{S_R}, 0\ns_cbranch_scc1 L_A_vn')
        vloop('j', cfg.Lj, 9)
        a('s_branch L_A_vx')
        a.label('L_A_vn')
    vloop('a', L2, nva)
    vloop('b', L3, 9 - nva)
    if cfg.Lj: a.label('L_A_vx')
    ST = V_T
    if cfg.fine and not cfg.st0: stamp(a, cfg, 3)
    L3 = cfg.Ld or L3
    for nn in range(144, NLD):
        m = nn + DV
        if m < NLD:
            if cfg.tctl: wait2(cfg.tctl, L3)
            else: a(f's_waitcnt vmcnt({L3-1})')
            issue(True, m)
            if cfg.tctl and nn in (148, 149): ctl(nn - 148)
        else:
            a(f's_waitcnt vmcnt({min(L3 - 1, NLD - 1 - nn)})' if NLD - 1 - nn < L3 else 's_nop 0')
            a('s_nop 0')
        mfma(nn)
        if nn + 1 < NLD: prepA(nn + 1)
        if nn == 144:
            lds_spin(a, 'A_sw', V_X, V_ZERO, L_FLAGS, 4, 1)
            a(f'v_lshrrev_b32 v{V_X}, 1, v{V_G}')
            a(f'v_lshlrev_b32 v{V_X}, 4, v{V_X}')
            a(f's_lshl_b32 s62, s{S_W}, 2')
            a(f'v_add_u32 v{V_Y}, s62, v{V_X}')
            a(f'ds_read_b128 {vr(ST,4)}, v{V_X} offset:{L_STAT}')
            a(f'ds_read_b32 v{V_F}, v{V_Y} offset:{L_STAT}')
        if nn == 146:
            a('s_waitcnt lgkmcnt(0)')
            a(f'v_max3_f32 v{V_X}, v{ST}, v{ST+1}, v{ST+2}')
            a(f'v_max_f32 v{V_X}, v{V_X}, v{ST+3}')
            a(f'v_sub_f32 v{V_F}, v{V_F}, v{V_X}')
            a(f'v_exp_f32 v{V_F}, v{V_F}')
            a(f'v_lshrrev_b32 v{V_Z}, 1, v{V_G}')
            a(f'v_mul_u32_u24 v{V_Z}, {4*OB_RS}, v{V_Z}')
            a(f'v_lshl_add_u32 v{V_Z}, v{V_C}, 4, v{V_Z}')
            a(f'v_and_b32 v{V_Y}, 1, v{V_G}')
            a(f'v_lshl_add_u32 v{V_Z}, v{V_Y}, 3, v{V_Z}')
            a(f's_mul_i32 s62, s{S_W}, {OB_RS}')
            a(f'v_add_u32 v{V_Z}, s62, v{V_Z}')
    if cfg.fine and cfg.st7: stamp(a, cfg, 7)
    a.nop(8)
    for k in range(4): a(f'v_mul_f32 v{V_ACC+k}, v{V_ACC+k}, v{V_F}')
    a(f'v_cvt_pk_bf16_f32 v{V_ACC}, v{V_ACC}, v{V_ACC+1}')
    a(f'v_cvt_pk_bf16_f32 v{V_ACC+1}, v{V_ACC+2}, v{V_ACC+3}')
    a(f'ds_write_b64 v{V_Z}, {vr(V_ACC,2)} offset:{L_OB}')
    a('s_waitcnt lgkmcnt(0)\ns_barrier')
    stamp(a, cfg, 2)
    a('s_endpgm')

def group_base(a, S_BASE):
    a(f's_and_b32 s63, s{S_H}, 7\ns_mul_i32 s63, s63, {G.CFG.gstr:#x}\ns_add_u32 s63, s63, {WS_PROG:#x}')
    a(f's_add_u32 s{S_BASE}, s{P_WS}, s63\ns_addc_u32 s{S_BASE+1}, s{P_WS+1}, 0')

def group_sum(a, S_BASE, va, v, s_sum, s_g, own=None, six=None):
    a('s_mov_b64 exec, 0x1ffffff')
    if six: a('s_mov_b32 exec_hi, 0x3f')
    a(f'global_load_dword v{v}, v{va}, s[{S_BASE}:{S_BASE+1}] {G.CFG.gpol.replace("+", " ")}')
    a('s_waitcnt vmcnt(0)')
    a(f'v_subrev_u32 v{v}, s{S_TAG}, v{v}')
    a('s_mov_b64 exec, 0xffffff')
    a(f'v_cmp_le_u32 vcc, 0x400, v{v}')
    a(f'v_readlane_b32 s{s_g}, v{v}, 24')
    if own: a(f'v_readlane_b32 s{own[0]}, v{v}, s{own[1]}')
    for st in (1, 2, 4, 8):
        if st > 1: a.nop(2)
        a(f'v_add_u32_dpp v{v}, v{v}, v{v} row_shr:{st} row_mask:0xf bank_mask:0xf bound_ctrl:0')
    a.nop(1)
    a(f'v_readlane_b32 s{s_sum}, v{v}, 15')
    a(f'v_readlane_b32 s63, v{v}, 23')
    a(f's_add_u32 s{s_sum}, s{s_sum}, s63')

def monitor(a, cfg, S_K, V_ZERO, V_TMP):
    S_BASE, S_NOW, S_PREV, S_SUM, S_G, S_N = 56, 58, 59, 61, 62, 64
    U = 20 * 24
    if cfg.post: a(f's_sub_u32 s63, s{S_K}, 1\ns_cmp_gt_u32 s63, 1\ns_cbranch_scc1 L_A_monx')
    else: a(f's_cmp_lg_u32 s{S_K}, 1\ns_cbranch_scc1 L_A_monx')
    group_base(a, S_BASE)
    a(f's_mov_b32 s{S_N}, 0\ns_mov_b32 s{S_PREV}, 0')
    a(f's_lshr_b32 s62, s{S_H}, 3\ns_mul_i32 s62, s62, 6\ns_add_u32 s62, s62, s{S_R}\ns_lshl_b32 s62, s62, 2')
    a(f'v_mov_b32 v{V_TMP}, s62')
    a(f'v_lshlrev_b32 v{V_TMP+4}, 2, v{V_LANE}')
    if cfg.post:
        a('s_lshr_b32 s65, s62, 2')
        a(f's_cmp_eq_u32 s{S_K}, 1\ns_cbranch_scc1 L_A_mon')
        a('s_mov_b64 exec, 1')
        a(f's_mov_b32 s{S_PREV}, {-cfg.post}')
        a.label('L_A_post')
        a(f'ds_read_b32 v{V_TMP+1}, v{V_ZERO} offset:{L_PROG}')
        a('s_waitcnt lgkmcnt(0)')
        a(f'v_readfirstlane_b32 s{S_NOW}, v{V_TMP+1}')
        a(f'v_add_u32 v{V_TMP+2}, s{S_TAG}, v{V_TMP+1}')
        a(f's_sub_u32 s63, s{S_NOW}, s{S_PREV}\ns_cmp_lt_u32 s63, {cfg.post}\ns_cbranch_scc1 L_A_postn')
        a(f'global_store_dword v{V_TMP}, v{V_TMP+2}, s[{S_BASE}:{S_BASE+1}]')
        a(f's_mov_b32 s{S_PREV}, s{S_NOW}')
        a(f's_cmp_ge_u32 s{S_NOW}, {cfg.pend}\ns_cbranch_scc1 L_A_monx')
        a.label('L_A_postn')
        a(f's_sleep {cfg.psl}')
        a(f's_add_u32 s{S_N}, s{S_N}, 1\ns_cmp_lt_u32 s{S_N}, {1 << 16}\ns_cbranch_scc1 L_A_post')
        a('s_branch L_A_monx')
    a.label('L_A_mon')
    a('s_mov_b64 exec, 1')
    a(f'ds_read_b32 v{V_TMP+1}, v{V_ZERO} offset:{L_PROG}')
    a('s_waitcnt lgkmcnt(0)')
    a(f'v_add_u32 v{V_TMP+2}, s{S_TAG}, v{V_TMP+1}')
    a(f'v_readfirstlane_b32 s{S_NOW}, v{V_TMP+1}')
    if not cfg.post: a(f'global_store_dword v{V_TMP}, v{V_TMP+2}, s[{S_BASE}:{S_BASE+1}]')
    group_sum(a, S_BASE, V_TMP + 4, V_TMP + 5, S_SUM, S_G, own=(S_PREV, 65) if cfg.post else None)
    if cfg.post: a(f's_mul_i32 s63, s{S_PREV}, 24\ns_sub_u32 s{S_SUM}, s{S_SUM}, s63')
    else: a(f's_add_u32 s63, s{S_NOW}, s{S_PREV}\ns_mul_i32 s63, s63, 12\ns_sub_u32 s{S_SUM}, s{S_SUM}, s63')
    if cfg.mon > 1:
        a(f's_cmp_lt_u32 s{S_G}, 0x8000\ns_cselect_b32 s{S_G}, s{S_G}, 0x4000')
        a(f's_add_u32 s{S_SUM}, s{S_SUM}, s{S_G}\ns_sub_u32 s{S_SUM}, s{S_SUM}, 0x4000')
    a(f's_mov_b32 s63, {cfg.tha * U // 100}')
    a(f's_cmp_lt_u32 s{S_NOW}, {cfg.mp1}\ns_cselect_b32 s63, s63, {cfg.thb * U // 100}')
    a(f's_cmp_gt_i32 s{S_SUM}, s63\ns_cselect_b32 s63, 1, 0')
    a(f's_cmp_eq_u64 vcc, 0\ns_cselect_b32 s63, s63, {cfg.mdef}')
    if not cfg.tctl: a(f's_cmp_lt_u32 s{S_NOW}, {cfg.mend}\ns_cselect_b32 s63, s63, 1')
    a(f'v_mov_b32 v{V_TMP+3}, s63')
    a(f'ds_write_b32 v{V_ZERO}, v{V_TMP+3} offset:{L_CTL}')
    if cfg.lite: a(f's_add_u32 s98, s98, s63\ns_add_u32 s99, s99, 1')
    a(f's_mov_b32 s{S_PREV}, s{S_NOW}')
    a(f's_cmp_ge_u32 s{S_NOW}, {cfg.mend}\ns_cbranch_scc1 L_A_monx')
    if cfg.msl: a(f's_sleep {cfg.msl}')
    a(f's_add_u32 s{S_N}, s{S_N}, 1\ns_cmp_lt_u32 s{S_N}, 4096\ns_cbranch_scc1 L_A_mon')
    a.label('L_A_monx')
    a('s_mov_b64 exec, -1')

def exchange(a, cfg, tag, V, V_ZERO, L_STOP):
    if cfg.grot: return exchange_rot(a, cfg, tag, V, V_ZERO, L_STOP)
    S_BASE, S_PREV, S_SUM, S_G, S_N = 56, 59, 61, 62, 64
    group_base(a, S_BASE)
    a(f's_mov_b32 s{S_N}, 0\ns_mov_b32 s{S_PREV}, 0')
    a(f's_lshl_b32 s62, s{S_H}, 8\ns_add_u32 s62, s62, {WS_PROG + 0x1000:#x}')
    a(f'v_lshl_add_u32 v{V+4}, v{V_LANE}, 4, s62')
    a(f's_mov_b32 s62, {WS_PROG + 0x1000:#x}')
    a(f'v_lshl_add_u32 v{V+5}, v{V_LANE}, 8, s62')
    a(f'v_lshlrev_b32 v{V+6}, 2, v{V_LANE}')
    a(f'v_mov_b32 v{V+7}, 96')
    a.label(f'L_gm_{tag}')
    if cfg.gpar:
        a('s_mov_b64 exec, 0xff')
        a(f'global_load_dword v{V+9}, v{V+5}, s[{P_WS}:{P_WS+1}] sc1')
    group_sum(a, S_BASE, V + 6, V + 8, S_SUM, S_G)
    a('s_mov_b64 exec, 0xff')
    a(f's_cbranch_vccnz L_gm_{tag}_{"next" if L_STOP is not None else "x"}')
    a(f's_add_u32 s63, s{S_SUM}, s{S_TAG}')
    for k in range(4): a(f'v_mov_b32 v{V+k}, s63')
    a(f'global_store_dwordx4 v{V+4}, {vr(V,4)}, s[{P_WS}:{P_WS+1}] sc1')
    if not cfg.gpar: a(f'global_load_dword v{V+9}, v{V+5}, s[{P_WS}:{P_WS+1}] sc1')
    a(f's_mul_i32 s63, s{S_SUM}, {cfg.gmix}\ns_mul_i32 s65, s{S_PREV}, {8 - cfg.gmix}\ns_add_u32 s65, s65, s63')
    a(f's_cmp_eq_u32 s{S_PREV}, 0\ns_mov_b32 s{S_PREV}, s{S_SUM}')
    if not cfg.gpar: a('s_waitcnt vmcnt(0)')
    a(f's_cbranch_scc1 L_gm_{tag}_next')
    a(f'v_subrev_u32 v{V+9}, s{S_TAG}, v{V+9}')
    a(f'v_cmp_le_u32 vcc, 0x8000, v{V+9}')
    a('s_nop 0')
    for st in (1, 2, 4):
        if st > 1: a.nop(2)
        a(f'v_add_u32_dpp v{V+9}, v{V+9}, v{V+9} row_shr:{st} row_mask:0xf bank_mask:0xf bound_ctrl:0')
    a(f's_cbranch_vccnz L_gm_{tag}_next')
    a('s_nop 0')
    a(f'v_readlane_b32 s63, v{V+9}, 7')
    a(f's_sub_u32 s63, s63, s65\ns_ashr_i32 s63, s63, 3')
    if cfg.ggain != 100: a(f's_mul_i32 s63, s63, {cfg.ggain * 64 // 100}\ns_ashr_i32 s63, s63, 6')
    a(f's_add_u32 s63, s63, 0x4000\ns_add_u32 s63, s63, s{S_TAG}')
    a(f'v_mov_b32 v{V+10}, s63')
    a(f'global_store_dword v{V+7}, v{V+10}, s[{S_BASE}:{S_BASE+1}]')
    a.label(f'L_gm_{tag}_next')
    if L_STOP is not None:
        a(f'ds_read_b32 v{V+11}, v{V_ZERO} offset:{L_STOP}')
        a('s_waitcnt lgkmcnt(0)')
        a(f'v_readfirstlane_b32 s63, v{V+11}')
        a(f's_cmp_eq_u32 s63, s{S_TAG}\ns_cbranch_scc1 L_gm_{tag}_x')
    else: a(f's_cmp_ge_u32 s{S_SUM}, {24 * (cfg.mend - 20)}\ns_cbranch_scc1 L_gm_{tag}_x')
    if cfg.gsl: a(f's_sleep {cfg.gsl}')
    a(f's_add_u32 s{S_N}, s{S_N}, 1\ns_cmp_lt_u32 s{S_N}, {128 if cfg.gpar else 64}\ns_cbranch_scc1 L_gm_{tag}')
    a.label(f'L_gm_{tag}_x')
    a('s_mov_b64 exec, -1')

def exchange_rot(a, cfg, tag, V, V_ZERO, L_STOP):
    S_BASE, S_K, S_PREV, S_SUM, S_G, S_N = 56, 58, 59, 61, 62, 64
    VO, VX, VS, VA, VW, VP, VY, VM, VT = V + 4, V + 5, V + 6, V + 7, V + 8, V + 9, V + 10, V + 11, V + 12
    group_base(a, S_BASE)
    a(f's_mov_b32 s{S_N}, 0\ns_mov_b32 s{S_PREV}, 0\ns_mov_b32 s{S_K}, 0')
    a(f's_lshl_b32 s62, s{S_H}, 12\ns_add_u32 s62, s62, {WS_GLOB:#x}')
    a(f'v_lshl_add_u32 v{VO}, v{V_LANE}, 4, s62')
    a(f'v_lshrrev_b32 v{VX}, 2, v{V_LANE}')
    a(f's_mov_b32 s62, {WS_GLOB:#x}')
    a(f'v_lshl_add_u32 v{VX}, v{VX}, 12, s62')
    a(f'v_and_b32 v{VS}, 3, v{V_LANE}')
    a(f'v_lshlrev_b32 v{VW}, 2, v{V_LANE}')
    a(f'v_mov_b32 v{VM}, 0')
    a.label(f'L_gm_{tag}')
    a('s_mov_b32 exec_lo, -1\ns_mov_b32 exec_hi, 0')
    a(f'v_add_u32 v{VA}, s{S_K}, v{VS}')
    a(f'v_and_b32 v{VA}, 15, v{VA}')
    a(f'v_lshl_add_u32 v{VA}, v{VA}, 8, v{VX}')
    a(f'global_load_dword v{VY}, v{VA}, s[{P_WS}:{P_WS+1}] sc1')
    group_sum(a, S_BASE, VW, VP, S_SUM, S_G)
    a('s_mov_b64 exec, 0xff')
    a(f's_cbranch_vccnz L_gm_{tag}_{"next" if L_STOP is not None else "x"}')
    a(f's_add_u32 s63, s{S_SUM}, s{S_TAG}')
    for k in range(4): a(f'v_mov_b32 v{V+k}, s63')
    a(f's_lshr_b32 s{S_K}, s{S_SUM}, {cfg.grot}\ns_and_b32 s63, s{S_K}, 15\ns_lshl_b32 s63, s63, 8')
    a(f'v_add_u32 v{VA}, s63, v{VO}')
    a(f's_sub_u32 s{S_K}, s{S_K}, {cfg.gback}')
    a(f'global_store_dwordx4 v{VA}, {vr(V,4)}, s[{P_WS}:{P_WS+1}] sc1')
    a(f's_mul_i32 s63, s{S_SUM}, {cfg.gmix}\ns_mul_i32 s65, s{S_PREV}, {8 - cfg.gmix}\ns_add_u32 s65, s65, s63')
    a(f's_cmp_eq_u32 s{S_PREV}, 0\ns_mov_b32 s{S_PREV}, s{S_SUM}')
    a(f's_cbranch_scc1 L_gm_{tag}_next')
    a('s_mov_b32 exec_lo, -1')
    a(f'v_subrev_u32 v{VY}, s{S_TAG}, v{VY}')
    a(f'v_cmp_gt_u32 vcc, 0x8000, v{VY}')
    a.nop(2)
    a(f'v_cndmask_b32 v{VY}, 0, v{VY}, vcc')
    a(f'v_max_u32 v{VM}, v{VM}, v{VY}')
    for qp in ('[1,0,3,2]', '[2,3,0,1]'):
        a.nop(2)
        a(f'v_max_u32_dpp v{VM}, v{VM}, v{VM} quad_perm:{qp} row_mask:0xf bank_mask:0xf')
    a(f'v_cmp_eq_u32 vcc, 0, v{VM}')
    a.nop(1)
    a(f'v_add_u32_dpp v{VY}, v{VM}, v{VM} row_shr:4 row_mask:0xf bank_mask:0xf bound_ctrl:0')
    a.nop(2)
    a(f'v_add_u32_dpp v{VY}, v{VY}, v{VY} row_shr:8 row_mask:0xf bank_mask:0xf bound_ctrl:0')
    a(f's_cbranch_vccnz L_gm_{tag}_next')
    a('s_nop 0')
    a(f'v_readlane_b32 s63, v{VY}, 15')
    a(f'v_readlane_b32 s62, v{VY}, 31')
    a('s_add_u32 s63, s63, s62')
    a(f's_sub_u32 s63, s63, s65\ns_ashr_i32 s63, s63, 3')
    if cfg.ggain != 100: a(f's_mul_i32 s63, s63, {cfg.ggain * 64 // 100}\ns_ashr_i32 s63, s63, 6')
    a(f's_add_u32 s63, s63, 0x4000\ns_add_u32 s63, s63, s{S_TAG}')
    a('s_mov_b64 exec, 0x1000000')
    a(f'v_mov_b32 v{VT}, s63')
    a(f'global_store_dword v{VW}, v{VT}, s[{S_BASE}:{S_BASE+1}]')
    a.label(f'L_gm_{tag}_next')
    if L_STOP is not None:
        a(f'ds_read_b32 v{VP}, v{V_ZERO} offset:{L_STOP}')
        a('s_waitcnt lgkmcnt(0)')
        a(f'v_readfirstlane_b32 s63, v{VP}')
        a(f's_cmp_eq_u32 s63, s{S_TAG}\ns_cbranch_scc1 L_gm_{tag}_x')
    else: a(f's_cmp_ge_u32 s{S_SUM}, {24 * (cfg.mend - 20)}\ns_cbranch_scc1 L_gm_{tag}_x')
    if cfg.gsl: a(f's_sleep {cfg.gsl}')
    a(f's_add_u32 s{S_N}, s{S_N}, 1\ns_cmp_lt_u32 s{S_N}, 128\ns_cbranch_scc1 L_gm_{tag}')
    a.label(f'L_gm_{tag}_x')
    a('s_mov_b64 exec, -1')

def assist(a, cfg, tag, V, V_ZERO, L_STOP):
    S_BASE, S_SUM, S_G, S_N, SRD = 56, 61, 62, 64, 68
    VA, VP, VU, VK, VL, V0, V1, VD, VT = range(V, V + 9)
    U = 20 * 24
    group_base(a, S_BASE)
    a(f's_lshl_b32 s62, s{S_H}, 21')
    a(f's_sub_u32 s63, {128 << 20:#x}, s62')
    srd(a, SRD, P_AK, off_s=62, nrec_s=63)
    srd(a, SRD + 4, P_AV, off_s=62, nrec_s=63)
    a(f's_mov_b64 s[{SRD+8}:{SRD+9}], s[{SRD}:{SRD+1}]\ns_mov_b64 s[{SRD+10}:{SRD+11}], s[{SRD+2}:{SRD+3}]')
    a(f's_lshr_b32 s62, s{S_H}, 3\ns_mul_i32 s62, s62, 6\ns_sub_u32 s62, s62, 32')
    a(f'v_add_u32 v{VT}, s62, v{V_LANE}')
    a(f'v_cmp_gt_u32 vcc, 32, v{V_LANE}')
    a(f'v_lshlrev_b32 v{V0}, 7, v{V_LANE}')
    a(f'v_add_u32 v{V1}, {64 << 20:#x}, v{V0}')
    a(f'v_cndmask_b32 v{VA}, v{VT}, v{V_LANE}, vcc')
    a(f'v_lshlrev_b32 v{VA}, 2, v{VA}')
    if cfg.lite: a('s_mov_b32 s98, 0')
    a(f'v_mov_b32 v{VL}, 0')
    a(f's_mov_b32 s{S_N}, 0')
    a.label(f'L_as_{tag}')
    group_sum(a, S_BASE, VA, VP, S_SUM, S_G, six=True)
    a(f's_cbranch_vccnz L_as_{tag}_{"idle" if L_STOP is not None else "x"}')
    if L_STOP is None: a(f's_cmp_ge_u32 s{S_SUM}, {24 * (cfg.pend - 8)}\ns_cbranch_scc1 L_as_{tag}_x')
    if cfg.ag:
        a(f's_cmp_lt_u32 s{S_G}, 0x8000\ns_cselect_b32 s{S_G}, s{S_G}, 0x4000')
        a(f's_add_u32 s{S_SUM}, s{S_SUM}, s{S_G}\ns_sub_u32 s{S_SUM}, s{S_SUM}, {0x4000 + cfg.ath * U // 100}')
    else: a(f's_sub_u32 s{S_SUM}, s{S_SUM}, {cfg.ath * U // 100}')
    a('s_mov_b32 exec_lo, 0\ns_mov_b32 exec_hi, 0x3f')
    a(f'v_cmp_gt_u32 vcc, {328 - cfg.lead}, v{VP}')
    a(f'v_add_u32 v{VU}, {cfg.lead + 8}, v{VP}')
    a('s_nop 0')
    a(f'v_cndmask_b32 v{VT}, 0, 8, vcc')
    a(f'v_add_u32 v{VU}, v{VU}, v{VT}')
    a(f'v_lshrrev_b32 v{VU}, 4, v{VU}')
    a(f'v_sub_u32 v{VT}, v{VU}, v{VL}')
    a(f'v_cmp_gt_i32 vcc, {cfg.acs}, v{VT}')
    a(f'v_cmp_le_i32 s[66:67], {cfg.agap}, v{VT}')
    a('s_nop 0')
    a(f'v_cndmask_b32 v{VK}, 0, {cfg.acr}, vcc')
    a(f'v_cmp_ge_u32 vcc, 41, v{VU}')
    a(f'v_add_u32 v{VK}, v{VK}, v{VP}')
    a(f'v_lshl_add_u32 v{VK}, v{VK}, 6, v{V_LANE}')
    a('s_and_b64 vcc, vcc, s[66:67]')
    a(f'v_cndmask_b32 v{VK}, -1, v{VK}, vcc')
    for st in (1, 2, 4):
        a.nop(2)
        a(f'v_min_u32_dpp v{VK}, v{VK}, v{VK} row_shr:{st} row_mask:0xf bank_mask:0xf')
    a.nop(1)
    a(f'v_readlane_b32 s63, v{VK}, 37')
    a('s_lshr_b32 s65, s63, 6\ns_and_b32 s63, s63, 63\ns_mul_i32 s65, s65, 24')
    a(f's_cmp_ge_i32 s65, s{S_SUM}\ns_cbranch_scc1 L_as_{tag}_idle')
    a(f'v_readlane_b32 s65, v{VU}, s63')
    a(f's_mov_b32 m0, s63')
    a('s_mov_b64 exec, -1')
    a('s_cmp_lt_u32 s65, 21')
    a(f's_cselect_b64 s[{SRD+8}:{SRD+9}], s[{SRD}:{SRD+1}], s[{SRD+4}:{SRD+5}]')
    a(f'v_writelane_b32 v{VL}, s65, m0')
    a('s_cselect_b32 s66, 0, 21\ns_sub_u32 s65, s65, s66')
    a(f's_mul_i32 s65, s65, {STEP:#x}\ns_and_b32 s63, s63, 7\ns_lshl_b32 s63, s63, 14\ns_add_u32 s65, s65, s63')
    a('s_add_u32 s66, s65, 0x2000')
    for v in (V0, V1):
        for so in (65, 66): a(f'buffer_load_dword v{VD}, v{v}, s[{SRD+8}:{SRD+11}], s{so} offen {cfg.apol.replace("+", " ")}')
    if cfg.lite: a('s_add_u32 s98, s98, 1')
    if cfg.await_: a(f's_waitcnt vmcnt({4 - cfg.await_})')
    a(f's_branch L_as_{tag}_next')
    a.label(f'L_as_{tag}_idle')
    if cfg.asl: a(f's_sleep {cfg.asl}')
    a.label(f'L_as_{tag}_next')
    if L_STOP is not None:
        a('s_mov_b64 exec, 1')
        a(f'ds_read_b32 v{VT}, v{V_ZERO} offset:{L_STOP}')
        a('s_waitcnt lgkmcnt(0)')
        a(f'v_readfirstlane_b32 s63, v{VT}')
        a(f's_cmp_eq_u32 s63, s{S_TAG}\ns_cbranch_scc1 L_as_{tag}_x')
    a(f's_add_u32 s{S_N}, s{S_N}, 1\ns_cmp_lt_u32 s{S_N}, 96\ns_cbranch_scc1 L_as_{tag}')
    a.label(f'L_as_{tag}_x')
    if cfg.lite:
        a(f's_lshl_b32 s92, s2, 9\ns_add_u32 s92, s92, {WS_STAMP + 6*64:#x}')
        a('s_mov_b64 exec, 1')
        a(f'v_mov_b32 v250, s92\nv_mov_b32 v252, s98\nv_mov_b32 v253, s{S_N}')
        a(f'global_store_dwordx2 v250, v[252:253], s[{P_WS}:{P_WS+1}] nt')
    a('s_mov_b64 exec, -1')
    a('s_waitcnt vmcnt(0)')

def helper(a, cfg):
    SRD_W, SRD_X = 40, 44
    S_K, S_ROT, S_P = 35, 36, 37
    V_ZERO, V_OFF, V_T0, V_T1 = 8, 9, 10, 11
    V_X = 12
    V_A = 28
    V_Y = 36
    V_TMP = 44
    V_W = 56
    V_B = V_W + 128
    assert V_B + 64 <= 249
    a(f's_sub_u32 s{S_K}, s{S_W}, 4')
    qc = cfg.tag and cfg.qc
    if cfg.lite and cfg.mon: a('s_mov_b32 s98, 0\ns_mov_b32 s99, 0')
    a(f's_lshl_b32 s{S_P}, s{S_H}, 3\ns_add_u32 s{S_P}, s{S_P}, s{S_R}')
    def clear_rows():
        a(f's_cmp_lg_u32 s{S_K}, 0\ns_cbranch_scc1 L_A_noclr')
        a(f's_lshl_b32 s63, s{S_P}, 10\ns_add_u32 s63, s63, {WS_YA:#x}')
        a(f'v_lshl_add_u32 v{V_T0}, v{V_LANE}, 4, s63')
        a(f'v_add_u32 v{V_T1}, {1 << 18:#x}, v{V_T0}')
        for k in range(4): a(f'v_mov_b32 v{V_TMP+k}, -1')
        a(f'global_store_dwordx4 v{V_T0}, {vr(V_TMP,4)}, s[{P_WS}:{P_WS+1}] sc1')
        a(f'global_store_dwordx4 v{V_T1}, {vr(V_TMP,4)}, s[{P_WS}:{P_WS+1}] sc1')
        a.label('L_A_noclr')
    def wo_setup():
        a(f's_lshl_b32 s62, s{S_H}, 17')
        a(f's_mov_b32 s63, {128*1024:#x}')
        srd(a, SRD_W, P_AWO, off_s=62, nrec_s=63)
        a(f'v_lshlrev_b32 v{V_OFF}, 13, v{V_G}')
        a(f'v_lshl_add_u32 v{V_OFF}, v{V_C}, 4, v{V_OFF}')
        a(f's_lshl_b32 s62, s{S_K}, 8')
        a(f'v_add_u32 v{V_OFF}, s62, v{V_OFF}')
    Lo = cfg.Lo
    assert Lo <= 8
    def wo_load(n):
        s, e = n // 8, n % 8
        if e % 4 == 0: a(f's_mov_b32 s61, {s*32768 + e*1024}')
        if not cfg.nowo: a(f'buffer_load_dwordx4 {vr(V_B + 32*(s&1) + 4*e,4)}, v{V_OFF}, s[{SRD_W}:{SRD_W+3}], s61 offen offset:{(e%4)*1024} {cfg.wopol}')
    if cfg.tag and cfg.clr0 and not cfg.noclr: clear_rows()
    if qc:
        wo_setup()
        if not cfg.wlate:
            for n in range(Lo): wo_load(n)
    else:
        srd(a, SRD_X, P_AX, nrec=2048)
        a(f's_lshl_b32 s62, s{S_H}, 8')
        a(f's_sub_u32 s63, {512*8192:#x}, s62')
        srd(a, SRD_W, P_AWQ, off_s=62, nrec_s=63)
        if cfg.rot: a(f's_and_b32 s{S_ROT}, s{S_R}, 3')
        else: a(f's_mov_b32 s{S_ROT}, 0')
        a(f'v_lshrrev_b32 v{V_T0}, 3, v{V_C}')
        a(f'v_lshlrev_b32 v{V_T0}, 10, v{V_T0}')
        a(f'v_lshl_add_u32 v{V_T0}, v{V_G}, 6, v{V_T0}')
        a(f's_lshl_b32 s62, s{S_K}, 8')
        a(f'v_add_u32 v{V_T0}, s62, v{V_T0}')
        a(f'v_lshlrev_b32 v{V_OFF}, 18, v{V_G}')
        a(f'v_lshl_add_u32 v{V_OFF}, v{V_C}, 4, v{V_OFF}')
        a(f's_lshl_b32 s62, s{S_K}, 20')
        a(f'v_add_u32 v{V_OFF}, s62, v{V_OFF}')
        for i in range(4):
            a(f's_add_u32 s62, s{S_ROT}, {i}\ns_and_b32 s62, s62, 3\ns_lshl_b32 s62, s62, 4')
            a(f'v_add_u32 v{V_T1}, s62, v{V_T0}')
            a(f'buffer_load_dwordx4 {vr(V_X+4*i,4)}, v{V_T1}, s[{SRD_X}:{SRD_X+3}], 0 offen')
        def wq_load(s):
            if s % 8 == 0: a(f's_add_u32 s61, s{S_ROT}, {s//8}\ns_and_b32 s61, s61, 3\ns_lshl_b32 s61, s61, 16')
            else: a(f's_add_u32 s61, s61, 0x2000')
            if not cfg.nowq: a(f'buffer_load_dwordx4 {vr(V_W+4*s,4)}, v{V_OFF}, s[{SRD_W}:{SRD_W+3}], s61 offen {cfg.wqpol}')
        Lq = cfg.Lq
        for s in range(Lq): wq_load(s)
    a(f'v_mov_b32 v{V_ZERO}, 0')
    a(f'v_mov_b32 v{V_T1}, 0')
    a(f'ds_write_b32 v{V_ZERO}, v{V_ZERO} offset:{L_FLAGQ}')
    a(f'ds_write_b32 v{V_ZERO}, v{V_ZERO} offset:{L_FLAGS}')
    if cfg.mon:
        a(f'ds_write_b32 v{V_ZERO}, v{V_ZERO} offset:{L_CTL}')
        a(f'ds_write_b32 v{V_ZERO}, v{V_ZERO} offset:{L_PROG}')
    a('s_waitcnt lgkmcnt(0)\ns_barrier')
    if cfg.tag: load_tag(a)
    if qc and cfg.wlate:
        for n in range(Lo): wo_load(n)
    if not qc:
        a('s_mov_b32 s66, 0x01000100\ns_mov_b32 s67, 0x03020302')
        for s in range(32):
            A = V_A + 4 * (s & 1)
            a(f's_waitcnt vmcnt({min(Lq - 1, 31 - s)})')
            if s + Lq < 32: wq_load(s + Lq)
            a(f'v_perm_b32 v{V_T0}, v{V_X + s//2}, v{V_X + s//2}, s{66 + (s & 1)}')
            for i in range(4): a(f'v_and_b32 v{A+i}, v{V_T0}, v{V_MASK+i}')
            a('s_nop 1')
            acc = V_Y + 4 * (s & 1)
            c = '0' if s < 2 else vr(acc, 4)
            a(f'v_mfma_f32_16x16x32_bf16 {vr(acc,4)}, {vr(A,4)}, {vr(V_W+4*s,4)}, {c}')
        wo_setup()
        a(f'v_lshrrev_b32 v{V_T0}, 1, v{V_G}')
        a(f'v_lshlrev_b32 v{V_T0}, 9, v{V_T0}')
        a(f'v_lshl_add_u32 v{V_T0}, v{V_C}, 5, v{V_T0}')
        a(f'v_and_b32 v{V_T1}, 1, v{V_G}')
        a(f'v_lshl_add_u32 v{V_T0}, v{V_T1}, 4, v{V_T0}')
        a(f's_lshl_b32 s63, s{S_K}, 10')
        a(f'v_add_u32 v{V_T0}, s63, v{V_T0}')
        a(f'v_mov_b32 v{V_T1}, 1')
        for k in range(4): a(f'v_add_f32 v{V_Y+k}, v{V_Y+k}, v{V_Y+4+k}')
        a(f'ds_write_b128 v{V_T0}, {vr(V_Y,4)} offset:{L_QP}')
        a('s_mov_b64 exec, 1')
        a(f'ds_add_u32 v{V_ZERO}, v{V_T1} offset:{L_FLAGQ}')
        a('s_mov_b64 exec, -1')
        stamp(a, cfg, 1)
        for n in range(Lo): wo_load(n)
    a('s_mov_b32 s66, 0x05040100\ns_mov_b32 s67, 0x07060302')
    S_QOK = 38
    tries = [int(t) for t in cfg.qtry.split(',') if t] if qc else []
    def q_to_lds():
        a(f'v_mov_b32 v{V_TMP+1}, v{V_TMP+2}')
        a(f'v_mov_b32 v{V_TMP+2}, 1')
        a(f'ds_write_b64 v{V_T1}, {vr(V_TMP,2)} offset:{L_QP}')
        a(f'ds_write_b32 v{V_ZERO}, v{V_TMP+2} offset:{L_FLAGQ}')
        stamp(a, cfg, 1)
    if qc:
        srd(a, SRD_X, P_WS, nrec=0x1000000)
        a(f's_lshl_b32 s63, s{S_H}, 10\ns_add_u32 s63, s63, {WS_QA:#x}')
        a(f'v_lshl_add_u32 v{V_T0}, v{V_LANE}, 4, s63')
        a(f'v_lshlrev_b32 v{V_T1}, 3, v{V_LANE}')
        a(f's_mov_b32 s{S_QOK}, s{S_K}')
    if cfg.tag: get_tag(a)
    for n in range(32):
        a(f's_waitcnt vmcnt({min(Lo - 1, 31 - n)})')
        if n - Lo in tries:
            a(f's_cmp_lg_u32 s{S_QOK}, 0\ns_cbranch_scc1 L_A_qc{n}')
            a(f'v_cmp_ne_u32 s[62:63], s{S_TAG}, v{V_TMP+1}')
            a(f'v_cmp_ne_u32 vcc, s{S_TAG}, v{V_TMP+3}')
            a('s_nop 1')
            a(f's_or_b64 vcc, vcc, s[62:63]\ns_cbranch_scc1 L_A_qc{n}')
            a(f's_mov_b32 s{S_QOK}, 1')
            q_to_lds()
            a.label(f'L_A_qc{n}')
        if n in tries:
            assert n + 2 * Lo <= 32 and all(abs(n - t) >= Lo for t in tries if t != n)
            a(f's_cmp_lg_u32 s{S_QOK}, 0\ns_cbranch_scc1 L_A_qt{n}')
            a(f'buffer_load_dwordx4 {vr(V_TMP,4)}, v{V_T0}, s[{SRD_X}:{SRD_X+3}], 0 offen sc1')
            a.label(f'L_A_qt{n}')
        if n + Lo < 32: wo_load(n + Lo)
        if n % 2:
            s, e = n // 8, n % 8
            lo, hi = V_B + 32*(s&1) + 4*(e-1), V_B + 32*(s&1) + 4*e
            for cb in range(8):
                a(f'v_perm_b32 v{V_W + 32*s + 4*cb + e//2}, v{hi + cb//2}, v{lo + cb//2}, s{66 + (cb & 1)}')
    if cfg.apf:
        a(f's_lshl_b32 s62, s{S_H}, 19\ns_add_u32 s62, s62, {(8 - cfg.apf) << 16:#x}')
        a(f's_mov_b32 s63, {cfg.apf << 16:#x}')
        srd(a, SRD_W, P_BC, off_s=62, nrec_s=63)
        a(f's_lshl_b32 s62, s{S_R}, 2\ns_add_u32 s62, s62, s{S_K}\ns_lshl_b32 s62, s62, 10')
        a(f'v_lshl_add_u32 v{V_OFF}, v{V_LANE}, 4, s62')
        for i in range((cfg.apf * 64 + 23) // 24):
            a(f's_waitcnt vmcnt({cfg.Lp - 1})')
            a(f's_mov_b32 s61, {i * 24 * 1024}')
            a(f'buffer_load_dwordx4 {vr(V_B + 4*(i%8),4)}, v{V_OFF}, s[{SRD_W}:{SRD_W+3}], s61 offen')
        a('s_waitcnt vmcnt(0)')
    if cfg.fine: stamp(a, cfg, 4)
    a(f's_mov_b32 s60, s{S_P}')
    a(f's_cmp_lg_u32 s{S_K}, 0\ns_cbranch_scc1 L_A_nostat')
    if qc:
        a(f's_cmp_lg_u32 s{S_QOK}, 0\ns_cbranch_scc1 L_A_qdone')
        if 'C' in cfg.roles: tag_poll(a, 'Aq', V_TMP, V_T0, SRD_X, cfg.qsleep)
        q_to_lds()
        a.label('L_A_qdone')
    if cfg.tag and not cfg.clr0:
        clear_rows()
    lds_spin(a, 'A_hs', V_T0, V_ZERO, L_FLAGS, 4, 16)
    if cfg.tag: a('s_waitcnt vmcnt(0)')
    elif 'W' in cfg.roles: poll(a, CNT_Q, 32, V_T0, V_ZERO, 'A_q')
    a(f'v_and_b32 v{V_T0}, 1, v{V_LANE}')
    a(f'v_lshlrev_b32 v{V_T1}, 4, v{V_T0}')
    m, l = V_TMP, V_TMP + 4
    a(f'ds_read_b128 {vr(m,4)}, v{V_T1} offset:{L_STAT}')
    a(f'ds_read_b128 {vr(l,4)}, v{V_T1} offset:{L_STAT + 32}')
    a(f'v_lshlrev_b32 v{V_T0}, {12 if cfg.tag else 11}, v{V_T0}')
    a(f's_lshl_b32 s63, s60, {4 if cfg.tag else 3}\ns_add_u32 s63, s63, {WS_YSTAT:#x}')
    a(f'v_add_u32 v{V_T0}, s63, v{V_T0}')
    if 'y' in cfg.fl:
        a(f's_lshl_b32 s63, s60, 7\ns_add_u32 s63, s63, {WS_YST2:#x}')
        a(f'v_lshl_add_u32 v{V_T0}, v{V_LANE}, 4, s63')
    a('s_waitcnt lgkmcnt(0)')
    M, L = V_TMP + 8, V_TMP + (10 if cfg.tag else 9)
    a(f'v_max3_f32 v{M}, v{m}, v{m+1}, v{m+2}')
    a(f'v_max_f32 v{M}, v{M}, v{m+3}')
    for k in range(4): a(f'v_sub_f32 v{m+k}, v{m+k}, v{M}')
    for k in range(4): a(f'v_exp_f32 v{m+k}, v{m+k}')
    a('s_nop 0')
    a(f'v_mul_f32 v{L}, v{m}, v{l}')
    for k in range(1, 4): a(f'v_fma_f32 v{L}, v{m+k}, v{l+k}, v{L}')
    if cfg.tag:
        a(f'v_mov_b32 v{M+1}, s{S_TAG}\nv_mov_b32 v{M+3}, s{S_TAG}')
        a(f's_mov_b64 exec, {0xff if "y" in cfg.fl else 3}')
        a(f'global_store_dwordx4 v{V_T0}, {vr(M,4)}, s[{P_WS}:{P_WS+1}] sc1')
    else:
        a(f'v_min_u32 v{M}, 0xfffffffe, v{M}')
        a(f'v_min_u32 v{L}, 0xfffffffe, v{L}')
        a('s_mov_b64 exec, 3')
        a(f'global_store_dwordx2 v{V_T0}, {vr(M,2)}, s[{P_WS}:{P_WS+1}] sc1')
    a('s_mov_b64 exec, -1')
    a.label('L_A_nostat')
    if cfg.mon: monitor(a, cfg, S_K, V_ZERO, V_TMP)
    a(f'v_and_b32 v{V_T0}, 7, v{V_C}')
    a(f'v_mul_u32_u24 v{V_T0}, {OB_RS}, v{V_T0}')
    a(f'v_lshl_add_u32 v{V_T0}, v{V_G}, 4, v{V_T0}')
    a(f'v_lshlrev_b32 v{V_T1}, 18, v{V_G}')
    a(f'v_lshl_add_u32 v{V_T1}, v{V_C}, 4, v{V_T1}')
    a(f's_lshl_b32 s63, s60, 10\ns_lshl_b32 s62, s{S_K}, 8\ns_add_u32 s63, s63, s62\ns_add_u32 s63, s63, {WS_YA:#x}')
    a(f'v_add_u32 v{V_T1}, s63, v{V_T1}')
    if cfg.fine: stamp(a, cfg, 5)
    a('s_barrier')
    for s in range(4): a(f'ds_read_b128 {vr(V_X+4*s,4)}, v{V_T0} offset:{L_OB + 64*s}')
    def red(cb):
        d = V_B + 4 * cb
        a(f'v_add_f32 v{d}, v{d}, v{d+1}')
        a(f'v_add_f32 v{d+2}, v{d+2}, v{d+3}')
        a(f'v_add_f32 v{d}, v{d}, v{d+2}')
    def pack(cp):
        a(f'v_cvt_pk_bf16_f32 v{V_Y+cp}, v{V_B + 8*cp}, v{V_B + 8*cp + 4}')
        a(f'v_min_u32 v{V_Y+cp}, 0xfffffffe, v{V_Y+cp}')
    for cp in range(4):
        for s in range(4):
            if cp == 0: a(f's_waitcnt lgkmcnt({3-s})')
            for cb in (2*cp, 2*cp + 1):
                d = V_B + 4 * cb
                c = '0' if s == 0 else vr(d, 4)
                a(f'v_mfma_f32_16x16x32_bf16 {vr(d,4)}, {vr(V_X+4*s,4)}, {vr(V_W + 32*s + 4*cb,4)}, {c}')
        if cp > 0: red(2*cp - 2); red(2*cp - 1); pack(cp - 1)
    a.nop(1)
    red(6); red(7); pack(3)
    a('s_mov_b32 exec_hi, 0')
    a(f'global_store_dwordx4 v{V_T1}, {vr(V_Y,4)}, s[{P_WS}:{P_WS+1}] sc1')
    stamp(a, cfg, 3)
    if cfg.aend: span_mark(a, cfg, True, 4)
    lite_end(a, cfg, 4, 3)
    if cfg.lite and cfg.mon:
        a(f's_cmp_lg_u32 s{S_W}, 5\ns_cbranch_scc1 L_A_nomst')
        a(f's_lshl_b32 s92, s2, 9\ns_add_u32 s92, s92, {WS_STAMP + 6*64:#x}')
        a('v_mov_b32 v250, s92\nv_mov_b32 v252, s98\nv_mov_b32 v253, s99')
        a('s_mov_b64 exec, 1')
        a(f'global_store_dwordx2 v250, v[252:253], s[{P_WS}:{P_WS+1}] nt')
        a.label('L_A_nomst')
    a('s_endpgm')
```

```python
from asmlib import vr, sr
import gen as G
from gen import *
import role_a4

def col_finish(a, ACC, tmp, L_RED, nw, out_col, tag):
    for k in range(4):
        pass
    a.nop(2)
    for k in range(4):
        a(f'v_add_f32_dpp v{ACC+k}, v{ACC+k}, v{ACC+k} row_ror:8 row_mask:0xf bank_mask:0xf')
    for st in (16, 32):
        for k in range(4):
            a(f'v_mov_b32 v{tmp+k}, v{ACC+k}')
        a.nop(2)
        for k in range(4):
            a(f'v_permlane{st}_swap_b32 v{ACC+k}, v{tmp+k}')
        a.nop(1)
        for k in range(4):
            a(f'v_add_f32 v{ACC+k}, v{ACC+k}, v{tmp+k}')
    a(f'v_lshlrev_b32 v{tmp}, 4, v{V_LANE}')
    a(f's_lshl_b32 s63, s{S_W}, 7')
    a(f'v_add_u32 v{tmp}, s63, v{tmp}')
    a('s_mov_b64 exec, 0xff')
    a(f'ds_write_b128 v{tmp}, {vr(ACC,4)} offset:{L_RED}')
    a('s_mov_b64 exec, -1')
    a('s_waitcnt lgkmcnt(0)\ns_barrier')
    a(f's_cmp_lg_u32 s{S_W}, 0\ns_cbranch_scc1 L_{tag}_fin')
    a(f'v_lshlrev_b32 v{tmp}, 2, v{V_LANE}')
    a('s_mov_b32 exec_hi, 0')
    for w in range(nw):
        a(f'ds_read_b32 v{tmp+1+w}, v{tmp} offset:{L_RED + 128*w}')
    a('s_waitcnt lgkmcnt(0)')
    for w in range(1, nw):
        a(f'v_add_f32 v{tmp+1}, v{tmp+1}, v{tmp+1+w}')
    a(f'v_cvt_pk_bf16_f32 v{tmp+1}, v{tmp+1}, v{tmp+1}')
    a(f's_lshr_b32 s62, s{S_H}, 4\ns_lshl_b32 s62, s62, 11')
    a(f's_and_b32 s63, s{S_H}, 15\ns_lshl_b32 s63, s63, 6')
    a(f's_add_u32 s62, s62, s63\ns_add_u32 s62, s62, {out_col*2}')
    a(f'v_lshl_add_u32 v{tmp}, v{V_LANE}, 1, s62')
    a(f'global_store_short v{tmp}, v{tmp+1}, s[{P_OUT}:{P_OUT+1}]')
    a('s_mov_b64 exec, -1')
    a.label(f'L_{tag}_fin')

def role_W(a, cfg):
    L_QP, L_QB, L_CT, L_RED, L_YB = 0, 8192, 9216, 17408, 18432
    L_CC = L_YB
    SRD_0, SRD_1, SRD_X, SRD_WS = 40, 44, 48, 52
    V_ZERO, V_OFF0, V_OFF1 = 8, 9, 10
    V_X, V_Q, V_A, V_Y, V_T = 12, 20, 28, 44, 60
    V_W0, V_W1, V_TMP = 64, 128, 192
    a.label('L_roleW')
    stamp(a, cfg, 0)
    if cfg.tag: load_tag(a)
    a(f'v_mov_b32 v{V_ZERO}, 0')
    srd(a, SRD_WS, P_WS, nrec=0x1000000)
    V_NONCE = 11
    use_nonce = cfg.qmode == 'dist'
    if use_nonce:
        a(f'v_mov_b32 v{V_TMP}, {WS_NONCE:#x}')
        a(f'buffer_load_dword v{V_NONCE}, v{V_TMP}, s[{SRD_WS}:{SRD_WS+3}], 0 offen')
    a(f's_lshl_b32 s60, s{S_H}, 8')
    a(f's_sub_u32 s61, {512*8192:#x}, s60')
    srd(a, SRD_0, P_BWQ, off_s=60, nrec_s=61)
    srd(a, SRD_1, P_BWUK, off_s=60, nrec_s=61)
    srd(a, SRD_X, P_BX, nrec=2048)
    a(f'v_lshrrev_b32 v{V_TMP}, 3, v{V_C}')
    a(f'v_lshlrev_b32 v{V_TMP}, 10, v{V_TMP}')
    a(f'v_lshl_add_u32 v{V_TMP}, v{V_G}, 5, v{V_TMP}')
    a(f's_lshl_b32 s62, s{S_W}, 7')
    a(f'v_add_u32 v{V_TMP}, s62, v{V_TMP}')
    a(f'buffer_load_dwordx4 {vr(V_X,4)}, v{V_TMP}, s[{SRD_X}:{SRD_X+3}], 0 offen')
    a(f'buffer_load_dwordx4 {vr(V_X+4,4)}, v{V_TMP}, s[{SRD_X}:{SRD_X+3}], 0 offen offset:16')
    rows_voff(a, V_OFF0)
    slice_loads(a, SRD_0, V_OFF0, V_W0, cfg.bpol, 'rows', cfg.wthr0)
    if cfg.ctl:
        a(f'ds_write_b32 v{V_ZERO}, v{V_ZERO} offset:9000')
        a('s_waitcnt lgkmcnt(0)')
    a('s_barrier')
    a('s_waitcnt vmcnt(16)')
    def wuk_load(s_):
        if cfg.wthr1: a(f's_waitcnt vmcnt({cfg.wthr1 - 1})')
        a(f's_mov_b32 s62, {s_*(256 if cfg.fake else 8192)}')
        a(f'buffer_load_dwordx4 {vr(V_W1+4*s_,4)}, v{V_OFF0}, s[{SRD_1}:{SRD_1+3}], s62 offen {cfg.bpol}')
    rowcomb(a, cfg, V_X, V_W0, V_Y, V_A, V_TMP, 0, after=wuk_load)
    if not cfg.tag:
        for k in range(4): a(f'v_mov_b32 v{V_TMP+4+k}, -1')
        a(f's_cmp_ge_u32 s{S_W}, {0 if cfg.noclr else 6}\ns_cbranch_scc1 L_W_noclr')
        a(f's_lshl_b32 s62, s{S_H}, 13\ns_add_u32 s62, s62, {WS_YA:#x}')
        a(f'v_lshl_add_u32 v{V_TMP}, v0, 4, s62')
        a(f's_mov_b32 s62, {1 << 18:#x}')
        a(f'buffer_store_dwordx4 {vr(V_TMP+4,4)}, v{V_TMP}, s[{SRD_WS}:{SRD_WS+3}], 0 offen sc1')
        a(f'buffer_store_dwordx4 {vr(V_TMP+4,4)}, v{V_TMP}, s[{SRD_WS}:{SRD_WS+3}], s62 offen sc1')
        a.label('L_W_noclr')
        if cfg.ybs:
            a(f's_cmp_lt_u32 s{S_W}, 4\ns_cbranch_scc1 L_W_noybc')
            a(f'v_bfe_u32 v{V_TMP}, v0, 7, 1')
            a(f'v_lshlrev_b32 v{V_TMP}, 16, v{V_TMP}')
            a(f'v_and_b32 v{V_TMP+1}, 127, v0')
            a(f'v_lshl_add_u32 v{V_TMP}, v{V_TMP+1}, 4, v{V_TMP}')
            a(f's_lshl_b32 s62, s{S_H}, 11\ns_add_u32 s62, s62, {WS_YB:#x}')
            a(f'v_add_u32 v{V_TMP}, s62, v{V_TMP}')
            a(f'buffer_store_dwordx4 {vr(V_TMP+4,4)}, v{V_TMP}, s[{SRD_WS}:{SRD_WS+3}], 0 offen sc1')
            a.label('L_W_noybc')
        a(f's_cmp_lg_u32 s{S_W}, 0\ns_cbranch_scc1 L_W_nostat')
        a(f'v_lshrrev_b32 v{V_TMP}, 2, v{V_LANE}')
        a(f'v_lshlrev_b32 v{V_TMP}, 11, v{V_TMP}')
        a(f'v_and_b32 v{V_TMP+1}, 3, v{V_LANE}')
        a(f'v_lshl_add_u32 v{V_TMP}, v{V_TMP+1}, 4, v{V_TMP}')
        a(f's_lshl_b32 s62, s{S_H}, 6\ns_add_u32 s62, s62, {WS_YSTAT:#x}')
        a(f'v_add_u32 v{V_TMP}, s62, v{V_TMP}')
        a('s_mov_b64 exec, 0xff')
        a(f'buffer_store_dwordx4 {vr(V_TMP+4,4)}, v{V_TMP}, s[{SRD_WS}:{SRD_WS+3}], 0 offen sc1')
        a('s_mov_b64 exec, -1')
        a.label('L_W_nostat')
        if cfg.ctl:
            a(f's_cmp_lg_u32 s{S_W}, 2\ns_cbranch_scc1 L_W_noprg')
            a(f's_lshl_b32 s62, s{S_H}, 10\ns_add_u32 s62, s62, {WS_PROG:#x}')
            a(f'v_lshl_add_u32 v{V_TMP}, v{V_LANE}, 7, s62')
            a(f's_lshl_b32 s62, s{S_H}, 7\ns_add_u32 s62, s62, {WS_MEAN:#x}')
            a(f'v_mov_b32 v{V_TMP+1}, s62')
            a('s_mov_b64 exec, 0xff')
            a(f'buffer_store_dword v{V_ZERO}, v{V_TMP}, s[{SRD_WS}:{SRD_WS+3}], 0 offen sc1')
            a('s_mov_b64 exec, 1')
            a(f'buffer_store_dword v{V_ZERO}, v{V_TMP+1}, s[{SRD_WS}:{SRD_WS+3}], 0 offen sc1')
            a('s_mov_b64 exec, -1')
            a.label('L_W_noprg')
        if cfg.hyb:
            a(f's_cmp_lg_u32 s{S_W}, 1\ns_cbranch_scc1 L_W_noctr')
            a(f's_lshl_b32 s62, s{S_H}, 7\ns_add_u32 s62, s62, {WS_CTR:#x}')
            a(f'v_lshl_add_u32 v{V_TMP}, v{V_LANE}, 12, s62')
            a('s_mov_b64 exec, 3')
            a(f'buffer_store_dword v{V_ZERO}, v{V_TMP}, s[{SRD_WS}:{SRD_WS+3}], 0 offen sc1')
            a('s_mov_b64 exec, -1')
            a.label('L_W_noctr')
    a('s_nop 1')
    q_reduce(a, V_Y, V_TMP, L_QP, L_QB, 'W')
    if cfg.tag: get_tag(a)
    a(f'v_lshlrev_b32 v{V_TMP+2}, 4, v{V_C}')
    a(f'ds_read_b128 {vr(V_Q,4)}, v{V_TMP+2} offset:{L_QB}')
    a(f'ds_read_b128 {vr(V_Q+4,4)}, v{V_TMP+2} offset:{L_QB+256}')
    stamp(a, cfg, 1)
    R0, R1 = V_TMP + 8, V_TMP + 9
    a(f'v_mov_b32 v{R0}, 0\nv_mov_b32 v{R1}, 0')
    a('s_waitcnt lgkmcnt(0)')
    for i in range(0, 16, 2):
        a(f's_waitcnt vmcnt({14 - i})')
        T = [V_T + n for n in range(4)]
        for k in range(4):
            for n in range(4):
                wreg = V_W1 + 4*(i + n//2) + k
                q = V_Q + 4*(n % 2) + k
                c = '0' if k == 0 else f'v{T[n]}'
                a(f'v_dot2_f32_bf16 v{T[n]}, v{wreg}, v{q}, {c}')
        for st in (8, 4, 2, 1):
            for n in range(4):
                a(f'v_add_f32_dpp v{T[n]}, v{T[n]}, v{T[n]} row_ror:{st} row_mask:0xf bank_mask:0xf')
        for n in range(4):
            if n % 2 == 0:
                a(f'v_cmp_eq_u32 vcc, {i + n//2}, v{V_C}')
                a('s_nop 1')
            r = R0 if n % 2 == 0 else R1
            a(f'v_cndmask_b32 v{r}, v{r}, v{T[n]}, vcc')
    a(f'v_cvt_pk_bf16_f32 v{R0}, v{R0}, v{R0}')
    a(f'v_cvt_pk_bf16_f32 v{R1}, v{R1}, v{R1}')
    a(f's_lshl_b32 s62, s{S_H}, 10\ns_lshl_b32 s63, s{S_W}, 7\ns_add_u32 s62, s62, s63')
    a(f's_add_u32 s62, s62, {WS_QABS:#x}')
    a(f'v_lshl_add_u32 v{V_TMP}, v{V_LANE}, 1, s62')
    a(f'buffer_store_short v{R0}, v{V_TMP}, s[{SRD_WS}:{SRD_WS+3}], 0 offen sc1')
    a(f's_mov_b32 s62, {32*1024}')
    a(f'buffer_store_short v{R1}, v{V_TMP}, s[{SRD_WS}:{SRD_WS+3}], s62 offen sc1')
    if cfg.tag and 'q' in cfg.fl:
        a(f's_lshl_b32 s62, s{S_H}, 8\ns_add_u32 s62, s62, {WS_MBOX:#x}')
        a(f'v_lshl_add_u32 v{V_TMP}, v{V_LANE}, 2, s62')
        a(f'v_mov_b32 v{V_TMP+1}, s{S_TAG}')
        a('s_waitcnt vmcnt(0)\ns_barrier')
        a(f's_cmp_lg_u32 s{S_W}, 0\ns_cbranch_scc1 L_sig_Wq')
        a('s_mov_b32 exec_hi, 0')
        a(f'buffer_store_dword v{V_TMP+1}, v{V_TMP}, s[{SRD_WS}:{SRD_WS+3}], 0 offen sc1')
        a('s_mov_b64 exec, -1')
        a.label('L_sig_Wq')
    elif cfg.tag:
        a(f's_lshl_b32 s62, s{S_H}, 2\ns_add_u32 s62, s62, {WS_MBOX:#x}')
        a(f'v_lshl_add_u32 v{V_TMP}, v{V_LANE}, 8, s62')
        a(f'v_mov_b32 v{V_TMP+1}, s{S_TAG}')
        a('s_waitcnt vmcnt(0)\ns_barrier')
        a(f's_cmp_lg_u32 s{S_W}, 0\ns_cbranch_scc1 L_sig_Wq')
        a('s_mov_b32 exec_hi, 0')
        a(f'buffer_store_dword v{V_TMP+1}, v{V_TMP}, s[{SRD_WS}:{SRD_WS+3}], 0 offen sc1')
        a('s_mov_b64 exec, -1')
        a.label('L_sig_Wq')
    else: signal(a, CNT_Q, V_ZERO, V_TMP, 'Wq')
    stamp(a, cfg, 2)
    if cfg.wstop == 1: a('s_endpgm'); return
    a(f's_lshl_b32 s60, s{S_H}, 8')
    a(f's_sub_u32 s61, {512*8192:#x}, s60')
    srd(a, SRD_0, P_BWUV, off_s=60, nrec_s=61)
    a(f's_lshl_b32 s60, s{S_H}, 17\ns_mov_b32 s61, {128*1024:#x}')
    srd(a, SRD_1, P_BWO, off_s=60, nrec_s=61)
    wo_voff(a, V_OFF1)
    if cfg.ctl:
        L_WFLAG = 9000
        a(f's_cmp_lg_u32 s{S_W}, 1\ns_cbranch_scc1 L_W_nomon')
        a(f's_cmp_lg_u32 s{S_H}, 0\ns_cbranch_scc1 L_W_nomon')
        slice_loads(a, SRD_0, V_OFF0, V_W0, cfg.bpol, 'rows', 0)
        slice_loads(a, SRD_1, V_OFF1, V_W1, cfg.bpol, 'wo', 0)
        poll(a, CNT_Q, 32, V_TMP, V_ZERO, 'Wm')
        a(f'v_lshlrev_b32 v{V_TMP}, 7, v{V_LANE}')
        a(f'v_add_u32 v{V_TMP}, {WS_PROG:#x}, v{V_TMP}')
        a(f'v_lshlrev_b32 v{V_TMP+1}, 7, v{V_LANE}')
        a(f'v_add_u32 v{V_TMP+1}, {WS_MEAN:#x}, v{V_TMP+1}')
        a('s_mov_b32 s66, 0')
        a.label('L_W_mon')
        for k in range(4):
            a(f's_mov_b32 s62, {k*8192}')
            a(f'buffer_load_dword v{V_TMP+4+k}, v{V_TMP}, s[{SRD_WS}:{SRD_WS+3}], s62 offen sc1')
        a(f'ds_read_b32 v{V_TMP+2}, v{V_ZERO} offset:{L_WFLAG}')
        a('s_waitcnt vmcnt(0) lgkmcnt(0)')
        a(f'v_add3_u32 v{V_TMP+4}, v{V_TMP+4}, v{V_TMP+5}, v{V_TMP+6}')
        a(f'v_add_u32 v{V_TMP+4}, v{V_TMP+4}, v{V_TMP+7}')
        for st in (1, 2, 4, 8):
            a.nop(2)
            a(f'v_add_u32_dpp v{V_TMP+4}, v{V_TMP+4}, v{V_TMP+4} row_ror:{st} row_mask:0xf bank_mask:0xf')
        a.nop(2)
        a(f'v_add_u32_dpp v{V_TMP+4}, v{V_TMP+4}, v{V_TMP+4} row_bcast:15 row_mask:0xa bank_mask:0xf')
        a.nop(2)
        a(f'v_add_u32_dpp v{V_TMP+4}, v{V_TMP+4}, v{V_TMP+4} row_bcast:31 row_mask:0xc bank_mask:0xf')
        a.nop(1)
        a(f'v_readlane_b32 s62, v{V_TMP+4}, 63')
        a(f'v_readfirstlane_b32 s63, v{V_TMP+2}')
        a('s_nop 1')
        a(f'v_mov_b32 v{V_TMP+3}, s62')
        a('s_mov_b32 exec_hi, 0')
        a(f'buffer_store_dword v{V_TMP+3}, v{V_TMP+1}, s[{SRD_WS}:{SRD_WS+3}], 0 offen sc1')
        a('s_mov_b64 exec, -1')
        a('s_cmp_lg_u32 s63, 0\ns_cbranch_scc1 L_W_monx')
        a(f's_sleep {cfg.msleep}')
        a('s_add_u32 s66, s66, 1')
        a(f's_cmp_lt_u32 s66, {SPIN_LIMIT}\ns_cbranch_scc1 L_W_mon')
        a('s_branch L_W_monx')
        a.label('L_W_nomon')
    slice_loads(a, SRD_0, V_OFF0, V_W0, cfg.bpol, 'rows', cfg.wthr)
    slice_loads(a, SRD_1, V_OFF1, V_W1, cfg.bpol, 'wo', cfg.wthr)
    if cfg.ctl: a.label('L_W_monx')
    if cfg.cpf2:
        a(f's_cmp_lg_u32 s{S_W}, 7\ns_cbranch_scc1 L_W_nopf')
        code_prefetch(a, 'W', V_TMP, V_TMP + 4, 'L_A_loopb', cfg.cpf2_kb)
        a.label('L_W_nopf')
    if '1' in cfg.ct:
        code_touch(a, 'W1', 5, 244)
    if cfg.wstop == 2:
        a('s_waitcnt vmcnt(0)'); a('s_endpgm'); return
    if cfg.ctl:
        a(f's_cmp_lg_u32 s{S_W}, 0\ns_cbranch_scc1 L_wc_Wc')
        poll(a, CNT_C, 32, V_TMP, V_ZERO, 'Wc')
        a(f'v_mov_b32 v{V_TMP}, 1')
        a(f'ds_write_b32 v{V_ZERO}, v{V_TMP} offset:9000')
        a('s_waitcnt lgkmcnt(0)')
        a.label('L_wc_Wc')
        a('s_barrier')
    elif cfg.tag:
        if cfg.mon > 1 and 'W' in cfg.ghost:
            a(f's_cmp_lg_u32 s{S_W}, 7\ns_cbranch_scc1 L_W_nogm')
            a(f's_cmp_ge_u32 s{S_H}, 8\ns_cbranch_scc1 L_W_nogm')
            role_a4.exchange(a, cfg, 'W', V_TMP + 8, V_ZERO, L_QB + 512)
            a.label('L_W_nogm')
        if 'W' in cfg.asst:
            a(f's_cmp_lg_u32 s{S_W}, 6\ns_cbranch_scc1 L_W_noas')
            role_a4.assist(a, cfg, 'W', V_TMP + 8, V_ZERO, L_QB + 512)
            a.label('L_W_noas')
        a(f's_cmp_lg_u32 s{S_W}, 0\ns_cbranch_scc1 L_wc_Wc')
        c_ = 'c' in cfg.fl
        a(f's_lshl_b32 s62, s{S_H}, {4 if c_ else 9}\ns_add_u32 s62, s62, {WS_CSTAT:#x}')
        a(f'v_and_b32 v{V_TMP+1}, 31, v{V_LANE}')
        a(f'v_lshl_add_u32 v{V_TMP}, v{V_TMP+1}, {9 if c_ else 4}, s62')
        if c_:
            a(f's_lshl_b64 exec, 1, s{S_H}')
            tag_poll(a, 'Wc0', V_TMP + 4, V_TMP, SRD_WS, cfg.tsleep)
            a('s_mov_b32 exec_lo, -1\ns_mov_b32 exec_hi, 0')
            tag_poll(a, 'Wc', V_TMP + 4, V_TMP, SRD_WS, cfg.tsl2, shrink=True)
            a('s_mov_b32 exec_lo, -1\ns_mov_b32 exec_hi, 0')
        else:
            a('s_mov_b32 exec_hi, 0')
            tag_poll(a, 'Wc', V_TMP + 4, V_TMP, SRD_WS, cfg.tsleep)
        a(f'v_lshlrev_b32 v{V_TMP+1}, 3, v{V_TMP+1}')
        a(f'v_mov_b32 v{V_TMP+5}, v{V_TMP+6}')
        a(f'ds_write_b64 v{V_TMP+1}, {vr(V_TMP+4,2)} offset:{L_QB}')
        if cfg.mon > 1:
            a(f'v_mov_b32 v{V_TMP+7}, s{S_TAG}')
            a(f'ds_write_b32 v{V_ZERO}, v{V_TMP+7} offset:{L_QB + 512}')
        a('s_mov_b64 exec, -1')
        a('s_waitcnt lgkmcnt(0)')
        a.label('L_wc_Wc')
        a('s_barrier')
    else:
        wait_counter(a, CNT_C, 32, V_TMP, V_ZERO, 'Wc')
    stamp(a, cfg, 3)
    if cfg.wstop == 3: a('s_endpgm'); return
    for _ in range(cfg.xdel): a('s_sleep 32')
    S_B, S_Q4 = 35, 36
    a(f's_lshr_b32 s{S_B}, s{S_W}, 2')
    a(f's_and_b32 s{S_Q4}, s{S_W}, 3')
    a(f's_lshl_b32 s62, s{S_B}, 5\ns_add_u32 s62, s62, s{S_H}')
    a(f's_lshl_b32 s63, s62, 7\ns_add_u32 s63, s63, {WS_CSTAT:#x}')
    a(f'v_lshl_add_u32 v{V_TMP}, v{V_C}, 3, s63')
    if cfg.tag:
        a(f's_lshl_b32 s63, s{S_B}, 7')
        a(f'v_lshl_add_u32 v{V_TMP}, v{V_C}, 3, s63')
        a(f'ds_read_b64 {vr(V_TMP+2,2)}, v{V_TMP} offset:{L_QB}')
    else: a(f'buffer_load_dwordx2 {vr(V_TMP+2,2)}, v{V_TMP}, s[{SRD_WS}:{SRD_WS+3}], 0 offen sc1')
    a(f's_lshl_b32 s63, s62, 14\ns_add_u32 s63, s63, {WS_CPART:#x}')
    a(f's_lshl_b32 s64, s{S_Q4}, 12\ns_add_u32 s63, s63, s64')
    a(f'v_lshl_add_u32 v{V_TMP+1}, v{V_LANE}, 4, s63')
    PT = V_TMP + 8
    for kk in range(4):
        if 'l' in cfg.xs and kk: a('s_waitcnt vmcnt(0)')
        a(f'buffer_load_dwordx4 {vr(PT+4*kk,4)}, v{V_TMP+1}, s[{SRD_WS}:{SRD_WS+3}], 0 offen offset:{kk*1024} {cfg.rppol.replace("+", " ")}')
    a('s_waitcnt vmcnt(4) lgkmcnt(0)')
    m, l, M, e = V_TMP + 2, V_TMP + 3, V_TMP + 4, V_TMP + 5
    a(f'v_mov_b32 v{M}, v{m}')
    for st in (8, 4, 2, 1):
        a.nop(2)
        a(f'v_max_f32_dpp v{M}, v{M}, v{M} row_ror:{st} row_mask:0xf bank_mask:0xf')
    a(f'v_sub_f32 v{e}, v{m}, v{M}')
    a(f'v_exp_f32 v{e}, v{e}')
    a('s_nop 0')
    a(f'v_mul_f32 v{l}, v{l}, v{e}')
    for st in (8, 4, 2, 1):
        a.nop(2)
        a(f'v_add_f32_dpp v{l}, v{l}, v{l} row_ror:{st} row_mask:0xf bank_mask:0xf')
    a(f'v_rcp_f32 v{l}, v{l}')
    a('s_nop 0')
    a(f'v_mul_f32 v{e}, v{e}, v{l}')
    a(f's_lshl_b32 s64, s{S_Q4}, 2')
    for kk in range(4):
        a(f's_add_u32 s65, s64, {kk}')
        a(f'v_readlane_b32 s{66+kk}, v{e}, s65')
    ACC = V_TMP + 40
    UP = PT + 16
    for kk in range(4):
        a(f's_waitcnt vmcnt({3-kk})')
        for k in range(4):
            a(f'v_lshlrev_b32 v{UP+2*k}, 16, v{PT+4*kk+k}')
            a(f'v_and_b32 v{UP+2*k+1}, 0xffff0000, v{PT+4*kk+k}')
        for k in range(8):
            if kk == 0: a(f'v_mul_f32 v{ACC+k}, s{66+kk}, v{UP+k}')
            else: a(f'v_fma_f32 v{ACC+k}, v{UP+k}, s{66+kk}, v{ACC+k}')
    if cfg.wstop == 4: a('s_endpgm'); return
    a(f's_lshl_b32 s62, s{S_W}, 11')
    a(f'v_lshl_add_u32 v{V_TMP}, v{V_LANE}, 5, s62')
    a(f'ds_write_b128 v{V_TMP}, {vr(ACC,4)} offset:{L_CC}')
    a(f'ds_write_b128 v{V_TMP}, {vr(ACC+4,4)} offset:{L_CC+16}')
    a('s_waitcnt lgkmcnt(0)\ns_barrier')
    a(f'v_lshrrev_b32 v{V_TMP}, 3, v{V_C}')
    a(f'v_lshlrev_b32 v{V_TMP}, 13, v{V_TMP}')
    a(f'v_lshl_add_u32 v{V_TMP}, v{V_G}, 6, v{V_TMP}')
    a(f's_lshl_b32 s62, s{S_W}, 8')
    a(f'v_add_u32 v{V_TMP}, s62, v{V_TMP}')
    for hf in range(2):
        for q4 in range(4):
            a(f'ds_read_b128 {vr(PT+16*hf+4*q4,4)}, v{V_TMP} offset:{L_CC + 2048*hf + 16*q4}')
    a('s_waitcnt lgkmcnt(0)')
    for i in range(16):
        a(f'v_add_f32 v{PT+i}, v{PT+i}, v{PT+16+i}')
    for hf in range(2, 4):
        for q4 in range(4):
            a(f'ds_read_b128 {vr(PT+16+4*q4,4)}, v{V_TMP} offset:{L_CC + 2048*hf + 16*q4}')
        a('s_waitcnt lgkmcnt(0)')
        for i in range(16):
            a(f'v_add_f32 v{PT+i}, v{PT+i}, v{PT+16+i}')
    for i in range(8):
        a(f'v_cvt_pk_bf16_f32 v{V_X+i}, v{PT+2*i}, v{PT+2*i+1}')
    rowcomb(a, cfg, V_X, V_W0, V_Y, V_A, V_TMP, 63)
    dtile_to_lds(a, V_Y, V_TMP, L_CT, 10, 9, 1)
    a('s_waitcnt lgkmcnt(0)\ns_barrier')
    a(f'v_lshrrev_b32 v{V_TMP}, 3, v{V_C}')
    a(f'v_lshlrev_b32 v{V_TMP}, 9, v{V_TMP}')
    a(f'v_lshl_add_u32 v{V_TMP}, v{V_G}, 4, v{V_TMP}')
    a(f's_lshl_b32 s62, s{S_W}, 6')
    a(f'v_add_u32 v{V_TMP}, s62, v{V_TMP}')
    for w in range(8):
        a(f'ds_read_b128 {vr(PT+4*w,4)}, v{V_TMP} offset:{L_CT + 1024*w}')
    for w in range(1, 8):
        a(f's_waitcnt lgkmcnt({7-w})')
        for k in range(4):
            a(f'v_add_f32 v{PT+k}, v{PT+k}, v{PT+4*w+k}')
    for s_ in range(4):
        a(f'v_cvt_pk_bf16_f32 v{V_T+s_}, v{PT+s_}, v{PT+s_}')
    for s_ in range(4):
        for k in range(4):
            a(f'v_and_b32 v{V_A+4*s_+k}, v{V_T+s_}, v{V_MASK+k}')
    a('s_nop 1')
    for s_ in range(4):
        for cb in range(4):
            c = '0' if s_ == 0 else vr(V_Y+4*cb, 4)
            a(f'v_mfma_f32_16x16x32_bf16 {vr(V_Y+4*cb,4)}, {vr(V_A+4*s_,4)}, {vr(V_W1+16*s_+4*cb,4)}, {c}')
    dtile_to_lds(a, V_Y, V_TMP, L_YB, 12, 11, 4)
    a('s_waitcnt lgkmcnt(0)\ns_barrier')
    a(f's_cmp_ge_u32 s{S_W}, 4\ns_cbranch_scc1 L_W_yskip')
    a(f'v_lshlrev_b32 v{V_TMP}, 4, v0')
    for w in range(8):
        a(f'ds_read_b128 {vr(PT+4*w,4)}, v{V_TMP} offset:{L_YB + 4096*w}')
    a(f'v_lshrrev_b32 v{V_TMP+1}, 7, v0')
    a(f'v_lshlrev_b32 v{V_TMP+1}, 16, v{V_TMP+1}')
    a(f'v_and_b32 v{V_TMP+2}, 127, v0')
    a(f'v_lshl_add_u32 v{V_TMP+1}, v{V_TMP+2}, 4, v{V_TMP+1}')
    a(f's_lshl_b32 s63, s{S_H}, 11\ns_add_u32 s63, s63, {WS_YB:#x}')
    a(f'v_add_u32 v{V_TMP+1}, s63, v{V_TMP+1}')
    for w in range(1, 8):
        a(f's_waitcnt lgkmcnt({7-w})')
        for k in range(4):
            a(f'v_add_f32 v{PT+k}, v{PT+k}, v{PT+4*w+k}')
    if cfg.tag:
        a(f'v_cvt_pk_bf16_f32 v{PT}, v{PT}, v{PT+1}')
        a(f'v_cvt_pk_bf16_f32 v{PT+2}, v{PT+2}, v{PT+3}')
        a(f'v_mov_b32 v{PT+1}, s{S_TAG}\nv_mov_b32 v{PT+3}, s{S_TAG}')
    elif cfg.ybs:
        for k in range(4): a(f'v_min_u32 v{PT+k}, 0xfffffffe, v{PT+k}')
    a(f'buffer_store_dwordx4 {vr(PT,4)}, v{V_TMP+1}, s[{SRD_WS}:{SRD_WS+3}], 0 offen sc1')
    a.label('L_W_yskip')
    if not cfg.ybs and not cfg.tag: signal(a, CNT_YB, V_ZERO, V_TMP, 'Wyb')
    stamp(a, cfg, 4)
    if cfg.wstop == 5: a('s_endpgm'); return
    if not cfg.ybs and not cfg.tag: wait_counter(a, CNT_YB, 32, V_TMP, V_ZERO, 'Wyb2')
    S_RB, S_SL = 35, 36
    a(f's_lshr_b32 s{S_RB}, s{S_H}, 4\ns_and_b32 s{S_SL}, s{S_H}, 15')
    for k in range(4): a(f'v_mov_b32 v{ACC+k}, 0')
    a(f's_cmp_ge_u32 s{S_W}, 4\ns_cbranch_scc1 L_W_bskip')
    a(f'v_lshrrev_b32 v{V_TMP}, 3, v0')
    a(f'v_lshlrev_b32 v{V_TMP}, 11, v{V_TMP}')
    a(f'v_and_b32 v{V_TMP+1}, 7, v0')
    a(f'v_lshl_add_u32 v{V_TMP}, v{V_TMP+1}, 4, v{V_TMP}')
    a(f's_lshl_b32 s62, s{S_RB}, 16\ns_lshl_b32 s63, s{S_SL}, 7\ns_add_u32 s62, s62, s63')
    a(f's_add_u32 s62, s62, {WS_YB:#x}')
    a(f'v_add_u32 v{V_TMP}, s62, v{V_TMP}')
    if cfg.tag:
        tag_poll(a, 'Wyb', ACC, V_TMP, SRD_WS, cfg.ysleep, shrink='b' in cfg.fl)
        if 'b' in cfg.fl: a('s_mov_b64 exec, -1')
        a(f'v_and_b32 v{ACC+1}, 0xffff0000, v{ACC}')
        a(f'v_lshlrev_b32 v{ACC}, 16, v{ACC}')
        a(f'v_and_b32 v{ACC+3}, 0xffff0000, v{ACC+2}')
        a(f'v_lshlrev_b32 v{ACC+2}, 16, v{ACC+2}')
    if cfg.ybs:
        a('s_mov_b32 s64, 0')
        a.label('L_W_ybp')
    if not cfg.tag:
        a(f'buffer_load_dwordx4 {vr(ACC,4)}, v{V_TMP}, s[{SRD_WS}:{SRD_WS+3}], 0 offen sc1')
        a('s_waitcnt vmcnt(0)')
    if cfg.ybs:
        a(f'v_max3_u32 v{V_TMP+1}, v{ACC}, v{ACC+1}, v{ACC+2}')
        a(f'v_max_u32 v{V_TMP+1}, v{V_TMP+1}, v{ACC+3}')
        a(f'v_cmp_eq_u32 vcc, -1, v{V_TMP+1}')
        a('s_add_u32 s64, s64, 1')
        a('s_nop 0')
        a('s_cmp_eq_u64 vcc, 0\ns_cbranch_scc1 L_W_bskip')
        a(f's_cmp_lt_u32 s64, {SPIN_LIMIT}\ns_cbranch_scc1 L_W_ybp')
    a.label('L_W_bskip')
    col_finish(a, ACC, V_TMP, L_RED, 4, 512, 'Wb')
    stamp(a, cfg, 5)
    if cfg.wstop == 6: a('s_endpgm'); return
    if 'A' not in cfg.roles:
        a('s_endpgm'); return
    Y = V_W0
    ST = V_W0 + 16
    YF = V_W0 + 24
    a(f'v_lshrrev_b32 v{V_TMP}, 3, v{V_LANE}')
    a(f's_lshl_b32 s62, s{S_RB}, 8\ns_lshl_b32 s63, s{S_W}, 3\ns_add_u32 s62, s62, s63')
    a(f'v_add_u32 v{V_TMP}, s62, v{V_TMP}')
    a(f'v_lshlrev_b32 v{V_OFF0}, {4 if cfg.tag else 3}, v{V_TMP}')
    a(f'v_add_u32 v{V_OFF0}, {WS_YSTAT:#x}, v{V_OFF0}')
    if 'y' in cfg.fl:
        a(f'v_and_b32 v{V_OFF0}, 255, v{V_TMP}')
        a(f's_lshl_b32 s63, s{S_RB}, 4\ns_add_u32 s63, s63, {WS_YST2:#x}')
        a(f'v_lshl_add_u32 v{V_OFF0}, v{V_OFF0}, 7, s63')
    a(f'v_lshlrev_b32 v{V_OFF1}, 10, v{V_TMP}')
    a(f'v_and_b32 v{V_TMP+1}, 7, v{V_LANE}')
    a(f'v_lshl_add_u32 v{V_OFF1}, v{V_TMP+1}, 3, v{V_OFF1}')
    a(f's_lshl_b32 s63, s{S_SL}, 6\ns_add_u32 s63, s63, {WS_YA:#x}')
    a(f'v_add_u32 v{V_OFF1}, s63, v{V_OFF1}')
    for k in range(4):
        a(f'v_mov_b32 v{ST+2*k}, 0xff800000\nv_mov_b32 v{ST+2*k+1}, 0')
        for i in range(2): a(f'v_mov_b32 v{Y+2*k+i}, 0')
    PEND = 66
    for k in range(4):
        a(f's_mov_b32 s{PEND+2*k}, -1\ns_mov_b32 s{PEND+2*k+1}, 0xffff')
    if cfg.two:
        final_two(a, cfg, locals())
        return
    a('s_mov_b32 s64, 0')
    a.label('L_W_gate')
    a(f's_mov_b64 exec, s[{PEND}:{PEND+1}]')
    a(f'buffer_load_dword v{V_TMP+2}, v{V_OFF0}, s[{SRD_WS}:{SRD_WS+3}], 0 offen sc1')
    a('s_mov_b64 exec, -1')
    a('s_waitcnt vmcnt(0)')
    a(f'v_cmp_ne_u32 vcc, -1, v{V_TMP+2}')
    a('s_add_u32 s64, s64, 1')
    a('s_nop 0')
    a(f's_and_b64 s[74:75], vcc, s[{PEND}:{PEND+1}]')
    a('s_cbranch_scc1 L_W_gate_done')
    a(f's_sleep {cfg.gsleep}')
    a(f's_cmp_lt_u32 s64, {SPIN_LIMIT}\ns_cbranch_scc1 L_W_gate')
    a.label('L_W_gate_done')
    stamp(a, cfg, 6)
    a('s_mov_b32 s64, 0')
    if cfg.inc:
        assert not cfg.smart
        a('s_mov_b32 s86, 0')
        for i in range(4): a(f'v_mov_b32 v{ACC+i}, 0')
    if cfg.smart:
        PENY = 78
        for k in range(4):
            a(f's_mov_b64 s[{PENY+2*k}:{PENY+2*k+1}], s[{PEND+2*k}:{PEND+2*k+1}]')
        a('s_mov_b32 s86, 0')
    def add_heads(tag):
        for k in range(4):
            a(f's_bitcmp1_b32 s86, {k}\ns_cbranch_scc1 L_W_inc{tag}{k}')
            a(f's_cmp_lg_u64 s[{PEND+2*k}:{PEND+2*k+1}], 0\ns_cbranch_scc1 L_W_inc{tag}{k}')
            a(f's_bitset1_b32 s86, {k}')
            MM, TT, LL = V_TMP + 4, V_TMP + 5, V_TMP + 6
            def allred(x, op):
                a.nop(2)
                a(f'{op}_dpp v{x}, v{x}, v{x} row_ror:8 row_mask:0xf bank_mask:0xf')
                for st in (16, 32):
                    a(f'v_mov_b32 v{TT}, v{x}')
                    a.nop(2)
                    a(f'v_permlane{st}_swap_b32 v{x}, v{TT}')
                    a.nop(1)
                    a(f'{op} v{x}, v{x}, v{TT}')
            a(f'v_mov_b32 v{MM}, v{ST+2*k}')
            for i in range(2):
                a(f'v_lshlrev_b32 v{YF+2*i}, 16, v{Y+2*k+i}')
                a(f'v_and_b32 v{YF+2*i+1}, 0xffff0000, v{Y+2*k+i}')
            allred(MM, 'v_max_f32')
            a(f'v_sub_f32 v{MM}, v{ST+2*k}, v{MM}')
            a(f'v_exp_f32 v{MM}, v{MM}')
            a('s_nop 0')
            a(f'v_mul_f32 v{LL}, v{ST+2*k+1}, v{MM}')
            allred(LL, 'v_add_f32')
            a(f'v_rcp_f32 v{LL}, v{LL}')
            a('s_nop 0')
            a(f'v_mul_f32 v{MM}, v{MM}, v{LL}')
            for i in range(4):
                a(f'v_fma_f32 v{ACC+i}, v{MM}, v{YF+i}, v{ACC+i}')
            a.label(f'L_W_inc{tag}{k}')
    if cfg.pipe:
        assert cfg.inc
        SA, SB = V_W0 + 40, V_W0 + 56
        def sweep(S):
            for k in range(4):
                a(f's_or_b32 s75, s{PEND+2*k+1}, 0x80000000')
                a(f's_mov_b32 s74, s{PEND+2*k}')
                a('s_mov_b64 exec, s[74:75]')
                a(f's_mov_b32 s63, {k*65536}')
                a(f'buffer_load_dwordx2 {vr(S+4*k,2)}, v{V_OFF0}, s[{SRD_WS}:{SRD_WS+3}], 0 offen offset:{k*512} sc1')
                a(f'buffer_load_dwordx2 {vr(S+4*k+2,2)}, v{V_OFF1}, s[{SRD_WS}:{SRD_WS+3}], s63 offen sc1')
            a('s_mov_b64 exec, -1')
        def check(S, tag):
            for k in range(4):
                t = V_TMP + k
                a(f'v_max3_u32 v{t}, v{S+4*k}, v{S+4*k+1}, v{S+4*k+2}')
                a(f'v_max_u32 v{t}, v{t}, v{S+4*k+3}')
            for k in range(4):
                a(f'v_cmp_ne_u32 vcc, -1, v{V_TMP+k}')
                a('s_nop 0')
                a(f's_and_b64 s[74:75], vcc, s[{PEND+2*k}:{PEND+2*k+1}]')
                a(f's_andn2_b64 s[{PEND+2*k}:{PEND+2*k+1}], s[{PEND+2*k}:{PEND+2*k+1}], s[74:75]')
                a('s_mov_b64 exec, s[74:75]')
                a(f'v_mov_b32 v{ST+2*k}, v{S+4*k}')
                a(f'v_mov_b32 v{ST+2*k+1}, v{S+4*k+1}')
                a(f'v_mov_b32 v{Y+2*k}, v{S+4*k+2}')
                a(f'v_mov_b32 v{Y+2*k+1}, v{S+4*k+3}')
                a('s_mov_b64 exec, -1')
            add_heads(tag)
            a(f's_or_b64 s[74:75], s[{PEND}:{PEND+1}], s[{PEND+2}:{PEND+3}]')
            a(f's_or_b64 s[76:77], s[{PEND+4}:{PEND+5}], s[{PEND+6}:{PEND+7}]')
            a('s_or_b64 s[74:75], s[74:75], s[76:77]')
            a('s_cbranch_scc0 L_W_sweep_done')
        sweep(SA)
        a.label('L_W_sweep')
        sweep(SB)
        a('s_waitcnt vmcnt(8)')
        check(SA, 'a')
        sweep(SA)
        a('s_waitcnt vmcnt(8)')
        check(SB, 'b')
        a('s_add_u32 s64, s64, 1')
        a(f's_cmp_lt_u32 s64, {SPIN_LIMIT}\ns_cbranch_scc1 L_W_sweep')
    else:
        a.label('L_W_sweep')
        for k in range(4):
            a(f's_mov_b64 exec, s[{PEND+2*k}:{PEND+2*k+1}]')
            a(f's_cbranch_execz L_W_sw{k}')
            a(f'buffer_load_dwordx2 {vr(ST+2*k,2)}, v{V_OFF0}, s[{SRD_WS}:{SRD_WS+3}], 0 offen offset:{k*512} sc1')
            if not cfg.smart:
                a(f's_mov_b32 s63, {k*65536}')
                a(f'buffer_load_dwordx2 {vr(Y+2*k,2)}, v{V_OFF1}, s[{SRD_WS}:{SRD_WS+3}], s63 offen sc1')
            a.label(f'L_W_sw{k}')
            if cfg.smart:
                a(f's_andn2_b64 s[74:75], s[{PENY+2*k}:{PENY+2*k+1}], s[{PEND+2*k}:{PEND+2*k+1}]')
                a('s_cmp_eq_u32 s86, 0')
                a(f's_cselect_b64 exec, s[74:75], s[{PENY+2*k}:{PENY+2*k+1}]')
                a(f's_cbranch_execz L_W_sy{k}')
                a(f's_mov_b32 s63, {k*65536}')
                a(f'buffer_load_dwordx2 {vr(Y+2*k,2)}, v{V_OFF1}, s[{SRD_WS}:{SRD_WS+3}], s63 offen sc1')
                a.label(f'L_W_sy{k}')
                a(f's_mov_b64 s[{88+2*k}:{89+2*k}], exec')
        a('s_mov_b64 exec, -1')
        a('s_waitcnt vmcnt(0)')
        if not cfg.smart:
            for k in range(4):
                t = V_TMP + k
                a(f'v_max3_u32 v{t}, v{ST+2*k}, v{ST+2*k+1}, v{Y+2*k}')
                a(f'v_max_u32 v{t}, v{t}, v{Y+2*k+1}')
            for k in range(4):
                a(f'v_cmp_eq_u32 vcc, -1, v{V_TMP+k}')
                a('s_nop 0')
                a(f's_and_b64 s[{PEND+2*k}:{PEND+2*k+1}], vcc, s[{PEND+2*k}:{PEND+2*k+1}]')
            if cfg.inc:
                add_heads('')
            a(f's_or_b64 s[74:75], s[{PEND}:{PEND+1}], s[{PEND+2}:{PEND+3}]')
            a(f's_or_b64 s[76:77], s[{PEND+4}:{PEND+5}], s[{PEND+6}:{PEND+7}]')
            a('s_or_b64 s[74:75], s[74:75], s[76:77]')
        else:
            for k in range(4):
                a(f'v_max_u32 v{V_TMP+k}, v{ST+2*k}, v{ST+2*k+1}')
                a(f'v_max_u32 v{V_TMP+4+k}, v{Y+2*k}, v{Y+2*k+1}')
            for k in range(4):
                a(f'v_cmp_eq_u32 vcc, -1, v{V_TMP+k}')
                a('s_nop 0')
                a(f's_and_b64 s[{PEND+2*k}:{PEND+2*k+1}], vcc, s[{PEND+2*k}:{PEND+2*k+1}]')
                a(f'v_cmp_ne_u32 vcc, -1, v{V_TMP+4+k}')
                a('s_nop 0')
                a(f's_and_b64 s[74:75], vcc, s[{88+2*k}:{89+2*k}]')
                a(f's_andn2_b64 s[{PENY+2*k}:{PENY+2*k+1}], s[{PENY+2*k}:{PENY+2*k+1}], s[74:75]')
            a('s_mov_b32 s87, 0')
            for k in range(4):
                a(f's_bcnt1_i32_b64 s62, s[{PEND+2*k}:{PEND+2*k+1}]')
                a('s_add_u32 s87, s87, s62')
            a(f's_cmp_le_u32 s87, {8*cfg.late}\ns_cselect_b32 s86, 1, 0')
            for k in range(4):
                a(f's_or_b64 s[{88+2*k}:{89+2*k}], s[{PEND+2*k}:{PEND+2*k+1}], s[{PENY+2*k}:{PENY+2*k+1}]')
            a('s_or_b64 s[74:75], s[88:89], s[90:91]')
            a('s_or_b64 s[76:77], s[92:93], s[94:95]')
            a('s_or_b64 s[74:75], s[74:75], s[76:77]')
        a('s_cbranch_scc0 L_W_sweep_done')
        a('s_add_u32 s64, s64, 1')
        a(f's_cmp_lt_u32 s64, {SPIN_LIMIT}\ns_cbranch_scc1 L_W_sweep')
    a.label('L_W_sweep_done')
    stamp(a, cfg, 7)
    if not cfg.inc:
        for k in range(4):
            for i in range(2):
                a(f'v_lshlrev_b32 v{YF+4*k+2*i}, 16, v{Y+2*k+i}')
                a(f'v_and_b32 v{YF+4*k+2*i+1}, 0xffff0000, v{Y+2*k+i}')
        Y = YF
        MM = V_TMP
        TT = V_TMP + 4
        for k in range(4): a(f'v_mov_b32 v{MM+k}, v{ST+2*k}')
        a.nop(2)
        for k in range(4):
            a(f'v_max_f32_dpp v{MM+k}, v{MM+k}, v{MM+k} row_ror:8 row_mask:0xf bank_mask:0xf')
        for st in (16, 32):
            for k in range(4): a(f'v_mov_b32 v{TT+k}, v{MM+k}')
            a.nop(2)
            for k in range(4): a(f'v_permlane{st}_swap_b32 v{MM+k}, v{TT+k}')
            a.nop(1)
            for k in range(4): a(f'v_max_f32 v{MM+k}, v{MM+k}, v{TT+k}')
        for k in range(4): a(f'v_sub_f32 v{MM+k}, v{ST+2*k}, v{MM+k}')
        for k in range(4): a(f'v_exp_f32 v{MM+k}, v{MM+k}')
        a('s_nop 0')
        for k in range(4): a(f'v_mul_f32 v{ST+2*k+1}, v{ST+2*k+1}, v{MM+k}')
        LL = V_TMP + 8
        for k in range(4): a(f'v_mov_b32 v{LL+k}, v{ST+2*k+1}')
        a.nop(2)
        for k in range(4):
            a(f'v_add_f32_dpp v{LL+k}, v{LL+k}, v{LL+k} row_ror:8 row_mask:0xf bank_mask:0xf')
        for st in (16, 32):
            for k in range(4): a(f'v_mov_b32 v{TT+k}, v{LL+k}')
            a.nop(2)
            for k in range(4): a(f'v_permlane{st}_swap_b32 v{LL+k}, v{TT+k}')
            a.nop(1)
            for k in range(4): a(f'v_add_f32 v{LL+k}, v{LL+k}, v{TT+k}')
        for k in range(4): a(f'v_rcp_f32 v{LL+k}, v{LL+k}')
        a('s_nop 0')
        for k in range(4): a(f'v_mul_f32 v{MM+k}, v{MM+k}, v{LL+k}')
        for i in range(4):
            a(f'v_mul_f32 v{ACC+i}, v{MM}, v{Y+i}')
        for k in range(1, 4):
            for i in range(4):
                a(f'v_fma_f32 v{ACC+i}, v{MM+k}, v{Y+4*k+i}, v{ACC+i}')
    col_finish(a, ACC, V_TMP + 12, 0, 8, 0, 'Wa')
    if use_nonce:
        a(f's_cmp_lg_u32 s{S_H}, 0\ns_cbranch_scc1 L_W_nonce')
        a(f's_cmp_lg_u32 s{S_W}, 0\ns_cbranch_scc1 L_W_nonce')
        a(f'v_add_u32 v{V_NONCE}, {GOLDEN:#x}, v{V_NONCE}')
        a(f'v_mov_b32 v{V_TMP}, {WS_NONCE:#x}')
        a('s_mov_b64 exec, 1')
        a(f'buffer_store_dword v{V_NONCE}, v{V_TMP}, s[{SRD_WS}:{SRD_WS+3}], 0 offen')
        a.label('L_W_nonce')
    if not cfg.aend: span_mark(a, cfg, True)
    a('s_endpgm')

def final_two(a, cfg, R):
    Y, ST, YF, PEND, ACC, V_TMP, V_OFF0, V_OFF1, SRD_WS = [R[n] for n in ('Y', 'ST', 'YF', 'PEND', 'ACC', 'V_TMP', 'V_OFF0', 'V_OFF1', 'SRD_WS')]
    if cfg.tag:
        TG = YF + 8
        a('s_mov_b32 s64, 0')
        a(f's_mov_b64 exec, s[{PEND}:{PEND+1}]')
        a.label('L_W_stt')
        for k in range(4):
            if 'y' in cfg.fl:
                a(f's_mov_b32 s63, {k*8192}')
                a(f'buffer_load_dwordx4 {vr(TG+4*k,4)}, v{V_OFF0}, s[{SRD_WS}:{SRD_WS+3}], s63 offen sc1')
            else: a(f'buffer_load_dwordx4 {vr(TG+4*k,4)}, v{V_OFF0}, s[{SRD_WS}:{SRD_WS+3}], 0 offen offset:{k*1024} sc1')
        a('s_waitcnt vmcnt(0)')
        for k in range(8): a(f'v_xor_b32 v{TG+2*k+1}, s{S_TAG}, v{TG+2*k+1}')
        a(f'v_or3_b32 v{V_TMP}, v{TG+1}, v{TG+3}, v{TG+5}')
        a(f'v_or3_b32 v{V_TMP}, v{V_TMP}, v{TG+7}, v{TG+9}')
        a(f'v_or3_b32 v{V_TMP}, v{V_TMP}, v{TG+11}, v{TG+13}')
        a(f'v_or_b32 v{V_TMP}, v{V_TMP}, v{TG+15}')
        a(f'v_cmp_ne_u32 vcc, 0, v{V_TMP}')
        a('s_add_u32 s64, s64, 1')
        a('s_nop 0')
        a('s_cmp_eq_u64 vcc, 0\ns_cbranch_scc1 L_W_stt_done')
        a('s_sleep 16')
        a(f's_cmp_lt_u32 s64, {SPIN_LIMIT}\ns_cbranch_scc1 L_W_stt')
        a.label('L_W_stt_done')
        for k in range(8): a(f'v_mov_b32 v{ST+k}, v{TG+2*k}')
        a('s_mov_b64 exec, -1')
    else:
        a('s_mov_b32 s64, 0')
        a.label('L_W_st')
        a(f's_mov_b64 exec, s[{PEND}:{PEND+1}]')
        for k in range(4):
            a(f'buffer_load_dwordx2 {vr(ST+2*k,2)}, v{V_OFF0}, s[{SRD_WS}:{SRD_WS+3}], 0 offen offset:{k*512} sc1')
        a('s_mov_b64 exec, -1')
        a('s_waitcnt vmcnt(0)')
        a(f'v_max3_u32 v{V_TMP}, v{ST}, v{ST+1}, v{ST+2}')
        a(f'v_max3_u32 v{V_TMP}, v{V_TMP}, v{ST+3}, v{ST+4}')
        a(f'v_max3_u32 v{V_TMP}, v{V_TMP}, v{ST+5}, v{ST+6}')
        a(f'v_max_u32 v{V_TMP}, v{V_TMP}, v{ST+7}')
        a(f'v_cmp_eq_u32 vcc, -1, v{V_TMP}')
        a('s_add_u32 s64, s64, 1')
        a('s_nop 0')
        a('s_cmp_eq_u64 vcc, 0\ns_cbranch_scc1 L_W_st_done')
        a('s_sleep 16')
        a(f's_cmp_lt_u32 s64, {SPIN_LIMIT}\ns_cbranch_scc1 L_W_st')
        a.label('L_W_st_done')
    MM, TT, LL = V_TMP, V_TMP + 4, V_TMP + 8
    def allred(x, op):
        a.nop(2)
        for k in range(4): a(f'{op}_dpp v{x+k}, v{x+k}, v{x+k} row_ror:8 row_mask:0xf bank_mask:0xf')
        for st in (16, 32):
            for k in range(4): a(f'v_mov_b32 v{TT+k}, v{x+k}')
            a.nop(2)
            for k in range(4): a(f'v_permlane{st}_swap_b32 v{x+k}, v{TT+k}')
            a.nop(1)
            for k in range(4): a(f'{op} v{x+k}, v{x+k}, v{TT+k}')
    for k in range(4): a(f'v_mov_b32 v{MM+k}, v{ST+2*k}')
    allred(MM, 'v_max_f32')
    for k in range(4): a(f'v_sub_f32 v{MM+k}, v{ST+2*k}, v{MM+k}')
    for k in range(4): a(f'v_exp_f32 v{MM+k}, v{MM+k}')
    a('s_nop 0')
    for k in range(4): a(f'v_mul_f32 v{LL+k}, v{ST+2*k+1}, v{MM+k}')
    allred(LL, 'v_add_f32')
    for k in range(4): a(f'v_rcp_f32 v{LL+k}, v{LL+k}')
    a('s_nop 0')
    F = ST
    for k in range(4): a(f'v_mul_f32 v{F+k}, v{MM+k}, v{LL+k}')
    for i in range(4): a(f'v_mov_b32 v{ACC+i}, 0')
    if cfg.wstop == 7: a('s_endpgm'); return
    a('s_mov_b32 s64, 0')
    a(f's_mov_b32 s74, {0x01010101 if cfg.gate == 6 else 0x0101 if cfg.gate == 2 else 1:#x}\ns_mov_b32 s75, {0x0101 if cfg.gate == 6 else 0:#x}')
    a.label('L_W_gate')
    a('s_mov_b64 exec, s[74:75]')
    a(f'buffer_load_dword v{V_TMP}, v{V_OFF1}, s[{SRD_WS}:{SRD_WS+3}], 0 offen sc1')
    a('s_waitcnt vmcnt(0)')
    a(f'v_cmp_ne_u32 vcc, -1, v{V_TMP}')
    a('s_mov_b64 exec, -1')
    a('s_add_u32 s64, s64, 1')
    a('s_cmp_lg_u64 vcc, 0\ns_cbranch_scc1 L_W_gate_done')
    a(f's_sleep {cfg.gsleep}')
    a(f's_cmp_lt_u32 s64, {SPIN_LIMIT}\ns_cbranch_scc1 L_W_gate')
    a.label('L_W_gate_done')
    stamp(a, cfg, 6)
    if cfg.wstop == 8: a('s_endpgm'); return
    a('s_mov_b32 s64, 0')
    for k in range(1, 4): a(f's_mov_b32 s{76+k}, {k*65536}')
    a.label('L_W_sweep')
    for k in range(4):
        a(f's_mov_b64 exec, s[{PEND+2*k}:{PEND+2*k+1}]')
        a(f's_cbranch_execz L_W_sw{k}')
        so = '0' if k == 0 else f's{76+k}'
        a(f'buffer_load_dwordx2 {vr(Y+2*k,2)}, v{V_OFF1}, s[{SRD_WS}:{SRD_WS+3}], {so} offen sc1')
        a.label(f'L_W_sw{k}')
    a('s_waitcnt vmcnt(0)')
    for k in range(4):
        a(f's_mov_b64 exec, s[{PEND+2*k}:{PEND+2*k+1}]')
        a(f's_cbranch_execz L_W_sx{k}')
        a(f'v_max_u32 v{V_TMP}, v{Y+2*k}, v{Y+2*k+1}')
        a(f'v_cmp_ne_u32 vcc, -1, v{V_TMP}')
        for i in range(2):
            a(f'v_lshlrev_b32 v{YF+2*i}, 16, v{Y+2*k+i}')
            a(f'v_and_b32 v{YF+2*i+1}, 0xffff0000, v{Y+2*k+i}')
        a(f's_andn2_b64 s[{PEND+2*k}:{PEND+2*k+1}], exec, vcc')
        a('s_mov_b64 exec, vcc')
        for i in range(4): a(f'v_fma_f32 v{ACC+i}, v{F+k}, v{YF+i}, v{ACC+i}')
        a.label(f'L_W_sx{k}')
    a('s_mov_b64 exec, -1')
    a(f's_or_b64 s[74:75], s[{PEND}:{PEND+1}], s[{PEND+2}:{PEND+3}]')
    a(f's_or_b64 s[80:81], s[{PEND+4}:{PEND+5}], s[{PEND+6}:{PEND+7}]')
    a('s_or_b64 s[74:75], s[74:75], s[80:81]')
    a('s_cbranch_scc0 L_W_sweep_done')
    if cfg.sw1:
        for k in range(4): a(f's_bcnt1_i32_b64 s{80+k}, s[{PEND+2*k}:{PEND+2*k+1}]')
        a('s_add_u32 s80, s80, s81\ns_add_u32 s82, s82, s83\ns_add_u32 s80, s80, s82')
        a(f's_cmp_le_u32 s80, {8*cfg.sw1}\ns_cbranch_scc1 L_W_nosl')
        a(f's_sleep {cfg.sl1}')
        a(f's_cmp_le_u32 s80, {8*cfg.sw2}\ns_cbranch_scc1 L_W_nosl')
        a(f's_sleep {cfg.sl2}')
        a.label('L_W_nosl')
    a('s_add_u32 s64, s64, 1')
    a(f's_cmp_lt_u32 s64, {SPIN_LIMIT}\ns_cbranch_scc1 L_W_sweep')
    a.label('L_W_sweep_done')
    stamp(a, cfg, 7)
    col_finish(a, ACC, V_TMP + 12, 0, 8, 0, 'Wa')
    if cfg.tag:
        a(f's_or_b32 s62, s{S_H}, s{S_W}\ns_cbranch_scc1 L_W_nonext')
        a(f'v_mov_b32 v{V_TMP}, {WS_NONCE:#x}\nv_mov_b32 v{V_TMP+1}, s{S_TAG}')
        a('s_mov_b64 exec, 1')
        a(f'buffer_store_dword v{V_TMP+1}, v{V_TMP}, s[{SRD_WS}:{SRD_WS+3}], 0 offen')
        a('s_mov_b64 exec, -1')
        a.label('L_W_nonext')
    if not cfg.aend: span_mark(a, cfg, True)
    lite_end(a, cfg, 0, 7)
    a('s_endpgm')

def q_for_A(a, cfg, SRD_WS, L_QP):
    SRD_0, SRD_X = 52, 56
    V_OFF, V_X, V_A, V_Y, V_W, V_TMP = 10, 12, 28, 44, 64, 192
    a(f's_lshl_b32 s60, s{S_H}, 8')
    a(f's_sub_u32 s61, {512*8192:#x}, s60')
    srd(a, SRD_0, P_AWQ, off_s=60, nrec_s=61)
    srd(a, SRD_X, P_AX, nrec=2048)
    a(f'v_lshrrev_b32 v{V_TMP}, 3, v{V_C}')
    a(f'v_lshlrev_b32 v{V_TMP}, 10, v{V_TMP}')
    a(f'v_lshl_add_u32 v{V_TMP}, v{V_G}, 5, v{V_TMP}')
    a(f's_lshl_b32 s62, s{S_W}, 7')
    a(f'v_add_u32 v{V_TMP}, s62, v{V_TMP}')
    a(f'buffer_load_dwordx4 {vr(V_X,4)}, v{V_TMP}, s[{SRD_X}:{SRD_X+3}], 0 offen')
    a(f'buffer_load_dwordx4 {vr(V_X+4,4)}, v{V_TMP}, s[{SRD_X}:{SRD_X+3}], 0 offen offset:16')
    rows_voff(a, V_OFF)
    Lq = cfg.cq
    def load(s_):
        a(f's_mov_b32 s62, {s_*8192}')
        a(f'buffer_load_dwordx4 {vr(V_W+4*s_,4)}, v{V_OFF}, s[{SRD_0}:{SRD_0+3}], s62 offen {cfg.bpol}')
    for s_ in range(Lq): load(s_)
    a(f'v_lshrrev_b32 v{V_TMP}, 1, v{V_G}')
    a(f'v_lshlrev_b32 v{V_TMP}, 9, v{V_TMP}')
    a(f'v_lshl_add_u32 v{V_TMP}, v{V_C}, 5, v{V_TMP}')
    a(f'v_and_b32 v{V_TMP+1}, 1, v{V_G}')
    a(f'v_lshl_add_u32 v{V_TMP}, v{V_TMP+1}, 4, v{V_TMP}')
    a(f's_lshl_b32 s63, s{S_W}, 10\ns_add_u32 s63, s63, {L_QP}')
    a(f'v_add_u32 v{V_TMP}, s63, v{V_TMP}')
    a(f'v_lshlrev_b32 v{V_TMP+1}, 4, v{V_LANE}')
    a(f's_lshl_b32 s63, s{S_H}, 10\ns_add_u32 s63, s63, {WS_QA:#x}')
    a(f'v_add_u32 v{V_TMP+2}, s63, v{V_TMP+1}')
    a(f'v_add_u32 v{V_TMP+1}, {L_QP}, v{V_TMP+1}')
    a('s_mov_b32 s66, 0x01000100\ns_mov_b32 s67, 0x03020302')
    for s_ in range(16):
        A = V_A + 4 * (s_ & 1)
        a(f's_waitcnt vmcnt({min(Lq - 1, 15 - s_)})')
        if s_ + Lq < 16: load(s_ + Lq)
        a(f'v_perm_b32 v{V_TMP+3}, v{V_X + s_//2}, v{V_X + s_//2}, s{66 + (s_ & 1)}')
        for i in range(4): a(f'v_and_b32 v{A+i}, v{V_TMP+3}, v{V_MASK+i}')
        a('s_nop 1')
        c = '0' if s_ == 0 else vr(V_Y, 4)
        a(f'v_mfma_f32_16x16x32_bf16 {vr(V_Y,4)}, {vr(A,4)}, {vr(V_W+4*s_,4)}, {c}')
    a.nop(8)
    a(f'ds_write_b128 v{V_TMP}, {vr(V_Y,4)}')
    get_tag(a)
    a('s_barrier')
    a(f's_cmp_lg_u32 s{S_W}, 0\ns_cbranch_scc1 L_C_qdone')
    for w in range(8): a(f'ds_read_b128 {vr(V_W+4*w,4)}, v{V_TMP+1} offset:{1024*w}')
    for w in range(1, 8):
        a(f's_waitcnt lgkmcnt({7-w})')
        for k in range(4): a(f'v_add_f32 v{V_W+k}, v{V_W+k}, v{V_W+4*w+k}')
    a(f'v_cvt_pk_bf16_f32 v{V_W}, v{V_W}, v{V_W+1}')
    a(f'v_cvt_pk_bf16_f32 v{V_W+2}, v{V_W+2}, v{V_W+3}')
    a(f'v_mov_b32 v{V_W+1}, s{S_TAG}\nv_mov_b32 v{V_W+3}, s{S_TAG}')
    a(f'buffer_store_dwordx4 {vr(V_W,4)}, v{V_TMP+2}, s[{SRD_WS}:{SRD_WS+3}], 0 offen sc1')
    a.label('L_C_qdone')
    if cfg.cqbar: a('s_barrier')
    stamp(a, cfg, 4)

def role_C(a, cfg):
    TS = 1056
    BUF = 64 * TS
    L_TMAX, L_P = 0, 512
    PS = 144
    L_T0 = 5120
    L_T1 = L_T0 + BUF
    assert L_P + 32*PS <= L_T0 and L_T1 + BUF <= LDS_BYTES
    SRD_C, SRD_WS = 40, 44
    S_B, S_KB, S_HB, S_LB, S_IT, S_BUF = 35, 36, 37, 38, 39, 48
    V_ZERO, V_COFF, V_SA, V_TA, V_PW, V_PR, V_TW, V_TRS, V_TRP = 8, 9, 10, 11, 12, 13, 14, 15, 16
    V_SC, V_MS, V_MP, V_LS, V_AL = 17, 18, 19, 20, 21
    V_T = 24
    V_SD = 28
    V_Q = 32
    V_ACC = 96
    V_SF = 128
    V_PB = 192
    V_TF = 128
    V_STG = 208
    V_TMP = 240
    V_STA, V_STW = 22, 23
    a.label('L_roleC')
    stamp(a, cfg, 0)
    if cfg.tag: load_tag(a)
    a(f'v_mov_b32 v{V_ZERO}, 0')
    a(f's_lshr_b32 s{S_B}, s{S_H}, 4')
    a(f's_lshr_b32 s{S_KB}, s{S_W}, 1\ns_and_b32 s{S_HB}, s{S_W}, 1')
    a(f's_lshl_b32 s60, s{S_H}, 19')
    a(f's_mov_b32 s61, {512*1024:#x}')
    srd(a, SRD_C, P_BC, off_s=60, nrec_s=61)
    srd(a, SRD_WS, P_WS, nrec=0x1000000)
    if cfg.dyn:
        a(f's_cmp_lg_u32 s{S_W}, 0\ns_cbranch_scc1 L_C_noz')
        a(f's_lshl_b32 s62, s{S_H}, 7\ns_add_u32 s62, s62, {WS_CTR:#x}')
        a(f'v_lshl_add_u32 v{V_TMP}, v{V_LANE}, 12, s62')
        a(f'v_mov_b32 v{V_TMP+1}, 1')
        a('s_mov_b64 exec, 3')
        a(f'buffer_store_dword v{V_ZERO}, v{V_TMP}, s[{SRD_WS}:{SRD_WS+3}], 0 offen sc1')
        a('s_waitcnt vmcnt(0)')
        a('s_mov_b64 exec, 1')
        a(f'global_atomic_add v{V_ZERO}, v{V_TMP+1}, s[{P_DBG}:{P_DBG+1}] offset:{CNT_Z} sc1')
        a('s_mov_b64 exec, -1')
        a.label('L_C_noz')
    if cfg.cpf:
        a(f's_cmp_lg_u32 s{S_W}, 7\ns_cbranch_scc1 L_C_nopf')
        code_prefetch(a, 'C', V_TMP, V_SF, f'{NAME}_kernel', cfg.cpf_kb)
        a.label('L_C_nopf')
    if '0' in cfg.ct: code_touch(a, 'C0', 7, 244)
    def q_part(n):
        if n != cfg.cfirst: return
        if cfg.tag and cfg.qc: q_for_A(a, cfg, SRD_WS, L_T1 + BUF)
        elif cfg.tag: get_tag(a)
    q_part(0)
    a(f'v_lshlrev_b32 v{V_COFF}, 4, v{V_LANE}')
    a(f's_lshl_b32 s62, s{S_W}, 13')
    a(f'v_add_u32 v{V_COFF}, s62, v{V_COFF}')
    S_RO, S_TB, S_TN = 68, 76, 77
    if cfg.cperm:
        a(f's_lshl_b32 s62, s{S_W}, 16')
        a(f'v_lshl_add_u32 v{V_COFF}, v{V_LANE}, 4, s62')
        a(f's_lshr_b32 s62, s{S_W}, 1' if cfg.cperm < 3 else 's_mov_b32 s62, 0')
        a(f's_and_b32 s{S_TB}, s{S_W}, {1 if cfg.cperm == 1 else 0}\ns_lshl_b32 s{S_TB}, s{S_TB}, 15')
        for i in range(8): a(f's_xor_b32 s{S_RO+i}, s62, {i}\ns_lshl_b32 s{S_RO+i}, s{S_RO+i}, 10')
        a(f'v_add_u32 v{V_COFF}, s{S_TB}, v{V_COFF}')
        a(f's_mov_b32 s{S_TN}, 0')
    def caddr(i):
        if cfg.cperm: return f's{S_RO+i} offen'
        return f'{"0" if i < 4 else "s51"} offen offset:{(i%4)*1024}'
    def next_tile():
        if not cfg.cperm:
            a(f'v_add_u32 v{V_COFF}, 0x10000, v{V_COFF}')
            return
        a(f's_add_u32 s62, s{S_TB}, 0x2000\ns_and_b32 s62, s62, 0xffff')
        a(f's_add_u32 s{S_TN}, s{S_TN}, 1\ns_cmp_eq_u32 s{S_TN}, 8\ns_cselect_b32 s62, 0x40000000, s62')
        a(f's_sub_u32 s63, s62, s{S_TB}\ns_mov_b32 s{S_TB}, s62')
        a(f'v_add_u32 v{V_COFF}, s63, v{V_COFF}')
    a(f's_mul_i32 s{S_LB}, s{S_W}, {8*TS}')
    def dma(bufreg_or_imm):
        for i in range(8):
            hi, lo = i // 4, i % 4
            if bufreg_or_imm == 'thr' and cfg.cthr: a(f's_waitcnt vmcnt({cfg.cthr-1})')
            a(f's_add_u32 m0, s50, {i*TS if cfg.cperm else hi*4*TS + lo*(TS-1024)}')
            a('s_nop 0')
            a(f'buffer_load_dwordx4 v{V_COFF}, s[{SRD_C}:{SRD_C+3}], {caddr(i)} {cfg.cpol} lds')
        next_tile()
    a('s_mov_b32 s51, 4096')
    if cfg.cfast:
        for t in range(cfg.cfast):
            for i in range(8):
                a(f's_waitcnt vmcnt({cfg.cthr - 1})')
                a(f'buffer_load_dwordx4 {vr(V_STG+4*i,4)}, v{V_COFF}, s[{SRD_C}:{SRD_C+3}], {caddr(i)} {cfg.cpol}')
            next_tile()
        a('s_waitcnt vmcnt(0)')
        stamp(a, cfg, 2)
        a('s_endpgm')
        return
    a(f's_add_u32 s50, s{S_LB}, {L_T0}'); dma('thr')
    q_part(1)
    a(f's_add_u32 s50, s{S_LB}, {L_T1}'); dma('thr')
    q_part(2)
    def stage_load(i):
        a(f'buffer_load_dwordx4 {vr(V_STG+4*i,4)}, v{V_COFF}, s[{SRD_C}:{SRD_C+3}], {caddr(i)} {cfg.cpol}')
    if not cfg.clate:
        for i in range(8):
            if cfg.cthr: a(f's_waitcnt vmcnt({cfg.cthr-1})')
            stage_load(i)
        next_tile()
    q_part(3)
    a(f's_add_u32 s62, s{S_LB}, {L_T0}')
    a(f'v_lshl_add_u32 v{V_STA}, v{V_LANE}, 4, s62')
    a(f's_lshl_b32 s62, s{S_KB}, 4')
    a(f'v_add_u32 v{V_TMP}, s62, v{V_C}')
    a(f'v_mul_u32_u24 v{V_SA}, {TS}, v{V_TMP}')
    a(f'v_lshl_add_u32 v{V_SA}, v{V_G}, 4, v{V_SA}')
    a(f'v_add_u32 v{V_SA}, {L_T0}, v{V_SA}')
    a(f'v_lshrrev_b32 v{V_TMP}, 1, v{V_G}')
    a(f'v_lshlrev_b32 v{V_TMP}, 3, v{V_TMP}')
    a(f'v_lshrrev_b32 v{V_TMP+1}, 2, v{V_C}')
    a(f'v_add_u32 v{V_TMP}, v{V_TMP}, v{V_TMP+1}')
    a(f'v_mul_u32_u24 v{V_TA}, {TS}, v{V_TMP}')
    a(f'v_and_b32 v{V_TMP}, 1, v{V_G}')
    a(f'v_lshl_add_u32 v{V_TA}, v{V_TMP}, 5, v{V_TA}')
    a(f'v_and_b32 v{V_TMP}, 3, v{V_C}')
    a(f'v_lshl_add_u32 v{V_TA}, v{V_TMP}, 3, v{V_TA}')
    a(f's_lshl_b32 s62, s{S_W}, 7\ns_add_u32 s62, s62, {L_T0}')
    a(f'v_add_u32 v{V_TA}, s62, v{V_TA}')
    a(f's_lshl_b32 s62, s{S_HB}, 4')
    a(f'v_add_u32 v{V_TMP}, s62, v{V_C}')
    a(f'v_mul_u32_u24 v{V_PW}, {PS}, v{V_TMP}')
    a(f'v_lshl_add_u32 v{V_PW}, v{V_G}, 3, v{V_PW}')
    a(f's_lshl_b32 s62, s{S_KB}, 5')
    a(f'v_add_u32 v{V_PW}, s62, v{V_PW}')
    a(f'v_lshlrev_b32 v{V_TRS}, 4, v{V_TMP}')
    a(f's_lshl_b32 s62, s{S_KB}, 2')
    a(f'v_add_u32 v{V_TW}, s62, v{V_TRS}')
    a(f'v_and_b32 v{V_TMP}, 31, v{V_LANE}')
    a(f'v_mul_u32_u24 v{V_PR}, {PS}, v{V_TMP}')
    a(f'v_lshrrev_b32 v{V_TMP+1}, 5, v{V_LANE}')
    a(f'v_lshl_add_u32 v{V_PR}, v{V_TMP+1}, 4, v{V_PR}')
    a(f'v_lshlrev_b32 v{V_TRP}, 4, v{V_TMP}')
    a(f'v_mov_b32 v{V_SC}, {f2u(SCALE):#x}')
    a(f'v_mov_b32 v{V_MS}, 0xff800000\nv_mov_b32 v{V_MP}, 0xff800000\nv_mov_b32 v{V_LS}, 0')
    for k in range(32): a(f'v_mov_b32 v{V_ACC+k}, 0')
    if cfg.tag:
        a(f's_cmp_lg_u32 s{S_W}, 0\ns_cbranch_scc1 L_wc_Cq')
        if 'q' in cfg.fl:
            a(f's_mov_b32 s62, {WS_MBOX:#x}')
            a(f'v_lshl_add_u32 v{V_TMP}, v{V_LANE}, 8, s62')
            a(f's_lshl_b64 exec, 1, s{S_H}')
            tag_poll(a, 'Cq0', V_TMP + 1, V_TMP, SRD_WS, cfg.tsleep, 1)
            a('s_mov_b32 exec_lo, -1\ns_mov_b32 exec_hi, 0')
            tag_poll(a, 'Cq', V_TMP + 1, V_TMP, SRD_WS, cfg.tsl2, 1, shrink=True)
        else:
            a(f's_lshl_b32 s62, s{S_H}, 8\ns_add_u32 s62, s62, {WS_MBOX:#x}')
            a(f'v_lshl_add_u32 v{V_TMP}, v{V_LANE}, 2, s62')
            a('s_mov_b32 exec_hi, 0')
            if not cfg.nowait: tag_poll(a, 'Cq', V_TMP + 1, V_TMP, SRD_WS, cfg.tsleep, 1)
        a('s_mov_b64 exec, -1')
        a.label('L_wc_Cq')
        a('s_barrier')
    else: wait_counter(a, CNT_Q, 0 if cfg.nowait else 32, V_TMP, V_ZERO, 'Cq', acquire=cfg.qacq)
    stamp(a, cfg, 1)
    if cfg.cstop == 2:
        a('s_waitcnt vmcnt(0)'); a('s_endpgm'); return
    a(f's_lshl_b32 s62, s{S_B}, 5\ns_lshl_b32 s63, s{S_HB}, 4\ns_add_u32 s62, s62, s63')
    a(f'v_add_u32 v{V_TMP}, s62, v{V_C}')
    a(f'v_lshlrev_b32 v{V_TMP}, 10, v{V_TMP}')
    a(f'v_lshl_add_u32 v{V_TMP}, v{V_G}, 4, v{V_TMP}')
    a(f'v_add_u32 v{V_TMP}, {WS_QABS:#x}, v{V_TMP}')
    for s_ in range(16):
        a(f'buffer_load_dwordx4 {vr(V_Q+4*s_,4)}, v{V_TMP}, s[{SRD_WS}:{SRD_WS+3}], 0 offen offset:{64*s_} {"" if cfg.qacq else "sc1"}')
    if cfg.cstop == 3:
        a('s_waitcnt vmcnt(0)'); a('s_endpgm'); return
    if cfg.clate:
        for i in range(8): stage_load(i)
        a(f'v_add_u32 v{V_COFF}, 0x10000, v{V_COFF}')
    a(f's_mov_b32 s{S_IT}, 0\ns_mov_b32 s{S_BUF}, 0')
    a('.p2align 6')
    a.label('L_C_loop')
    a(f's_cmp_lg_u32 s{S_IT}, 0\ns_cbranch_scc1 L_C_top')
    a('s_waitcnt vmcnt(8)' if cfg.clate else 's_waitcnt vmcnt(0)')
    a.label('L_C_top')
    a('s_waitcnt lgkmcnt(0)\ns_barrier')
    S_STG = 52
    a(f's_mov_b32 s{S_STG}, 1')
    a(f's_cmp_eq_u32 s{S_IT}, 0\ns_cselect_b32 s{S_STG}, 0, s{S_STG}')
    a(f's_cmp_ge_u32 s{S_IT}, 7\ns_cselect_b32 s{S_STG}, 0, s{S_STG}')
    a(f's_sub_u32 s50, {BUF}, s{S_BUF}')
    a(f'v_add_u32 v{V_STW}, s50, v{V_STA}')
    nstage = [0]
    def stage(rows):
        lab = f'L_C_st{nstage[0]}'; nstage[0] += 1
        a(f's_cmp_eq_u32 s{S_STG}, 0\ns_cbranch_scc1 {lab}')
        for i in rows:
            a('s_waitcnt vmcnt(7)')
            a(f'ds_write_b128 v{V_STW}, {vr(V_STG+4*i,4)} offset:{i*TS}')
            stage_load(i)
        if rows[-1] == 7: next_tile()
        a.label(lab)
    groups = [[0, 1], [2, 3], [4, 5], [6, 7]] if cfg.cspread else [list(range(8)), [], [], []]
    stage(groups[0])
    a(f'v_add_u32 v{V_TMP}, s{S_BUF}, v{V_SA}')
    a(f'v_add_u32 v{V_TMP+1}, s{S_BUF}, v{V_TA}')
    for s_ in range(16):
        a(f'ds_read_b128 {vr(V_SF+4*s_,4)}, v{V_TMP} offset:{64*s_}')
    for s_ in range(16):
        a(f's_waitcnt lgkmcnt({15-s_})')
        c = '0' if s_ == 0 else vr(V_SD, 4)
        a(f'v_mfma_f32_16x16x32_bf16 {vr(V_SD,4)}, {vr(V_SF+4*s_,4)}, {vr(V_Q+4*s_,4)}, {c}')
    if groups[1]: stage(groups[1])
    a.nop(8)
    for i in range(4): a(f'v_mul_f32 v{V_T+i}, v{V_SD+i}, v{V_SC}')
    a(f'v_max3_f32 v{V_TMP+2}, v{V_T}, v{V_T+1}, v{V_T+2}')
    a(f'v_max_f32 v{V_TMP+2}, v{V_TMP+2}, v{V_T+3}')
    xrow_allreduce(a, 'v_max_f32', V_TMP+2, V_TMP+3)
    a('s_mov_b64 exec, 0xffff')
    a(f'ds_write_b32 v{V_TW}, v{V_TMP+2} offset:{L_TMAX}')
    a('s_mov_b64 exec, -1')
    a('s_waitcnt lgkmcnt(0)\ns_barrier')
    a(f'ds_read_b128 {vr(V_PB,4)}, v{V_TRS} offset:{L_TMAX}')
    a(f'ds_read_b128 {vr(V_PB+4,4)}, v{V_TRP} offset:{L_TMAX}')
    a('s_waitcnt lgkmcnt(1)')
    a(f'v_max3_f32 v{V_TMP+2}, v{V_PB}, v{V_PB+1}, v{V_PB+2}')
    a(f'v_max3_f32 v{V_TMP+2}, v{V_TMP+2}, v{V_PB+3}, v{V_MS}')
    a(f'v_sub_f32 v{V_AL}, v{V_MS}, v{V_TMP+2}')
    for i in range(4): a(f'v_sub_f32 v{V_T+i}, v{V_T+i}, v{V_TMP+2}')
    a(f'v_exp_f32 v{V_AL}, v{V_AL}')
    for i in range(4): a(f'v_exp_f32 v{V_T+i}, v{V_T+i}')
    a(f'v_mov_b32 v{V_MS}, v{V_TMP+2}')
    a(f'v_cvt_pk_bf16_f32 v{V_TMP+4}, v{V_T}, v{V_T+1}')
    a(f'v_cvt_pk_bf16_f32 v{V_TMP+5}, v{V_T+2}, v{V_T+3}')
    a(f'ds_write_b64 v{V_PW}, {vr(V_TMP+4,2)} offset:{L_P}')
    a(f'v_add_f32 v{V_T}, v{V_T}, v{V_T+1}')
    a(f'v_add_f32 v{V_T+2}, v{V_T+2}, v{V_T+3}')
    a(f'v_fma_f32 v{V_LS}, v{V_LS}, v{V_AL}, v{V_T}')
    a(f'v_add_f32 v{V_LS}, v{V_LS}, v{V_T+2}')
    a('s_waitcnt lgkmcnt(1)')
    a(f'v_max3_f32 v{V_TMP+2}, v{V_PB+4}, v{V_PB+5}, v{V_PB+6}')
    a(f'v_max3_f32 v{V_TMP+2}, v{V_TMP+2}, v{V_PB+7}, v{V_MP}')
    a(f'v_sub_f32 v{V_AL}, v{V_MP}, v{V_TMP+2}')
    a(f'v_exp_f32 v{V_AL}, v{V_AL}')
    a(f'v_mov_b32 v{V_MP}, v{V_TMP+2}')
    for k in range(32): a(f'v_mul_f32 v{V_ACC+k}, v{V_ACC+k}, v{V_AL}')
    if groups[2]: stage(groups[2])
    a('s_waitcnt lgkmcnt(0)\ns_barrier')
    for t in range(4):
        a(f'ds_read_b128 {vr(V_PB+4*t,4)}, v{V_PR} offset:{L_P + 32*t}')
    for t in range(4):
        for cb in range(2):
            f = V_TF + 8*t + 4*cb
            off = t*16*TS + cb*64
            a(f'ds_read_b64_tr_b16 {vr(f,2)}, v{V_TMP+1} offset:{off}')
            a(f'ds_read_b64_tr_b16 {vr(f+2,2)}, v{V_TMP+1} offset:{off + 4*TS}')
    for t in range(4):
        a(f's_waitcnt lgkmcnt({12 - 4*t})')
        for cb in range(2):
            f = V_TF + 8*t + 4*cb
            a(f'v_mfma_f32_32x32x16_bf16 {vr(V_ACC+16*cb,16)}, {vr(f,4)}, {vr(V_PB+4*t,4)}, {vr(V_ACC+16*cb,16)}')
    if groups[3]: stage(groups[3])
    a(f's_sub_u32 s{S_BUF}, {BUF}, s{S_BUF}')
    a(f's_add_u32 s{S_IT}, s{S_IT}, 1')
    a(f's_cmp_lt_u32 s{S_IT}, 8\ns_cbranch_scc1 L_C_loop')
    stamp(a, cfg, 2)
    if cfg.cstop == 1: a('s_endpgm'); return
    xrow_allreduce(a, 'v_add_f32', V_LS, V_TMP+3)
    a('s_barrier')
    a('s_mov_b64 exec, 0xffff')
    a(f'ds_write_b32 v{V_TW}, v{V_LS} offset:{L_TMAX}')
    a('s_mov_b64 exec, -1')
    RS = 2064
    a(f'v_and_b32 v{V_TMP}, 31, v{V_LANE}')
    a(f'v_mul_u32_u24 v{V_TMP}, {RS}, v{V_TMP}')
    a(f'v_lshrrev_b32 v{V_TMP+1}, 5, v{V_LANE}')
    a(f'v_lshl_add_u32 v{V_TMP}, v{V_TMP+1}, 4, v{V_TMP}')
    a(f's_lshl_b32 s62, s{S_W}, 8\ns_add_u32 s62, s62, {L_T0}')
    a(f'v_add_u32 v{V_TMP}, s62, v{V_TMP}')
    a.nop(6)
    for cb in range(2):
        for k in range(4):
            a(f'ds_write_b128 v{V_TMP}, {vr(V_ACC+16*cb+4*k,4)} offset:{128*cb + 32*k}')
    a('s_waitcnt lgkmcnt(0)\ns_barrier')
    a(f's_mul_i32 s62, s{S_W}, {4*RS}\ns_add_u32 s62, s62, {L_T0}')
    a(f'v_lshl_add_u32 v{V_TMP}, v{V_LANE}, 5, s62')
    for r_ in range(4):
        for hf in range(2):
            a(f'ds_read_b128 {vr(V_SF+8*r_+4*hf,4)}, v{V_TMP} offset:{r_*RS + hf*16}')
    if cfg.cswz:
        K0 = {1: 0x83, 2: 0x02, 3: 0x00}[cfg.cswz]; K1 = 0x04 if cfg.cswz < 3 else 0; K2 = 0x08 if cfg.cswz < 3 else 0
        a(f'v_and_b32 v{V_TMP+2}, 1, v{V_G}')
        a(f'v_mul_u32_u24 v{V_TMP+1}, {(K0 << 8) | 0x10000:#x}, v{V_TMP+2}')
        a(f'v_lshrrev_b32 v{V_TMP+2}, 1, v{V_G}')
        a(f'v_mul_u32_u24 v{V_TMP+2}, {(K1 << 8) | 0x20000:#x}, v{V_TMP+2}')
        a(f'v_xor_b32 v{V_TMP+1}, v{V_TMP+1}, v{V_TMP+2}')
        a(f'v_lshl_add_u32 v{V_TMP+1}, v{V_C}, 4, v{V_TMP+1}')
        a(f's_and_b32 s62, s{S_H}, 15\ns_lshl_b32 s62, s62, 12\ns_lshl_b32 s63, s{S_W}, 9\ns_add_u32 s62, s62, s63')
        a(f's_lshl_b32 s63, s{S_B}, 19\ns_add_u32 s62, s62, s63')
        a(f'v_xor_b32 v{V_TMP+1}, s62, v{V_TMP+1}')
    else:
        a(f's_lshl_b32 s62, s{S_B}, 5\ns_lshl_b32 s63, s{S_W}, 2\ns_add_u32 s62, s62, s63')
        a(f's_lshl_b32 s62, s62, 4\ns_and_b32 s63, s{S_H}, 15\ns_add_u32 s62, s62, s63')
        a(f's_lshl_b32 s62, s62, 10\ns_add_u32 s62, s62, {WS_CPART:#x}')
        a(f'v_lshl_add_u32 v{V_TMP+1}, v{V_LANE}, 4, s62')
    for r_ in range(4):
        a(f's_waitcnt lgkmcnt({6 - 2*r_})')
        for k in range(4):
            a(f'v_cvt_pk_bf16_f32 v{V_SF+32+4*r_+k}, v{V_SF+8*r_+2*k}, v{V_SF+8*r_+2*k+1}')
        if cfg.cswz:
            a(f'v_xor_b32 v{V_TMP+2}, {((r_ & 1) * ((K2 << 8) | 0x40000)) ^ ((r_ >> 1) << 8):#x}, v{V_TMP+1}')
            a(f's_mov_b32 s63, {WS_CPART:#x}')
            a(f'buffer_store_dwordx4 {vr(V_SF+32+4*r_,4)}, v{V_TMP+2}, s[{SRD_WS}:{SRD_WS+3}], s63 offen {cfg.cppol.replace("+", " ")}')
            continue
        a(f's_mov_b32 s63, {r_*16384}')
        if 's' in cfg.xs and r_: a('s_waitcnt vmcnt(0)')
        if cfg.cstop != 4: a(f'buffer_store_dwordx4 {vr(V_SF+32+4*r_,4)}, v{V_TMP+1}, s[{SRD_WS}:{SRD_WS+3}], s63 offen {cfg.cppol.replace("+", " ")}')
    if cfg.tag:
        a(f'ds_read_b128 {vr(V_PB,4)}, v{V_TRP} offset:{L_TMAX}')
        a(f'v_and_b32 v{V_TMP}, 31, v{V_LANE}')
        a(f's_lshl_b32 s63, s{S_H}, {9 if "c" in cfg.fl else 4}\ns_add_u32 s63, s63, {WS_CSTAT:#x}')
        a(f'v_lshl_add_u32 v{V_TMP}, v{V_TMP}, {4 if "c" in cfg.fl else 9}, s63')
        a('s_waitcnt lgkmcnt(0)')
        a(f'v_add_f32 v{V_PB}, v{V_PB}, v{V_PB+1}')
        a(f'v_add_f32 v{V_PB+2}, v{V_PB+2}, v{V_PB+3}')
        a(f'v_add_f32 v{V_PB+2}, v{V_PB}, v{V_PB+2}')
        a(f'v_mov_b32 v{V_PB}, v{V_MP}')
        a(f'v_mov_b32 v{V_PB+1}, s{S_TAG}\nv_mov_b32 v{V_PB+3}, s{S_TAG}')
        a('s_waitcnt vmcnt(0)\ns_barrier')
        if 'C' in cfg.asst:
            a(f's_cmp_lg_u32 s{S_W}, 1\ns_cbranch_scc1 L_C_noas')
            role_a4.assist(a, cfg, 'C', V_SF, V_ZERO, None)
            a.label('L_C_noas')
        a(f's_cmp_lg_u32 s{S_W}, 0\ns_cbranch_scc1 L_C_done')
        a('s_mov_b32 exec_hi, 0')
        a(f'buffer_store_dwordx4 {vr(V_PB,4)}, v{V_TMP}, s[{SRD_WS}:{SRD_WS+3}], 0 offen sc1')
        a('s_mov_b64 exec, -1')
        if cfg.mon > 1 and 'C' in cfg.ghost:
            a(f's_cmp_ge_u32 s{S_H}, 8\ns_cbranch_scc1 L_C_done')
            role_a4.exchange(a, cfg, 'C', V_SF, V_ZERO, None)
        a.label('L_C_done')
        if '2' in cfg.ct:
            code_touch(a, 'C2', 2, 244)
            a('s_waitcnt vmcnt(0)')
        stamp(a, cfg, 3)
        if cfg.pfx:
            a(f's_lshl_b32 s62, s{S_H}, 21')
            a(f's_sub_u32 s63, {128 << 20:#x}, s62')
            srd(a, SRD_C, P_AV, off_s=62, nrec_s=63)
            a(f's_lshr_b32 s62, s{S_W}, 2\ns_lshl_b32 s62, s62, 26\ns_and_b32 s63, s{S_W}, 3\ns_lshl_b32 s63, s63, 12\ns_add_u32 s62, s62, s63')
            a(f'v_lshl_add_u32 v{V_TMP}, v{V_LANE}, 4, s62')
            rng = range(cfg.pf1, cfg.pf0 - 1, -1) if cfg.pfx == 1 else range(cfg.pf0, cfg.pf1 + 1)
            for t in rng:
                a(f's_mov_b32 s62, {t * 24 * 4096:#x}')
                for k in range(4):
                    a(f's_waitcnt vmcnt({cfg.pfl - 1})')
                    a(f'buffer_load_dwordx4 {vr(V_SF+4*k,4)}, v{V_TMP}, s[{SRD_C}:{SRD_C+3}], s62 offen offset:{1024*k} {cfg.pfpol}')
            a('s_waitcnt vmcnt(0)')
            stamp(a, cfg, 5)
        a('s_endpgm')
        return
    a(f's_cmp_lg_u32 s{S_W}, 0\ns_cbranch_scc1 L_C_nostat')
    a(f'ds_read_b128 {vr(V_PB,4)}, v{V_TRP} offset:{L_TMAX}')
    a(f's_lshl_b32 s62, s{S_B}, 5')
    a(f'v_and_b32 v{V_TMP}, 31, v{V_LANE}')
    a(f'v_add_u32 v{V_TMP}, s62, v{V_TMP}')
    a(f'v_lshlrev_b32 v{V_TMP}, 7, v{V_TMP}')
    a(f's_and_b32 s63, s{S_H}, 15\ns_lshl_b32 s63, s63, 3\ns_add_u32 s63, s63, {WS_CSTAT:#x}')
    a(f'v_add_u32 v{V_TMP}, s63, v{V_TMP}')
    a('s_waitcnt lgkmcnt(0)')
    a(f'v_add_f32 v{V_PB}, v{V_PB}, v{V_PB+1}')
    a(f'v_add_f32 v{V_PB+2}, v{V_PB+2}, v{V_PB+3}')
    a(f'v_add_f32 v{V_TMP+3}, v{V_PB}, v{V_PB+2}')
    a(f'v_mov_b32 v{V_TMP+2}, v{V_MP}')
    a('s_mov_b32 exec_hi, 0')
    a(f'buffer_store_dwordx2 {vr(V_TMP+2,2)}, v{V_TMP}, s[{SRD_WS}:{SRD_WS+3}], 0 offen sc1')
    a('s_mov_b64 exec, -1')
    a.label('L_C_nostat')
    signal(a, CNT_C, V_ZERO, V_TMP+4, 'Cc')
    stamp(a, cfg, 3)
    a('s_endpgm')
```

```python
import sys, math
from asmlib import Asm, vr, sr, lint

NAME = 'concat_heads__gqa_block_cached__compressed_kv_cla__decode'
NA = 6
LDS_BYTES = 150 * 1024
SCALE = (128 ** -0.5) * math.log2(math.e)
def f2u(x):
    import struct
    return struct.unpack('<I', struct.pack('<f', x))[0]
NEG_INF = 0xff800000
SENT = 0xffffffff

WS_QABS  = 0x000000
WS_CSTAT = 0x010000
WS_YSTAT = 0x014000
WS_YB    = 0x020000
WS_NONCE = 0x018000
WS_CTR   = 0x01A000
WS_PROG  = 0x0C0000
WS_GLOB  = 0x0D0000
WS_MEAN  = 0x01D000
WS_QA    = 0x040000
GOLDEN   = 0x9E3779B9
WS_YA    = 0x100000
WS_CPART = 0x200000
WS_STAMP = 0x800000

P_AX, P_AK, P_AV, P_AWQ, P_AWO, P_BX, P_BC, P_BWQ = 4, 6, 8, 10, 12, 14, 16, 18
P_BWUK, P_BWUV, P_BWO, P_OUT, P_DBG, P_WS = 20, 22, 24, 26, 28, 30
S_H, S_R, S_W = 32, 33, 34
S_TAG = 88
WS_YST2  = 0x050000
WS_MBOX  = 0x01A000

CNT_Q, CNT_C, CNT_YB, CNT_Z = 0, 64, 128, 192
SPIN_LIMIT = 1 << 16

DESCRIPTION = """
Generated by gen/gen.py (hand-written generator).  One launch, 256 workgroups of 8 waves, one per CU.
id -> xcd = id & 7 (expected placement, speed only), slot = id >> 3, head h = xcd + 8*(slot >> 3), role = slot & 7.
role 0..5 (A): K/V-cache attention of head h, both batches.  Waves 0-3 first read the weights and c_kv rows that
  roles 6 and 7 of the head need into the L2 (speed only).  Then they stream: first their whole share of K
  (scores by v_dot2 + DPP row sums, kept in registers), softmax numerators relative to the wave's true maximum, then
  the same rows of V (MFMA: A = p times a unit pattern, B = the V rows as loaded).  Waves 4-7 hold wo[h], fetch q,
  publish the workgroup's (max, sum) and finally y = o wo[h] (bf16).  Wave 6 posts the workgroup's progress, wave 5
  compares it with that of the others; a workgroup that has fallen behind keeps more loads in flight, and an idle wave
  of role 6 / 7 reads some of its next rows into the L2 (speed only).
role 6 (W): q_B = x w_q, q_abs = q_B w_uk^T (absorbed up-projection), later: merge of the C partials, w_uv, w_o,
  output columns of part B, and the softmax-weighted sum of the A partials for 32 output columns.
role 7 (C): q = x wq of head h for the A workgroups, then latent attention over 512 keys of c_kv for all 32 heads
  (MFMA, LDS tiles, online softmax).
Hand-offs: sc1 stores that carry a tag (a word of d_ws read on entry plus a constant; the last workgroup replaces the
  word, so no earlier launch's tag matches); the y rows are polled against a sentinel written earlier in the same
  launch.  Every spin is bounded.
"""

class Cfg:
    two = True
    R = 32
    L0 = 8
    La = 7
    Lb = 6
    Lc = 6
    NKa = 7
    NVa = 9
    Lq = 4
    Lo = 4
    catch = 3
    sprio = 0
    cperm = 0
    spf = 'q,k,a,v,o,c38'
    spol = ''
    L0k = 8
    ct = ''
    grot = 9
    gstr = 0x100
    gback = 2
    gpol = 'nt'
    ag = 0
    xs = ''
    tctl = 0
    gpar = 1
    cfirst = 1
    spm = 1
    st0 = 0
    post = 4
    psl = 2
    pend = 640
    asst = 'WC'
    ath = 25
    lead = 48
    agap = 2
    acs = 4
    acr = 7
    apol = ''
    await_ = 3
    asl = 4
    spw = 0
    xdel = 0
    rppol = 'sc1'
    wlate = 0
    cfast = 0
    apf = 0
    Lp = 4
    fl = 'qcyb'
    tsl2 = 8
    idrot = 0
    st7 = False
    ghost = 'WC'
    gmix = 0
    ggain = 100
    gtest = 0
    mtest = 0
    mon = 2
    HK = 8
    HV = 8
    Ld = 9
    tha = -10
    thb = -10
    mp1 = 400
    mend = 620
    mdef = 0
    msl = 0
    gsl = 0
    pfx = 0
    pf0 = 13
    pf1 = 20
    pfl = 4
    pfpol = ''
    qtry = '20,24'
    rmap = 0x76543210
    hwid = False
    Lj = 0
    sw1 = 0
    sw2 = 16
    sl1 = 12
    sl2 = 20
    gate = 6
    clr0 = True
    tag = True
    qc = True
    cq = 6
    cqbar = True
    tsleep = 32
    ysleep = 8
    qsleep = 0
    lite = False
    cswz = 0
    cppol = 'sc1'
    noclr = False
    nowq = False
    nowo = False
    stamps = False
    roles = 'AWC'
    kpol = 'nt'
    vpol = 'nt'
    wqpol = ''
    wopol = ''
    U = 8
    thr = 4
    half = False
    NF = 16
    xmix = False
    smix = False
    smix_order = 0x76543210
    noT = True
    cpf = False
    cpf2 = False
    cpf_kb = 17
    cpf2_kb = 12
    ybs = False
    ctl = False
    theta = 200
    msleep = 8
    xthr = -1
    xa = 1
    xb = 7
    slowd = 1
    wthr1 = 0
    clate = False
    wthr0 = 3
    pipe = False
    inc = True
    d4 = False
    idxor = 0
    wox = True
    q2 = True
    chk_it = 5
    fake = False
    gsc = 'sc1'
    hyb = True
    NS = 9
    twop = False
    afirst = False
    qacq = False
    smart = False
    late = 6
    step = False
    gsleep = 4
    brot = 5
    hrot2 = 0
    jrot = 2
    phi = 23
    ilv = False
    Lv = False
    Lpat = '+-'
    hrot = 0
    wthr = 3
    cthr = 4
    cspread = False
    aend = False
    ring = True
    L1 = 4
    L2 = 8
    N1 = 99
    dyn = False
    wstop = 0
    cstop = 0
    nowait = False
    psleep = 2
    spin = 16
    loopst = False
    qmode = 'red'
    early = 4
    rot = True
    qbar = True
    wo_stag = 1
    bpol = 'nt'
    cpol = 'nt'
    fine = False
    span = False
    swapb = False
    wo_iter = 0

def srd(a, d, ptr, off_s=None, off_hi=None, nrec=None, nrec_s=None):
    if off_s is None:
        a(f's_mov_b32 s{d}, s{ptr}')
        a(f's_and_b32 s{d+1}, s{ptr+1}, 0xffff')
    else:
        a(f's_add_u32 s{d}, s{ptr}, s{off_s}')
        a(f's_addc_u32 s{d+1}, s{ptr+1}, {("s%d" % off_hi) if off_hi is not None else 0}')
        a(f's_and_b32 s{d+1}, s{d+1}, 0xffff')
    if nrec_s is not None: a(f's_mov_b32 s{d+2}, s{nrec_s}')
    else: a(f's_mov_b32 s{d+2}, {nrec:#x}')
    a(f's_mov_b32 s{d+3}, 0x20000')

def stamp(a, cfg, idx, waited=False):
    if cfg.lite and idx == 0: a('s_memrealtime s[96:97]')
    if not cfg.stamps: return
    a('s_memrealtime s[90:91]')
    a(f's_lshl_b32 s92, s2, 3\ns_add_u32 s92, s92, s{S_W}\ns_lshl_b32 s92, s92, 6')
    a(f's_add_u32 s92, s92, {WS_STAMP + idx*8:#x}')
    a('s_waitcnt lgkmcnt(0)')
    a('v_mov_b32 v250, s92\nv_mov_b32 v252, s90\nv_mov_b32 v253, s91')
    a('s_mov_b64 s[94:95], exec\ns_mov_b64 exec, 1')
    a(f'global_store_dwordx2 v250, v[252:253], s[{P_WS}:{P_WS+1}] nt')
    a('s_mov_b64 exec, s[94:95]')
stamp.n = 0
def lite_end(a, cfg, wave, idx):
    if not cfg.lite: return
    lab = f'L_lite_{stamp.n}'; stamp.n += 1
    a(f's_cmp_lg_u32 s{S_W}, {wave}\ns_cbranch_scc1 {lab}')
    a('s_memrealtime s[90:91]')
    a(f's_lshl_b32 s92, s2, 3\ns_add_u32 s92, s92, s{S_W}\ns_lshl_b32 s92, s92, 6')
    a(f's_add_u32 s92, s92, {WS_STAMP:#x}')
    a('s_waitcnt lgkmcnt(0)')
    a('v_mov_b32 v250, s92\nv_mov_b32 v252, s90\nv_mov_b32 v253, s91\nv_mov_b32 v254, s96\nv_mov_b32 v255, s97')
    a('s_mov_b64 exec, 1')
    a(f'global_store_dwordx2 v250, v[254:255], s[{P_WS}:{P_WS+1}] nt')
    a(f'global_store_dwordx2 v250, v[252:253], s[{P_WS}:{P_WS+1}] offset:{idx*8} nt')
    if cfg.hwid:
        a('s_getreg_b32 s90, hwreg(HW_REG_HW_ID)\ns_getreg_b32 s91, hwreg(HW_REG_XCC_ID)')
        a('v_mov_b32 v246, s90\nv_mov_b32 v247, s91')
        a(f'global_store_dwordx2 v250, v[246:247], s[{P_WS}:{P_WS+1}] offset:64 nt')
    a.label(lab)
def span_mark(a, cfg, end, wave=0):
    if not cfg.span: return
    lab = f'L_span_{stamp.n}'; stamp.n += 1
    a(f's_cmp_lg_u32 s{S_W}, {wave}\ns_cbranch_scc1 {lab}')
    if not end: a(f's_cmp_ge_u32 s2, 8\ns_cbranch_scc1 {lab}')
    a('s_memrealtime s[90:91]')
    a('s_waitcnt lgkmcnt(0)')
    if not end: a('s_not_b32 s90, s90')
    a('v_mov_b32 v252, s90\nv_mov_b32 v250, 0')
    a('s_mov_b64 s[94:95], exec\ns_mov_b64 exec, 1')
    a(f'global_atomic_umax v250, v252, s[{P_DBG}:{P_DBG+1}] offset:{36 if end else 32} sc1')
    a('s_mov_b64 exec, s[94:95]')
    a.label(lab)

V_LANE, V_C, V_G = 1, 2, 3
V_MASK = 4

def common_lane_setup(a):
    a(f'v_and_b32 v{V_LANE}, 63, v0')
    a(f'v_and_b32 v{V_C}, 15, v0')
    a(f'v_bfe_u32 v{V_G}, v0, 4, 2')
    a(f'v_and_b32 v8, 1, v0')
    a(f'v_lshlrev_b32 v8, 4, v8')
    a(f'v_mov_b32 v9, 0xffff')
    a(f'v_lshlrev_b32 v8, v8, v9')
    a(f'v_bfe_u32 v9, v0, 1, 2')
    for i in range(4):
        a(f'v_cmp_eq_u32 vcc, {i}, v9')
        a('s_nop 1')
        a(f'v_cndmask_b32 v{V_MASK+i}, 0, v8, vcc')

def rowcomb(a, cfg, X, Wr, ACC, AOP, TMP, wait_first, after=None):
    for s in range(16):
        sel = '0x01000100' if s % 2 == 0 else '0x03020302'
        t = TMP + (s & 1)
        A = AOP + 4 * (s & 1)
        a(f's_mov_b32 s60, {sel}')
        a(f'v_perm_b32 v{t}, v{X + s//2}, v{X + s//2}, s60')
        for i in range(4):
            a(f'v_and_b32 v{A+i}, v{t}, v{V_MASK+i}')
        n = 15 - s + wait_first + (s if after else 0)
        a(f's_waitcnt vmcnt({min(63, n)})')
        a('s_nop 0')
        c = '0' if s == 0 else vr(ACC, 4)
        a(f'v_mfma_f32_16x16x32_bf16 {vr(ACC,4)}, {vr(A,4)}, {vr(Wr+4*s,4)}, {c}')
        if after: after(s)

def poll(a, cnt_off, target, vt, vz, tag):
    a(f's_mov_b32 s64, 0')
    a.label(f'L_poll_{tag}')
    a(f'global_load_dword v{vt}, v{vz}, s[{P_DBG}:{P_DBG+1}] offset:{cnt_off} sc1')
    a('s_waitcnt vmcnt(0)')
    a(f'v_readfirstlane_b32 s65, v{vt}')
    a('s_add_u32 s64, s64, 1')
    a('s_nop 2')
    a(f's_cmp_ge_u32 s65, {target}\ns_cbranch_scc1 L_done_{tag}')
    a(f's_sleep {CFG.psleep}')
    a(f's_cmp_lt_u32 s64, {1 << CFG.spin}\ns_cbranch_scc1 L_poll_{tag}')
    a.label(f'L_done_{tag}')

def load_tag(a):
    a(f's_load_dword s{S_TAG}, s[{P_WS}:{P_WS+1}], {WS_NONCE:#x}')

def get_tag(a):
    a('s_waitcnt lgkmcnt(0)')
    a(f's_add_u32 s{S_TAG}, s{S_TAG}, {GOLDEN:#x}')

def tag_poll(a, tag, dst, vaddr, srd_, sleep, n=4, shrink=False):
    a('s_mov_b32 s64, 0')
    a.label(f'L_tp_{tag}')
    if n == 4: a(f'buffer_load_dwordx4 {vr(dst,4)}, v{vaddr}, s[{srd_}:{srd_+3}], 0 offen sc1')
    else: a(f'buffer_load_dword v{dst}, v{vaddr}, s[{srd_}:{srd_+3}], 0 offen sc1')
    a('s_waitcnt vmcnt(0)')
    if n == 4:
        a(f'v_cmp_ne_u32 s[62:63], s{S_TAG}, v{dst+1}')
        a(f'v_cmp_ne_u32 vcc, s{S_TAG}, v{dst+3}')
        a('s_add_u32 s64, s64, 1')
        a('s_nop 0')
        a('s_or_b64 vcc, vcc, s[62:63]')
    else:
        a(f'v_cmp_ne_u32 vcc, s{S_TAG}, v{dst}')
        a('s_add_u32 s64, s64, 1')
        a('s_nop 0')
        a('s_or_b64 vcc, vcc, vcc')
    a(f's_cbranch_scc0 L_tp_{tag}_ok')
    if shrink: a('s_mov_b64 exec, vcc')
    if sleep: a(f's_sleep {sleep}')
    a(f's_cmp_lt_u32 s64, {SPIN_LIMIT}\ns_cbranch_scc1 L_tp_{tag}')
    a.label(f'L_tp_{tag}_ok')

def signal(a, cnt_off, vz, vt, tag):
    a('s_waitcnt vmcnt(0)\ns_barrier')
    a(f's_cmp_lg_u32 s{S_W}, 0\ns_cbranch_scc1 L_sig_{tag}')
    a(f'v_mov_b32 v{vt}, 1')
    a('s_mov_b64 exec, 1')
    a(f'global_atomic_add v{vz}, v{vt}, s[{P_DBG}:{P_DBG+1}] offset:{cnt_off} sc1')
    a('s_mov_b64 exec, -1')
    a.label(f'L_sig_{tag}')

def wait_counter(a, cnt_off, target, vt, vz, tag, acquire=False):
    a(f's_cmp_lg_u32 s{S_W}, 0\ns_cbranch_scc1 L_wc_{tag}')
    poll(a, cnt_off, target, vt, vz, tag)
    if acquire:
        a('buffer_inv sc1')
        a('s_waitcnt vmcnt(0)')
    a.label(f'L_wc_{tag}')
    a('s_barrier')

def code_prefetch(a, tag, tmp, dst, first_label, kib):
    a('s_getpc_b64 s[62:63]')
    a.label(f'L_pc_{tag}')
    a(f's_sub_u32 s62, s62, L_pc_{tag}-{first_label}')
    a('s_subb_u32 s63, s63, 0')
    a(f'v_lshlrev_b32 v{tmp}, 4, v{V_LANE}')
    a(f'v_mov_b32 v{tmp+1}, s63')
    a(f'v_add_co_u32 v{tmp}, vcc, s62, v{tmp}')
    a('s_nop 1')
    a(f'v_addc_co_u32 v{tmp+1}, vcc, 0, v{tmp+1}, vcc')
    for k in range(kib):
        a(f'global_load_dwordx4 {vr(dst,4)}, {vr(tmp,2)}, off')
        if k + 1 < kib:
            a(f'v_add_co_u32 v{tmp}, vcc, 0x400, v{tmp}')
            a('s_nop 1')
            a(f'v_addc_co_u32 v{tmp+1}, vcc, 0, v{tmp+1}, vcc')

def code_touch(a, tag, wave, t):
    a(f's_cmp_lg_u32 s{S_W}, {wave}\ns_cbranch_scc1 L_ct_{tag}')
    a('s_getpc_b64 s[62:63]')
    a.label(f'L_pc_{tag}')
    a(f's_sub_u32 s62, s62, L_pc_{tag}-{NAME}_kernel')
    a('s_subb_u32 s63, s63, 0')
    a(f's_lshr_b32 s61, s{S_H}, 3\ns_lshl_b32 s61, s61, 13')
    a(f'v_lshl_add_u32 v{t}, v{V_LANE}, 7, s61')
    a(f'v_min_u32 v{t}, L_exit-{NAME}_kernel, v{t}')
    a(f'v_mov_b32 v{t+1}, s63')
    a(f'v_add_co_u32 v{t}, vcc, s62, v{t}')
    a('s_nop 1')
    a(f'v_addc_co_u32 v{t+1}, vcc, 0, v{t+1}, vcc')
    a(f'global_load_dword v{t+2}, {vr(t,2)}, off')
    a.label(f'L_ct_{tag}')

def xrow_allreduce(a, op, x, tmp, steps=(16, 32)):
    for st in steps:
        a(f'v_mov_b32 v{tmp}, v{x}')
        a.nop(2)
        a(f'v_permlane{st}_swap_b32 v{x}, v{tmp}')
        a.nop(1)
        a(f'{op} v{x}, v{x}, v{tmp}')

def slice_loads(a, srd_, voff, dst, pol, kind, thr=0):
    n = 0
    if kind == 'rows':
        for s_ in range(16):
            if thr: a(f's_waitcnt vmcnt({thr-1})')
            a(f's_mov_b32 s62, {s_*(256 if CFG.fake else 8192)}')
            a(f'buffer_load_dwordx4 {vr(dst+4*s_,4)}, v{voff}, s[{srd_}:{srd_+3}], s62 offen {pol}')
    else:
        for s_ in range(4):
            for cb in range(4):
                if thr: a(f's_waitcnt vmcnt({thr-1})')
                a(f'buffer_load_dwordx4 {vr(dst+16*s_+4*cb,4)}, v{voff}, s[{srd_}:{srd_+3}], 0 offen offset:{s_*1024+cb*256} {pol}')

def rows_voff(a, v):
    a(f'v_lshlrev_b32 v{v}, {12 if CFG.fake else 17}, v{V_G}')
    a(f'v_lshl_add_u32 v{v}, v{V_C}, 4, v{v}')
    a(f's_lshl_b32 s62, s{S_W}, {14 if CFG.fake else 19}')
    if CFG.fake: a(f's_mul_i32 s61, s{S_H}, {131072 - 256}\ns_add_u32 s62, s62, s61')
    a(f'v_add_u32 v{v}, s62, v{v}')
def wo_voff(a, v):
    a(f'v_lshlrev_b32 v{v}, 12, v{V_G}')
    a(f'v_lshl_add_u32 v{v}, v{V_C}, 4, v{v}')
    a(f's_lshl_b32 s62, s{S_W}, 14')
    a(f'v_add_u32 v{v}, s62, v{v}')

def dtile_to_lds(a, D, tmp, base, wstride_sh, bstride_sh, ncb):
    a(f'v_lshrrev_b32 v{tmp}, 1, v{V_G}')
    a(f'v_lshlrev_b32 v{tmp}, {bstride_sh}, v{tmp}')
    a(f'v_lshl_add_u32 v{tmp}, v{V_C}, 5, v{tmp}')
    a(f'v_and_b32 v{tmp+1}, 1, v{V_G}')
    a(f'v_lshl_add_u32 v{tmp}, v{tmp+1}, 4, v{tmp}')
    a(f's_lshl_b32 s63, s{S_W}, {wstride_sh}')
    a(f'v_add_u32 v{tmp}, s63, v{tmp}')
    a.nop(2)
    for cb in range(ncb):
        if cb == ncb - 1: a.nop(6)
        a(f'ds_write_b128 v{tmp}, {vr(D+4*cb,4)} offset:{base + 512*cb}')


def q_reduce(a, D, tmp, L_QP, L_QB, tag):
    dtile_to_lds(a, D, tmp, L_QP, 10, 9, 1)
    a('s_waitcnt lgkmcnt(0)\ns_barrier')
    a(f's_cmp_ge_u32 s{S_W}, 4\ns_cbranch_scc1 L_{tag}_qskip')
    a(f'v_lshlrev_b32 v{tmp+2}, 2, v0')
    for w in range(8):
        a(f'ds_read_b32 v{tmp+4+w}, v{tmp+2} offset:{L_QP + 1024*w}')
    a('s_waitcnt lgkmcnt(0)')
    for w in range(1, 8):
        a(f'v_add_f32 v{tmp+4}, v{tmp+4}, v{tmp+4+w}')
    a(f'v_cvt_pk_bf16_f32 v{tmp+4}, v{tmp+4}, v{tmp+4}')
    a(f'v_lshlrev_b32 v{tmp+2}, 1, v0')
    a(f'ds_write_b16 v{tmp+2}, v{tmp+4} offset:{L_QB}')
    a('s_waitcnt lgkmcnt(0)')
    a.label(f'L_{tag}_qskip')
    a('s_barrier')

def role_A2(a, cfg):
    L_QP, L_QB, L_OB, L_SB, L_YB = 0, 8192, 8704, 12800, 16384
    SRD_K, SRD_V, SRD_W, SRD_X = 40, 44, 48, 52
    S_B, S_W4, S_N, S_SIG, S_IT = 35, 36, 37, 38, 39
    S_WOIT, S_RHO = 56, 57
    S_BIAS = 66
    U = cfg.U
    V_WOFF, V_Q = 9, 10
    V_OC, V_ON = [8, 14], [15, 250 - 1]
    V_K = 16
    V_V = V_K + 4 * U
    V_W = V_V + 4 * U
    V_X = V_W + 64
    V_T = V_X + 8
    V_P = V_T + U
    V_A = V_P + max(U, 4)
    V_ACC = V_A + 4 * max(U, 4)
    V_M, V_L, V_AL, V_MN, V_SC, V_XX, V_CLR, V_ZERO = [V_ACC + 4 + k for k in range(8)]
    V_Y = V_ACC + 12
    V_TMP = V_Y + 16
    V_CADDR, V_GRAB, V_ONE = V_TMP + 12, V_TMP + 13, V_TMP + 14
    V_ST = V_TMP + 12
    assert not (cfg.step and (cfg.dyn or cfg.ilv))
    S_UN = 59
    S_CU = 58
    NU, NWV = 2048 // U, 4 * NA
    dyn = cfg.dyn
    assert V_TMP + 15 <= 249 and V_M % 2 == 0
    V_S = V_K
    starts = [2048 * j // NA for j in range(NA + 1)]
    NIT = -(-max(starts[j+1] - starts[j] for j in range(NA)) // (4 * U))
    STEP = 4 * U * 1024
    L1, L2, N1 = cfg.L1, cfg.L2 or cfg.L1, min(cfg.N1, NIT)
    assert 1 <= L1 <= L2 <= 2 * U
    a.label('L_roleA')
    stamp(a, cfg, 0)
    a(f's_lshr_b32 s{S_B}, s{S_W}, 2')
    a(f's_and_b32 s{S_W4}, s{S_W}, 3')
    L_XA = 49152
    S_BASE = S_RHO
    srd(a, SRD_X, P_AX, nrec=2048)
    a(f's_cmp_ge_u32 s{S_W}, 2\ns_cbranch_scc1 L_A_nox')
    a(f'v_lshlrev_b32 v{V_TMP+2}, 4, v0')
    a(f'buffer_load_dwordx4 {vr(V_X,4)}, v{V_TMP+2}, s[{SRD_X}:{SRD_X+3}], 0 offen')
    a.label('L_A_nox')
    a(f's_lshl_b32 s62, s{S_H}, 8')
    a(f's_sub_u32 s63, {512*8192:#x}, s62')
    srd(a, SRD_W, P_AWQ, off_s=62, nrec_s=63)
    a(f's_mul_i32 s60, s{S_R}, {171 if cfg.rot else 0}\ns_lshr_b32 s60, s60, 3')
    a(f's_lshl_b32 s61, s{S_B}, 6\ns_add_u32 s60, s60, s61\ns_add_u32 s60, s60, s{S_W4}')
    a(f's_and_b32 s{S_BASE}, s60, 127')
    a(f'v_lshlrev_b32 v{V_TMP+1}, 13, v{V_G}')
    a(f'v_lshl_add_u32 v{V_TMP+1}, v{V_C}, 4, v{V_TMP+1}')
    for s in range(16):
        a(f's_add_u32 s62, s{S_BASE}, {4*s}\ns_and_b32 s62, s62, 127\ns_lshl_b32 s62, s62, 15')
        a(f'buffer_load_dwordx4 {vr(V_W+4*s,4)}, v{V_TMP+1}, s[{SRD_W}:{SRD_W+3}], s62 offen {cfg.wqpol}')
    a(f's_cmp_ge_u32 s{S_W}, 2\ns_cbranch_scc1 L_A_nox2')
    a(f'v_lshlrev_b32 v{V_TMP+2}, 4, v{V_LANE}')
    a(f's_lshl_b32 s62, s{S_W}, 11')
    a(f'v_add_u32 v{V_TMP+2}, s62, v{V_TMP+2}')
    a('s_waitcnt vmcnt(16)')
    a(f'ds_write_b128 v{V_TMP+2}, {vr(V_X,4)} offset:{L_XA}')
    a(f'ds_write_b128 v{V_TMP+2}, {vr(V_X,4)} offset:{L_XA + 1024}')
    a('s_waitcnt lgkmcnt(0)')
    a.label('L_A_nox2')
    if dyn:
        a(f's_lshl_b32 s62, s{S_B}, 5\ns_add_u32 s62, s62, s{S_H}')
        a(f's_lshl_b32 s61, s62, 7\ns_add_u32 s61, s61, {WS_CTR:#x}')
        a(f'v_mov_b32 v{V_CADDR}, s61')
        a(f'v_mov_b32 v{V_ONE}, 1')
        a(f's_lshl_b32 s62, s62, 21')
        a(f's_mov_b32 s63, {2 << 20:#x}')
        srd(a, SRD_K, P_AK, off_s=62, nrec_s=63)
        srd(a, SRD_V, P_AV, off_s=62, nrec_s=63)
        a(f's_lshl_b32 s60, s{S_R}, 2\ns_add_u32 s60, s60, s{S_W4}')
        a(f's_mul_i32 s62, s60, {U*1024}')
        a(f'v_lshl_add_u32 v{V_OC[0]}, v{V_LANE}, 4, s62')
        if U > 4: a(f'v_add_u32 v{V_OC[1]}, 0x1000, v{V_OC[0]}')
    elif cfg.ilv:
        UB = 4 * U * 1024
        NFULL = (2048 // (4 * U)) // NA
        REM0 = NFULL * NA * 4 * U
        rst = [REM0 + (2048 - REM0) * j // NA for j in range(NA + 1)]
        assert max(rst[j+1] - rst[j] for j in range(NA)) <= 4 * U and NFULL + 1 == NIT
        a(f's_mov_b32 s60, {rst[0]}\ns_mov_b32 s61, {rst[1]}')
        for j in range(1, NA):
            a(f's_cmp_eq_u32 s{S_R}, {j}')
            a(f's_cselect_b32 s60, {rst[j]}, s60')
            a(f's_cselect_b32 s61, {rst[j+1]}, s61')
        S_LAST = 58
        a(f's_lshl_b32 s{S_LAST}, s60, 10')
        a(f's_sub_u32 s{S_N}, s61, s60')
        a(f's_lshl_b32 s63, s61, 10')
        a(f's_lshl_b32 s62, s{S_B}, 5\ns_add_u32 s62, s62, s{S_H}')
        a(f's_lshl_b32 s62, s62, 21')
        srd(a, SRD_K, P_AK, off_s=62, nrec_s=63)
        srd(a, SRD_V, P_AV, off_s=62, nrec_s=63)
        NR = NFULL * NA
        S_U, S_WOF = 64, 65
        a(f's_mul_i32 s{S_WOF}, s{S_W4}, {U*1024}')
        a(f's_add_u32 s{S_LAST}, s{S_LAST}, s{S_WOF}')
        a(f's_lshl_b32 s62, s{S_B}, 5\ns_add_u32 s62, s62, s{S_H}')
        a(f's_mul_i32 s62, s62, {cfg.phi}')
        a(f's_mul_hi_u32 s61, s62, {-(-(1 << 32) // NR):#x}\ns_mul_i32 s61, s61, {NR}\ns_sub_u32 s62, s62, s61')
        a(f's_add_u32 s{S_U}, s62, s{S_R}')
        def wrap_u():
            a(f's_sub_u32 s61, s{S_U}, {NR}\ns_cmp_ge_u32 s{S_U}, {NR}\ns_cselect_b32 s{S_U}, s61, s{S_U}')
        def unit_off(dst):
            a(f's_mul_i32 s62, s{S_U}, {UB}\ns_add_u32 s62, s62, s{S_WOF}')
            a(f'v_lshl_add_u32 v{dst[0]}, v{V_LANE}, 4, s62')
            if U > 4: a(f'v_add_u32 v{dst[1]}, 0x1000, v{dst[0]}')
        wrap_u(); unit_off(V_OC)
        a(f's_add_u32 s{S_U}, s{S_U}, {NA}')
        wrap_u(); unit_off(V_ON)
    else:
        S_BA, S_BB = 74, 75
        if cfg.twop:
            NH = 5 if U == 8 else 10
            LO = NA * NH * 4 * U
            sb = [LO + (2048 - LO) * j // NA for j in range(NA + 1)]
            a(f's_mov_b32 s60, {sb[0]}\ns_mov_b32 s61, {sb[1]}')
            for j in range(1, NA):
                a(f's_cmp_eq_u32 s{S_R}, {j}')
                a(f's_cselect_b32 s60, {sb[j]}, s60')
                a(f's_cselect_b32 s61, {sb[j+1]}, s61')
            a(f's_sub_u32 s{S_N}, s61, s60\ns_add_u32 s{S_N}, s{S_N}, {NH*4*U}')
            a(f's_mul_i32 s{S_BA}, s{S_R}, {NH*4*U*1024}')
            a(f's_sub_u32 s{S_BB}, s60, {NH*4*U}\ns_lshl_b32 s{S_BB}, s{S_BB}, 10')
            a(f's_lshl_b32 s63, s61, 10')
            a(f's_lshl_b32 s62, s{S_B}, 5\ns_add_u32 s62, s62, s{S_H}')
            a(f's_lshl_b32 s62, s62, 21')
        else:
            a(f's_mov_b32 s60, 0\ns_mov_b32 s61, {starts[1]}')
            for j in range(1, NA):
                a(f's_cmp_eq_u32 s{S_R}, {j}')
                a(f's_cselect_b32 s60, {starts[j]}, s60')
                a(f's_cselect_b32 s61, {starts[j+1]}, s61')
            a(f's_sub_u32 s{S_N}, s61, s60')
            a(f's_lshl_b32 s62, s{S_B}, 5\ns_add_u32 s62, s62, s{S_H}')
            a(f's_lshl_b32 s62, s62, 21')
            a(f's_lshl_b32 s63, s60, 10\ns_add_u32 s62, s62, s63')
            a(f's_lshl_b32 s63, s{S_N}, 10')
        srd(a, SRD_K, P_AK, off_s=62, nrec_s=63)
        srd(a, SRD_V, P_AV, off_s=62, nrec_s=63)
        def part_base():
            if cfg.twop:
                a(f's_cmp_lt_u32 s{S_U}, {NH}\ns_cselect_b32 s61, s{S_BA}, s{S_BB}\ns_add_u32 s62, s62, s61')
        S_U, S_WOF = 64, 65
        a(f's_mul_i32 s{S_WOF}, s{S_W4}, {1024 if cfg.step else U*1024}')
        a(f's_mul_i32 s62, s{S_B}, {cfg.brot}')
        a(f's_mul_i32 s61, s{S_H}, {cfg.hrot2}\ns_add_u32 s62, s62, s61')
        a(f's_mul_i32 s61, s{S_R}, {cfg.jrot}\ns_add_u32 s62, s62, s61')
        a(f's_mul_hi_u32 s61, s62, {-(-(1 << 32) // NIT):#x}\ns_mul_i32 s61, s61, {NIT}\ns_sub_u32 s{S_U}, s62, s61')
        def wrap_u():
            a(f's_sub_u32 s61, s{S_U}, {NIT}\ns_cmp_ge_u32 s{S_U}, {NIT}\ns_cselect_b32 s{S_U}, s61, s{S_U}')
        def unit_off(dst):
            a(f's_mul_i32 s62, s{S_U}, {STEP}\ns_add_u32 s62, s62, s{S_WOF}')
            part_base()
            a(f'v_lshl_add_u32 v{dst[0]}, v{V_LANE}, 4, s62')
            if U > 4: a(f'v_add_u32 v{dst[1]}, 0x1000, v{dst[0]}')
        unit_off(V_OC)
        a(f's_mul_i32 s{S_CU}, s{S_U}, {4*U}')
        a(f's_add_u32 s{S_U}, s{S_U}, 1')
        wrap_u(); unit_off(V_ON)
    tog = [0]
    def slot_load(m):
        offs = V_OC if m < 2 * U else V_ON
        m %= 2 * U
        isv, i = m >= U, m % U
        dst = (V_V if isv else V_K) + 4 * i
        srd_ = SRD_V if isv else SRD_K
        pol = cfg.vpol if isv else cfg.kpol
        if cfg.step:
            if i == 0:
                a(f'buffer_load_dwordx4 {vr(dst,4)}, v{offs[0]}, s[{srd_}:{srd_+3}], 0 offen {pol}')
            else:
                t = V_ST + tog[0]; tog[0] ^= 1
                a(f'v_add_u32 v{t}, {4096*i}, v{offs[0]}')
                a(f'buffer_load_dwordx4 {vr(dst,4)}, v{t}, s[{srd_}:{srd_+3}], 0 offen {pol}')
        else:
            a(f'buffer_load_dwordx4 {vr(dst,4)}, v{offs[i // 4]}, s[{srd_}:{srd_+3}], 0 offen offset:{1024*(i%4)} {pol}')
    a(f'v_mov_b32 v{V_M}, 0xf149f2ca')
    a(f'v_mov_b32 v{V_L}, 0')
    for k in range(4): a(f'v_mov_b32 v{V_ACC+k}, 0')
    a(f'v_mov_b32 v{V_SC}, {f2u(SCALE):#x}')
    a(f'v_mov_b32 v{V_ZERO}, 0')
    if cfg.fine: stamp(a, cfg, 4)
    a('s_barrier')
    if cfg.fine: stamp(a, cfg, 5)
    ne = min(cfg.early, L1)
    XV = V_V
    a(f'v_lshrrev_b32 v{V_TMP}, 3, v{V_C}')
    a(f'v_lshlrev_b32 v{V_TMP}, 11, v{V_TMP}')
    a(f'v_lshl_add_u32 v{V_TMP}, v{V_G}, 1, v{V_TMP}')
    a(f's_lshl_b32 s62, s{S_BASE}, 3')
    a(f'v_add_u32 v{V_TMP}, s62, v{V_TMP}')
    for s in range(16):
        a(f'ds_read_u16 v{XV+s}, v{V_TMP} offset:{L_XA + 32*s}')
    nkv = 0
    nz = 0
    if dyn:
        a(f'global_load_dword v{V_GRAB}, v{V_ZERO}, s[{P_DBG}:{P_DBG+1}] offset:{CNT_Z} sc1'); nz = 1
    for s in range(16):
        t = V_TMP + 2 + (s & 1); A = V_A + 4 * (s & 1)
        a(f's_waitcnt lgkmcnt({15 - s})')
        a(f'v_lshl_or_b32 v{t}, v{XV+s}, 16, v{XV+s}')
        for i in range(4): a(f'v_and_b32 v{A+i}, v{t}, v{V_MASK+i}')
        a(f's_waitcnt vmcnt({15 - s + nkv + nz})')
        a('s_nop 0')
        c = '0' if s == 0 else vr(V_Y, 4)
        a(f'v_mfma_f32_16x16x32_bf16 {vr(V_Y,4)}, {vr(A,4)}, {vr(V_W+4*s,4)}, {c}')
        if s >= 16 - ne: slot_load(nkv); nkv += 1
    assert ne <= U
    if cfg.fine: stamp(a, cfg, 6)
    q_reduce(a, V_Y, V_TMP, L_QP, L_QB, 'A')
    for m in range(nkv, L1): slot_load(m)
    a(f'v_lshlrev_b32 v{V_TMP+2}, 4, v{V_C}')
    a(f's_lshl_b32 s62, s{S_B}, 8')
    a(f'v_add_u32 v{V_TMP+2}, s62, v{V_TMP+2}')
    a(f'ds_read_b128 {vr(V_Q,4)}, v{V_TMP+2} offset:{L_QB}')
    a(f's_lshl_b32 s62, s{S_H}, 17')
    a(f's_mov_b32 s63, {128*1024:#x}')
    srd(a, SRD_W, P_AWO, off_s=62, nrec_s=63)
    wo_voff(a, V_WOFF)
    a(f's_mul_i32 s{S_SIG}, s{S_W4}, {1 if cfg.step else U}')
    a(f's_mov_b32 s{S_IT}, 0')
    a(f's_mul_i32 s{S_WOIT}, s{S_R}, {cfg.wo_stag}\ns_add_u32 s{S_WOIT}, s{S_WOIT}, {cfg.wo_iter}')
    a('s_waitcnt lgkmcnt(0)')
    stamp(a, cfg, 1)
    if dyn:
        assert L1 == L2 and L1 < U
        a(f's_waitcnt vmcnt({L1})')
        a(f'v_readfirstlane_b32 s62, v{V_GRAB}')
        a('s_nop 3')
        a('s_cmp_ge_u32 s62, 32\ns_cbranch_scc1 L_A_z_ok')
        poll(a, CNT_Z, 32, V_GRAB, V_ZERO, 'A_z')
        a.label('L_A_z_ok')
    else:
        assert cfg.wo_iter + cfg.wo_stag * (NA - 1) < NIT - 1
    def body(L, tag, last_it):
        LK = [L] * (2 * U)
        if cfg.Lv:
            for n in range(2 * U):
                if cfg.Lpat[n % len(cfg.Lpat)] == '-' and n != 2 * U - 1: LK[n] = L - 1
        def issue(n):
            prev = (n - 1 + LK[n - 1]) if n > 0 else (L - 1)
            for m in range(prev + 1, n + LK[n] + 1): slot_load(m)
        def waitn(n):
            v = (LK[n - 1] if n > 0 else L) - 1
            if dyn and n < L: v += 1
            a(f's_waitcnt vmcnt({v})')
        N0 = 2 * U - L
        def next_unit():
            a(f'v_readfirstlane_b32 s{S_UN}, v{V_GRAB}')
            a('s_nop 3')
            a(f's_add_u32 s{S_UN}, s{S_UN}, {NWV}')
            a(f's_mul_i32 s62, s{S_UN}, {U*1024}')
            a(f'v_lshl_add_u32 v{V_ON[0]}, v{V_LANE}, 4, s62')
            if U > 4: a(f'v_add_u32 v{V_ON[1]}, 0x1000, v{V_ON[0]}')
            a(f's_cmp_lt_u32 s{S_UN}, {NU}\ns_cbranch_scc1 L_A_more{tag}')
            a(f'global_load_dword v{V_CLR}, v{V_ZERO}, s[{P_DBG}:{P_DBG+1}] offset:{CNT_Q} sc1')
            a.label(f'L_A_more{tag}')
        a('.p2align 6')
        a.label(f'L_A_loop{tag}')
        a(f's_cmp_lg_u32 s{S_IT}, s{S_WOIT}\ns_cbranch_scc1 L_A_nowo{tag}')
        slice_loads(a, SRD_W, V_WOFF, V_W, cfg.wopol, 'wo')
        if not dyn: a(f'global_load_dword v{V_CLR}, v{V_ZERO}, s[{P_DBG}:{P_DBG+1}] offset:{CNT_Q} sc1')
        a.label(f'L_A_nowo{tag}')
        if dyn:
            a('s_mov_b64 exec, 1')
            a(f'global_atomic_add v{V_GRAB}, v{V_CADDR}, v{V_ONE}, s[{P_WS}:{P_WS+1}] sc0 sc1')
            a('s_mov_b64 exec, -1')
        if cfg.loopst:
            for n, it in enumerate((2, 4, 6, 8)):
                a(f's_cmp_lg_u32 s{S_IT}, {it}\ns_cbranch_scc1 L_A_ls{n}{tag}')
                stamp(a, cfg, 4 + n)
                a.label(f'L_A_ls{n}{tag}')
        if cfg.ilv and not dyn:
            a(f's_cmp_eq_u32 s{S_IT}, {NIT-1}')
            a(f's_cselect_b32 s63, s{S_N}, {4*U}')
            for i in range(U):
                a(f's_add_u32 s62, s{S_SIG}, {i}')
                a(f's_cmp_lt_u32 s62, s63')
                a(f's_cselect_b32 s{S_BIAS+i}, 0, 0xff800000')
        elif not dyn:
            a(f's_add_u32 s63, s{S_SIG}, s{S_CU}')
            for i in range(U):
                a(f's_add_u32 s62, s63, {4*i if cfg.step else i}')
                a(f's_cmp_lt_u32 s62, s{S_N}')
                a(f's_cselect_b32 s{S_BIAS+i}, 0, 0xff800000')
        for i in range(U):
            waitn(i)
            a(f'v_dot2_f32_bf16 v{V_T+i}, v{V_K+4*i}, v{V_Q}, 0')
            for k in range(1, 4):
                a(f'v_dot2_f32_bf16 v{V_T+i}, v{V_K+4*i+k}, v{V_Q+k}, v{V_T+i}')
            issue(i)
        a.nop(2)
        for st in (8, 4, 2, 1):
            for i in range(U):
                a(f'v_add_f32_dpp v{V_T+i}, v{V_T+i}, v{V_T+i} row_ror:{st} row_mask:0xf bank_mask:0xf')
        for i in range(U):
            if dyn: a(f'v_mul_f32 v{V_T+i}, v{V_T+i}, v{V_SC}')
            else: a(f'v_fma_f32 v{V_T+i}, v{V_T+i}, v{V_SC}, s{S_BIAS+i}')
        a(f'v_max3_f32 v{V_XX}, v{V_T}, v{V_T+1}, v{V_T+2}')
        i = 3
        while i < U:
            if i + 1 < U: a(f'v_max3_f32 v{V_XX}, v{V_XX}, v{V_T+i}, v{V_T+i+1}'); i += 2
            else: a(f'v_max_f32 v{V_XX}, v{V_XX}, v{V_T+i}'); i += 1
        a.nop(2)
        a(f'v_max_f32_dpp v{V_XX}, v{V_XX}, v{V_XX} row_bcast:15 row_mask:0xa bank_mask:0xf')
        a.nop(2)
        a(f'v_max_f32_dpp v{V_XX}, v{V_XX}, v{V_XX} row_bcast:31 row_mask:0xc bank_mask:0xf')
        a.nop(1)
        a(f'v_readlane_b32 s62, v{V_XX}, 63')
        a.nop(2)
        a(f'v_max_f32 v{V_MN}, s62, v{V_M}')
        a(f'v_sub_f32 v{V_AL}, v{V_M}, v{V_MN}')
        for i in range(U):
            a(f'v_sub_f32 v{V_T+i}, v{V_T+i}, v{V_MN}')
        a(f'v_exp_f32 v{V_AL}, v{V_AL}')
        for i in range(U):
            a(f'v_exp_f32 v{V_T+i}, v{V_T+i}')
        a(f'v_mov_b32 v{V_M}, v{V_MN}')
        for k in range(4):
            a(f'v_mul_f32 v{V_ACC+k}, v{V_ACC+k}, v{V_AL}')
        for i in range(U):
            a(f'v_cvt_pk_bf16_f32 v{V_P+i}, v{V_T+i}, v{V_T+i}')
        a(f'v_mul_f32 v{V_L}, v{V_L}, v{V_AL}')
        for i in range(0, U, 2):
            a(f'v_add_f32 v{V_T+i}, v{V_T+i}, v{V_T+i+1}')
        for i in range(U):
            for k in range(4):
                a(f'v_and_b32 v{V_A+4*i+k}, v{V_P+i}, v{V_MASK+k}')
        for i in range(0, U, 2):
            a(f'v_add_f32 v{V_L}, v{V_L}, v{V_T+i}')
        for i in range(U):
            waitn(U + i)
            a(f'v_mfma_f32_16x16x32_bf16 {vr(V_ACC,4)}, {vr(V_A+4*i,4)}, {vr(V_V+4*i,4)}, {vr(V_ACC,4)}')
            if dyn and U + i == N0: next_unit()
            issue(U + i)
        for k in range(2 if U > 4 else 1):
            a(f'v_mov_b32 v{V_OC[k]}, v{V_ON[k]}')
        a(f's_add_u32 s{S_IT}, s{S_IT}, 1')
        if cfg.ilv and not dyn:
            a(f's_add_u32 s{S_U}, s{S_U}, {NA}')
            wrap_u()
            a(f's_mul_i32 s62, s{S_U}, {UB}\ns_add_u32 s62, s62, s{S_WOF}')
            a(f's_cmp_eq_u32 s{S_IT}, {NIT-2}\ns_cselect_b32 s62, s58, s62')
            a(f's_cmp_eq_u32 s{S_IT}, {NIT-1}\ns_cselect_b32 s62, {4 << 20:#x}, s62')
            a(f'v_lshl_add_u32 v{V_ON[0]}, v{V_LANE}, 4, s62')
            if U > 4: a(f'v_add_u32 v{V_ON[1]}, 0x1000, v{V_ON[0]}')
            a(f's_cmp_lt_u32 s{S_IT}, {last_it}')
        elif dyn:
            a(f's_cmp_lt_u32 s{S_UN}, {NU}')
        else:
            a(f's_mul_i32 s{S_CU}, s{S_U}, {4*U}')
            a(f's_add_u32 s{S_U}, s{S_U}, 1')
            wrap_u()
            a(f's_mul_i32 s62, s{S_U}, {STEP}\ns_add_u32 s62, s62, s{S_WOF}')
            part_base()
            a(f's_cmp_eq_u32 s{S_IT}, {NIT-1}\ns_cselect_b32 s62, {4 << 20:#x}, s62')
            a(f'v_lshl_add_u32 v{V_ON[0]}, v{V_LANE}, 4, s62')
            if U > 4: a(f'v_add_u32 v{V_ON[1]}, 0x1000, v{V_ON[0]}')
            a(f's_cmp_lt_u32 s{S_IT}, {last_it}')
        a(f's_cbranch_scc1 L_A_loop{tag}')
    if L2 != L1 and N1 < NIT:
        body(L1, 'a', N1)
        for m in range(L1, L2): slot_load(m)
        body(L2, 'b', NIT)
    else:
        body(L1, 'a', NIT)
    if dyn:
        a(f's_cmp_gt_u32 s{S_IT}, s{S_WOIT}\ns_cbranch_scc1 L_A_wo_ok')
        slice_loads(a, SRD_W, V_WOFF, V_W, cfg.wopol, 'wo')
        a.label('L_A_wo_ok')
    a('s_waitcnt vmcnt(0)')
    stamp(a, cfg, 2)
    role_A_tail(a, cfg, locals())

def role_A3(a, cfg):
    L_QP, L_QB, L_OB, L_SB, L_YB = 0, 8192, 8704, 12800, 16384
    SRD_K, SRD_V, SRD_W, SRD_X = 40, 44, 48, 52
    S_B, S_W4, S_N, S_SIG, S_IT = 35, 36, 37, 38, 39
    S_WOIT, S_RHO = 56, 57
    S_BIAS = 66
    U = cfg.U
    V_WOFF, V_Q = 9, 10
    V_OC, V_ON = [8, 14], [15, 250 - 1]
    V_K = 16
    V_V = V_K + 4 * U
    V_W = V_V + 4 * U
    V_X = V_W + 64
    V_T = V_X + 8
    V_P = V_T + U
    V_A = V_P + max(U, 4)
    V_ACC = V_A + 4 * max(U, 4)
    V_M, V_L, V_AL, V_MN, V_SC, V_XX, V_CLR, V_ZERO = [V_ACC + 4 + k for k in range(8)]
    V_Y = V_ACC + 12
    V_TMP = V_Y + 16
    V_CADDR, V_GRAB, V_ONE = V_TMP + 12, V_TMP + 13, V_TMP + 14
    V_ST = V_TMP + 12
    assert not (cfg.step and (cfg.dyn or cfg.ilv))
    S_UN = 59
    NOCLR = True
    S_CU = 58
    NU, NWV = 2048 // U, 4 * NA
    dyn = True
    assert V_TMP + 15 <= 249 and V_M % 2 == 0
    V_S = V_K
    starts = [2048 * j // NA for j in range(NA + 1)]
    NIT = -(-max(starts[j+1] - starts[j] for j in range(NA)) // (4 * U))
    STEP = 4 * U * 1024
    L1, L2, N1 = cfg.L1, cfg.L2 or cfg.L1, min(cfg.N1, NIT)
    assert 1 <= L1 <= L2 <= 2 * U
    a.label('L_roleA')
    stamp(a, cfg, 0)
    a(f's_lshr_b32 s{S_B}, s{S_W}, 2')
    a(f's_and_b32 s{S_W4}, s{S_W}, 3')
    L_XA = 49152
    S_BASE = S_RHO
    srd(a, SRD_X, P_AX, nrec=2048)
    a(f's_cmp_ge_u32 s{S_W}, 2\ns_cbranch_scc1 L_A_nox')
    a(f'v_lshlrev_b32 v{V_TMP+2}, 4, v0')
    a(f'buffer_load_dwordx4 {vr(V_X,4)}, v{V_TMP+2}, s[{SRD_X}:{SRD_X+3}], 0 offen')
    a.label('L_A_nox')
    a(f's_lshl_b32 s62, s{S_H}, 8')
    a(f's_sub_u32 s63, {512*8192:#x}, s62')
    srd(a, SRD_W, P_AWQ, off_s=62, nrec_s=63)
    a(f's_mul_i32 s60, s{S_R}, {171 if cfg.rot else 0}\ns_lshr_b32 s60, s60, 3')
    a(f's_lshl_b32 s61, s{S_B}, 6\ns_add_u32 s60, s60, s61\ns_add_u32 s60, s60, s{S_W4}')
    a(f's_and_b32 s{S_BASE}, s60, 127')
    a(f'v_lshlrev_b32 v{V_TMP+1}, 13, v{V_G}')
    a(f'v_lshl_add_u32 v{V_TMP+1}, v{V_C}, 4, v{V_TMP+1}')
    for s in range(16):
        a(f's_add_u32 s62, s{S_BASE}, {4*s}\ns_and_b32 s62, s62, 127\ns_lshl_b32 s62, s62, 15')
        a(f'buffer_load_dwordx4 {vr(V_W+4*s,4)}, v{V_TMP+1}, s[{SRD_W}:{SRD_W+3}], s62 offen {cfg.wqpol}')
    a(f's_cmp_ge_u32 s{S_W}, 2\ns_cbranch_scc1 L_A_nox2')
    a(f'v_lshlrev_b32 v{V_TMP+2}, 4, v{V_LANE}')
    a(f's_lshl_b32 s62, s{S_W}, 11')
    a(f'v_add_u32 v{V_TMP+2}, s62, v{V_TMP+2}')
    a('s_waitcnt vmcnt(16)')
    a(f'ds_write_b128 v{V_TMP+2}, {vr(V_X,4)} offset:{L_XA}')
    a(f'ds_write_b128 v{V_TMP+2}, {vr(V_X,4)} offset:{L_XA + 1024}')
    a('s_waitcnt lgkmcnt(0)')
    a.label('L_A_nox2')
    NS = cfg.NS
    assert U == 8 and not cfg.step and L1 <= U and L2 <= U and cfg.wo_iter + cfg.wo_stag * (NA - 1) < NS - 1
    a(f's_lshl_b32 s62, s{S_B}, 5\ns_add_u32 s62, s62, s{S_H}')
    a(f's_lshl_b32 s61, s62, 7\ns_add_u32 s61, s61, {WS_CTR:#x}')
    a(f'v_mov_b32 v{V_CADDR}, s61')
    a(f'v_mov_b32 v{V_ONE}, 1')
    a(f's_lshl_b32 s62, s62, 21')
    a(f's_mov_b32 s63, {2 << 20:#x}')
    srd(a, SRD_K, P_AK, off_s=62, nrec_s=63)
    srd(a, SRD_V, P_AV, off_s=62, nrec_s=63)
    S_U, S_WOF = 76, 77
    a(f's_mul_i32 s{S_WOF}, s{S_W4}, {U*1024}')
    a(f's_mul_i32 s61, s{S_R}, {NS*STEP}\ns_add_u32 s{S_WOF}, s{S_WOF}, s61')
    a(f's_mul_i32 s62, s{S_B}, {cfg.brot}')
    a(f's_mul_i32 s61, s{S_R}, {cfg.jrot}\ns_add_u32 s62, s62, s61')
    a(f's_mul_hi_u32 s61, s62, {-(-(1 << 32) // NS):#x}\ns_mul_i32 s61, s61, {NS}\ns_sub_u32 s{S_U}, s62, s61')
    def wrap_u():
        a(f's_sub_u32 s61, s{S_U}, {NS}\ns_cmp_ge_u32 s{S_U}, {NS}\ns_cselect_b32 s{S_U}, s61, s{S_U}')
    def unit_off(dst):
        a(f's_mul_i32 s62, s{S_U}, {STEP}\ns_add_u32 s62, s62, s{S_WOF}')
        a(f'v_lshl_add_u32 v{dst[0]}, v{V_LANE}, 4, s62')
        a(f'v_add_u32 v{dst[1]}, 0x1000, v{dst[0]}')
    unit_off(V_OC)
    a(f's_add_u32 s{S_U}, s{S_U}, 1')
    wrap_u(); unit_off(V_ON)
    tog = [0]
    def slot_load(m):
        offs = V_OC if m < 2 * U else V_ON
        m %= 2 * U
        isv, i = m >= U, m % U
        dst = (V_V if isv else V_K) + 4 * i
        srd_ = SRD_V if isv else SRD_K
        pol = cfg.vpol if isv else cfg.kpol
        if cfg.step:
            if i == 0:
                a(f'buffer_load_dwordx4 {vr(dst,4)}, v{offs[0]}, s[{srd_}:{srd_+3}], 0 offen {pol}')
            else:
                t = V_ST + tog[0]; tog[0] ^= 1
                a(f'v_add_u32 v{t}, {4096*i}, v{offs[0]}')
                a(f'buffer_load_dwordx4 {vr(dst,4)}, v{t}, s[{srd_}:{srd_+3}], 0 offen {pol}')
        else:
            a(f'buffer_load_dwordx4 {vr(dst,4)}, v{offs[i // 4]}, s[{srd_}:{srd_+3}], 0 offen offset:{1024*(i%4)} {pol}')
    a(f'v_mov_b32 v{V_M}, 0xff800000')
    a(f'v_mov_b32 v{V_L}, 0')
    for k in range(4): a(f'v_mov_b32 v{V_ACC+k}, 0')
    a(f'v_mov_b32 v{V_SC}, {f2u(SCALE):#x}')
    a(f'v_mov_b32 v{V_ZERO}, 0')
    a(f'ds_write_b32 v{V_ZERO}, v{V_ZERO} offset:12928')
    if cfg.ctl: a(f'ds_write_b32 v{V_ZERO}, v{V_ZERO} offset:12932')
    a('s_waitcnt lgkmcnt(0)')
    if cfg.fine: stamp(a, cfg, 4)
    a('s_barrier')
    if cfg.fine: stamp(a, cfg, 5)
    ne = min(cfg.early, L1)
    XV = V_V
    a(f'v_lshrrev_b32 v{V_TMP}, 3, v{V_C}')
    a(f'v_lshlrev_b32 v{V_TMP}, 11, v{V_TMP}')
    a(f'v_lshl_add_u32 v{V_TMP}, v{V_G}, 1, v{V_TMP}')
    a(f's_lshl_b32 s62, s{S_BASE}, 3')
    a(f'v_add_u32 v{V_TMP}, s62, v{V_TMP}')
    for s in range(16):
        a(f'ds_read_u16 v{XV+s}, v{V_TMP} offset:{L_XA + 32*s}')
    nkv = 0
    nz = 0
    if cfg.q2:
        AO = [V_A + 4 * s for s in range(8)] + [V_V + 16 + 4 * s for s in range(4)] + [V_T + 4 * s for s in range(4)]
        assert V_P == V_T + 8
        for s in range(16):
            t = V_TMP + 2 + (s & 1)
            a(f's_waitcnt lgkmcnt({15 - s})')
            a(f'v_lshl_or_b32 v{t}, v{XV+s}, 16, v{XV+s}')
            for i in range(4): a(f'v_and_b32 v{AO[s]+i}, v{t}, v{V_MASK+i}')
        a('s_nop 0')
        for s in range(16):
            a(f's_waitcnt vmcnt({15 - s + nkv + nz})')
            acc = V_Y + 4 * (s & 1)
            c = '0' if s < 2 else vr(acc, 4)
            a(f'v_mfma_f32_16x16x32_bf16 {vr(acc,4)}, {vr(AO[s],4)}, {vr(V_W+4*s,4)}, {c}')
            if s >= 16 - ne: slot_load(nkv); nkv += 1
        a.nop(8)
        for k in range(4): a(f'v_add_f32 v{V_Y+k}, v{V_Y+k}, v{V_Y+4+k}')
    else:
      for s in range(16):
        t = V_TMP + 2 + (s & 1); A = V_A + 4 * (s & 1)
        a(f's_waitcnt lgkmcnt({15 - s})')
        a(f'v_lshl_or_b32 v{t}, v{XV+s}, 16, v{XV+s}')
        for i in range(4): a(f'v_and_b32 v{A+i}, v{t}, v{V_MASK+i}')
        a(f's_waitcnt vmcnt({15 - s + nkv + nz})')
        a('s_nop 0')
        c = '0' if s == 0 else vr(V_Y, 4)
        a(f'v_mfma_f32_16x16x32_bf16 {vr(V_Y,4)}, {vr(A,4)}, {vr(V_W+4*s,4)}, {c}')
        if s >= 16 - ne: slot_load(nkv); nkv += 1
    assert ne <= U
    if cfg.fine: stamp(a, cfg, 6)
    q_reduce(a, V_Y, V_TMP, L_QP, L_QB, 'A')
    for m in range(nkv, L1): slot_load(m)
    a(f'v_lshlrev_b32 v{V_TMP+2}, 4, v{V_C}')
    a(f's_lshl_b32 s62, s{S_B}, 8')
    a(f'v_add_u32 v{V_TMP+2}, s62, v{V_TMP+2}')
    a(f'ds_read_b128 {vr(V_Q,4)}, v{V_TMP+2} offset:{L_QB}')
    a(f's_lshl_b32 s62, s{S_H}, 17')
    a(f's_mov_b32 s63, {128*1024:#x}')
    srd(a, SRD_W, P_AWO, off_s=62, nrec_s=63)
    wo_voff(a, V_WOFF)
    a(f's_mul_i32 s{S_SIG}, s{S_W4}, {1 if cfg.step else U}')
    a(f's_mov_b32 s{S_IT}, 0')
    a(f's_mul_i32 s{S_WOIT}, s{S_R}, {cfg.wo_stag}\ns_add_u32 s{S_WOIT}, s{S_WOIT}, {cfg.wo_iter}')
    a('s_waitcnt lgkmcnt(0)')
    stamp(a, cfg, 1)
    L_FLAG = 12928
    L_MODE = 12932
    V_PADR, V_MADR, V_MODE, V_PRG = V_TMP + 15, V_TMP + 16, V_TMP + 17, V_TMP + 18
    S_SLOW, S_FLG = 79, 80
    if cfg.ctl:
        assert V_PRG < 249 and cfg.xthr < 0
        a(f's_lshl_b32 s62, s{S_H}, 3\ns_add_u32 s62, s62, s{S_R}\ns_lshl_b32 s62, s62, 7\ns_add_u32 s62, s62, {WS_PROG:#x}')
        a(f'v_mov_b32 v{V_PADR}, s62')
        a(f's_lshl_b32 s62, s{S_H}, 7\ns_add_u32 s62, s62, {WS_MEAN:#x}')
        a(f'v_mov_b32 v{V_MADR}, s62')
        a(f'v_mov_b32 v{V_MODE}, 0')
        a(f's_mov_b32 s{S_SLOW}, 0\ns_mov_b32 s{S_FLG}, 0')
    assert cfg.chk_it + 1 < NS - 1
    S_BHC, S_BHN = 81, 82
    def softmax(U, hb=False):
        a.nop(2)
        for st in (8, 4, 2, 1):
            for i in range(U):
                a(f'v_add_f32_dpp v{V_T+i}, v{V_T+i}, v{V_T+i} row_ror:{st} row_mask:0xf bank_mask:0xf')
        for i in range(U):
            if hb and i >= 4: a(f'v_fma_f32 v{V_T+i}, v{V_T+i}, v{V_SC}, s{S_BHC}')
            else: a(f'v_mul_f32 v{V_T+i}, v{V_T+i}, v{V_SC}')
        a(f'v_max3_f32 v{V_XX}, v{V_T}, v{V_T+1}, v{V_T+2}')
        i = 3
        while i < U:
            if i + 1 < U: a(f'v_max3_f32 v{V_XX}, v{V_XX}, v{V_T+i}, v{V_T+i+1}'); i += 2
            else: a(f'v_max_f32 v{V_XX}, v{V_XX}, v{V_T+i}'); i += 1
        a.nop(2)
        a(f'v_max_f32_dpp v{V_XX}, v{V_XX}, v{V_XX} row_bcast:15 row_mask:0xa bank_mask:0xf')
        a.nop(2)
        a(f'v_max_f32_dpp v{V_XX}, v{V_XX}, v{V_XX} row_bcast:31 row_mask:0xc bank_mask:0xf')
        a.nop(1)
        a(f'v_readlane_b32 s62, v{V_XX}, 63')
        a.nop(2)
        a(f'v_max_f32 v{V_MN}, s62, v{V_M}')
        a(f'v_sub_f32 v{V_AL}, v{V_M}, v{V_MN}')
        for i in range(U):
            a(f'v_sub_f32 v{V_T+i}, v{V_T+i}, v{V_MN}')
        a(f'v_exp_f32 v{V_AL}, v{V_AL}')
        for i in range(U):
            a(f'v_exp_f32 v{V_T+i}, v{V_T+i}')
        a(f'v_mov_b32 v{V_M}, v{V_MN}')
        for k in range(4):
            a(f'v_mul_f32 v{V_ACC+k}, v{V_ACC+k}, v{V_AL}')
        for i in range(U):
            a(f'v_cvt_pk_bf16_f32 v{V_P+i}, v{V_T+i}, v{V_T+i}')
        a(f'v_mul_f32 v{V_L}, v{V_L}, v{V_AL}')
        for i in range(0, U, 2):
            a(f'v_add_f32 v{V_T+i}, v{V_T+i}, v{V_T+i+1}')
        for i in range(U):
            for k in range(4):
                a(f'v_and_b32 v{V_A+4*i+k}, v{V_P+i}, v{V_MASK+k}')
        for i in range(0, U, 2):
            a(f'v_add_f32 v{V_L}, v{V_L}, v{V_T+i}')
    HF = 2 if cfg.d4 else 1
    def flag_wait():
        a('s_mov_b32 s64, 0')
        a.label('L_A_flag')
        a(f'ds_read_b32 v{V_CLR}, v{V_ZERO} offset:{L_FLAG}')
        a('s_waitcnt lgkmcnt(0)')
        a(f'v_readfirstlane_b32 s62, v{V_CLR}')
        a('s_add_u32 s64, s64, 1')
        a('s_nop 2')
        a('s_cmp_lg_u32 s62, 0\ns_cbranch_scc1 L_A_flag_ok')
        a('s_sleep 8')
        a(f's_cmp_lt_u32 s64, {1 << 20}\ns_cbranch_scc1 L_A_flag')
        a.label('L_A_flag_ok')
    def body(L, tag, mode, last=None, slow=False):
        grab = mode != 'S'
        LK = [L] * (2 * U)
        if slow: LK = [L - cfg.slowd] * (2 * U - 1) + [L]
        def issue(n):
            prev = (n - 1 + LK[n - 1]) if n > 0 else (L - 1)
            for m in range(prev + 1, n + LK[n] + 1): slot_load(m)
        def waitn(n):
            v = (LK[n - 1] if n > 0 else L) - 1
            if grab and n < L: v += 1
            if mode == 'S' and n < L and cfg.wox:
                a(f's_cmp_eq_u32 s{S_IT}, s{S_WOIT}\ns_cbranch_scc1 L_A_wx{tag}{n}')
                a(f's_waitcnt vmcnt({v})')
                a.label(f'L_A_wx{tag}{n}')
                a(f's_waitcnt vmcnt({v + 16})')
                return
            a(f's_waitcnt vmcnt({v})')
        N0 = 2 * U - L
        def next_unit():
            a(f'v_readfirstlane_b32 s{S_UN}, v{V_GRAB}')
            a('s_nop 3')
            if cfg.half:
                NF = cfg.NF
                POOL0 = NS * NWV * 2
                a(f's_lshl_b32 s62, s{S_UN}, 1')
                a(f's_add_u32 s63, s{S_UN}, {NF}')
                a(f's_cmp_lt_u32 s{S_UN}, {NF}')
                a(f's_cselect_b32 s{S_UN}, s62, s63')
                a(f's_cselect_b32 s{S_BHN}, 0, 0xff800000')
                a(f's_mov_b32 s63, {4 << 20:#x}\ns_cselect_b32 s63, 0x1000, s63')
                a(f's_add_u32 s{S_UN}, s{S_UN}, {POOL0}')
                a(f's_lshl_b32 s62, s{S_UN}, 12')
                a(f'v_lshl_add_u32 v{V_ON[0]}, v{V_LANE}, 4, s62')
                a(f'v_add_u32 v{V_ON[1]}, s63, v{V_ON[0]}')
            else:
                a(f's_add_u32 s{S_UN}, s{S_UN}, {NS*NWV*HF}')
                a(f's_mul_i32 s62, s{S_UN}, {U*1024//HF}')
                a(f'v_lshl_add_u32 v{V_ON[0]}, v{V_LANE}, 4, s62')
                a(f'v_add_u32 v{V_ON[1]}, 0x1000, v{V_ON[0]}')
            if cfg.d4:
                a('s_mov_b64 exec, 1')
                a(f'global_atomic_add v{V_GRAB}, v{V_CADDR}, v{V_ONE}, s[{P_WS}:{P_WS+1}] sc0 {cfg.gsc}')
                a('s_mov_b64 exec, -1')
        if mode != 'T': a('.p2align 6')
        a.label(f'L_A_loop{tag}')
        if mode == 'S':
            a(f's_cmp_lg_u32 s{S_IT}, s{S_WOIT}\ns_cbranch_scc1 L_A_nowo{tag}')
            slice_loads(a, SRD_W, V_WOFF, V_W, cfg.wopol, 'wo')
            a.label(f'L_A_nowo{tag}')
            if not cfg.ctl:
                a(f's_cmp_lg_u32 s{S_W}, 0\ns_cbranch_scc1 L_A_nochk{tag}')
                a(f's_cmp_lg_u32 s{S_IT}, {cfg.chk_it}\ns_cbranch_scc1 L_A_nold{tag}')
                a(f'global_load_dword v{V_CLR}, v{V_ZERO}, s[{P_DBG}:{P_DBG+1}] offset:{CNT_Q} sc1')
                a.label(f'L_A_nold{tag}')
                a(f's_cmp_lg_u32 s{S_IT}, {cfg.chk_it + 1}\ns_cbranch_scc1 L_A_nochk{tag}')
                a(f'v_readfirstlane_b32 s62, v{V_CLR}')
                a('s_nop 3')
                a(f's_cmp_ge_u32 s62, 32\ns_cbranch_scc1 L_A_q_ok{tag}')
                poll(a, CNT_Q, 32, V_CLR, V_ZERO, f'A_q{tag}')
                a.label(f'L_A_q_ok{tag}')
                a(f'v_mov_b32 v{V_CLR}, 1')
                a(f'ds_write_b32 v{V_ZERO}, v{V_CLR} offset:{L_FLAG}')
                a.label(f'L_A_nochk{tag}')
            else:
                a(f's_cmp_lg_u32 s{S_W}, 0\ns_cbranch_scc1 L_A_nochk{tag}')
                a(f's_cmp_lt_u32 s{S_IT}, 2\ns_cbranch_scc1 L_A_c0{tag}')
                a(f's_cmp_lg_u32 s{S_FLG}, 0\ns_cbranch_scc1 L_A_c1{tag}')
                a(f's_cmp_lt_u32 s{S_IT}, 3\ns_cbranch_scc1 L_A_c2{tag}')
                a(f'v_readfirstlane_b32 s62, v{V_CLR}')
                a('s_nop 3')
                a(f's_cmp_ge_u32 s62, 32\ns_cbranch_scc1 L_A_c3{tag}')
                a(f's_cmp_lt_u32 s{S_IT}, {NS - 2}\ns_cbranch_scc1 L_A_c2{tag}')
                poll(a, CNT_Q, 32, V_CLR, V_ZERO, f'A_q{tag}')
                a.label(f'L_A_c3{tag}')
                a(f's_mov_b32 s{S_FLG}, 1')
                a(f'v_mov_b32 v{V_CLR}, 1')
                a(f'ds_write_b32 v{V_ZERO}, v{V_CLR} offset:{L_FLAG}')
                a(f'global_load_dword v{V_GRAB}, v{V_MADR}, s[{P_WS}:{P_WS+1}] sc1')
                a(f's_branch L_A_c0{tag}')
                a.label(f'L_A_c2{tag}')
                a(f'global_load_dword v{V_CLR}, v{V_ZERO}, s[{P_DBG}:{P_DBG+1}] offset:{CNT_Q} sc1')
                a(f's_branch L_A_c0{tag}')
                a.label(f'L_A_c1{tag}')
                a(f'v_readfirstlane_b32 s62, v{V_GRAB}')
                a(f's_sub_u32 s63, s{S_IT}, 1\ns_mul_i32 s63, s63, 192')
                a('s_nop 1')
                a(f's_add_u32 s62, s62, {cfg.theta}')
                a('s_cmp_gt_u32 s63, s62\ns_cselect_b32 s63, 1, 0')
                a(f's_cmp_eq_u32 s62, {cfg.theta}\ns_cselect_b32 s63, 0, s63')
                a(f'v_mov_b32 v{V_PRG}, s63')
                a(f'ds_write_b32 v{V_ZERO}, v{V_PRG} offset:{L_MODE}')
                a(f'global_load_dword v{V_GRAB}, v{V_MADR}, s[{P_WS}:{P_WS+1}] sc1')
                a.label(f'L_A_c0{tag}')
                a(f'v_mov_b32 v{V_PRG}, s{S_IT}')
                a('s_mov_b64 exec, 1')
                a(f'global_store_dword v{V_PADR}, v{V_PRG}, s[{P_WS}:{P_WS+1}] sc1')
                a('s_mov_b64 exec, -1')
                a.label(f'L_A_nochk{tag}')
        if mode == 'T': flag_wait()
        if grab:
            a('s_mov_b64 exec, 1')
            a(f'global_atomic_add v{V_GRAB}, v{V_CADDR}, v{V_ONE}, s[{P_WS}:{P_WS+1}] sc0 {cfg.gsc}')
            a('s_mov_b64 exec, -1')
        for i in range(U):
            waitn(i)
            a(f'v_dot2_f32_bf16 v{V_T+i}, v{V_K+4*i}, v{V_Q}, 0')
            for k in range(1, 4):
                a(f'v_dot2_f32_bf16 v{V_T+i}, v{V_K+4*i+k}, v{V_Q+k}, v{V_T+i}')
            if grab and i == N0: next_unit()
            issue(i)
        softmax(U, hb=(cfg.half and mode == 'D'))
        for i in range(U):
            waitn(U + i)
            a(f'v_mfma_f32_16x16x32_bf16 {vr(V_ACC,4)}, {vr(V_A+4*i,4)}, {vr(V_V+4*i,4)}, {vr(V_ACC,4)}')
            if grab and U + i == N0: next_unit()
            issue(U + i)
        for k in range(2):
            a(f'v_mov_b32 v{V_OC[k]}, v{V_ON[k]}')
        a(f's_add_u32 s{S_IT}, s{S_IT}, 1')
        if mode == 'S':
            if cfg.ctl: a(f'ds_read_b32 v{V_MODE}, v{V_ZERO} offset:{L_MODE}')
            a(f's_add_u32 s{S_U}, s{S_U}, 1')
            wrap_u(); unit_off(V_ON)
            a(f's_cmp_lt_u32 s{S_IT}, {last}')
            if cfg.xthr >= 0 or cfg.ctl:
                a(f's_cbranch_scc1 L_A_sel')
                if not slow: a('s_branch L_A_sdone')
            else:
                a(f's_cbranch_scc1 L_A_loop{tag}')
        elif mode == 'T':
            a(f's_cmp_ge_u32 s{S_UN}, {NU*HF}\ns_cbranch_scc1 L_A_done')
        else:
            if cfg.half: a(f's_mov_b32 s{S_BHC}, s{S_BHN}')
            a(f's_cmp_lt_u32 s{S_UN}, {NU * (2 if cfg.half else 1)}')
            a(f's_cbranch_scc1 L_A_loop{tag}')
    NH1 = min(cfg.N1, NS - 1)
    if cfg.ctl:
        a.label('L_A_sel')
        a('s_waitcnt lgkmcnt(0)')
        a(f'v_readfirstlane_b32 s{S_SLOW}, v{V_MODE}')
        a('s_nop 3')
        a(f's_cmp_eq_u32 s{S_SLOW}, 0\ns_cbranch_scc0 L_A_loopw')
        body(L1, 'a', 'S', NH1)
        body(L1, 'w', 'S', NH1, slow=True)
        a.label('L_A_sdone')
    elif cfg.xthr >= 0:
        S_SLOW = 79
        a(f's_and_b32 s62, s2, 7\ns_lshr_b32 s{S_SLOW}, {cfg.xthr}, s62\ns_and_b32 s{S_SLOW}, s{S_SLOW}, 1')
        a.label('L_A_sel')
        a(f's_cmp_eq_u32 s{S_SLOW}, 0\ns_cbranch_scc1 L_A_loopa')
        a(f's_cmp_lt_u32 s{S_IT}, {cfg.xa}\ns_cbranch_scc1 L_A_loopa')
        a(f's_cmp_lt_u32 s{S_IT}, {cfg.xb}\ns_cbranch_scc1 L_A_loopw')
        a('s_branch L_A_loopa')
        body(L1, 'a', 'S', NH1)
        body(L1, 'w', 'S', NH1, slow=True)
        a.label('L_A_sdone')
    else:
        body(L1, 'a', 'S', NH1)
    if cfg.d4:
        assert NH1 == NS - 1 and L1 == 4
        body(L1, 't', 'T')
        for i in range(4): slot_load(U + i)
        a('.p2align 6')
        a.label('L_A_loopd')
        a('s_waitcnt vmcnt(6)')
        a(f'v_readfirstlane_b32 s{S_UN}, v{V_GRAB}')
        a('s_nop 3')
        a(f's_add_u32 s{S_UN}, s{S_UN}, {NS*NWV*HF}')
        a(f's_mul_i32 s62, s{S_UN}, {U*1024//HF}')
        a(f'v_lshl_add_u32 v{V_ON[0]}, v{V_LANE}, 4, s62')
        for n in range(4):
            a(f's_waitcnt vmcnt({7 if n <= 2 else 8})')
            a(f'v_dot2_f32_bf16 v{V_T+n}, v{V_K+4*n}, v{V_Q}, 0')
            for k in range(1, 4):
                a(f'v_dot2_f32_bf16 v{V_T+n}, v{V_K+4*n+k}, v{V_Q+k}, v{V_T+n}')
            if n == 2:
                a('s_mov_b64 exec, 1')
                a(f'global_atomic_add v{V_GRAB}, v{V_CADDR}, v{V_ONE}, s[{P_WS}:{P_WS+1}] sc0 {cfg.gsc}')
                a('s_mov_b64 exec, -1')
            slot_load(2 * U + n)
        softmax(4)
        for n in range(4):
            a('s_waitcnt vmcnt(8)')
            a(f'v_mfma_f32_16x16x32_bf16 {vr(V_ACC,4)}, {vr(V_A+4*n,4)}, {vr(V_V+4*n,4)}, {vr(V_ACC,4)}')
            slot_load(2 * U + U + n)
        a(f's_cmp_lt_u32 s{S_UN}, {NU*HF}')
        a('s_cbranch_scc1 L_A_loopd')
    elif cfg.noT:
        assert NH1 == NS - 1
        for m in range(L1, L2): slot_load(m)
        flag_wait()
        if cfg.half: a(f's_mov_b32 s{S_BHC}, 0')
        body(L2, 'b', 'D')
    else:
        if NH1 < NS - 1:
            for m in range(L1, L2): slot_load(m)
            body(L2, 's', 'S', NS - 1)
            body(L2, 't', 'T')
        else:
            body(L1, 't', 'T')
            for m in range(L1, L2): slot_load(m)
        body(L2, 'b', 'D')
    a.label('L_A_done')
    stamp(a, cfg, 2)
    TAIL_ST, TAIL_OV = V_T, V_A + 16
    role_A_tail(a, cfg, locals())

def role_A_tail(a, cfg, R):
    g = lambda n: R[n]
    V_CLR, V_ZERO, V_L, V_M, V_TMP, V_ACC, V_MN, V_XX = [g(n) for n in ('V_CLR', 'V_ZERO', 'V_L', 'V_M', 'V_TMP', 'V_ACC', 'V_MN', 'V_XX')]
    V_S, V_P, V_A, V_Y, V_W = [g(n) for n in ('V_S', 'V_P', 'V_A', 'V_Y', 'V_W')]
    S_B, S_W4 = g('S_B'), g('S_W4')
    L_OB, L_SB, L_YB = g('L_OB'), g('L_SB'), g('L_YB')
    if 'W' in cfg.roles and 'NOCLR' not in R:
        a(f'v_readfirstlane_b32 s62, v{V_CLR}')
        a('s_nop 3')
        a('s_cmp_ge_u32 s62, 32\ns_cbranch_scc1 L_A_clr_ok')
        poll(a, CNT_Q, 32, V_CLR, V_ZERO, 'A_clr')
        a.label('L_A_clr_ok')
    a(f'v_add_f32_dpp v{V_L}, v{V_L}, v{V_L} row_bcast:15 row_mask:0xa bank_mask:0xf')
    a.nop(2)
    a(f'v_add_f32_dpp v{V_L}, v{V_L}, v{V_L} row_bcast:31 row_mask:0xc bank_mask:0xf')
    a.nop(1)
    a(f'v_readlane_b32 s62, v{V_L}, 63')
    a(f'v_lshlrev_b32 v{V_TMP}, 5, v{V_C}')
    a(f'v_lshl_add_u32 v{V_TMP}, v{V_G}, 4, v{V_TMP}')
    a(f's_lshl_b32 s60, s{S_B}, 2\ns_add_u32 s60, s60, s{S_W4}')
    a(f's_lshl_b32 s63, s60, 9')
    a(f'v_add_u32 v{V_TMP}, s63, v{V_TMP}')
    a(f'v_mov_b32 v{V_M+1}, s62')
    a(f's_lshl_b32 s63, s60, 3')
    a(f'v_mov_b32 v{V_TMP+1}, s63')
    a('s_mov_b32 exec_hi, 0')
    a(f'ds_write_b128 v{V_TMP}, {vr(V_ACC,4)} offset:{L_OB}')
    a('s_mov_b64 exec, 1')
    a(f'ds_write_b64 v{V_TMP+1}, {vr(V_M,2)} offset:{L_SB}')
    a('s_mov_b64 exec, -1')
    a('s_waitcnt lgkmcnt(0)\ns_barrier')
    a(f'v_lshrrev_b32 v{V_TMP}, 3, v{V_C}')
    a(f'v_lshlrev_b32 v{V_TMP+1}, 5, v{V_TMP}')
    ST = R.get('TAIL_ST', V_S)
    OV = R.get('TAIL_OV', V_S + 8)
    a(f'ds_read_b128 {vr(ST,4)}, v{V_TMP+1} offset:{L_SB}')
    a(f'ds_read_b128 {vr(ST+4,4)}, v{V_TMP+1} offset:{L_SB+16}')
    a(f'v_lshlrev_b32 v{V_TMP+1}, 11, v{V_TMP}')
    a(f'v_lshl_add_u32 v{V_TMP+1}, v{V_G}, 4, v{V_TMP+1}')
    a(f's_lshl_b32 s63, s{S_W}, 6')
    a(f'v_add_u32 v{V_TMP+1}, s63, v{V_TMP+1}')
    for k in range(4):
        a(f'ds_read_b128 {vr(OV+4*k,4)}, v{V_TMP+1} offset:{L_OB + 512*k}')
    a('s_waitcnt lgkmcnt(4)')
    m0, l0, m1, l1, m2, l2, m3, l3 = [ST + i for i in range(8)]
    a(f'v_max3_f32 v{V_MN}, v{m0}, v{m1}, v{m2}')
    a(f'v_max_f32 v{V_MN}, v{V_MN}, v{m3}')
    for m in (m0, m1, m2, m3): a(f'v_sub_f32 v{m}, v{m}, v{V_MN}')
    for m in (m0, m1, m2, m3): a(f'v_exp_f32 v{m}, v{m}')
    a('s_nop 0')
    a(f'v_mul_f32 v{V_XX}, v{m0}, v{l0}')
    a(f'v_fma_f32 v{V_XX}, v{m1}, v{l1}, v{V_XX}')
    a(f'v_fma_f32 v{V_XX}, v{m2}, v{l2}, v{V_XX}')
    a(f'v_fma_f32 v{V_XX}, v{m3}, v{l3}, v{V_XX}')
    a('s_waitcnt lgkmcnt(0)')
    for s in range(4):
        a(f'v_mul_f32 v{OV+s}, v{OV+s}, v{m0}')
    for k, m in ((1, m1), (2, m2), (3, m3)):
        for s in range(4):
            a(f'v_fma_f32 v{OV+s}, v{OV+4*k+s}, v{m}, v{OV+s}')
    for s in range(4):
        a(f'v_cvt_pk_bf16_f32 v{V_P+s}, v{OV+s}, v{OV+s}')
    for s in range(4):
        for k in range(4):
            a(f'v_and_b32 v{V_A+4*s+k}, v{V_P+s}, v{V_MASK+k}')
    a('s_nop 1')
    for s in range(4):
        for cb in range(4):
            c = '0' if s == 0 else vr(V_Y+4*cb, 4)
            a(f'v_mfma_f32_16x16x32_bf16 {vr(V_Y+4*cb,4)}, {vr(V_A+4*s,4)}, {vr(V_W+16*s+4*cb,4)}, {c}')
    dtile_to_lds(a, V_Y, V_TMP, L_YB, 12, 11, 4)
    a(f's_lshl_b32 s62, s{S_H}, 3\ns_add_u32 s62, s62, s{S_R}')
    a('s_waitcnt lgkmcnt(0)\ns_barrier')
    a(f's_cmp_ge_u32 s{S_W}, 4\ns_cbranch_scc1 L_A_stats')
    a(f'v_lshlrev_b32 v{V_TMP}, 4, v0')
    for w in range(8):
        a(f'ds_read_b128 {vr(V_W+4*w,4)}, v{V_TMP} offset:{L_YB + 4096*w}')
    a(f'v_lshrrev_b32 v{V_TMP+1}, 7, v0')
    a(f'v_lshlrev_b32 v{V_TMP+1}, 18, v{V_TMP+1}')
    a(f'v_and_b32 v{V_TMP+2}, 127, v0')
    a(f'v_lshl_add_u32 v{V_TMP+1}, v{V_TMP+2}, 3, v{V_TMP+1}')
    a(f's_lshl_b32 s63, s62, 10\ns_add_u32 s63, s63, {WS_YA:#x}')
    a(f'v_add_u32 v{V_TMP+1}, s63, v{V_TMP+1}')
    for w in range(1, 8):
        a(f's_waitcnt lgkmcnt({7-w})')
        for k in range(4):
            a(f'v_add_f32 v{V_W+k}, v{V_W+k}, v{V_W+4*w+k}')
    a(f'v_cvt_pk_bf16_f32 v{V_W}, v{V_W}, v{V_W+1}')
    a(f'v_cvt_pk_bf16_f32 v{V_W+1}, v{V_W+2}, v{V_W+3}')
    for k in range(2):
        a(f'v_min_u32 v{V_W+k}, 0xfffffffe, v{V_W+k}')
    a(f'global_store_dwordx2 v{V_TMP+1}, {vr(V_W,2)}, s[{P_WS}:{P_WS+1}] sc1')
    a('s_branch L_A_end')
    a.label('L_A_stats')
    a(f's_cmp_lg_u32 s{S_W}, 4\ns_cbranch_scc1 L_A_end')
    a(f'v_lshrrev_b32 v{V_TMP}, 3, v{V_LANE}')
    a(f'v_lshlrev_b32 v{V_TMP}, 11, v{V_TMP}')
    a(f's_lshl_b32 s63, s62, 3\ns_add_u32 s63, s63, {WS_YSTAT:#x}')
    a(f'v_add_u32 v{V_TMP}, s63, v{V_TMP}')
    a(f'v_min_u32 v{V_TMP+2}, 0xfffffffe, v{V_MN}')
    a(f'v_min_u32 v{V_TMP+3}, 0xfffffffe, v{V_XX}')
    a('s_mov_b64 exec, 0x101')
    a(f'global_store_dwordx2 v{V_TMP}, {vr(V_TMP+2,2)}, s[{P_WS}:{P_WS+1}] sc1')
    a.label('L_A_end')
    stamp(a, cfg, 3)
    if cfg.aend: span_mark(a, cfg, True)
    a('s_endpgm')

def role_A(a, cfg):
    L_QP, L_QB, L_OB, L_SB, L_YB = 0, 8192, 8704, 12800, 16384
    SRD_K, SRD_V, SRD_W, SRD_X = 40, 44, 48, 52
    S_B, S_W4, S_N, S_SIG, S_IT = 35, 36, 37, 38, 39
    S_WOIT, S_RHO = 56, 57
    S_BIAS = 66
    U = cfg.U
    V_OFF, V_WOFF, V_Q, V_OFF2 = 8, 9, 10, 14
    V_K = 16
    V_V = V_K + 4 * U
    V_W = V_V + 4 * U
    V_X = V_W + 64
    V_T = V_X + 8
    V_P = V_T + U
    V_A = V_P + max(U, 4)
    V_ACC = V_A + 4 * max(U, 4)
    V_M, V_L, V_AL, V_MN, V_SC, V_XX, V_CLR, V_ZERO = [V_ACC + 4 + k for k in range(8)]
    V_Y = V_ACC + 12
    V_TMP = V_Y + 16
    assert V_TMP + 15 <= 250 and V_M % 2 == 0
    V_S = V_K
    a.label('L_roleA')
    stamp(a, cfg, 0)
    S_NONCE, S_BLK = 58, 59
    SRD_WS = SRD_X
    a(f's_lshr_b32 s{S_B}, s{S_W}, 2')
    if cfg.swapb: a(f's_xor_b32 s{S_B}, s{S_B}, 1')
    a(f's_and_b32 s{S_W4}, s{S_W}, 3')
    starts = [2048 * j // NA for j in range(NA + 1)]
    NU = 2048 // U
    NWV = 4 * NA
    S_UN, V_CADDR, V_GRAB, V_ONE = 59, V_TMP + 12, V_TMP + 13, V_TMP + 14
    if cfg.dyn:
        a(f's_lshl_b32 s62, s{S_B}, 5\ns_add_u32 s62, s62, s{S_H}')
        a(f's_lshl_b32 s61, s62, 7\ns_add_u32 s61, s61, {WS_CTR:#x}')
        a(f'v_mov_b32 v{V_CADDR}, s61')
        a(f'v_mov_b32 v{V_ONE}, 1')
        a(f's_lshl_b32 s62, s62, 21')
        a(f's_mov_b32 s63, {2 << 20:#x}')
        srd(a, SRD_K, P_AK, off_s=62, nrec_s=63)
        srd(a, SRD_V, P_AV, off_s=62, nrec_s=63)
        a(f's_lshl_b32 s{S_UN}, s{S_R}, 2\ns_add_u32 s{S_UN}, s{S_UN}, s{S_W4}')
        a(f's_mul_i32 s62, s{S_UN}, {U*1024}')
        a(f'v_lshl_add_u32 v{V_OFF}, v{V_LANE}, 4, s62')
        a(f'v_add_u32 v{V_OFF2}, 0x1000, v{V_OFF}')
    else:
        a(f's_mov_b32 s60, 0\ns_mov_b32 s61, {starts[1]}')
        for j in range(1, NA):
            a(f's_cmp_eq_u32 s{S_R}, {j}')
            a(f's_cselect_b32 s60, {starts[j]}, s60')
            a(f's_cselect_b32 s61, {starts[j+1]}, s61')
        a(f's_sub_u32 s{S_N}, s61, s60')
        a(f's_lshl_b32 s62, s{S_B}, 5\ns_add_u32 s62, s62, s{S_H}')
        a(f's_lshl_b32 s62, s62, 21')
        a(f's_lshl_b32 s63, s60, 10\ns_add_u32 s62, s62, s63')
        a(f's_lshl_b32 s63, s{S_N}, 10')
        srd(a, SRD_K, P_AK, off_s=62, nrec_s=63)
        srd(a, SRD_V, P_AV, off_s=62, nrec_s=63)
        a(f'v_lshlrev_b32 v{V_OFF}, 4, v{V_LANE}')
        a(f's_mul_i32 s62, s{S_W4}, {U*1024}')
        a(f'v_add_u32 v{V_OFF}, s62, v{V_OFF}')
        a(f'v_add_u32 v{V_OFF2}, 0x1000, v{V_OFF}')
    def kv_load(dst, srd_, i, pol):
        vo = V_OFF if i < 4 else V_OFF2
        a(f'buffer_load_dwordx4 {vr(dst+4*i,4)}, v{vo}, s[{srd_}:{srd_+3}], 0 offen offset:{1024*(i%4)} {pol}')
    STEP = (NWV if cfg.dyn else 4) * U * 1024
    a(f'v_mov_b32 v{V_M}, 0xff800000')
    a(f'v_mov_b32 v{V_L}, 0')
    for k in range(4): a(f'v_mov_b32 v{V_ACC+k}, 0')
    a(f'v_mov_b32 v{V_SC}, {f2u(SCALE):#x}')
    a(f'v_mov_b32 v{V_ZERO}, 0')
    if cfg.qmode == 'red':
        srd(a, SRD_X, P_AX, nrec=2048)
        a(f's_lshl_b32 s62, s{S_H}, 8')
        a(f's_sub_u32 s63, {512*8192:#x}, s62')
        srd(a, SRD_W, P_AWQ, off_s=62, nrec_s=63)
        a(f's_and_b32 s60, s{S_R}, 1\ns_lshl_b32 s60, s60, 2\ns_add_u32 s60, s60, s{S_W}\ns_and_b32 s60, s60, 7')
        a(f's_bfe_u32 s{S_RHO}, s{S_R}, 0x10001')
        if not cfg.rot:
            a(f's_mov_b32 s60, s{S_W}\ns_mov_b32 s{S_RHO}, 0')
        a(f'v_lshrrev_b32 v{V_TMP}, 3, v{V_C}')
        a(f'v_lshlrev_b32 v{V_TMP}, 10, v{V_TMP}')
        a(f'v_lshl_add_u32 v{V_TMP}, v{V_G}, 5, v{V_TMP}')
        a(f's_lshl_b32 s62, s60, 7')
        a(f'v_add_u32 v{V_TMP}, s62, v{V_TMP}')
        a(f's_lshl_b32 s62, s{S_RHO}, 4\ns_xor_b32 s63, s62, 16')
        a(f'buffer_load_dwordx4 {vr(V_X,4)}, v{V_TMP}, s[{SRD_X}:{SRD_X+3}], s62 offen')
        a(f'buffer_load_dwordx4 {vr(V_X+4,4)}, v{V_TMP}, s[{SRD_X}:{SRD_X+3}], s63 offen')
        a(f'v_lshlrev_b32 v{V_TMP+1}, 17, v{V_G}')
        a(f'v_lshl_add_u32 v{V_TMP+1}, v{V_C}, 4, v{V_TMP+1}')
        a(f's_lshl_b32 s62, s60, 19')
        a(f'v_add_u32 v{V_TMP+1}, s62, v{V_TMP+1}')
        a(f's_lshl_b32 s61, s{S_RHO}, 16')
        for s in range(16):
            a(f's_xor_b32 s62, s61, {(s // 8) * 65536}\ns_add_u32 s62, s62, {(s % 8) * 8192}')
            a(f'buffer_load_dwordx4 {vr(V_W+4*s,4)}, v{V_TMP+1}, s[{SRD_W}:{SRD_W+3}], s62 offen {cfg.wqpol}')
        a('s_barrier')
        kvl = [(V_K, SRD_K, i, cfg.kpol) for i in range(U)] + [(V_V, SRD_V, i, cfg.vpol) for i in range(U)]
        ne = cfg.early
        a(f's_waitcnt vmcnt(16)')
        if cfg.dyn: a(f'global_load_dword v{V_GRAB}, v{V_ZERO}, s[{P_DBG}:{P_DBG+1}] offset:{CNT_Z} sc1')
        done = [1 if cfg.dyn else 0]
        first = done[0]
        def early(s):
            if s >= 16 - ne: kv_load(*kvl[done[0] - first]); done[0] += 1
        for s in range(16):
            sel = '0x01000100' if s % 2 == 0 else '0x03020302'
            t = V_TMP + (s & 1); A = V_A + 4 * (s & 1)
            a(f's_mov_b32 s60, {sel}')
            a(f'v_perm_b32 v{t}, v{V_X + s//2}, v{V_X + s//2}, s60')
            for i in range(4): a(f'v_and_b32 v{A+i}, v{t}, v{V_MASK+i}')
            a(f's_waitcnt vmcnt({15 - s + done[0]})')
            a('s_nop 0')
            c = '0' if s == 0 else vr(V_Y, 4)
            a(f'v_mfma_f32_16x16x32_bf16 {vr(V_Y,4)}, {vr(A,4)}, {vr(V_W+4*s,4)}, {c}')
            early(s)
        q_reduce(a, V_Y, V_TMP, L_QP, L_QB, 'A')
        for x in kvl[done[0] - first:]: kv_load(*x)
        a(f'v_add_u32 v{V_OFF}, {STEP:#x}, v{V_OFF}')
        a(f'v_add_u32 v{V_OFF2}, {STEP:#x}, v{V_OFF2}')
    else:
        a(f's_mov_b32 s{S_BLK}, s{S_R}')
        a(f's_cmp_eq_u32 s{S_W}, 0\ns_cbranch_scc1 L_A_task')
        a(f's_add_u32 s{S_BLK}, s{S_R}, 6')
        a(f's_cmp_lg_u32 s{S_W}, 1\ns_cbranch_scc1 L_A_notask')
        a(f's_cmp_ge_u32 s{S_R}, 2\ns_cbranch_scc1 L_A_notask')
        a.label('L_A_task')
        a('s_setprio 3')
        a(f'v_mov_b32 v{V_TMP+2}, {WS_NONCE:#x}')
        a(f'global_load_dword v{V_CLR}, v{V_TMP+2}, s[{P_WS}:{P_WS+1}]')
        srd(a, SRD_X, P_AX, nrec=2048)
        a(f's_lshl_b32 s62, s{S_H}, 8')
        a(f's_sub_u32 s63, {512*8192:#x}, s62')
        srd(a, SRD_W, P_AWQ, off_s=62, nrec_s=63)
        a(f'v_lshrrev_b32 v{V_TMP}, 3, v{V_C}')
        a(f'v_lshlrev_b32 v{V_TMP}, 10, v{V_TMP}')
        a(f'v_lshl_add_u32 v{V_TMP}, v{V_G}, 5, v{V_TMP}')
        a(f's_lshl_b32 s62, s{S_BLK}, 7')
        a(f'v_add_u32 v{V_TMP}, s62, v{V_TMP}')
        a(f'buffer_load_dwordx4 {vr(V_X,4)}, v{V_TMP}, s[{SRD_X}:{SRD_X+3}], 0 offen')
        a(f'buffer_load_dwordx4 {vr(V_X+4,4)}, v{V_TMP}, s[{SRD_X}:{SRD_X+3}], 0 offen offset:16')
        a(f'v_lshlrev_b32 v{V_TMP+1}, 17, v{V_G}')
        a(f'v_lshl_add_u32 v{V_TMP+1}, v{V_C}, 4, v{V_TMP+1}')
        a(f's_lshl_b32 s62, s{S_BLK}, 19')
        a(f'v_add_u32 v{V_TMP+1}, s62, v{V_TMP+1}')
        for s in range(16):
            a(f's_mov_b32 s62, {s*8192}')
            a(f'buffer_load_dwordx4 {vr(V_W+4*s,4)}, v{V_TMP+1}, s[{SRD_W}:{SRD_W+3}], s62 offen {cfg.wqpol}')
        a('s_barrier')
        srd(a, SRD_WS, P_WS, nrec=0x1000000)
        a(f's_waitcnt vmcnt(16)')
        a(f'v_readfirstlane_b32 s{S_NONCE}, v{V_CLR}')
        rowcomb(a, cfg, V_X, V_W, V_Y, V_A, V_TMP, 0)
        a(f's_add_u32 s{S_NONCE}, s{S_NONCE}, {GOLDEN:#x}')
        a(f's_lshl_b32 s62, s{S_H}, 3\ns_add_u32 s62, s62, s{S_BLK}\ns_lshl_b32 s62, s62, 11\ns_add_u32 s62, s62, {WS_QA:#x}')
        a(f'v_lshl_add_u32 v{V_TMP}, v{V_LANE}, 5, s62')
        G0 = V_A
        for k in (1, 3, 5, 7): a(f'v_mov_b32 v{G0+k}, s{S_NONCE}')
        a.nop(3)
        for k in range(4): a(f'v_mov_b32 v{G0+2*k}, v{V_Y+k}')
        a(f'buffer_store_dwordx4 {vr(G0,4)}, v{V_TMP}, s[{SRD_WS}:{SRD_WS+3}], 0 offen sc1')
        a(f'buffer_store_dwordx4 {vr(G0+4,4)}, v{V_TMP}, s[{SRD_WS}:{SRD_WS+3}], 0 offen offset:16 sc1')
        if cfg.fine: stamp(a, cfg, 4)
        a(f's_cmp_lg_u32 s{S_W}, 0\ns_cbranch_scc1 L_A_kv0p')
        a(f's_lshl_b32 s62, s{S_H}, 14\ns_add_u32 s62, s62, {WS_QA:#x}')
        a(f'v_lshl_add_u32 v{V_TMP}, v{V_LANE}, 5, s62')
        a(f'v_mov_b32 v{V_TMP+1}, s{S_NONCE}')
        R = V_W
        a('s_mov_b32 s64, 0xff\ns_mov_b32 s65, 0')
        a.label('L_A_qpoll')
        for r in range(8):
            a(f's_bitcmp1_b32 s64, {r}\ns_cbranch_scc0 L_A_qp{r}')
            a(f's_mov_b32 s62, {r*2048}')
            a(f'buffer_load_dwordx4 {vr(R+8*r,4)}, v{V_TMP}, s[{SRD_WS}:{SRD_WS+3}], s62 offen sc1')
            a(f'buffer_load_dwordx4 {vr(R+8*r+4,4)}, v{V_TMP}, s[{SRD_WS}:{SRD_WS+3}], s62 offen offset:16 sc1')
            a.label(f'L_A_qp{r}')
        a('s_waitcnt vmcnt(0)')
        for r in range(8):
            t = V_TMP + 2 + (r % 4)
            a(f'v_xor_b32 v{t}, v{R+8*r+1}, v{V_TMP+1}')
            a(f'v_xor_b32 v{V_TMP+6}, v{R+8*r+3}, v{V_TMP+1}')
            a(f'v_xor_b32 v{V_TMP+7}, v{R+8*r+5}, v{V_TMP+1}')
            a(f'v_or3_b32 v{t}, v{t}, v{V_TMP+6}, v{V_TMP+7}')
            a(f'v_xor_b32 v{V_TMP+6}, v{R+8*r+7}, v{V_TMP+1}')
            a(f'v_or_b32 v{t}, v{t}, v{V_TMP+6}')
            a(f'v_cmp_ne_u32 vcc, 0, v{t}')
            a('s_nop 0')
            a(f's_cmp_eq_u64 vcc, 0')
            a(f's_cselect_b32 s62, {(~(1 << r)) & 0xffffffff:#x}, -1')
            a('s_and_b32 s64, s64, s62')
        a('s_cmp_eq_u32 s64, 0\ns_cbranch_scc1 L_A_qdone')
        a('s_add_u32 s65, s65, 1')
        a(f's_cmp_lt_u32 s65, {SPIN_LIMIT}\ns_cbranch_scc1 L_A_qpoll')
        a.label('L_A_qdone')
        for k in range(4):
            a(f'v_add_f32 v{V_Y+k}, v{R+2*k}, v{R+8+2*k}')
        for r in range(2, 8):
            for k in range(4):
                a(f'v_add_f32 v{V_Y+k}, v{V_Y+k}, v{R+8*r+2*k}')
        a(f'v_cvt_pk_bf16_f32 v{V_TMP+2}, v{V_Y}, v{V_Y+1}')
        a(f'v_cvt_pk_bf16_f32 v{V_TMP+3}, v{V_Y+2}, v{V_Y+3}')
        a(f'v_lshrrev_b32 v{V_TMP}, 1, v{V_G}')
        a(f'v_lshlrev_b32 v{V_TMP}, 8, v{V_TMP}')
        a(f'v_lshl_add_u32 v{V_TMP}, v{V_C}, 4, v{V_TMP}')
        a(f'v_and_b32 v{V_TMP+1}, 1, v{V_G}')
        a(f'v_lshl_add_u32 v{V_TMP}, v{V_TMP+1}, 3, v{V_TMP}')
        a(f'ds_write_b64 v{V_TMP}, {vr(V_TMP+2,2)} offset:{L_QB}')
        if cfg.fine: stamp(a, cfg, 5)
        a.label('L_A_kv0p')
        a('s_setprio 0')
        a('s_branch L_A_kv0')
        a.label('L_A_notask')
        a('s_barrier')
        a.label('L_A_kv0')
        n = 0
        for dst, srd_, pol in ((V_K, SRD_K, cfg.kpol), (V_V, SRD_V, cfg.vpol)):
            for i in range(U):
                if n >= cfg.thr: a(f's_waitcnt vmcnt({cfg.thr - 1})')
                kv_load(dst, srd_, i, pol); n += 1
        a(f'v_add_u32 v{V_OFF}, {STEP:#x}, v{V_OFF}')
        a(f'v_add_u32 v{V_OFF2}, {STEP:#x}, v{V_OFF2}')
        if cfg.fine: stamp(a, cfg, 6)
        a('s_waitcnt lgkmcnt(0)\ns_barrier')
    a(f'v_lshlrev_b32 v{V_TMP+2}, 4, v{V_C}')
    a(f's_lshl_b32 s62, s{S_B}, 8')
    a(f'v_add_u32 v{V_TMP+2}, s62, v{V_TMP+2}')
    a(f'ds_read_b128 {vr(V_Q,4)}, v{V_TMP+2} offset:{L_QB}')
    a(f's_lshl_b32 s62, s{S_H}, 17')
    a(f's_mov_b32 s63, {128*1024:#x}')
    srd(a, SRD_W, P_AWO, off_s=62, nrec_s=63)
    wo_voff(a, V_WOFF)
    a(f's_mul_i32 s{S_SIG}, s{S_W4}, {U}')
    a(f's_mov_b32 s{S_IT}, 0')
    a(f's_mul_i32 s{S_WOIT}, s{S_R}, {cfg.wo_stag}\ns_add_u32 s{S_WOIT}, s{S_WOIT}, {cfg.wo_iter}')
    a('s_waitcnt lgkmcnt(0)')
    stamp(a, cfg, 1)
    NIT = -(-max(starts[j+1] - starts[j] for j in range(NA)) // (4 * U))
    NV = 2 * U - 1
    if cfg.dyn:
        NV = 2 * U
        assert cfg.qmode == 'red'
        a(f's_waitcnt vmcnt({2*U})')
        a(f'v_readfirstlane_b32 s62, v{V_GRAB}')
        a('s_nop 3')
        a('s_cmp_ge_u32 s62, 32\ns_cbranch_scc1 L_A_z_ok')
        poll(a, CNT_Z, 32, V_GRAB, V_ZERO, 'A_z')
        a.label('L_A_z_ok')
        a(f's_sub_u32 s62, s{S_UN}, {NWV}')
        a(f'v_mov_b32 v{V_GRAB}, s62')
    else:
        assert cfg.wo_iter + cfg.wo_stag * (NA - 1) < NIT - 1
    a('.p2align 6')
    a.label('L_A_loop')
    if cfg.dyn:
        a(f's_waitcnt vmcnt({2*U - 1})')
        a(f'v_readfirstlane_b32 s{S_UN}, v{V_GRAB}')
        a('s_mov_b64 exec, 1')
        a(f'global_atomic_add v{V_GRAB}, v{V_CADDR}, v{V_ONE}, s[{P_WS}:{P_WS+1}] sc0 sc1')
        a('s_mov_b64 exec, -1')
        a(f's_add_u32 s{S_UN}, s{S_UN}, {2*NWV}')
        a(f's_mul_i32 s62, s{S_UN}, {U*1024}')
        a(f'v_lshl_add_u32 v{V_OFF}, v{V_LANE}, 4, s62')
        a(f'v_add_u32 v{V_OFF2}, 0x1000, v{V_OFF}')
        a(f's_cmp_lt_u32 s{S_UN}, {NU}\ns_cbranch_scc1 L_A_more')
        a(f'global_load_dword v{V_CLR}, v{V_ZERO}, s[{P_DBG}:{P_DBG+1}] offset:{CNT_Q} sc1')
        a.label('L_A_more')
        a(f's_cmp_lg_u32 s{S_IT}, 1\ns_cbranch_scc1 L_A_nowo')
        slice_loads(a, SRD_W, V_WOFF, V_W, cfg.wopol, 'wo')
        a.label('L_A_nowo')
    else:
        a(f's_cmp_lg_u32 s{S_IT}, s{S_WOIT}\ns_cbranch_scc1 L_A_nowo')
        slice_loads(a, SRD_W, V_WOFF, V_W, cfg.wopol, 'wo')
        a(f'global_load_dword v{V_CLR}, v{V_ZERO}, s[{P_DBG}:{P_DBG+1}] offset:{CNT_Q} sc1')
        a.label('L_A_nowo')
    if cfg.loopst:
        for n, it in enumerate((2, 5, 8)):
            a(f's_cmp_lg_u32 s{S_IT}, {it}\ns_cbranch_scc1 L_A_ls{n}')
            stamp(a, cfg, 4 + n)
            a.label(f'L_A_ls{n}')
    if not cfg.dyn:
        for i in range(U):
            a(f's_add_u32 s62, s{S_SIG}, {i}')
            a(f's_cmp_lt_u32 s62, s{S_N}')
            a(f's_cselect_b32 s{S_BIAS+i}, 0, 0xff800000')
    for i in range(U):
        a(f's_waitcnt vmcnt({NV})')
        a(f'v_dot2_f32_bf16 v{V_T+i}, v{V_K+4*i}, v{V_Q}, 0')
        for k in range(1, 4):
            a(f'v_dot2_f32_bf16 v{V_T+i}, v{V_K+4*i+k}, v{V_Q+k}, v{V_T+i}')
        kv_load(V_K, SRD_K, i, cfg.kpol)
    a.nop(2)
    for st in (8, 4, 2, 1):
        for i in range(U):
            a(f'v_add_f32_dpp v{V_T+i}, v{V_T+i}, v{V_T+i} row_ror:{st} row_mask:0xf bank_mask:0xf')
    for i in range(U):
        if cfg.dyn: a(f'v_mul_f32 v{V_T+i}, v{V_T+i}, v{V_SC}')
        else: a(f'v_fma_f32 v{V_T+i}, v{V_T+i}, v{V_SC}, s{S_BIAS+i}')
    a(f'v_max3_f32 v{V_XX}, v{V_T}, v{V_T+1}, v{V_T+2}')
    i = 3
    while i < U:
        if i + 1 < U: a(f'v_max3_f32 v{V_XX}, v{V_XX}, v{V_T+i}, v{V_T+i+1}'); i += 2
        else: a(f'v_max_f32 v{V_XX}, v{V_XX}, v{V_T+i}'); i += 1
    a.nop(2)
    a(f'v_max_f32_dpp v{V_XX}, v{V_XX}, v{V_XX} row_bcast:15 row_mask:0xa bank_mask:0xf')
    a.nop(2)
    a(f'v_max_f32_dpp v{V_XX}, v{V_XX}, v{V_XX} row_bcast:31 row_mask:0xc bank_mask:0xf')
    a.nop(1)
    a(f'v_readlane_b32 s62, v{V_XX}, 63')
    a.nop(2)
    a(f'v_max_f32 v{V_MN}, s62, v{V_M}')
    a(f'v_sub_f32 v{V_AL}, v{V_M}, v{V_MN}')
    for i in range(U):
        a(f'v_sub_f32 v{V_T+i}, v{V_T+i}, v{V_MN}')
    a(f'v_exp_f32 v{V_AL}, v{V_AL}')
    for i in range(U):
        a(f'v_exp_f32 v{V_T+i}, v{V_T+i}')
    a(f'v_mov_b32 v{V_M}, v{V_MN}')
    for k in range(4):
        a(f'v_mul_f32 v{V_ACC+k}, v{V_ACC+k}, v{V_AL}')
    for i in range(U):
        a(f'v_cvt_pk_bf16_f32 v{V_P+i}, v{V_T+i}, v{V_T+i}')
    a(f'v_mul_f32 v{V_L}, v{V_L}, v{V_AL}')
    for i in range(0, U, 2):
        a(f'v_add_f32 v{V_T+i}, v{V_T+i}, v{V_T+i+1}')
    for i in range(U):
        for k in range(4):
            a(f'v_and_b32 v{V_A+4*i+k}, v{V_P+i}, v{V_MASK+k}')
    for i in range(0, U, 2):
        a(f'v_add_f32 v{V_L}, v{V_L}, v{V_T+i}')
    for i in range(U):
        a(f's_waitcnt vmcnt({NV})')
        a(f'v_mfma_f32_16x16x32_bf16 {vr(V_ACC,4)}, {vr(V_A+4*i,4)}, {vr(V_V+4*i,4)}, {vr(V_ACC,4)}')
        kv_load(V_V, SRD_V, i, cfg.vpol)
    a(f's_add_u32 s{S_IT}, s{S_IT}, 1')
    if cfg.dyn:
        a(f's_cmp_lt_u32 s{S_UN}, {NU}')
    else:
        a(f'v_add_u32 v{V_OFF}, {STEP:#x}, v{V_OFF}')
        a(f'v_add_u32 v{V_OFF2}, {STEP:#x}, v{V_OFF2}')
        a(f's_add_u32 s{S_SIG}, s{S_SIG}, {4*U}')
        a(f's_cmp_lt_u32 s{S_IT}, {NIT}')
    a('s_cbranch_scc1 L_A_loop')
    a('s_waitcnt vmcnt(0)')
    stamp(a, cfg, 2)
    role_A_tail(a, cfg, locals())

def build(cfg):
    global CFG
    CFG = cfg
    a = Asm()
    hdr = open(__import__('os').path.join(__import__('os').path.dirname(__import__('os').path.abspath(__file__)), 'header.txt')).read().rstrip('\n')
    a(hdr)
    a(f'; @launch grid=(256,1,1) block=(512,1,1) lds={LDS_BYTES}')
    for l in DESCRIPTION.strip().split('\n'): a('; ' + l)
    a('.amdgcn_target "amdgcn-amd-amdhsa--gfx950"')
    a('.text')
    a(f'.globl {NAME}_kernel')
    a('.p2align 8')
    a(f'.type {NAME}_kernel,@function')
    a.label(f'{NAME}_kernel')
    a('s_cmp_ge_u32 s2, 256\ns_cbranch_scc1 L_exit')
    if cfg.idrot: a(f's_lshl_b32 s60, s2, {cfg.idrot}\ns_lshr_b32 s2, s2, {8 - cfg.idrot}\ns_or_b32 s2, s2, s60\ns_and_b32 s2, s2, 255')
    if cfg.idxor: a(f's_mul_i32 s2, s2, {cfg.idxor}\ns_and_b32 s2, s2, 255')
    a('s_load_dwordx16 s[4:19], s[0:1], 0')
    a('s_load_dwordx8 s[20:27], s[0:1], 64')
    a('s_load_dwordx4 s[28:31], s[0:1], 96')
    a(f'v_lshrrev_b32 v8, 6, v0')
    a(f's_add_u32 s60, s2, {cfg.hrot}\ns_and_b32 s60, s60, 7')
    a(f's_lshr_b32 s61, s2, 3')
    a(f'v_readfirstlane_b32 s{S_W}, v8')
    if cfg.afirst:
        a('s_mul_i32 s62, s61, 43\ns_lshr_b32 s62, s62, 8')
        a('s_mul_i32 s63, s62, 6\ns_sub_u32 s63, s61, s63')
        a('s_sub_u32 s64, s61, 24\ns_and_b32 s65, s64, 3\ns_lshr_b32 s64, s64, 2\ns_add_u32 s64, s64, 6')
        a('s_cmp_lt_u32 s61, 24')
        a(f's_cselect_b32 s{S_R}, s63, s64')
        a('s_cselect_b32 s61, s62, s65')
        a('s_lshl_b32 s61, s61, 3')
    elif cfg.xmix:
        a(f's_add_u32 s{S_R}, s60, s61\ns_and_b32 s{S_R}, s{S_R}, 7')
        a('s_mov_b32 s60, 0')
    elif cfg.smix:
        order = cfg.smix_order
        a('s_lshr_b32 s62, s61, 2\ns_lshl_b32 s62, s62, 2')
        a(f's_lshr_b32 s{S_R}, {order:#x}, s62\ns_and_b32 s{S_R}, s{S_R}, 15')
        a('s_and_b32 s61, s61, 3\ns_lshl_b32 s61, s61, 3')
    else:
        a(f's_and_b32 s{S_R}, s61, 7')
        if cfg.rmap != 0x76543210:
            a(f's_lshl_b32 s{S_R}, s{S_R}, 2\ns_lshr_b32 s{S_R}, {cfg.rmap:#x}, s{S_R}\ns_and_b32 s{S_R}, s{S_R}, 7')
        a(f's_lshr_b32 s61, s61, 3\ns_lshl_b32 s61, s61, 3')
    a(f's_add_u32 s{S_H}, s60, s61')
    common_lane_setup(a)
    a('s_waitcnt lgkmcnt(0)')
    span_mark(a, cfg, False)
    if not cfg.two: cfg.tag = False
    a(f's_cmp_eq_u32 s{S_R}, {NA}\ns_cbranch_scc1 L_roleW')
    a(f's_cmp_eq_u32 s{S_R}, {NA+1}\ns_cbranch_scc1 L_roleC')
    import role_a4
    if 'A' in cfg.roles: (role_a4.role_A4 if cfg.two else role_A3 if cfg.hyb else role_A2 if cfg.ring else role_A)(a, cfg)
    else: a('s_endpgm')
    import roles_wc
    if 'W' in cfg.roles: roles_wc.role_W(a, cfg)
    else: a.label('L_roleW'); a('s_endpgm')
    if 'C' in cfg.roles: roles_wc.role_C(a, cfg)
    else: a.label('L_roleC'); a('s_endpgm')
    a.label('L_exit')
    a('s_endpgm')
    a(f'''.section .rodata,"a"
.p2align 6
.amdhsa_kernel {NAME}_kernel
  .amdhsa_next_free_vgpr 256
  .amdhsa_next_free_sgpr 102
  .amdhsa_accum_offset 256
  .amdhsa_group_segment_fixed_size 0
  .amdhsa_kernarg_size 112
  .amdhsa_user_sgpr_count 2
  .amdhsa_user_sgpr_kernarg_segment_ptr 1
  .amdhsa_system_sgpr_workgroup_id_x 1
.end_amdhsa_kernel''')
    return a.text()

if __name__ == '__main__':
    sys.modules['gen'] = sys.modules['__main__']
    cfg = Cfg()
    out = None
    for arg in sys.argv[1:]:
        if '=' in arg:
            k, v = arg.split('=', 1)
            cur = getattr(cfg, k)
            setattr(cfg, k, v == '1' if isinstance(cur, bool) else int(v, 0) if isinstance(cur, int) else v)
        else: out = arg
    t = build(cfg)
    for p in lint(t):
        print('HAZARD line %d -> %d need %d have %d\n   %s\n   %s' % p, file=sys.stderr)
    if out: open(out, 'w').write(t)
    else: print(t)
```

```python
import re

class Asm:
    def __init__(self):
        self.lines = []
    def __call__(self, s=''):
        for l in s.split('\n'):
            self.lines.append(l)
    def label(self, name):
        self.lines.append(name + ':')
    def nop(self, n):
        while n > 0:
            k = min(n, 16)
            self.lines.append(f's_nop {k-1}')
            n -= k
    def text(self):
        return '\n'.join(self.lines) + '\n'

def vr(a, n=1):
    return f'v{a}' if n == 1 else f'v[{a}:{a+n-1}]'
def sr(a, n=1):
    return f's{a}' if n == 1 else f's[{a}:{a+n-1}]'

REG = re.compile(r'^(-|\|)?(v|s|a)(\d+)\|?$')
RNG = re.compile(r'^(v|s|a)\[(\d+):(\d+)\]$')
def regs(op):
    op = op.strip()
    for pre in ('-', 'abs(', 'neg('):
        if op.startswith(pre): op = op[len(pre):]
    op = op.rstrip(')')
    m = RNG.match(op)
    if m: return {(m.group(1), i) for i in range(int(m.group(2)), int(m.group(3)) + 1)}
    m = REG.match(op)
    if m: return {(m.group(2), int(m.group(3)))}
    if op == 'vcc': return {('s', 'vcc')}
    if op in ('vcc_lo', 'vcc_hi'): return {('s', 'vcc')}
    if op == 'exec' or op in ('exec_lo', 'exec_hi'): return {('s', 'exec')}
    if op == 'm0': return {('s', 'm0')}
    return set()

TRANS = ('v_exp_f32', 'v_log_f32', 'v_rcp_f32', 'v_rsq_f32', 'v_sqrt_f32', 'v_sin_f32', 'v_cos_f32')
def parse(line):
    line = line.split(';')[0].split('//')[0].strip()
    if not line or line.endswith(':') or line.startswith('.'): return None
    parts = line.split(None, 1)
    mn = parts[0]
    rest = parts[1] if len(parts) > 1 else ''
    ops = [o.strip() for o in re.split(r',(?![^\[]*\])', rest)]
    mods = ''
    if ops and ops[-1]:
        toks = ops[-1].split()
        ops[-1] = toks[0]
        mods = ' '.join(toks[1:])
    I = dict(mn=mn, ops=ops, mods=mods, line=line)
    base = mn.replace('_e32', '').replace('_e64', '').replace('_dpp', '').replace('_sdwa', '')
    I['base'] = base
    isv = mn.startswith('v_')
    I['mfma'] = mn.startswith(('v_mfma', 'v_smfmac'))
    I['valu'] = isv and not I['mfma']
    I['dpp'] = ('_dpp' in mn) or ('row_' in mods) or ('quad_perm' in mods)
    I['trans'] = base in TRANS
    I['dot'] = base.startswith('v_dot')
    I['vmem'] = mn.startswith(('buffer_', 'global_', 'flat_'))
    I['ds'] = mn.startswith('ds_')
    I['salu'] = mn.startswith('s_')
    dst, src = set(), set()
    R = [regs(o) for o in ops]
    if isv:
        if base.startswith('v_cmp'):
            dst = R[0]; src = set().union(*R[1:]) if len(R) > 1 else set()
            if base.startswith('v_cmpx'): dst = dst | {('s', 'exec')}
        elif base in ('v_readlane_b32', 'v_readfirstlane_b32'):
            dst = R[0]; src = set().union(*R[1:])
        elif base in ('v_permlane16_swap_b32', 'v_permlane32_swap_b32'):
            dst = R[0] | R[1]; src = R[0] | R[1]
        elif base in ('v_add_co_u32', 'v_sub_co_u32', 'v_addc_co_u32', 'v_subb_co_u32'):
            dst = R[0] | R[1]; src = set().union(*R[2:])
        else:
            dst = R[0]; src = set().union(*R[1:]) if len(R) > 1 else set()
            if base in ('v_fmac_f32', 'v_dot2c_f32_bf16', 'v_writelane_b32') or I['dpp']: src |= R[0]
            if base == 'v_cndmask_b32' and len(ops) == 3: src |= {('s', 'vcc')}
    elif I['vmem']:
        lds = 'lds' in mods.split()
        if 'load' in mn and not lds:
            dst = R[0]; src = set().union(*R[1:])
        elif 'atomic' in mn and 'sc0' in mods.split():
            dst = R[0]; src = set().union(*R[1:])
        else:
            src = set().union(*R) if R else set()
        if lds: src |= {('s', 'm0')}
        I['lds'] = lds
        I['store'] = 'store' in mn
        I['wide_store'] = I['store'] and ('x4' in mn or 'x3' in mn)
        if I['store']:
            I['sdata'] = R[1] if mn.startswith('global') else R[0]
    elif I['ds']:
        if mn.startswith(('ds_read', 'ds_bpermute', 'ds_permute', 'ds_swizzle')) or '_rtn_' in mn:
            dst = R[0]; src = set().union(*R[1:]) if len(R) > 1 else set()
        else:
            src = set().union(*R)
    elif I['salu']:
        if mn.startswith(('s_cmp', 's_cbranch', 's_branch', 's_waitcnt', 's_nop', 's_barrier', 's_endpgm', 's_sleep', 's_setprio', 's_bitcmp')):
            src = set().union(*R) if R else set()
        else:
            dst = R[0] if R else set(); src = set().union(*R[1:]) if len(R) > 1 else set()
            if 'saveexec' in mn: dst |= {('s', 'exec')}; src |= {('s', 'exec')}
    I['dst'], I['src'] = dst, src
    if I['mfma']:
        I['passes'] = 8 if '32x32' in mn else 4
        I['A'], I['B'], I['C'] = R[1], R[2], R[3]
        if mn.startswith('v_smfmac'):
            I['passes'] = 8
            I['A'], I['C'] = R[1] | R[3], R[0]
            I['src'] = I['src'] | R[0]
    I['ws'] = 1
    if mn == 's_nop': I['ws'] = int(ops[0], 0) + 1
    return I

def need(p, c):
    n = 0
    vd = {r for r in p['dst'] if r[0] in 'va'}
    sd = {r for r in p['dst'] if r[0] == 's'}
    if p['valu']:
        if vd & c['src']:
            if c['dpp']: n = max(n, 2)
            if c['mfma']: n = max(n, 2)
            if c['base'] in ('v_readlane_b32', 'v_readfirstlane_b32'): n = max(n, 1)
            if c['base'].startswith('v_permlane'): n = max(n, 2)
            if p['trans'] and (c['valu'] or c['mfma']) and not c['trans']: n = max(n, 1)
            if p['trans'] and (c['vmem'] or c['ds']): n = max(n, 1)
        if p['dot'] and (vd & (c['src'] | c['dst'])):
            same = c['base'] == p['base']
            if same:
                if len(c['ops']) >= 3 and (vd & (regs(c['ops'][1]) | regs(c['ops'][2]))): n = max(n, 3)
            else: n = max(n, 3)
        if sd & c['src']:
            if c['vmem']: n = max(n, 5)
            if c['valu'] or c['mfma']:
                if c['base'] in ('v_readlane_b32', 'v_writelane_b32'): n = max(n, 4)
                else: n = max(n, 2)
            if ('s', 'exec') in sd and c['dpp']: n = max(n, 5)
        if ('s', 'exec') in sd:
            if c['mfma']: n = max(n, 4)
            if c['dpp']: n = max(n, 5)
            if c['base'] in ('v_readlane_b32', 'v_readfirstlane_b32', 'v_writelane_b32') or c['base'].startswith('v_permlane'): n = max(n, 4)
    if p['mfma']:
        P = p['passes']
        d = p['dst']
        if c['mfma']:
            if d & (c['A'] | c['B']): n = max(n, 8 if P == 4 else 12)
            if d & c['C']:
                if not (c['C'] == d and c['passes'] == P): n = max(n, 6 if P == 4 else 10)
            elif d & c['dst']: n = max(n, 6 if P == 4 else 10)
        elif c['valu'] or c['vmem'] or c['ds']:
            if d & (c['src'] | c['dst']): n = max(n, 8 if P == 4 else 12)
            if c['valu'] and (p['C'] & c['dst']): n = max(n, 3 if P == 4 else 7)
    if p['vmem'] and p.get('wide_store'):
        if p['sdata'] & c['dst']: n = max(n, 2)
    if p['salu'] and ('s', 'm0') in p['dst'] and c['vmem'] and c.get('lds'): n = max(n, 1)
    if p['salu'] and ('s', 'exec') in p['dst'] and c['dpp']: n = max(n, 0)
    return n

def lint(text):
    lines = text.split('\n')
    ins = []; labels = {}
    for ln, l in enumerate(lines):
        s = l.split(';')[0].strip()
        if s.endswith(':') and not s.startswith('.'):
            labels[s[:-1]] = len(ins); continue
        I = parse(l)
        if I: I['ln'] = ln + 1; ins.append(I)
    probs = []
    W = 20
    def check_seq(seq):
        for j in range(len(seq)):
            c = seq[j]; dist = 0
            for i in range(j - 1, max(-1, j - W - 1), -1):
                p = seq[i]
                n = need(p, c)
                if n > dist:
                    probs.append((p['ln'], c['ln'], n, dist, p['line'], c['line']))
                dist += p['ws']
                if dist >= 13: break
    segs = []; cur = []
    for I in ins:
        cur.append(I)
        if I['mn'] in ('s_branch', 's_endpgm'): segs.append(cur); cur = []
    if cur: segs.append(cur)
    for s in segs: check_seq(s)
    for k, I in enumerate(ins):
        if I['mn'].startswith(('s_cbranch', 's_branch')):
            t = labels.get(I['ops'][0])
            if t is None: continue
            check_seq(ins[max(0, k - W):k + 1] + ins[t:t + W])
    seen = set(); out = []
    for p in probs:
        if (p[0], p[1]) not in seen:
            seen.add((p[0], p[1])); out.append(p)
    return out
```

```python
import re
from asmlib import vr, sr
import gen as G
from gen import *

def bitrev4(c): return int(f'{c:04b}'[::-1], 2)

L_FLAGQ, L_FLAGS, L_CTL, L_STAT, L_PROG, L_QP, L_OB = 0, 4, 8, 64, 256, 1024, 8192
OB_RS = 272
SP_RS = 144
STEP = 24 * 4096
REM = 21 * STEP
NREG, NLD = 168, 172
POS = {168: 8, 169: 9, 170: 12, 171: 13}
def pos(n): return POS.get(n, n % 16)
def batch(n): return (pos(n) >> 2) & 1

def pattern(cfg):
    M = 1 << 20
    return {0: (1, [0, 1024, 2048, 3072]), 1: (2, [0, 1024, 2048, 3072]), 2: (2, [0, 1024, M, M + 1024]),
            3: (4, [0, M // 2, M, 3 * M // 2]), 4: (4, [0, 1024, 2048, 3072]), 5: (2, [0, 1024, 2048, 3072]),
            6: (1, [0, 4096, 8192, 12288]), 7: (1, [0, 24576, 49152, 73728]), 8: (1, [0, 1024, 2048, 3072]),
            9: (1, [0, 1024, 49152, 50176])}[cfg.pat]

def pat_base(a, cfg, d, j, w):
    if cfg.pat == 1:
        a(f's_cmp_ge_u32 s{j}, 3\ns_cselect_b32 s62, {(1 << 20) - 3*16384:#x}, 0')
        a(f's_lshl_b32 s{d}, s{j}, 2\ns_add_u32 s{d}, s{d}, s{w}\ns_lshl_b32 s{d}, s{d}, 12\ns_add_u32 s{d}, s{d}, s62')
    if cfg.pat in (2, 3, 7, 9):
        a(f's_lshl_b32 s{d}, s{j}, 2\ns_add_u32 s{d}, s{d}, s{w}\ns_lshl_b32 s{d}, s{d}, {11 if cfg.pat in (2, 9) else 10}')
    if cfg.pat == 4:
        a(f's_lshl_b32 s{d}, s{w}, 19\ns_lshl_b32 s62, s{j}, 12\ns_add_u32 s{d}, s{d}, s62')
    if cfg.pat == 5:
        a(f's_lshr_b32 s{d}, s{w}, 1\ns_lshl_b32 s{d}, s{d}, 20\ns_lshl_b32 s62, s{j}, 13\ns_add_u32 s{d}, s{d}, s62')
        a(f's_and_b32 s62, s{w}, 1\ns_lshl_b32 s62, s62, 12\ns_add_u32 s{d}, s{d}, s62')
    if cfg.pat == 6:
        a(f's_lshl_b32 s{d}, s{j}, 14\ns_lshl_b32 s62, s{w}, 10\ns_add_u32 s{d}, s{d}, s62')
    if cfg.pat == 8:
        a(f's_mul_i32 s{d}, s{w}, 6\ns_add_u32 s{d}, s{d}, s{j}\ns_lshl_b32 s{d}, s{d}, 12')

def xor_masks(a, cfg, d):
    a(f's_mov_b32 s{d}, 0')
    for t in cfg.hx.split(','):
        if not t: continue
        bit, m = t.split(':')
        a(f's_bitcmp1_b32 s{S_HP}, {bit}\ns_cselect_b32 s62, {int(m) << 15:#x}, 0\ns_xor_b32 s{d}, s{d}, s62')
    a(f's_xor_b32 s{d+1}, s{d}, {cfg.bx << 15:#x}')

def lds_spin(a, tag, vt, vz, off, target, sleep):
    a('s_mov_b32 s64, 0')
    a.label(f'L_{tag}')
    a(f'ds_read_b32 v{vt}, v{vz} offset:{off}')
    a('s_waitcnt lgkmcnt(0)')
    a(f'v_readfirstlane_b32 s65, v{vt}')
    a('s_add_u32 s64, s64, 1')
    a('s_nop 2')
    a(f's_cmp_ge_u32 s65, {target}\ns_cbranch_scc1 L_{tag}_ok')
    if sleep: a(f's_sleep {sleep}')
    a(f's_cmp_lt_u32 s64, {1 << 20}\ns_cbranch_scc1 L_{tag}')
    a.label(f'L_{tag}_ok')

def role_A4(a, cfg):
    a.label('L_roleA')
    if not cfg.fs: stamp(a, cfg, 0)
    if cfg.jp:
        for k in range(4): a(f's_cmp_eq_u32 s{S_W}, {4 + k}\ns_cbranch_scc1 L_A_jp{k}')
    else: a(f's_cmp_ge_u32 s{S_W}, 4\ns_cbranch_scc1 L_A_helper')
    n0 = len(a.lines)
    streamer(a, cfg)
    for k, t in reversed(list(enumerate(int(x) for x in cfg.jp.split(',') if x))):
        i = n0 + t
        while a.lines[i].startswith(('s_addc', 's_cselect', 's_cbranch', 'buffer_', 's_waitcnt', 's_nop')) or a.lines[i+1].startswith('s_cselect') and not a.lines[i].startswith(('s_cmp', 's_sub')): i += 1
        a.lines[i:i] = [f's_branch L_A_jq{k}', f'L_A_jp{k}:', 's_branch L_A_helper', f'L_A_jq{k}:']
    a.label('L_A_helper')
    helper(a, cfg)

def streamer(a, cfg):
    SRD_K, SRD_V = 40, 44
    S_OFF, S_A, S_REM, S_IT = 35, 36, 37, 38
    S_M3, S_M4, S_VAL = 48, 50, 52
    R = cfg.R
    V_OFF = [8, 9]; V_SP = [10, 11]
    V_MK = [V_MASK, 12]
    V_Q = [16, 20]
    V_T, V_M1, V_M2, V_M3, V_TA, V_TB = 24, 28, 30, 32, 34, 35
    V_S = 36
    V_ZERO = 47
    V_ACC, V_A = 48, 52
    V_X, V_Y, V_Z, V_F = 60, 61, 62, 63
    V_R = 64
    V_TMP = V_R + 4 * max(R, 32)
    assert R % 16 == 0 and V_R + 4 * R <= 249
    if cfg.sprio: a(f's_setprio {cfg.sprio}')
    if not cfg.fs:
        a(f's_lshl_b32 s62, s{S_HP}, 21')
        a(f's_sub_u32 s63, {128 << 20:#x}, s62')
        srd(a, SRD_K, P_AK, off_s=62, nrec_s=63)
    def stream_offsets():
        a(f's_lshl_b32 s{S_OFF}, s{S_R}, 2\ns_add_u32 s{S_OFF}, s{S_OFF}, s{S_W}\ns_lshl_b32 s{S_OFF}, s{S_OFF}, 12')
        a(f's_mov_b32 s{S_A}, s{S_OFF}')
        a(f'v_lshlrev_b32 v{V_OFF[0]}, 4, v{V_LANE}')
        a(f'v_add_u32 v{V_OFF[1]}, {64 << 20:#x}, v{V_OFF[0]}')
    if cfg.fs > 2: assert not (cfg.seq or cfg.pat)
    else: stream_offsets()
    S_SW, V_O2 = 84, V_TMP + 3
    if cfg.seq:
        a(f's_lshl_b32 s{S_SW}, s{S_OFF}, 1\ns_add_u32 s{S_SW}, s{S_SW}, {18*STEP:#x}')
        a(f's_mov_b32 s{S_SW+1}, {(64 << 20) - 18*STEP:#x}\ns_mov_b32 s{S_SW+2}, {2*STEP:#x}')
        a(f'v_add_u32 v{V_O2}, 4096, v{V_OFF[0]}')
    if cfg.bx or cfg.hx:
        xor_masks(a, cfg, S_SW + 1)
    V_PO = V_TMP + 4
    NQ, KO = pattern(cfg)
    if cfg.pat:
        pat_base(a, cfg, S_SW, S_R, S_W)
        for b in range(2):
            for k in range(4): a(f'v_add_u32 v{V_PO + 4*b + k}, {KO[k]:#x}, v{V_OFF[b]}')
    def rem_off(d, r):
        sh = 5 - (NQ.bit_length() - 1)
        a(f's_lshr_b32 s63, s{r}, {sh}\ns_mul_i32 s63, s63, {(2 << 20) // NQ - (1024 << sh):#x}')
        a(f's_lshl_b32 s{d}, s{r}, 10\ns_add_u32 s{d}, s{d}, s63\ns_add_u32 s{d}, s{d}, {REM // NQ:#x}')
    def slotK(n): return n if n < R else n % 16
    def slotV(n): return (n + NLD) % 16
    V_PA, V_ONE, V_CTL = V_TMP, V_TMP + 1, V_TMP + 2
    nlab = [0]
    def wait2(lo, hi=None):
        if cfg.mon and hi and hi > lo:
            nlab[0] += 1
            a(f's_cbranch_vccnz L_A_w{nlab[0]}')
            a(f's_waitcnt vmcnt({lo-1})')
            a.label(f'L_A_w{nlab[0]}')
            a(f's_waitcnt vmcnt({hi-1})')
        else: a(f's_waitcnt vmcnt({lo-1})')
    def ctl(i):
        if not cfg.mon: return
        if i % 8 == 0: a(f'ds_read_b32 v{V_CTL}, v{V_ZERO} offset:{L_CTL}')
        if i % 8 == 1:
            a('s_waitcnt lgkmcnt(1)')
            a(f'v_cmp_ne_u32 vcc, 0, v{V_CTL}')
    def issue(isv, n):
        issue0(isv, n)
        if cfg.mon and n % 2 and (isv or n >= 8): a(f'ds_add_u32 v{V_PA}, v{V_ONE} offset:{L_PROG}')
    def issue0(isv, n):
        srd_ = SRD_V if isv else SRD_K
        pol = cfg.vpol if isv else cfg.kpol
        dst = V_R + 4 * (slotV(n) if isv else slotK(n))
        if cfg.seq and n < NREG:
            if n % 8 == 0:
                if n == 0: a(f's_lshl_b32 s{S_A}, s{S_OFF}, 1')
                elif n == 160: a(f's_add_u32 s{S_A}, s{S_OFF}, {20*STEP:#x}')
                else:
                    a(f's_cmp_eq_u32 s{S_A}, s{S_SW}')
                    a(f's_cselect_b32 s60, s{S_SW+1}, s{S_SW+2}')
                    a(f's_add_u32 s{S_A}, s{S_A}, s60')
            v = V_OFF[batch(n)] if n >= 160 or not batch(n) else V_O2
            a(f'buffer_load_dwordx4 {vr(dst,4)}, v{v}, s[{srd_}:{srd_+3}], s{S_A} offen offset:{1024*(n%4)} {pol}')
        elif cfg.pat and n < NREG:
            if n % 8 == 0:
                if n > 0: a(f's_add_u32 s{S_A}, s{S_A}, {STEP // NQ:#x}')
                else: a(f's_mov_b32 s{S_A}, s{S_SW}')
            a(f'buffer_load_dwordx4 {vr(dst,4)}, v{V_PO + n % 8}, s[{srd_}:{srd_+3}], s{S_A} offen {pol}')
        elif n < NREG:
            if n % 8 == 0:
                if n > 0: a(f's_add_u32 s{S_A}, s{S_A}, {STEP:#x}')
                elif isv: a(f's_mov_b32 s{S_A}, s{S_OFF}')
            so = S_A
            if cfg.bx or cfg.hx:
                so = S_SW
                if n % 4 == 0: a(f's_xor_b32 s{so}, s{S_A}, s{S_SW + 1 + batch(n)}')
            a(f'buffer_load_dwordx4 {vr(dst,4)}, v{V_OFF[batch(n)]}, s[{srd_}:{srd_+3}], s{so} offen offset:{1024*(n%4)} {pol}')
        else:
            v = (V_SP if n % 2 else V_OFF)[batch(n)]
            so = S_REM
            if cfg.bx or cfg.hx:
                so = S_SW
                a(f's_xor_b32 s{so}, s{S_REM}, s{S_SW + 1 + batch(n)}')
            a(f'buffer_load_dwordx4 {vr(dst,4)}, v{v}, s[{srd_}:{srd_+3}], s{so} offen {pol}')
    L0, L1, L2, L3 = cfg.L0, cfg.La, cfg.Lb, cfg.Lc
    seq = []
    S_I = 54
    rot = [0]
    def job(kind, sb):
        def setup():
            if kind[0] == 'c':
                t0, t1 = int(kind[1]), int(kind[2]) if len(kind) > 2 else 8
                a(f's_lshl_b32 s60, s{S_H}, 19\ns_add_u32 s60, s60, {t0 << 16:#x}\ns_mov_b32 s61, {(t1 - t0) << 16:#x}')
                srd(a, sb, P_BC, off_s=60, nrec_s=61)
            elif kind in 'ow':
                a(f's_lshl_b32 s60, s{S_HP}, 17\ns_mov_b32 s61, {128*1024:#x}')
                srd(a, sb, P_BWO if kind == 'o' else P_AWO, off_s=60, nrec_s=61)
            else:
                a(f's_lshl_b32 s60, s{S_HP}, 8\ns_sub_u32 s61, {512*8192:#x}, s60')
                srd(a, sb, {'v': P_BWUV, 'k': P_BWUK, 'q': P_BWQ, 'a': P_AWQ}[kind], off_s=60, nrec_s=61)
        rows = kind in 'vkqa'
        sh = (15 if rows else 10) + cfg.spw
        nl = (128 if kind[0] != 'c' else 64 * ((int(kind[2]) if len(kind) > 2 else 8) - int(kind[1]))) >> cfg.spw
        r = rot[0]; rot[0] = (r + (nl % 24) // 8) % 3
        base, ex = nl // 24, (nl % 24) // 4
        for m in range((nl + 23) // 24):
            def ld(m=m, slot=len(seq) % 8):
                if m == 0: setup()
                if rows and cfg.fs > 2:
                    a(f'v_readlane_b32 s39, v{V_Z}, {8 * r + m}')
                elif cfg.spm:
                    if m == 0:
                        a(f's_lshr_b32 s58, s{S_I + r}, 2\ns_min_u32 s60, s58, {ex}\ns_mul_i32 s59, s58, {base}\ns_add_u32 s59, s59, s60')
                        a(f's_lshl_b32 s59, s59, 2\ns_add_u32 s59, s59, s{S_W}')
                    else: a('s_add_u32 s59, s59, 4')
                    if m == base: a(f's_cmp_lt_u32 s58, {ex}\ns_cselect_b32 s59, s59, {nl}')
                    if rows:
                        b = 4 - cfg.spw
                        a(f's_lshr_b32 s60, s59, 1\ns_xor_b32 s60, s60, s59\ns_and_b32 s60, s60, {1 << b}\ns_mul_i32 s60, s60, 3')
                        a(f's_xor_b32 s60, s60, s59\ns_lshl_b32 s39, s60, {sh}')
                    else: a(f's_lshl_b32 s39, s59, {sh}')
                elif m == 0: a(f's_lshl_b32 s39, s{S_I + r}, {sh}')
                else: a(f's_add_u32 s39, s39, {24 << sh:#x}')
                if cfg.spw: a(f'buffer_load_dword v{V_R + 4*(16 + slot)}, v{V_Y if rows else V_X}, s[{sb}:{sb+3}], s39 offen {cfg.spol.replace("+", " ")}')
                else: a(f'buffer_load_dwordx4 {vr(V_R + 4*(16 + slot),4)}, v{V_Y if rows else V_OFF[0]}, s[{sb}:{sb+3}], s39 offen {cfg.spol.replace("+", " ")}')
            seq.append(ld)
    def rotations():
        a(f's_lshr_b32 s{S_I}, s{S_OFF}, 12\ns_mov_b32 s57, 0xff')
        for r in (1, 2):
            a(f's_sub_u32 s{S_I+r}, s{S_I+r-1}, 8')
            a(f's_cselect_b32 s60, 24, 0')
            a(f's_add_u32 s{S_I+r}, s{S_I+r}, s60')
    if cfg.spf:
        if cfg.fs > 2:
            assert cfg.spm and not cfg.spw and cfg.spf[0] in 'vkqa' and cfg.spf[2] in 'vkqa'
            t, u = V_T, V_T + 1
            a(f'v_bfe_u32 v{t}, v0, 3, 2')
            a(f'v_mad_i32_i24 v{t}, v{t}, -2, s{S_R}')
            a(f'v_add_u32 v{u}, 6, v{t}')
            a(f'v_min_u32 v{t}, v{t}, v{u}')
            a(f'v_min_u32 v{u}, 2, v{t}')
            a(f'v_mad_u32_u24 v{t}, v{t}, 5, v{u}')
            a(f'v_and_b32 v{V_F}, 7, v0')
            a(f'v_add_u32 v{t}, v{t}, v{V_F}')
            a(f'v_lshrrev_b32 v{V_Z}, 1, v{t}')
            a(f'v_add_u32 v{u}, v{u}, v{V_F}')
            a(f'v_xor_b32 v{V_Z}, v{V_Z}, v{t}')
            a(f'v_cmp_gt_u32 vcc, 7, v{u}')
            a(f'v_and_b32 v{V_Z}, 4, v{V_Z}')
            a(f'v_mul_u32_u24 v{V_Z}, 3, v{V_Z}')
            a(f'v_xor_b32 v{V_Z}, v{V_Z}, v{t}')
            a(f'v_cndmask_b32 v{V_Z}, 32, v{V_Z}, vcc')
            a(f'v_lshlrev_b32 v{V_Z}, 17, v{V_Z}')
            a(f'v_lshrrev_b32 v{t}, 4, v0')
            a(f'v_lshlrev_b32 v{V_Y}, 4, v{V_C}')
            a(f'v_lshl_add_u32 v{V_Y}, v{t}, 13, v{V_Y}')
        else: rotations()
        if cfg.fs > 2: pass
        elif cfg.spw:
            a(f'v_lshlrev_b32 v{V_X}, {4 + cfg.spw}, v{V_LANE}')
            a(f'v_lshrrev_b32 v{V_Y}, 8, v{V_X}')
            a(f'v_lshlrev_b32 v{V_Y}, 13, v{V_Y}')
            a(f'v_bfi_b32 v{V_Y}, s57, v{V_X}, v{V_Y}')
        else:
            a(f'v_lshlrev_b32 v{V_Y}, 4, v{V_C}')
            a(f'v_lshl_add_u32 v{V_Y}, v{V_G}, 13, v{V_Y}')
        for i, k in enumerate(cfg.spf.split(',')): job(k, 68 + 4 * (i % 4))
    npre = len(seq)
    for n in range(R): seq.append(lambda n=n: issue(False, n))
    if cfg.fs:
        assert npre >= L0 and L0 <= 8
        post = []
        for i, f in enumerate(seq[:L0]):
            n0 = len(a.lines); f()
            new = a.lines[n0:]; del a.lines[n0:]
            for l in new:
                l = re.sub(r'\bs39\b', f's{44+i}', l)
                m = re.match(r's_add_u32 (s\d+), s(\d+), s60$', l)
                if m and P_AX <= int(m.group(2)) <= P_WS:
                    a(f's_mov_b32 {m.group(1)}, s60')
                    post.append(f's_add_u32 {m.group(1)}, s{m.group(2)}, {m.group(1)}')
                elif l.startswith(('s_addc_u32', 'buffer_load')) or l.endswith(', 0xffff'): post.append(l)
                else: a(l)
        late_entry(a, cfg, False)
        stamp(a, cfg, 0)
        span_mark(a, cfg, False)
        first = True
        for l in post:
            a(l)
            if first and l.startswith('buffer'): ist(a, cfg, 2); first = False
        ist(a, cfg, 3)
        if cfg.fb: a('s_barrier')
        if cfg.fs > 2:
            stream_offsets()
            rotations()
        mask_setup(a, V_T)
    else:
        for i, f in enumerate(seq[:L0]):
            f()
            if i == 0: ist(a, cfg, 2)
        ist(a, cfg, 3)
    a(f's_lshl_b32 s62, s{S_HP}, 21')
    a(f's_sub_u32 s63, {128 << 20:#x}, s62')
    if cfg.fs: srd(a, SRD_K, P_AK, off_s=62, nrec_s=63)
    srd(a, SRD_V, P_AV, off_s=62, nrec_s=63)
    a(f's_mul_i32 s60, s{S_W}, 6\ns_add_u32 s60, s60, s{S_R}')
    if cfg.pat:
        rem_off(S_REM, 60)
        a('s_and_b32 s61, s60, 7\ns_add_u32 s61, s61, 24')
        rem_off(S_SW + 1, 61)
        a(f's_sub_u32 s{S_SW+1}, s{S_SW+1}, s{S_REM}')
    else: a(f's_lshl_b32 s{S_REM}, s60, 10\ns_add_u32 s{S_REM}, s{S_REM}, {REM:#x}')
    base_valid = sum(1 << bitrev4(c) for c in list(range(9)) + [12])
    a(f's_mov_b32 s{S_VAL}, {base_valid:#x}')
    a(f's_cmp_lt_u32 s60, 8')
    a(f's_cselect_b32 s61, {24*1024}, 0x80000000' if False else f's_cselect_b32 s61, 0, 1')
    a(f's_cselect_b32 s62, {1 << bitrev4(9):#x}, 0')
    a(f's_or_b32 s{S_VAL}, s{S_VAL}, s62')
    a(f's_lshl_b32 s61, s61, 31\ns_add_u32 s61, s61, {f"s{S_SW+1}" if cfg.pat else 24*1024}')
    a(f'v_add_u32 v{V_SP[0]}, s61, v{V_OFF[0]}')
    a(f's_sub_u32 s60, s60, 8\ns_cmp_lt_u32 s60, 8')
    a(f's_cselect_b32 s61, 0, 1')
    a(f's_cselect_b32 s62, {1 << bitrev4(13):#x}, 0')
    a(f's_or_b32 s{S_VAL}, s{S_VAL}, s62')
    a(f's_lshl_b32 s61, s61, 31\ns_add_u32 s61, s61, {f"s{S_SW+1}" if cfg.pat else 16*1024}')
    a(f'v_add_u32 v{V_SP[1]}, s61, v{V_OFF[1]}')
    a(f's_mul_i32 s{S_VAL}, s{S_VAL}, 0x10001\ns_mov_b32 s{S_VAL+1}, s{S_VAL}')
    a(f's_mov_b32 s{S_M3}, 0xcccccccc\ns_mov_b32 s{S_M3+1}, 0xcccccccc')
    a(f's_mov_b32 s{S_M4}, 0xaaaaaaaa\ns_mov_b32 s{S_M4+1}, 0xaaaaaaaa')
    a(f'v_cmp_gt_u32 vcc, 8, v{V_C}')
    a(f'v_mov_b32 v{V_ZERO}, 0')
    for k in range(4): a(f'v_mov_b32 v{V_ACC+k}, 0')
    for k in range(4): a(f'v_cndmask_b32 v{V_MK[1]+k}, v{V_MASK+k}, v{V_ZERO}, vcc')
    for k in range(4): a(f'v_cndmask_b32 v{V_MK[0]+k}, v{V_ZERO}, v{V_MASK+k}, vcc')
    if cfg.mon:
        a(f'v_lshlrev_b32 v{V_PA}, 2, v{V_LANE}')
        a(f'v_mov_b32 v{V_ONE}, 1')
        a('s_mov_b64 vcc, 0')
    nbar = max(L0, min(npre + 8, cfg.wlate))
    for i in range(L0, len(seq)):
        if i == nbar and not cfg.fb: a('s_barrier')
        if i == nbar: ist(a, cfg, 4)
        if i == cfg.ist: ist(a, cfg, 5)
        if cfg.st0 and i in (L0 + 1, 18, npre): stamp(a, cfg, {L0 + 1: 7, 18: 3, npre: 5}[i])
        n0 = len(a.lines); seq[i]()
        k = next(k for k in range(n0, len(a.lines)) if a.lines[k].startswith('buffer_load')) if cfg.fs else n0
        w = [f's_waitcnt vmcnt({(L0 if i < npre or not cfg.L0k else cfg.L0k) - 1})']
        if a.lines[k-1].startswith('v_readlane'): w.insert(0, 's_nop 3')
        a.lines[k:k] = w
    L0 = cfg.L0k or L0
    if cfg.fine: stamp(a, cfg, 4)
    qc = cfg.tag and cfg.qc
    a(f'v_lshlrev_b32 v{V_Y}, 4, v{V_C}')
    lds_spin(a, 'A_qw', V_X, V_ZERO, L_FLAGQ, 1 if qc else 4, 1)
    a(f'v_lshlrev_b32 v{V_X}, 5, v{V_C}')
    QT = [24, 28, 36, 40]
    if qc:
        for b in range(2): a(f'ds_read_b128 {vr(V_Q[b],4)}, v{V_Y} offset:{L_QP + 256*b}')
        a('s_waitcnt lgkmcnt(0)')
    for b in range(0 if qc else 2):
        for hf in range(2):
            for k in range(4):
                a(f'ds_read_b128 {vr(QT[k],4)}, v{V_X} offset:{L_QP + 1024*k + 512*b + 16*hf}')
            a('s_waitcnt lgkmcnt(2)')
            for e in range(4): a(f'v_add_f32 v{QT[0]+e}, v{QT[0]+e}, v{QT[1]+e}')
            a('s_waitcnt lgkmcnt(0)')
            for e in range(4): a(f'v_add_f32 v{QT[2]+e}, v{QT[2]+e}, v{QT[3]+e}')
            for e in range(4): a(f'v_add_f32 v{QT[0]+e}, v{QT[0]+e}, v{QT[2]+e}')
            for e in range(2): a(f'v_cvt_pk_bf16_f32 v{V_Q[b]+2*hf+e}, v{QT[0]+2*e}, v{QT[0]+2*e+1}')
    stamp(a, cfg, 1)

    class Merge:
        def __init__(s, carry): s.q = [('l1', 7, V_T + 2, V_T + 3, False)] if carry else []
        def pre(s):
            for t in s.q:
                if t[0] == 'l1': a(f'v_add_f32_dpp v{V_M1 + (t[1] & 1)}, v{t[2]}, v{t[2]} row_ror:8 row_mask:0xf bank_mask:0x3')
                if t[0] == 'l2' and not t[2]: a(f'v_add_f32_dpp v{V_M2 + (t[1] & 1)}, v{V_M1}, v{V_M1} row_shl:4 row_mask:0xf bank_mask:0x5')
                if t[0] == 'l3': a(f'v_add_f32_dpp v{V_TA}, v{V_M2}, v{V_M2} quad_perm:[2,3,0,1] row_mask:0xf bank_mask:0xf')
                if t[0] == 'l4':
                    a(f'v_add_f32_dpp v{V_TA}, v{V_M3}, v{V_M3} quad_perm:[1,0,3,2] row_mask:0xf bank_mask:0xf')
                    for k in range(10): a(f'v_mov_b32 v{V_S+k}, v{V_S+k+1}')
        def post(s, n):
            nxt = []
            for t in s.q:
                if t[0] == 'l1':
                    a(f'v_add_f32_dpp v{V_M1 + (t[1] & 1)}, v{t[3]}, v{t[3]} row_ror:8 row_mask:0xf bank_mask:0xc')
                    if t[1] & 1 or t[4]: nxt.append(('l2', t[1] >> 1, t[4]))
                if t[0] == 'l2':
                    if t[2]: a(f'v_add_f32_dpp v{V_M2 + (t[1] & 1)}, v{V_M1}, v{V_M1} row_shl:4 row_mask:0xf bank_mask:0x5')
                    else: a(f'v_add_f32_dpp v{V_M2 + (t[1] & 1)}, v{V_M1+1}, v{V_M1+1} row_shr:4 row_mask:0xf bank_mask:0xa')
                    if t[1] & 1: nxt.append(('l3', t[1] >> 1))
                if t[0] == 'l3':
                    a(f'v_add_f32_dpp v{V_TB}, v{V_M2+1}, v{V_M2+1} quad_perm:[2,3,0,1] row_mask:0xf bank_mask:0xf')
                    a(f'v_cndmask_b32 v{V_M3 + t[1]}, v{V_TA}, v{V_TB}, s[{S_M3}:{S_M3+1}]')
                    if t[1]: nxt.append(('l4',))
                if t[0] == 'l4':
                    a(f'v_add_f32_dpp v{V_TB}, v{V_M3+1}, v{V_M3+1} quad_perm:[1,0,3,2] row_mask:0xf bank_mask:0xf')
                    a(f'v_cndmask_b32 v{V_S+10}, v{V_TA}, v{V_TB}, s[{S_M4}:{S_M4+1}]')
            if n is not None and n % 2: nxt.append(('l1', pos(n) >> 1, V_T + (n - 1) % 4, V_T + n % 4, n >= NREG))
            s.q = nxt
    def consumeK(mg, n):
        src = V_R + 4 * slotK(n); t = V_T + n % 4; q = V_Q[batch(n)]
        mg.pre()
        a(f'v_dot2_f32_bf16 v{t}, v{src}, v{q}, 0')
        for k in range(1, 4): a(f'v_dot2_f32_bf16 v{t}, v{src+k}, v{q+k}, v{t}')
        mg.post(n)
    D = 8
    mg = Merge(False)
    G0 = R // 16 + 1
    issued, landed, n = R, R - L0, 0
    def occupant(m): return m % 16 if m < R + 16 else m - 16
    since = 0; nissue = 0
    while n < 16 * G0:
        free = occupant(issued) < n
        want = issued - n <= D or nissue < L1 or since >= cfg.catch
        if free and want and issued < 16 * G0 + D and (issued - n < D + 1 or True):
            if issued - n <= D or issued - n > D:
                a(f's_waitcnt vmcnt({L1-1})'); landed = max(landed, issued - (L1 - 1))
                issue(False, issued); issued += 1; since = 0; nissue += 1
        if n >= landed:
            a(f's_waitcnt vmcnt({issued - 1 - n})'); landed = n + 1
        consumeK(mg, n); n += 1; since += 1
    while issued < 16 * G0 + D:
        a(f's_waitcnt vmcnt({L1-1})'); issue(False, issued); issued += 1
    def kloop(tag, L, count, G0=G0):
        if count <= 0: return
        a(f's_mov_b32 s{S_IT}, {count}')
        a('.p2align 6')
        a.label(f'L_A_k{tag}')
        m = Merge(True)
        for i in range(16):
            nn = 16 * G0 + i
            wait2(L, cfg.HK)
            issue(False, nn + D)
            ctl(i)
            consumeK(m, nn)
        a(f's_sub_u32 s{S_IT}, s{S_IT}, 1\ns_cmp_lg_u32 s{S_IT}, 0\ns_cbranch_scc1 L_A_k{tag}')
    na = min(cfg.NKa, 10 - G0)
    if cfg.seq:
        kloop('a', L1, 9 - G0)
        kloop('b', L1 if na == 10 - G0 else L2, 1, 9)
    else: kloop('a', L1, na)
    if cfg.fine and not cfg.st0: stamp(a, cfg, 5)
    if not cfg.seq: kloop('b', L2, 10 - G0 - na)
    mg = Merge(True)
    for nn in range(160, NLD):
        wait2(L2, cfg.HK)
        m = nn + D
        if m < NLD: issue(False, m)
        else: issue(True, m - NLD)
        consumeK(mg, nn)
    DV = 12
    extra = list(range(D, DV))
    def vissue():
        if extra:
            a(f's_waitcnt vmcnt({L2-1})')
            issue(True, extra.pop(0))
    while mg.q:
        a.nop(3); mg.pre(); a.nop(2); mg.post(None)
    if cfg.fine: stamp(a, cfg, 6)
    a(f'v_mov_b32 v{V_X}, 0xff800000')
    a(f'v_cndmask_b32 v{V_S+10}, v{V_X}, v{V_S+10}, s[{S_VAL}:{S_VAL+1}]')
    a(f'v_max3_f32 v{V_X}, v{V_S}, v{V_S+1}, v{V_S+2}')
    for k in range(3, 11, 2): a(f'v_max3_f32 v{V_X}, v{V_X}, v{V_S+k}, v{V_S+k+1}')
    def batch_allreduce(op, x):
        for ctl in ('quad_perm:[1,0,3,2]', 'row_ror:4', 'row_ror:8'):
            a.nop(2)
            a(f'{op}_dpp v{x}, v{x}, v{x} {ctl} row_mask:0xf bank_mask:0xf')
        xrow_allreduce(a, op, x, V_TA)
    vissue()
    batch_allreduce('v_max_f32', V_X)
    a(f's_mov_b32 s62, {f2u(SCALE):#x}')
    a(f'v_mul_f32 v{V_X}, s62, v{V_X}')
    vissue()
    for k in range(11): a(f'v_fma_f32 v{V_S+k}, v{V_S+k}, s62, -v{V_X}')
    for k in range(11): a(f'v_exp_f32 v{V_S+k}, v{V_S+k}')
    vissue()
    a(f'v_add_f32 v{V_Y}, v{V_S}, v{V_S+1}')
    for k in range(2, 11): a(f'v_add_f32 v{V_Y}, v{V_Y}, v{V_S+k}')
    for k in range(11): a(f'v_cvt_pk_bf16_f32 v{V_S+k}, v{V_S+k}, v{V_S+k}')
    vissue()
    batch_allreduce('v_add_f32', V_Y)
    a(f's_lshl_b32 s62, s{S_W}, 2')
    a(f'v_lshl_add_u32 v{V_Z}, v{V_LANE}, 3, s62')
    a(f'v_mov_b32 v{V_F}, 1')
    a('s_mov_b64 exec, 5')
    a(f'ds_write_b32 v{V_Z}, v{V_X} offset:{L_STAT}')
    a(f'ds_write_b32 v{V_Z}, v{V_Y} offset:{L_STAT + 32}')
    a('s_mov_b64 exec, 1')
    a(f'ds_add_u32 v{V_ZERO}, v{V_F} offset:{L_FLAGS}')
    a('s_mov_b64 exec, -1')
    assert not extra
    if cfg.fine and not cfg.st7 and not cfg.st0: stamp(a, cfg, 7)
    def prepA(n):
        if n % 16 == 0 and n > 0:
            for k in range(10): a(f'v_mov_b32 v{V_S+k}, v{V_S+k+1}')
        for k in range(4):
            a(f'v_and_b32_dpp v{V_A + 4*(n&1) + k}, v{V_S}, v{V_MK[batch(n)]+k} row_newbcast:{bitrev4(pos(n))} row_mask:0xf bank_mask:0xf')
    def mfma(n):
        a(f'v_mfma_f32_16x16x32_bf16 {vr(V_ACC,4)}, {vr(V_A + 4*(n&1),4)}, {vr(V_R + 4*slotV(n),4)}, {vr(V_ACC,4)}')
    prepA(0)
    def vloop(tag, L, count):
        if count <= 0: return
        a(f's_mov_b32 s{S_IT}, {count}')
        a('.p2align 6')
        a.label(f'L_A_v{tag}')
        for i in range(16):
            wait2(L, cfg.HV)
            issue(True, 16 + i + DV)
            mfma(16 + i); ctl(i); prepA(16 + i + 1)
        a(f's_sub_u32 s{S_IT}, s{S_IT}, 1\ns_cmp_lg_u32 s{S_IT}, 0\ns_cbranch_scc1 L_A_v{tag}')
    nva = min(cfg.NVa, 9)
    if cfg.Lj:
        a(f's_cmp_lg_u32 s{S_R}, 0\ns_cbranch_scc1 L_A_vn')
        vloop('j', cfg.Lj, 9)
        a('s_branch L_A_vx')
        a.label('L_A_vn')
    vloop('a', L2, nva)
    vloop('b', L3, 9 - nva)
    if cfg.Lj: a.label('L_A_vx')
    ST = V_T
    if cfg.fine and not cfg.st0: stamp(a, cfg, 3)
    L3 = cfg.Ld or L3
    for nn in range(144, NLD):
        m = nn + DV
        if m < NLD:
            if cfg.tctl: wait2(cfg.tctl, L3)
            else: a(f's_waitcnt vmcnt({L3-1})')
            issue(True, m)
            if cfg.tctl and nn in (148, 149): ctl(nn - 148)
        else:
            a(f's_waitcnt vmcnt({min(L3 - 1, NLD - 1 - nn)})' if NLD - 1 - nn < L3 else 's_nop 0')
            a('s_nop 0')
        mfma(nn)
        if nn + 1 < NLD: prepA(nn + 1)
        if nn == 144:
            lds_spin(a, 'A_sw', V_X, V_ZERO, L_FLAGS, 4, 1)
            a(f'v_lshrrev_b32 v{V_X}, 1, v{V_G}')
            a(f'v_lshlrev_b32 v{V_X}, 4, v{V_X}')
            a(f's_lshl_b32 s62, s{S_W}, 2')
            a(f'v_add_u32 v{V_Y}, s62, v{V_X}')
            a(f'ds_read_b128 {vr(ST,4)}, v{V_X} offset:{L_STAT}')
            a(f'ds_read_b32 v{V_F}, v{V_Y} offset:{L_STAT}')
        if nn == 146:
            a('s_waitcnt lgkmcnt(0)')
            a(f'v_max3_f32 v{V_X}, v{ST}, v{ST+1}, v{ST+2}')
            a(f'v_max_f32 v{V_X}, v{V_X}, v{ST+3}')
            a(f'v_sub_f32 v{V_F}, v{V_F}, v{V_X}')
            a(f'v_exp_f32 v{V_F}, v{V_F}')
            rs = 2 * SP_RS if cfg.smf else OB_RS
            a(f'v_lshrrev_b32 v{V_Z}, 1, v{V_G}')
            a(f'v_mul_u32_u24 v{V_Z}, {4*rs}, v{V_Z}')
            a(f'v_lshl_add_u32 v{V_Z}, v{V_C}, {3 if cfg.smf else 4}, v{V_Z}')
            a(f'v_and_b32 v{V_Y}, 1, v{V_G}')
            a(f'v_lshl_add_u32 v{V_Z}, v{V_Y}, {2 if cfg.smf else 3}, v{V_Z}')
            a(f's_mul_i32 s62, s{S_W}, {rs}')
            if cfg.smf: a(f's_add_u32 s62, s62, {L_OB}')
            a(f'v_add_u32 v{V_Z}, s62, v{V_Z}')
    if cfg.fine and cfg.st7: stamp(a, cfg, 7)
    a.nop(8)
    for k in (0, 2): a(f'v_pk_mul_f32 {vr(V_ACC+k,2)}, {vr(V_ACC+k,2)}, {vr(V_F-1,2)} op_sel:[0,1] op_sel_hi:[1,1]')
    a(f'v_cvt_pk_bf16_f32 v{V_ACC}, v{V_ACC}, v{V_ACC+1}')
    a(f'v_cvt_pk_bf16_f32 v{V_ACC+1}, v{V_ACC+2}, v{V_ACC+3}')
    if cfg.smf: a(f'ds_write2_b32 v{V_Z}, v{V_ACC}, v{V_ACC+1} offset1:{SP_RS // 4}')
    else: a(f'ds_write_b64 v{V_Z}, {vr(V_ACC,2)} offset:{L_OB}')
    a('s_waitcnt lgkmcnt(0)\ns_barrier')
    stamp(a, cfg, 2)
    ist(a, cfg, -1)
    a('s_endpgm')

def group_base(a, S_BASE):
    a(f's_and_b32 s63, s{S_H}, 7\ns_mul_i32 s63, s63, {G.CFG.gstr:#x}\ns_add_u32 s63, s63, {WS_PROG:#x}')
    a(f's_add_u32 s{S_BASE}, s{P_WS}, s63\ns_addc_u32 s{S_BASE+1}, s{P_WS+1}, 0')

def group_sum(a, S_BASE, va, v, s_sum, s_g, own=None, six=None):
    a('s_mov_b64 exec, 0x1ffffff')
    if six: a('s_mov_b32 exec_hi, 0x3f')
    a(f'global_load_dword v{v}, v{va}, s[{S_BASE}:{S_BASE+1}] {G.CFG.gpol.replace("+", " ")}')
    a('s_waitcnt vmcnt(0)')
    a(f'v_subrev_u32 v{v}, s{S_TAG}, v{v}')
    a('s_mov_b64 exec, 0xffffff')
    a(f'v_cmp_le_u32 vcc, 0x400, v{v}')
    a(f'v_readlane_b32 s{s_g}, v{v}, 24')
    if own: a(f'v_readlane_b32 s{own[0]}, v{v}, s{own[1]}')
    for st in (1, 2, 4, 8):
        if st > 1: a.nop(2)
        a(f'v_add_u32_dpp v{v}, v{v}, v{v} row_shr:{st} row_mask:0xf bank_mask:0xf bound_ctrl:0')
    a.nop(1)
    a(f'v_readlane_b32 s{s_sum}, v{v}, 15')
    a(f'v_readlane_b32 s63, v{v}, 23')
    a(f's_add_u32 s{s_sum}, s{s_sum}, s63')

def monitor(a, cfg, S_K, V_ZERO, V_TMP):
    S_BASE, S_NOW, S_PREV, S_SUM, S_G, S_N = 56, 58, 59, 61, 62, 64
    U = 20 * 24
    if cfg.post: a(f's_sub_u32 s63, s{S_K}, 1\ns_cmp_gt_u32 s63, 1\ns_cbranch_scc1 L_A_monx')
    else: a(f's_cmp_lg_u32 s{S_K}, 1\ns_cbranch_scc1 L_A_monx')
    group_base(a, S_BASE)
    a(f's_mov_b32 s{S_N}, 0\ns_mov_b32 s{S_PREV}, 0')
    a(f's_lshr_b32 s62, s{S_H}, 3\ns_mul_i32 s62, s62, 6\ns_add_u32 s62, s62, s{S_R}\ns_lshl_b32 s62, s62, 2')
    a(f'v_mov_b32 v{V_TMP}, s62')
    a(f'v_lshlrev_b32 v{V_TMP+4}, 2, v{V_LANE}')
    if cfg.post:
        a('s_lshr_b32 s65, s62, 2')
        a(f's_cmp_eq_u32 s{S_K}, 1\ns_cbranch_scc1 L_A_mon')
        a('s_mov_b64 exec, 1')
        a(f's_mov_b32 s{S_PREV}, {-cfg.post}')
        a.label('L_A_post')
        a(f'ds_read_b32 v{V_TMP+1}, v{V_ZERO} offset:{L_PROG}')
        a('s_waitcnt lgkmcnt(0)')
        a(f'v_readfirstlane_b32 s{S_NOW}, v{V_TMP+1}')
        a(f'v_add_u32 v{V_TMP+2}, s{S_TAG}, v{V_TMP+1}')
        a(f's_sub_u32 s63, s{S_NOW}, s{S_PREV}\ns_cmp_lt_u32 s63, {cfg.post}\ns_cbranch_scc1 L_A_postn')
        a(f'global_store_dword v{V_TMP}, v{V_TMP+2}, s[{S_BASE}:{S_BASE+1}]')
        a(f's_mov_b32 s{S_PREV}, s{S_NOW}')
        a(f's_cmp_ge_u32 s{S_NOW}, {cfg.pend}\ns_cbranch_scc1 L_A_monx')
        a.label('L_A_postn')
        a(f's_sleep {cfg.psl}')
        a(f's_add_u32 s{S_N}, s{S_N}, 1\ns_cmp_lt_u32 s{S_N}, {1 << 16}\ns_cbranch_scc1 L_A_post')
        a('s_branch L_A_monx')
    a.label('L_A_mon')
    a('s_mov_b64 exec, 1')
    a(f'ds_read_b32 v{V_TMP+1}, v{V_ZERO} offset:{L_PROG}')
    a('s_waitcnt lgkmcnt(0)')
    a(f'v_add_u32 v{V_TMP+2}, s{S_TAG}, v{V_TMP+1}')
    a(f'v_readfirstlane_b32 s{S_NOW}, v{V_TMP+1}')
    if not cfg.post: a(f'global_store_dword v{V_TMP}, v{V_TMP+2}, s[{S_BASE}:{S_BASE+1}]')
    group_sum(a, S_BASE, V_TMP + 4, V_TMP + 5, S_SUM, S_G, own=(S_PREV, 65) if cfg.post else None)
    if cfg.post: a(f's_mul_i32 s63, s{S_PREV}, 24\ns_sub_u32 s{S_SUM}, s{S_SUM}, s63')
    else: a(f's_add_u32 s63, s{S_NOW}, s{S_PREV}\ns_mul_i32 s63, s63, 12\ns_sub_u32 s{S_SUM}, s{S_SUM}, s63')
    if cfg.mon > 1:
        a(f's_cmp_lt_u32 s{S_G}, 0x8000\ns_cselect_b32 s{S_G}, s{S_G}, 0x4000')
        a(f's_add_u32 s{S_SUM}, s{S_SUM}, s{S_G}\ns_sub_u32 s{S_SUM}, s{S_SUM}, 0x4000')
    a(f's_mov_b32 s63, {cfg.tha * U // 100}')
    a(f's_cmp_lt_u32 s{S_NOW}, {cfg.mp1}\ns_cselect_b32 s63, s63, {cfg.thb * U // 100}')
    a(f's_cmp_gt_i32 s{S_SUM}, s63\ns_cselect_b32 s63, 1, 0')
    a(f's_cmp_eq_u64 vcc, 0\ns_cselect_b32 s63, s63, {cfg.mdef}')
    if not cfg.tctl: a(f's_cmp_lt_u32 s{S_NOW}, {cfg.mend}\ns_cselect_b32 s63, s63, 1')
    a(f'v_mov_b32 v{V_TMP+3}, s63')
    a(f'ds_write_b32 v{V_ZERO}, v{V_TMP+3} offset:{L_CTL}')
    if cfg.lite: a(f's_add_u32 s98, s98, s63\ns_add_u32 s99, s99, 1')
    a(f's_mov_b32 s{S_PREV}, s{S_NOW}')
    a(f's_cmp_ge_u32 s{S_NOW}, {cfg.mend}\ns_cbranch_scc1 L_A_monx')
    if cfg.msl: a(f's_sleep {cfg.msl}')
    a(f's_add_u32 s{S_N}, s{S_N}, 1\ns_cmp_lt_u32 s{S_N}, 4096\ns_cbranch_scc1 L_A_mon')
    a.label('L_A_monx')
    a('s_mov_b64 exec, -1')

def exchange(a, cfg, tag, V, V_ZERO, L_STOP):
    if cfg.grot: return exchange_rot(a, cfg, tag, V, V_ZERO, L_STOP)
    S_BASE, S_PREV, S_SUM, S_G, S_N = 56, 59, 61, 62, 64
    group_base(a, S_BASE)
    a(f's_mov_b32 s{S_N}, 0\ns_mov_b32 s{S_PREV}, 0')
    a(f's_lshl_b32 s62, s{S_H}, 8\ns_add_u32 s62, s62, {WS_PROG + 0x1000:#x}')
    a(f'v_lshl_add_u32 v{V+4}, v{V_LANE}, 4, s62')
    a(f's_mov_b32 s62, {WS_PROG + 0x1000:#x}')
    a(f'v_lshl_add_u32 v{V+5}, v{V_LANE}, 8, s62')
    a(f'v_lshlrev_b32 v{V+6}, 2, v{V_LANE}')
    a(f'v_mov_b32 v{V+7}, 96')
    a.label(f'L_gm_{tag}')
    if cfg.gpar:
        a('s_mov_b64 exec, 0xff')
        a(f'global_load_dword v{V+9}, v{V+5}, s[{P_WS}:{P_WS+1}] sc1')
    group_sum(a, S_BASE, V + 6, V + 8, S_SUM, S_G)
    a('s_mov_b64 exec, 0xff')
    a(f's_cbranch_vccnz L_gm_{tag}_{"next" if L_STOP is not None else "x"}')
    a(f's_add_u32 s63, s{S_SUM}, s{S_TAG}')
    for k in range(4): a(f'v_mov_b32 v{V+k}, s63')
    a(f'global_store_dwordx4 v{V+4}, {vr(V,4)}, s[{P_WS}:{P_WS+1}] sc1')
    if not cfg.gpar: a(f'global_load_dword v{V+9}, v{V+5}, s[{P_WS}:{P_WS+1}] sc1')
    a(f's_mul_i32 s63, s{S_SUM}, {cfg.gmix}\ns_mul_i32 s65, s{S_PREV}, {8 - cfg.gmix}\ns_add_u32 s65, s65, s63')
    a(f's_cmp_eq_u32 s{S_PREV}, 0\ns_mov_b32 s{S_PREV}, s{S_SUM}')
    if not cfg.gpar: a('s_waitcnt vmcnt(0)')
    a(f's_cbranch_scc1 L_gm_{tag}_next')
    a(f'v_subrev_u32 v{V+9}, s{S_TAG}, v{V+9}')
    a(f'v_cmp_le_u32 vcc, 0x8000, v{V+9}')
    a('s_nop 0')
    for st in (1, 2, 4):
        if st > 1: a.nop(2)
        a(f'v_add_u32_dpp v{V+9}, v{V+9}, v{V+9} row_shr:{st} row_mask:0xf bank_mask:0xf bound_ctrl:0')
    a(f's_cbranch_vccnz L_gm_{tag}_next')
    a('s_nop 0')
    a(f'v_readlane_b32 s63, v{V+9}, 7')
    a(f's_sub_u32 s63, s63, s65\ns_ashr_i32 s63, s63, 3')
    if cfg.ggain != 100: a(f's_mul_i32 s63, s63, {cfg.ggain * 64 // 100}\ns_ashr_i32 s63, s63, 6')
    a(f's_add_u32 s63, s63, 0x4000\ns_add_u32 s63, s63, s{S_TAG}')
    a(f'v_mov_b32 v{V+10}, s63')
    a(f'global_store_dword v{V+7}, v{V+10}, s[{S_BASE}:{S_BASE+1}]')
    a.label(f'L_gm_{tag}_next')
    if L_STOP is not None:
        a(f'ds_read_b32 v{V+11}, v{V_ZERO} offset:{L_STOP}')
        a('s_waitcnt lgkmcnt(0)')
        a(f'v_readfirstlane_b32 s63, v{V+11}')
        a(f's_cmp_eq_u32 s63, s{S_TAG}\ns_cbranch_scc1 L_gm_{tag}_x')
    else: a(f's_cmp_ge_u32 s{S_SUM}, {24 * (cfg.mend - 20)}\ns_cbranch_scc1 L_gm_{tag}_x')
    if cfg.gsl: a(f's_sleep {cfg.gsl}')
    a(f's_add_u32 s{S_N}, s{S_N}, 1\ns_cmp_lt_u32 s{S_N}, {128 if cfg.gpar else 64}\ns_cbranch_scc1 L_gm_{tag}')
    a.label(f'L_gm_{tag}_x')
    a('s_mov_b64 exec, -1')

def exchange_rot(a, cfg, tag, V, V_ZERO, L_STOP):
    S_BASE, S_K, S_PREV, S_SUM, S_G, S_N = 56, 58, 59, 61, 62, 64
    VO, VX, VS, VA, VW, VP, VY, VM, VT = V + 4, V + 5, V + 6, V + 7, V + 8, V + 9, V + 10, V + 11, V + 12
    group_base(a, S_BASE)
    a(f's_mov_b32 s{S_N}, 0\ns_mov_b32 s{S_PREV}, 0\ns_mov_b32 s{S_K}, 0')
    a(f's_lshl_b32 s62, s{S_H}, 12\ns_add_u32 s62, s62, {WS_GLOB:#x}')
    a(f'v_lshl_add_u32 v{VO}, v{V_LANE}, 4, s62')
    a(f'v_lshrrev_b32 v{VX}, 2, v{V_LANE}')
    a(f's_mov_b32 s62, {WS_GLOB:#x}')
    a(f'v_lshl_add_u32 v{VX}, v{VX}, 12, s62')
    a(f'v_and_b32 v{VS}, 3, v{V_LANE}')
    a(f'v_lshlrev_b32 v{VW}, 2, v{V_LANE}')
    a(f'v_mov_b32 v{VM}, 0')
    a.label(f'L_gm_{tag}')
    a('s_mov_b32 exec_lo, -1\ns_mov_b32 exec_hi, 0')
    a(f'v_add_u32 v{VA}, s{S_K}, v{VS}')
    a(f'v_and_b32 v{VA}, 15, v{VA}')
    a(f'v_lshl_add_u32 v{VA}, v{VA}, 8, v{VX}')
    a(f'global_load_dword v{VY}, v{VA}, s[{P_WS}:{P_WS+1}] sc1')
    group_sum(a, S_BASE, VW, VP, S_SUM, S_G)
    a('s_mov_b64 exec, 0xff')
    a(f's_cbranch_vccnz L_gm_{tag}_{"next" if L_STOP is not None else "x"}')
    a(f's_add_u32 s63, s{S_SUM}, s{S_TAG}')
    for k in range(4): a(f'v_mov_b32 v{V+k}, s63')
    a(f's_lshr_b32 s{S_K}, s{S_SUM}, {cfg.grot}\ns_and_b32 s63, s{S_K}, 15\ns_lshl_b32 s63, s63, 8')
    a(f'v_add_u32 v{VA}, s63, v{VO}')
    a(f's_sub_u32 s{S_K}, s{S_K}, {cfg.gback}')
    a(f'global_store_dwordx4 v{VA}, {vr(V,4)}, s[{P_WS}:{P_WS+1}] sc1')
    a(f's_mul_i32 s63, s{S_SUM}, {cfg.gmix}\ns_mul_i32 s65, s{S_PREV}, {8 - cfg.gmix}\ns_add_u32 s65, s65, s63')
    a(f's_cmp_eq_u32 s{S_PREV}, 0\ns_mov_b32 s{S_PREV}, s{S_SUM}')
    a(f's_cbranch_scc1 L_gm_{tag}_next')
    a('s_mov_b32 exec_lo, -1')
    a(f'v_subrev_u32 v{VY}, s{S_TAG}, v{VY}')
    a(f'v_cmp_gt_u32 vcc, 0x8000, v{VY}')
    a.nop(2)
    a(f'v_cndmask_b32 v{VY}, 0, v{VY}, vcc')
    a(f'v_max_u32 v{VM}, v{VM}, v{VY}')
    for qp in ('[1,0,3,2]', '[2,3,0,1]'):
        a.nop(2)
        a(f'v_max_u32_dpp v{VM}, v{VM}, v{VM} quad_perm:{qp} row_mask:0xf bank_mask:0xf')
    a(f'v_cmp_eq_u32 vcc, 0, v{VM}')
    a.nop(1)
    a(f'v_add_u32_dpp v{VY}, v{VM}, v{VM} row_shr:4 row_mask:0xf bank_mask:0xf bound_ctrl:0')
    a.nop(2)
    a(f'v_add_u32_dpp v{VY}, v{VY}, v{VY} row_shr:8 row_mask:0xf bank_mask:0xf bound_ctrl:0')
    a(f's_cbranch_vccnz L_gm_{tag}_next')
    a('s_nop 0')
    a(f'v_readlane_b32 s63, v{VY}, 15')
    a(f'v_readlane_b32 s62, v{VY}, 31')
    a('s_add_u32 s63, s63, s62')
    a(f's_sub_u32 s63, s63, s65\ns_ashr_i32 s63, s63, 3')
    if cfg.ggain != 100: a(f's_mul_i32 s63, s63, {cfg.ggain * 64 // 100}\ns_ashr_i32 s63, s63, 6')
    a(f's_add_u32 s63, s63, 0x4000\ns_add_u32 s63, s63, s{S_TAG}')
    a('s_mov_b64 exec, 0x1000000')
    a(f'v_mov_b32 v{VT}, s63')
    a(f'global_store_dword v{VW}, v{VT}, s[{S_BASE}:{S_BASE+1}]')
    a.label(f'L_gm_{tag}_next')
    if L_STOP is not None:
        a(f'ds_read_b32 v{VP}, v{V_ZERO} offset:{L_STOP}')
        a('s_waitcnt lgkmcnt(0)')
        a(f'v_readfirstlane_b32 s63, v{VP}')
        a(f's_cmp_eq_u32 s63, s{S_TAG}\ns_cbranch_scc1 L_gm_{tag}_x')
    else: a(f's_cmp_ge_u32 s{S_SUM}, {24 * (cfg.mend - 20)}\ns_cbranch_scc1 L_gm_{tag}_x')
    if cfg.gsl: a(f's_sleep {cfg.gsl}')
    a(f's_add_u32 s{S_N}, s{S_N}, 1\ns_cmp_lt_u32 s{S_N}, 128\ns_cbranch_scc1 L_gm_{tag}')
    a.label(f'L_gm_{tag}_x')
    a('s_mov_b64 exec, -1')

def assist(a, cfg, tag, V, V_ZERO, L_STOP):
    S_BASE, S_SUM, S_G, S_N, SRD = 56, 61, 62, 64, 68
    VA, VP, VU, VK, VL, V0, V1, VD, VT = range(V, V + 9)
    U = 20 * 24
    group_base(a, S_BASE)
    a(f's_lshl_b32 s62, s{S_HP}, 21')
    a(f's_sub_u32 s63, {128 << 20:#x}, s62')
    srd(a, SRD, P_AK, off_s=62, nrec_s=63)
    srd(a, SRD + 4, P_AV, off_s=62, nrec_s=63)
    a(f's_mov_b64 s[{SRD+8}:{SRD+9}], s[{SRD}:{SRD+1}]\ns_mov_b64 s[{SRD+10}:{SRD+11}], s[{SRD+2}:{SRD+3}]')
    a(f's_lshr_b32 s62, s{S_H}, 3\ns_mul_i32 s62, s62, 6\ns_sub_u32 s62, s62, 32')
    a(f'v_add_u32 v{VT}, s62, v{V_LANE}')
    a(f'v_cmp_gt_u32 vcc, 32, v{V_LANE}')
    a(f'v_lshlrev_b32 v{V0}, 7, v{V_LANE}')
    a(f'v_add_u32 v{V1}, {64 << 20:#x}, v{V0}')
    a(f'v_cndmask_b32 v{VA}, v{VT}, v{V_LANE}, vcc')
    a(f'v_lshlrev_b32 v{VA}, 2, v{VA}')
    if cfg.lite: a('s_mov_b32 s98, 0')
    a(f'v_mov_b32 v{VL}, 0')
    a(f's_mov_b32 s{S_N}, 0')
    a.label(f'L_as_{tag}')
    group_sum(a, S_BASE, VA, VP, S_SUM, S_G, six=True)
    a(f's_cbranch_vccnz L_as_{tag}_{"idle" if L_STOP is not None else "x"}')
    if L_STOP is None: a(f's_cmp_ge_u32 s{S_SUM}, {24 * (cfg.pend - 8)}\ns_cbranch_scc1 L_as_{tag}_x')
    if cfg.ag:
        a(f's_cmp_lt_u32 s{S_G}, 0x8000\ns_cselect_b32 s{S_G}, s{S_G}, 0x4000')
        a(f's_add_u32 s{S_SUM}, s{S_SUM}, s{S_G}\ns_sub_u32 s{S_SUM}, s{S_SUM}, {0x4000 + cfg.ath * U // 100}')
    else: a(f's_sub_u32 s{S_SUM}, s{S_SUM}, {cfg.ath * U // 100}')
    a('s_mov_b32 exec_lo, 0\ns_mov_b32 exec_hi, 0x3f')
    a(f'v_cmp_gt_u32 vcc, {328 - cfg.lead}, v{VP}')
    a(f'v_add_u32 v{VU}, {cfg.lead + 8}, v{VP}')
    a('s_nop 0')
    a(f'v_cndmask_b32 v{VT}, 0, 8, vcc')
    a(f'v_add_u32 v{VU}, v{VU}, v{VT}')
    a(f'v_lshrrev_b32 v{VU}, 4, v{VU}')
    a(f'v_sub_u32 v{VT}, v{VU}, v{VL}')
    a(f'v_cmp_gt_i32 vcc, {cfg.acs}, v{VT}')
    a(f'v_cmp_le_i32 s[66:67], {cfg.agap}, v{VT}')
    a('s_nop 0')
    a(f'v_cndmask_b32 v{VK}, 0, {cfg.acr}, vcc')
    a(f'v_cmp_ge_u32 vcc, 41, v{VU}')
    a(f'v_add_u32 v{VK}, v{VK}, v{VP}')
    a(f'v_lshl_add_u32 v{VK}, v{VK}, 6, v{V_LANE}')
    a('s_and_b64 vcc, vcc, s[66:67]')
    a(f'v_cndmask_b32 v{VK}, -1, v{VK}, vcc')
    for st in (1, 2, 4):
        a.nop(2)
        a(f'v_min_u32_dpp v{VK}, v{VK}, v{VK} row_shr:{st} row_mask:0xf bank_mask:0xf')
    a.nop(1)
    a(f'v_readlane_b32 s63, v{VK}, 37')
    a('s_lshr_b32 s65, s63, 6\ns_and_b32 s63, s63, 63\ns_mul_i32 s65, s65, 24')
    a(f's_cmp_ge_i32 s65, s{S_SUM}\ns_cbranch_scc1 L_as_{tag}_idle')
    a(f'v_readlane_b32 s65, v{VU}, s63')
    a(f's_mov_b32 m0, s63')
    a('s_mov_b64 exec, -1')
    a('s_cmp_lt_u32 s65, 21')
    a(f's_cselect_b64 s[{SRD+8}:{SRD+9}], s[{SRD}:{SRD+1}], s[{SRD+4}:{SRD+5}]')
    a(f'v_writelane_b32 v{VL}, s65, m0')
    a('s_cselect_b32 s66, 0, 21\ns_sub_u32 s65, s65, s66')
    a(f's_mul_i32 s65, s65, {STEP:#x}\ns_and_b32 s63, s63, 7\ns_lshl_b32 s63, s63, 14\ns_add_u32 s65, s65, s63')
    a('s_add_u32 s66, s65, 0x2000')
    for v in (V0, V1):
        for so in (65, 66): a(f'buffer_load_dword v{VD}, v{v}, s[{SRD+8}:{SRD+11}], s{so} offen {cfg.apol.replace("+", " ")}')
    if cfg.lite: a('s_add_u32 s98, s98, 1')
    if cfg.await_: a(f's_waitcnt vmcnt({4 - cfg.await_})')
    a(f's_branch L_as_{tag}_next')
    a.label(f'L_as_{tag}_idle')
    if cfg.asl: a(f's_sleep {cfg.asl}')
    a.label(f'L_as_{tag}_next')
    if L_STOP is not None:
        a('s_mov_b64 exec, 1')
        a(f'ds_read_b32 v{VT}, v{V_ZERO} offset:{L_STOP}')
        a('s_waitcnt lgkmcnt(0)')
        a(f'v_readfirstlane_b32 s63, v{VT}')
        a(f's_cmp_eq_u32 s63, s{S_TAG}\ns_cbranch_scc1 L_as_{tag}_x')
    a(f's_add_u32 s{S_N}, s{S_N}, 1\ns_cmp_lt_u32 s{S_N}, 96\ns_cbranch_scc1 L_as_{tag}')
    a.label(f'L_as_{tag}_x')
    if cfg.lite:
        a(f's_lshl_b32 s92, s2, 9\ns_add_u32 s92, s92, {WS_STAMP + 6*64:#x}')
        a('s_mov_b64 exec, 1')
        a(f'v_mov_b32 v250, s92\nv_mov_b32 v252, s98\nv_mov_b32 v253, s{S_N}')
        a(f'global_store_dwordx2 v250, v[252:253], s[{P_WS}:{P_WS+1}] nt')
    a('s_mov_b64 exec, -1')
    a('s_waitcnt vmcnt(0)')

def helper(a, cfg):
    SRD_W, SRD_X = 40, 44
    S_K, S_ROT, S_P = 35, 36, 37
    V_ZERO, V_OFF, V_T0, V_T1 = 8, 9, 10, 11
    V_X = 12
    V_A = 28
    V_Y = 36
    V_TMP = 44
    V_W = 56
    V_B = V_W + 128
    assert V_B + 64 <= 249
    def zero_flags():
        a(f'v_mov_b32 v{V_ZERO}, 0')
        a(f'v_mov_b32 v{V_T1}, 0')
        a(f'ds_write_b32 v{V_ZERO}, v{V_ZERO} offset:{L_FLAGQ}')
        a(f'ds_write_b32 v{V_ZERO}, v{V_ZERO} offset:{L_FLAGS}')
        if cfg.mon:
            a(f'ds_write_b32 v{V_ZERO}, v{V_ZERO} offset:{L_CTL}')
            a(f'ds_write_b32 v{V_ZERO}, v{V_ZERO} offset:{L_PROG}')
        a('s_waitcnt lgkmcnt(0)\ns_barrier')
    qc = cfg.tag and cfg.qc
    if cfg.fb:
        assert qc
        zero_flags()
    late_entry(a, cfg, not qc)
    if cfg.fs: stamp(a, cfg, 0)
    a(f's_sub_u32 s{S_K}, s{S_W}, 4')
    if cfg.lite and cfg.mon: a('s_mov_b32 s98, 0\ns_mov_b32 s99, 0')
    a(f's_lshl_b32 s{S_P}, s{S_H}, 3\ns_add_u32 s{S_P}, s{S_P}, s{S_R}')
    def clear_rows():
        a(f's_cmp_lg_u32 s{S_K}, 0\ns_cbranch_scc1 L_A_noclr')
        a(f's_lshl_b32 s63, s{S_P}, 10\ns_add_u32 s63, s63, {WS_YA:#x}')
        a(f'v_lshl_add_u32 v{V_T0}, v{V_LANE}, 4, s63')
        a(f'v_add_u32 v{V_T1}, {1 << 18:#x}, v{V_T0}')
        for k in range(4): a(f'v_mov_b32 v{V_TMP+k}, -1')
        a(f'global_store_dwordx4 v{V_T0}, {vr(V_TMP,4)}, s[{P_WS}:{P_WS+1}] {cfg.zpol.replace("+", " ")}')
        a(f'global_store_dwordx4 v{V_T1}, {vr(V_TMP,4)}, s[{P_WS}:{P_WS+1}] {cfg.zpol.replace("+", " ")}')
        a.label('L_A_noclr')
    def wo_setup():
        a(f's_lshl_b32 s62, s{S_HP}, 17')
        a(f's_mov_b32 s63, {128*1024:#x}')
        srd(a, SRD_W, P_AWO, off_s=62, nrec_s=63)
        a(f'v_lshlrev_b32 v{V_OFF}, 13, v{V_G}')
        a(f'v_lshl_add_u32 v{V_OFF}, v{V_C}, 4, v{V_OFF}')
        a(f's_lshl_b32 s62, s{S_K}, 8')
        a(f'v_add_u32 v{V_OFF}, s62, v{V_OFF}')
    Lo = cfg.Lo
    assert Lo <= 8
    def wo_load(n):
        s, e = n // 8, n % 8
        if e % 4 == 0: a(f's_mov_b32 s61, {s*32768 + e*1024}')
        if not cfg.nowo: a(f'buffer_load_dwordx4 {vr(V_B + 32*(s&1) + 4*e,4)}, v{V_OFF}, s[{SRD_W}:{SRD_W+3}], s61 offen offset:{(e%4)*1024} {cfg.wopol}')
    def touch(ptr, dst):
        lab = f'L_A_tch{dst}'
        a(f's_cmp_lg_u32 s{S_K}, 3\ns_cbranch_scc1 {lab}')
        a(f's_lshl_b32 s62, s{S_HP}, 21')
        a(f's_sub_u32 s63, {128 << 20:#x}, s62')
        srd(a, 68, ptr, off_s=62, nrec_s=63)
        n = cfg.tn
        a(f'v_and_b32 v{V_T0}, {n - 1}, v{V_LANE}')
        a(f'v_mul_u32_u24 v{V_T0}, {((2 << 20) - 128) // (n - 1) // 128 * 128:#x}, v{V_T0}')
        a(f'v_bfe_u32 v{V_T1}, v{V_LANE}, {n.bit_length() - 1}, 1')
        a(f'v_lshl_add_u32 v{V_T0}, v{V_T1}, 26, v{V_T0}')
        a(f's_mov_b64 exec, {hex((1 << (2 * n)) - 1) if n < 16 else -1}')
        if n == 16: a('s_mov_b32 exec_hi, 0')
        a(f'buffer_load_dword v{dst}, v{V_T0}, s[68:71], 0 offen {cfg.tpol}')
        a('s_mov_b64 exec, -1')
        a.label(lab)
    if 'k' in cfg.tlb: touch(P_AK, V_Y)
    if 'v' in cfg.tlb: touch(P_AV, V_Y + 1)
    if cfg.tag and cfg.clr0 and not cfg.noclr: clear_rows()
    if qc:
        wo_setup()
        if not cfg.wlate:
            for n in range(Lo): wo_load(n)
    else:
        srd(a, SRD_X, P_AX, nrec=2048)
        a(f's_lshl_b32 s62, s{S_HP}, 8')
        a(f's_sub_u32 s63, {512*8192:#x}, s62')
        srd(a, SRD_W, P_AWQ, off_s=62, nrec_s=63)
        if cfg.rot: a(f's_and_b32 s{S_ROT}, s{S_R}, 3')
        else: a(f's_mov_b32 s{S_ROT}, 0')
        a(f'v_lshrrev_b32 v{V_T0}, 3, v{V_C}')
        a(f'v_lshlrev_b32 v{V_T0}, 10, v{V_T0}')
        a(f'v_lshl_add_u32 v{V_T0}, v{V_G}, 6, v{V_T0}')
        a(f's_lshl_b32 s62, s{S_K}, 8')
        a(f'v_add_u32 v{V_T0}, s62, v{V_T0}')
        a(f'v_lshlrev_b32 v{V_OFF}, 18, v{V_G}')
        a(f'v_lshl_add_u32 v{V_OFF}, v{V_C}, 4, v{V_OFF}')
        a(f's_lshl_b32 s62, s{S_K}, 20')
        a(f'v_add_u32 v{V_OFF}, s62, v{V_OFF}')
        for i in range(4):
            a(f's_add_u32 s62, s{S_ROT}, {i}\ns_and_b32 s62, s62, 3\ns_lshl_b32 s62, s62, 4')
            a(f'v_add_u32 v{V_T1}, s62, v{V_T0}')
            a(f'buffer_load_dwordx4 {vr(V_X+4*i,4)}, v{V_T1}, s[{SRD_X}:{SRD_X+3}], 0 offen')
        def wq_load(s):
            if s % 8 == 0: a(f's_add_u32 s61, s{S_ROT}, {s//8}\ns_and_b32 s61, s61, 3\ns_lshl_b32 s61, s61, 16')
            else: a(f's_add_u32 s61, s61, 0x2000')
            if not cfg.nowq: a(f'buffer_load_dwordx4 {vr(V_W+4*s,4)}, v{V_OFF}, s[{SRD_W}:{SRD_W+3}], s61 offen {cfg.wqpol}')
        Lq = cfg.Lq
        for s in range(Lq): wq_load(s)
    if not cfg.fb: zero_flags()
    if cfg.tag: load_tag(a)
    if qc and cfg.wlate:
        for n in range(Lo): wo_load(n)
    if not qc:
        a('s_mov_b32 s66, 0x01000100\ns_mov_b32 s67, 0x03020302')
        for s in range(32):
            A = V_A + 4 * (s & 1)
            a(f's_waitcnt vmcnt({min(Lq - 1, 31 - s)})')
            if s + Lq < 32: wq_load(s + Lq)
            a(f'v_perm_b32 v{V_T0}, v{V_X + s//2}, v{V_X + s//2}, s{66 + (s & 1)}')
            for i in range(4): a(f'v_and_b32 v{A+i}, v{V_T0}, v{V_MASK+i}')
            a('s_nop 1')
            acc = V_Y + 4 * (s & 1)
            c = '0' if s < 2 else vr(acc, 4)
            a(f'v_mfma_f32_16x16x32_bf16 {vr(acc,4)}, {vr(A,4)}, {vr(V_W+4*s,4)}, {c}')
        wo_setup()
        a(f'v_lshrrev_b32 v{V_T0}, 1, v{V_G}')
        a(f'v_lshlrev_b32 v{V_T0}, 9, v{V_T0}')
        a(f'v_lshl_add_u32 v{V_T0}, v{V_C}, 5, v{V_T0}')
        a(f'v_and_b32 v{V_T1}, 1, v{V_G}')
        a(f'v_lshl_add_u32 v{V_T0}, v{V_T1}, 4, v{V_T0}')
        a(f's_lshl_b32 s63, s{S_K}, 10')
        a(f'v_add_u32 v{V_T0}, s63, v{V_T0}')
        a(f'v_mov_b32 v{V_T1}, 1')
        for k in range(4): a(f'v_add_f32 v{V_Y+k}, v{V_Y+k}, v{V_Y+4+k}')
        a(f'ds_write_b128 v{V_T0}, {vr(V_Y,4)} offset:{L_QP}')
        a('s_mov_b64 exec, 1')
        a(f'ds_add_u32 v{V_ZERO}, v{V_T1} offset:{L_FLAGQ}')
        a('s_mov_b64 exec, -1')
        stamp(a, cfg, 1)
        for n in range(Lo): wo_load(n)
    a('s_mov_b32 s66, 0x05040100\ns_mov_b32 s67, 0x07060302')
    S_QOK = 38
    tries = [int(t) for t in cfg.qtry.split(',') if t] if qc else []
    def q_to_lds():
        a(f'v_mov_b32 v{V_TMP+1}, v{V_TMP+2}')
        a(f'v_mov_b32 v{V_TMP+2}, 1')
        a(f'ds_write_b64 v{V_T1}, {vr(V_TMP,2)} offset:{L_QP}')
        a(f'ds_write_b32 v{V_ZERO}, v{V_TMP+2} offset:{L_FLAGQ}')
        stamp(a, cfg, 1)
    if qc:
        srd(a, SRD_X, P_WS, nrec=0x1000000)
        a(f's_lshl_b32 s63, s{S_H}, 10\ns_add_u32 s63, s63, {WS_QA:#x}')
        a(f'v_lshl_add_u32 v{V_T0}, v{V_LANE}, 4, s63')
        a(f'v_lshlrev_b32 v{V_T1}, 3, v{V_LANE}')
        a(f's_mov_b32 s{S_QOK}, s{S_K}')
    if cfg.tag: get_tag(a)
    for n in range(32):
        a(f's_waitcnt vmcnt({min(Lo - 1, 31 - n)})')
        if n - Lo in tries:
            a(f's_cmp_lg_u32 s{S_QOK}, 0\ns_cbranch_scc1 L_A_qc{n}')
            a(f'v_cmp_ne_u32 s[62:63], s{S_TAG}, v{V_TMP+1}')
            a(f'v_cmp_ne_u32 vcc, s{S_TAG}, v{V_TMP+3}')
            a('s_nop 1')
            a(f's_or_b64 vcc, vcc, s[62:63]\ns_cbranch_scc1 L_A_qc{n}')
            a(f's_mov_b32 s{S_QOK}, 1')
            q_to_lds()
            a.label(f'L_A_qc{n}')
        if n in tries:
            assert n + 2 * Lo <= 32 and all(abs(n - t) >= Lo for t in tries if t != n)
            a(f's_cmp_lg_u32 s{S_QOK}, 0\ns_cbranch_scc1 L_A_qt{n}')
            a(f'buffer_load_dwordx4 {vr(V_TMP,4)}, v{V_T0}, s[{SRD_X}:{SRD_X+3}], 0 offen sc1')
            a.label(f'L_A_qt{n}')
        if n + Lo < 32: wo_load(n + Lo)
        if n % 2:
            s, e = n // 8, n % 8
            lo, hi = V_B + 32*(s&1) + 4*(e-1), V_B + 32*(s&1) + 4*e
            for cb in range(8):
                w = V_W + 64*(s >> 1) + 8*cb + 4*(s & 1) if cfg.smf else V_W + 32*s + 4*cb
                a(f'v_perm_b32 v{w + e//2}, v{hi + cb//2}, v{lo + cb//2}, s{66 + (cb & 1)}')
    if cfg.smf:
        for k in range(32): a(f'v_mov_b32 v{V_B + k}, 0')
    if cfg.apf:
        a(f's_lshl_b32 s62, s{S_H}, 19\ns_add_u32 s62, s62, {(8 - cfg.apf) << 16:#x}')
        a(f's_mov_b32 s63, {cfg.apf << 16:#x}')
        srd(a, SRD_W, P_BC, off_s=62, nrec_s=63)
        a(f's_lshl_b32 s62, s{S_R}, 2\ns_add_u32 s62, s62, s{S_K}\ns_lshl_b32 s62, s62, 10')
        a(f'v_lshl_add_u32 v{V_OFF}, v{V_LANE}, 4, s62')
        for i in range((cfg.apf * 64 + 23) // 24):
            a(f's_waitcnt vmcnt({cfg.Lp - 1})')
            a(f's_mov_b32 s61, {i * 24 * 1024}')
            a(f'buffer_load_dwordx4 {vr(V_B + 4*(i%8),4)}, v{V_OFF}, s[{SRD_W}:{SRD_W+3}], s61 offen')
        a('s_waitcnt vmcnt(0)')
    if 'V' in cfg.tlb: touch(P_AV, V_Y + 2)
    if 'L' in cfg.tlb:
        a(f's_cmp_lg_u32 s{S_K}, 3\ns_cbranch_scc1 L_A_tl')
        lds_spin(a, 'A_tw', V_T0, V_ZERO, L_PROG, cfg.tat, 32)
        a.label('L_A_tl')
        touch(P_AV, V_Y + 3)
    if cfg.tlb: a('s_waitcnt vmcnt(0)')
    if cfg.fine: stamp(a, cfg, 4)
    a(f's_mov_b32 s60, s{S_P}')
    a(f's_cmp_lg_u32 s{S_K}, 0\ns_cbranch_scc1 L_A_nostat')
    if qc:
        a(f's_cmp_lg_u32 s{S_QOK}, 0\ns_cbranch_scc1 L_A_qdone')
        if 'C' in cfg.roles: tag_poll(a, 'Aq', V_TMP, V_T0, SRD_X, cfg.qsleep)
        q_to_lds()
        a.label('L_A_qdone')
    if cfg.tag and not cfg.clr0:
        clear_rows()
    lds_spin(a, 'A_hs', V_T0, V_ZERO, L_FLAGS, 4, 16)
    if cfg.tag: a('s_waitcnt vmcnt(0)')
    elif 'W' in cfg.roles: poll(a, CNT_Q, 32, V_T0, V_ZERO, 'A_q')
    a(f'v_and_b32 v{V_T0}, 1, v{V_LANE}')
    a(f'v_lshlrev_b32 v{V_T1}, 4, v{V_T0}')
    m, l = V_TMP, V_TMP + 4
    a(f'ds_read_b128 {vr(m,4)}, v{V_T1} offset:{L_STAT}')
    a(f'ds_read_b128 {vr(l,4)}, v{V_T1} offset:{L_STAT + 32}')
    a(f'v_lshlrev_b32 v{V_T0}, {12 if cfg.tag else 11}, v{V_T0}')
    a(f's_lshl_b32 s63, s60, {4 if cfg.tag else 3}\ns_add_u32 s63, s63, {WS_YSTAT:#x}')
    a(f'v_add_u32 v{V_T0}, s63, v{V_T0}')
    if 'y' in cfg.fl:
        a(f's_lshl_b32 s63, s60, 7\ns_add_u32 s63, s63, {WS_YST2:#x}')
        a(f'v_lshl_add_u32 v{V_T0}, v{V_LANE}, 4, s63')
    a('s_waitcnt lgkmcnt(0)')
    M, L = V_TMP + 8, V_TMP + (10 if cfg.tag else 9)
    a(f'v_max3_f32 v{M}, v{m}, v{m+1}, v{m+2}')
    a(f'v_max_f32 v{M}, v{M}, v{m+3}')
    for k in range(4): a(f'v_sub_f32 v{m+k}, v{m+k}, v{M}')
    for k in range(4): a(f'v_exp_f32 v{m+k}, v{m+k}')
    a('s_nop 0')
    a(f'v_mul_f32 v{L}, v{m}, v{l}')
    for k in range(1, 4): a(f'v_fma_f32 v{L}, v{m+k}, v{l+k}, v{L}')
    if cfg.tag:
        a(f'v_mov_b32 v{M+1}, s{S_TAG}\nv_mov_b32 v{M+3}, s{S_TAG}')
        a(f's_mov_b64 exec, {0xff if "y" in cfg.fl else 3}')
        a(f'global_store_dwordx4 v{V_T0}, {vr(M,4)}, s[{P_WS}:{P_WS+1}] sc1')
    else:
        a(f'v_min_u32 v{M}, 0xfffffffe, v{M}')
        a(f'v_min_u32 v{L}, 0xfffffffe, v{L}')
        a('s_mov_b64 exec, 3')
        a(f'global_store_dwordx2 v{V_T0}, {vr(M,2)}, s[{P_WS}:{P_WS+1}] sc1')
    a('s_mov_b64 exec, -1')
    a.label('L_A_nostat')
    if cfg.mon: monitor(a, cfg, S_K, V_ZERO, V_TMP)
    if cfg.smf: return tail_sparse(a, cfg, locals())
    a(f'v_and_b32 v{V_T0}, 7, v{V_C}')
    a(f'v_mul_u32_u24 v{V_T0}, {OB_RS}, v{V_T0}')
    a(f'v_lshl_add_u32 v{V_T0}, v{V_G}, 4, v{V_T0}')
    a(f'v_lshlrev_b32 v{V_T1}, 18, v{V_G}')
    a(f'v_lshl_add_u32 v{V_T1}, v{V_C}, 4, v{V_T1}')
    a(f's_lshl_b32 s63, s60, 10\ns_lshl_b32 s62, s{S_K}, 8\ns_add_u32 s63, s63, s62\ns_add_u32 s63, s63, {WS_YA:#x}')
    a(f'v_add_u32 v{V_T1}, s63, v{V_T1}')
    if cfg.fine: stamp(a, cfg, 5)
    a('s_barrier')
    for s in range(4): a(f'ds_read_b128 {vr(V_X+4*s,4)}, v{V_T0} offset:{L_OB + 64*s}')
    def red(cb):
        d = V_B + 4 * cb
        a(f'v_add_f32 v{d}, v{d}, v{d+1}')
        a(f'v_add_f32 v{d+2}, v{d+2}, v{d+3}')
        a(f'v_add_f32 v{d}, v{d}, v{d+2}')
    def pack(cp):
        a(f'v_cvt_pk_bf16_f32 v{V_Y+cp}, v{V_B + 8*cp}, v{V_B + 8*cp + 4}')
        a(f'v_min_u32 v{V_Y+cp}, 0xfffffffe, v{V_Y+cp}')
    for cp in range(4):
        for s in range(4):
            if cp == 0: a(f's_waitcnt lgkmcnt({3-s})')
            for cb in (2*cp, 2*cp + 1):
                d = V_B + 4 * cb
                c = '0' if s == 0 else vr(d, 4)
                a(f'v_mfma_f32_16x16x32_bf16 {vr(d,4)}, {vr(V_X+4*s,4)}, {vr(V_W + 32*s + 4*cb,4)}, {c}')
        if cp > 0: red(2*cp - 2); red(2*cp - 1); pack(cp - 1)
    a.nop(1)
    red(6); red(7); pack(3)
    a('s_mov_b32 exec_hi, 0')
    a(f'global_store_dwordx4 v{V_T1}, {vr(V_Y,4)}, s[{P_WS}:{P_WS+1}] {cfg.ypol.replace("+", " ")}')
    helper_end(a, cfg)

def tail_sparse(a, cfg, R):
    V_T0, V_T1, V_X, V_W, V_B, V_Y, V_A, S_K = [R[n] for n in ('V_T0', 'V_T1', 'V_X', 'V_W', 'V_B', 'V_Y', 'V_A', 'S_K')]
    a(f'v_mul_u32_u24 v{V_T0}, {SP_RS}, v{V_C}')
    a(f'v_lshl_add_u32 v{V_T0}, v{V_G}, 4, v{V_T0}')
    a(f'v_and_b32 v{V_A}, 1, v{V_C}')
    a(f'v_mul_u32_u24 v{V_A}, 0xaaaa, v{V_A}')
    a(f'v_add_u32 v{V_A}, 0x4444, v{V_A}')
    a(f'v_lshrrev_b32 v{V_T1}, 1, v{V_G}')
    a(f'v_lshlrev_b32 v{V_T1}, 18, v{V_T1}')
    a(f'v_and_b32 v{V_A+1}, 31, v{V_LANE}')
    a(f'v_lshl_add_u32 v{V_T1}, v{V_A+1}, 3, v{V_T1}')
    a(f's_lshl_b32 s63, s60, 10\ns_lshl_b32 s62, s{S_K}, 8\ns_add_u32 s63, s63, s62\ns_add_u32 s63, s63, {WS_YA:#x}')
    a(f'v_add_u32 v{V_T1}, s63, v{V_T1}')
    if cfg.fine: stamp(a, cfg, 5)
    a('s_barrier')
    for s in range(2): a(f'ds_read_b128 {vr(V_X+4*s,4)}, v{V_T0} offset:{L_OB + 64*s}')
    D = lambda cb: V_B + 4 * cb
    def smf(cb, s): a(f'v_smfmac_f32_16x16x64_bf16 {vr(D(cb),4)}, {vr(V_X+4*s,4)}, {vr(V_W + 64*s + 8*cb,8)}, v{V_A}')
    def pk(cb): a(f'v_pk_add_f32 {vr(D(cb),2)}, {vr(D(cb),2)}, {vr(D(cb)+2,2)}')
    def ad(cb): a(f'v_add_f32 v{D(cb)}, v{D(cb)}, v{D(cb)+1}')
    def sw(i): a(f'v_permlane16_swap_b32 v{D(i)}, v{D(i+4)}')
    def rs(i): a(f'v_add_f32 v{D(i)}, v{D(i)}, v{D(i+4)}')
    def cv(j): a(f'v_cvt_pk_bf16_f32 v{V_Y+j}, v{D(2*j)}, v{D(2*j+1)}')
    def mn(j): a(f'v_min_u32 v{V_Y+j}, 0xfffffffe, v{V_Y+j}')
    a('s_waitcnt lgkmcnt(1)')
    smf(0, 0); smf(4, 0)
    a('s_waitcnt lgkmcnt(0)')
    smf(0, 1); smf(4, 1)
    for i in (1, 2, 3):
        for s in range(2): smf(i, s); smf(i + 4, s)
    pk(0); pk(4); ad(0); ad(4); pk(1); pk(5); sw(0); ad(1); ad(5); pk(2); pk(6); rs(0); sw(1)
    ad(2); ad(6); rs(1); pk(3); pk(7); sw(2); ad(3); ad(7); cv(0); rs(2); sw(3); mn(0); rs(3); cv(1); mn(1)
    a(f'global_store_dwordx2 v{V_T1}, {vr(V_Y,2)}, s[{P_WS}:{P_WS+1}] {cfg.ypol.replace("+", " ")}')
    helper_end(a, cfg)

def helper_end(a, cfg):
    stamp(a, cfg, 3)
    if cfg.aend: span_mark(a, cfg, True, 4)
    lite_end(a, cfg, 4, 3)
    if cfg.lite and cfg.mon:
        a(f's_cmp_lg_u32 s{S_W}, 5\ns_cbranch_scc1 L_A_nomst')
        a(f's_lshl_b32 s92, s2, 9\ns_add_u32 s92, s92, {WS_STAMP + 6*64:#x}')
        a('v_mov_b32 v250, s92\nv_mov_b32 v252, s98\nv_mov_b32 v253, s99')
        a('s_mov_b64 exec, 1')
        a(f'global_store_dwordx2 v250, v[252:253], s[{P_WS}:{P_WS+1}] nt')
        a.label('L_A_nomst')
    a('s_endpgm')
```

```python
from asmlib import vr, sr
import gen as G
from gen import *
import role_a4

def col_finish(a, ACC, tmp, L_RED, nw, out_col, tag, perm=False):
    for k in range(4):
        pass
    a.nop(2)
    for k in range(4):
        a(f'v_add_f32_dpp v{ACC+k}, v{ACC+k}, v{ACC+k} row_ror:8 row_mask:0xf bank_mask:0xf')
    for st in (16, 32):
        for k in range(4):
            a(f'v_mov_b32 v{tmp+k}, v{ACC+k}')
        a.nop(2)
        for k in range(4):
            a(f'v_permlane{st}_swap_b32 v{ACC+k}, v{tmp+k}')
        a.nop(1)
        for k in range(4):
            a(f'v_add_f32 v{ACC+k}, v{ACC+k}, v{tmp+k}')
    a(f'v_lshlrev_b32 v{tmp}, 4, v{V_LANE}')
    a(f's_lshl_b32 s63, s{S_W}, 7')
    a(f'v_add_u32 v{tmp}, s63, v{tmp}')
    a('s_mov_b64 exec, 0xff')
    a(f'ds_write_b128 v{tmp}, {vr(ACC,4)} offset:{L_RED}')
    a('s_mov_b64 exec, -1')
    a('s_waitcnt lgkmcnt(0)\ns_barrier')
    a(f's_cmp_lg_u32 s{S_W}, 0\ns_cbranch_scc1 L_{tag}_fin')
    a(f'v_lshlrev_b32 v{tmp}, 2, v{V_LANE}')
    a('s_mov_b32 exec_hi, 0')
    for w in range(nw):
        a(f'ds_read_b32 v{tmp+1+w}, v{tmp} offset:{L_RED + 128*w}')
    a('s_waitcnt lgkmcnt(0)')
    for w in range(1, nw):
        a(f'v_add_f32 v{tmp+1}, v{tmp+1}, v{tmp+1+w}')
    a(f'v_cvt_pk_bf16_f32 v{tmp+1}, v{tmp+1}, v{tmp+1}')
    a(f's_lshr_b32 s62, s{S_H}, 4\ns_lshl_b32 s62, s62, 11')
    a(f's_and_b32 s63, s{S_H}, 15\ns_lshl_b32 s63, s63, 6')
    a(f's_add_u32 s62, s62, s63\ns_add_u32 s62, s62, {out_col*2}')
    if perm:
        a(f's_lshr_b32 s62, s{S_H}, 4\ns_lshl_b32 s62, s62, 11')
        a(f's_bfe_u32 s63, s{S_H}, 0x20002\ns_lshl_b32 s63, s63, 8\ns_add_u32 s62, s62, s63')
        a(f's_and_b32 s63, s{S_H}, 1\ns_lshl_b32 s63, s63, 7\ns_add_u32 s62, s62, s63')
        a(f's_and_b32 s63, s{S_H}, 2\ns_lshl_b32 s63, s63, 2\ns_add_u32 s62, s62, s63')
        a(f'v_and_b32 v{tmp}, 28, v{V_LANE}')
        a(f'v_add_u32 v{tmp}, v{tmp}, v{V_LANE}')
        a(f'v_lshl_add_u32 v{tmp}, v{tmp}, 1, s62')
    else: a(f'v_lshl_add_u32 v{tmp}, v{V_LANE}, 1, s62')
    a(f'global_store_short v{tmp}, v{tmp+1}, s[{P_OUT}:{P_OUT+1}] {G.CFG.opol.replace("+", " ")}')
    a('s_mov_b64 exec, -1')
    a.label(f'L_{tag}_fin')

CF_RS = 48
def col_fast_prep(a, cfg, VL, VO, tmp, vz):
    a(f'v_and_b32 v{tmp}, 7, v{V_LANE}')
    a(f'v_lshl_add_u32 v{VL}, v{V_G}, 3, v{tmp}')
    a(f'v_mul_u32_u24 v{VL}, {CF_RS}, v{VL}')
    a(f'ds_write_b32 v{VL}, v{vz} offset:32')
    a(f's_lshr_b32 s62, s{S_H}, 4\ns_lshl_b32 s62, s62, 11')
    if cfg.smf:
        a(f's_bfe_u32 s63, s{S_H}, 0x20002\ns_lshl_b32 s63, s63, 8\ns_add_u32 s62, s62, s63')
        a(f's_and_b32 s63, s{S_H}, 1\ns_lshl_b32 s63, s63, 7\ns_add_u32 s62, s62, s63')
        a(f's_and_b32 s63, s{S_H}, 2\ns_lshl_b32 s63, s63, 2\ns_add_u32 s62, s62, s63')
    else: a(f's_and_b32 s63, s{S_H}, 15\ns_lshl_b32 s63, s63, 6\ns_add_u32 s62, s62, s63')
    a(f'v_lshl_add_u32 v{VO}, v{tmp}, {3 if cfg.smf else 2}, v{V_G}')
    a(f'v_lshl_add_u32 v{VO}, v{VO}, 1, s62')
    a(f's_lshl_b32 s63, s{S_W}, 2')
    a(f'v_add_u32 v{VL+1}, s63, v{VL}')
    a(f'v_mov_b32 v{VL+2}, 1')

def col_fast(a, cfg, ACC, VL, VO, tmp):
    a.nop(2)
    a(f'v_permlane16_swap_b32 v{ACC}, v{ACC+1}')
    a(f'v_permlane16_swap_b32 v{ACC+2}, v{ACC+3}')
    a(f'v_add_f32 v{ACC}, v{ACC}, v{ACC+1}')
    a(f'v_add_f32 v{ACC+2}, v{ACC+2}, v{ACC+3}')
    a.nop(2)
    a(f'v_permlane32_swap_b32 v{ACC}, v{ACC+2}')
    a.nop(1)
    a(f'v_add_f32 v{ACC}, v{ACC}, v{ACC+2}')
    a.nop(2)
    a(f'v_add_f32_dpp v{ACC}, v{ACC}, v{ACC} row_ror:8 row_mask:0xf bank_mask:0xf')
    a('s_mov_b32 exec_lo, 0x00ff00ff\ns_mov_b32 exec_hi, 0x00ff00ff')
    a(f'ds_write_b32 v{VL+1}, v{ACC}')
    a(f'ds_add_rtn_u32 v{tmp+8}, v{VL}, v{VL+2} offset:32')
    a(f'ds_read_b128 {vr(tmp,4)}, v{VL}')
    a(f'ds_read_b128 {vr(tmp+4,4)}, v{VL} offset:16')
    a('s_waitcnt lgkmcnt(2)')
    a(f'v_cmp_eq_u32 vcc, 7, v{tmp+8}')
    a('s_waitcnt lgkmcnt(0)')
    a(f'v_pk_add_f32 {vr(tmp,2)}, {vr(tmp,2)}, {vr(tmp+2,2)}')
    a(f'v_pk_add_f32 {vr(tmp+4,2)}, {vr(tmp+4,2)}, {vr(tmp+6,2)}')
    a('s_and_b64 exec, exec, vcc')
    a('s_cbranch_scc1 L_W_last')
    a('s_endpgm')
    a.label('L_W_last')
    a(f'v_pk_add_f32 {vr(tmp,2)}, {vr(tmp,2)}, {vr(tmp+4,2)}')
    a(f'v_add_f32 v{tmp}, v{tmp}, v{tmp+1}')
    a(f'v_cvt_pk_bf16_f32 v{tmp}, v{tmp}, v{tmp}')
    a(f'global_store_short v{VO}, v{tmp}, s[{P_OUT}:{P_OUT+1}] {cfg.opol.replace("+", " ")}')
    a(f's_andn2_b32 s{S_W}, 1, vcc_lo')
    a('s_mov_b64 exec, -1')

def role_W(a, cfg):
    L_QP, L_QB, L_CT, L_RED, L_YB = 0, 8192, 9216, 17408, 18432
    L_CC = L_YB
    SRD_0, SRD_1, SRD_X, SRD_WS = 40, 44, 48, 52
    V_ZERO, V_OFF0, V_OFF1 = 8, 9, 10
    V_X, V_Q, V_A, V_Y, V_T = 12, 20, 28, 44, 60
    V_W0, V_W1, V_TMP = 64, 128, 192
    a.label('L_roleW')
    late_entry(a, cfg)
    stamp(a, cfg, 0)
    if cfg.tag: load_tag(a)
    a(f'v_mov_b32 v{V_ZERO}, 0')
    srd(a, SRD_WS, P_WS, nrec=0x1000000)
    V_NONCE = 11
    use_nonce = cfg.qmode == 'dist'
    if use_nonce:
        a(f'v_mov_b32 v{V_TMP}, {WS_NONCE:#x}')
        a(f'buffer_load_dword v{V_NONCE}, v{V_TMP}, s[{SRD_WS}:{SRD_WS+3}], 0 offen')
    a(f's_lshl_b32 s60, s{S_HP}, 8')
    a(f's_sub_u32 s61, {512*8192:#x}, s60')
    srd(a, SRD_0, P_BWQ, off_s=60, nrec_s=61)
    srd(a, SRD_1, P_BWUK, off_s=60, nrec_s=61)
    srd(a, SRD_X, P_BX, nrec=2048)
    a(f'v_lshrrev_b32 v{V_TMP}, 3, v{V_C}')
    a(f'v_lshlrev_b32 v{V_TMP}, 10, v{V_TMP}')
    a(f'v_lshl_add_u32 v{V_TMP}, v{V_G}, 5, v{V_TMP}')
    a(f's_lshl_b32 s62, s{S_W}, 7')
    a(f'v_add_u32 v{V_TMP}, s62, v{V_TMP}')
    a(f'buffer_load_dwordx4 {vr(V_X,4)}, v{V_TMP}, s[{SRD_X}:{SRD_X+3}], 0 offen')
    a(f'buffer_load_dwordx4 {vr(V_X+4,4)}, v{V_TMP}, s[{SRD_X}:{SRD_X+3}], 0 offen offset:16')
    rows_voff(a, V_OFF0)
    slice_loads(a, SRD_0, V_OFF0, V_W0, cfg.bpol, 'rows', cfg.wthr0)
    if cfg.ctl:
        a(f'ds_write_b32 v{V_ZERO}, v{V_ZERO} offset:9000')
        a('s_waitcnt lgkmcnt(0)')
    a('s_barrier')
    a('s_waitcnt vmcnt(16)')
    def wuk_load(s_):
        if cfg.wthr1: a(f's_waitcnt vmcnt({cfg.wthr1 - 1})')
        a(f's_mov_b32 s62, {s_*(256 if cfg.fake else 8192)}')
        a(f'buffer_load_dwordx4 {vr(V_W1+4*s_,4)}, v{V_OFF0}, s[{SRD_1}:{SRD_1+3}], s62 offen {cfg.bpol}')
    rowcomb(a, cfg, V_X, V_W0, V_Y, V_A, V_TMP, 0, after=wuk_load)
    if not cfg.tag:
        for k in range(4): a(f'v_mov_b32 v{V_TMP+4+k}, -1')
        a(f's_cmp_ge_u32 s{S_W}, {0 if cfg.noclr else 6}\ns_cbranch_scc1 L_W_noclr')
        a(f's_lshl_b32 s62, s{S_H}, 13\ns_add_u32 s62, s62, {WS_YA:#x}')
        a(f'v_lshl_add_u32 v{V_TMP}, v0, 4, s62')
        a(f's_mov_b32 s62, {1 << 18:#x}')
        a(f'buffer_store_dwordx4 {vr(V_TMP+4,4)}, v{V_TMP}, s[{SRD_WS}:{SRD_WS+3}], 0 offen sc1')
        a(f'buffer_store_dwordx4 {vr(V_TMP+4,4)}, v{V_TMP}, s[{SRD_WS}:{SRD_WS+3}], s62 offen sc1')
        a.label('L_W_noclr')
        if cfg.ybs:
            a(f's_cmp_lt_u32 s{S_W}, 4\ns_cbranch_scc1 L_W_noybc')
            a(f'v_bfe_u32 v{V_TMP}, v0, 7, 1')
            a(f'v_lshlrev_b32 v{V_TMP}, 16, v{V_TMP}')
            a(f'v_and_b32 v{V_TMP+1}, 127, v0')
            a(f'v_lshl_add_u32 v{V_TMP}, v{V_TMP+1}, 4, v{V_TMP}')
            a(f's_lshl_b32 s62, s{S_H}, 11\ns_add_u32 s62, s62, {WS_YB:#x}')
            a(f'v_add_u32 v{V_TMP}, s62, v{V_TMP}')
            a(f'buffer_store_dwordx4 {vr(V_TMP+4,4)}, v{V_TMP}, s[{SRD_WS}:{SRD_WS+3}], 0 offen sc1')
            a.label('L_W_noybc')
        a(f's_cmp_lg_u32 s{S_W}, 0\ns_cbranch_scc1 L_W_nostat')
        a(f'v_lshrrev_b32 v{V_TMP}, 2, v{V_LANE}')
        a(f'v_lshlrev_b32 v{V_TMP}, 11, v{V_TMP}')
        a(f'v_and_b32 v{V_TMP+1}, 3, v{V_LANE}')
        a(f'v_lshl_add_u32 v{V_TMP}, v{V_TMP+1}, 4, v{V_TMP}')
        a(f's_lshl_b32 s62, s{S_H}, 6\ns_add_u32 s62, s62, {WS_YSTAT:#x}')
        a(f'v_add_u32 v{V_TMP}, s62, v{V_TMP}')
        a('s_mov_b64 exec, 0xff')
        a(f'buffer_store_dwordx4 {vr(V_TMP+4,4)}, v{V_TMP}, s[{SRD_WS}:{SRD_WS+3}], 0 offen sc1')
        a('s_mov_b64 exec, -1')
        a.label('L_W_nostat')
        if cfg.ctl:
            a(f's_cmp_lg_u32 s{S_W}, 2\ns_cbranch_scc1 L_W_noprg')
            a(f's_lshl_b32 s62, s{S_H}, 10\ns_add_u32 s62, s62, {WS_PROG:#x}')
            a(f'v_lshl_add_u32 v{V_TMP}, v{V_LANE}, 7, s62')
            a(f's_lshl_b32 s62, s{S_H}, 7\ns_add_u32 s62, s62, {WS_MEAN:#x}')
            a(f'v_mov_b32 v{V_TMP+1}, s62')
            a('s_mov_b64 exec, 0xff')
            a(f'buffer_store_dword v{V_ZERO}, v{V_TMP}, s[{SRD_WS}:{SRD_WS+3}], 0 offen sc1')
            a('s_mov_b64 exec, 1')
            a(f'buffer_store_dword v{V_ZERO}, v{V_TMP+1}, s[{SRD_WS}:{SRD_WS+3}], 0 offen sc1')
            a('s_mov_b64 exec, -1')
            a.label('L_W_noprg')
        if cfg.hyb:
            a(f's_cmp_lg_u32 s{S_W}, 1\ns_cbranch_scc1 L_W_noctr')
            a(f's_lshl_b32 s62, s{S_H}, 7\ns_add_u32 s62, s62, {WS_CTR:#x}')
            a(f'v_lshl_add_u32 v{V_TMP}, v{V_LANE}, 12, s62')
            a('s_mov_b64 exec, 3')
            a(f'buffer_store_dword v{V_ZERO}, v{V_TMP}, s[{SRD_WS}:{SRD_WS+3}], 0 offen sc1')
            a('s_mov_b64 exec, -1')
            a.label('L_W_noctr')
    a('s_nop 1')
    q_reduce(a, V_Y, V_TMP, L_QP, L_QB, 'W')
    if cfg.tag: get_tag(a)
    a(f'v_lshlrev_b32 v{V_TMP+2}, 4, v{V_C}')
    a(f'ds_read_b128 {vr(V_Q,4)}, v{V_TMP+2} offset:{L_QB}')
    a(f'ds_read_b128 {vr(V_Q+4,4)}, v{V_TMP+2} offset:{L_QB+256}')
    stamp(a, cfg, 1)
    R0, R1 = V_TMP + 8, V_TMP + 9
    a(f'v_mov_b32 v{R0}, 0\nv_mov_b32 v{R1}, 0')
    a('s_waitcnt lgkmcnt(0)')
    for i in range(0, 16, 2):
        a(f's_waitcnt vmcnt({14 - i})')
        T = [V_T + n for n in range(4)]
        for k in range(4):
            for n in range(4):
                wreg = V_W1 + 4*(i + n//2) + k
                q = V_Q + 4*(n % 2) + k
                c = '0' if k == 0 else f'v{T[n]}'
                a(f'v_dot2_f32_bf16 v{T[n]}, v{wreg}, v{q}, {c}')
        for st in (8, 4, 2, 1):
            for n in range(4):
                a(f'v_add_f32_dpp v{T[n]}, v{T[n]}, v{T[n]} row_ror:{st} row_mask:0xf bank_mask:0xf')
        for n in range(4):
            if n % 2 == 0:
                a(f'v_cmp_eq_u32 vcc, {i + n//2}, v{V_C}')
                a('s_nop 1')
            r = R0 if n % 2 == 0 else R1
            a(f'v_cndmask_b32 v{r}, v{r}, v{T[n]}, vcc')
    a(f'v_cvt_pk_bf16_f32 v{R0}, v{R0}, v{R0}')
    a(f'v_cvt_pk_bf16_f32 v{R1}, v{R1}, v{R1}')
    a(f's_lshl_b32 s62, s{S_H}, 10\ns_lshl_b32 s63, s{S_W}, 7\ns_add_u32 s62, s62, s63')
    a(f's_add_u32 s62, s62, {WS_QABS:#x}')
    a(f'v_lshl_add_u32 v{V_TMP}, v{V_LANE}, 1, s62')
    a(f'buffer_store_short v{R0}, v{V_TMP}, s[{SRD_WS}:{SRD_WS+3}], 0 offen sc1')
    a(f's_mov_b32 s62, {32*1024}')
    a(f'buffer_store_short v{R1}, v{V_TMP}, s[{SRD_WS}:{SRD_WS+3}], s62 offen sc1')
    if cfg.tag and 'q' in cfg.fl:
        a(f's_lshl_b32 s62, s{S_H}, 8\ns_add_u32 s62, s62, {WS_MBOX:#x}')
        a(f'v_lshl_add_u32 v{V_TMP}, v{V_LANE}, 2, s62')
        a(f'v_mov_b32 v{V_TMP+1}, s{S_TAG}')
        a('s_waitcnt vmcnt(0)\ns_barrier')
        a(f's_cmp_lg_u32 s{S_W}, 0\ns_cbranch_scc1 L_sig_Wq')
        a('s_mov_b32 exec_hi, 0')
        a(f'buffer_store_dword v{V_TMP+1}, v{V_TMP}, s[{SRD_WS}:{SRD_WS+3}], 0 offen sc1')
        a('s_mov_b64 exec, -1')
        a.label('L_sig_Wq')
    elif cfg.tag:
        a(f's_lshl_b32 s62, s{S_H}, 2\ns_add_u32 s62, s62, {WS_MBOX:#x}')
        a(f'v_lshl_add_u32 v{V_TMP}, v{V_LANE}, 8, s62')
        a(f'v_mov_b32 v{V_TMP+1}, s{S_TAG}')
        a('s_waitcnt vmcnt(0)\ns_barrier')
        a(f's_cmp_lg_u32 s{S_W}, 0\ns_cbranch_scc1 L_sig_Wq')
        a('s_mov_b32 exec_hi, 0')
        a(f'buffer_store_dword v{V_TMP+1}, v{V_TMP}, s[{SRD_WS}:{SRD_WS+3}], 0 offen sc1')
        a('s_mov_b64 exec, -1')
        a.label('L_sig_Wq')
    else: signal(a, CNT_Q, V_ZERO, V_TMP, 'Wq')
    stamp(a, cfg, 2)
    if cfg.wstop == 1: a('s_endpgm'); return
    a(f's_lshl_b32 s60, s{S_HP}, 8')
    a(f's_sub_u32 s61, {512*8192:#x}, s60')
    srd(a, SRD_0, P_BWUV, off_s=60, nrec_s=61)
    a(f's_lshl_b32 s60, s{S_HP}, 17\ns_mov_b32 s61, {128*1024:#x}')
    srd(a, SRD_1, P_BWO, off_s=60, nrec_s=61)
    wo_voff(a, V_OFF1)
    if cfg.ctl:
        L_WFLAG = 9000
        a(f's_cmp_lg_u32 s{S_W}, 1\ns_cbranch_scc1 L_W_nomon')
        a(f's_cmp_lg_u32 s{S_H}, 0\ns_cbranch_scc1 L_W_nomon')
        slice_loads(a, SRD_0, V_OFF0, V_W0, cfg.bpol, 'rows', 0)
        slice_loads(a, SRD_1, V_OFF1, V_W1, cfg.bpol, 'wo', 0)
        poll(a, CNT_Q, 32, V_TMP, V_ZERO, 'Wm')
        a(f'v_lshlrev_b32 v{V_TMP}, 7, v{V_LANE}')
        a(f'v_add_u32 v{V_TMP}, {WS_PROG:#x}, v{V_TMP}')
        a(f'v_lshlrev_b32 v{V_TMP+1}, 7, v{V_LANE}')
        a(f'v_add_u32 v{V_TMP+1}, {WS_MEAN:#x}, v{V_TMP+1}')
        a('s_mov_b32 s66, 0')
        a.label('L_W_mon')
        for k in range(4):
            a(f's_mov_b32 s62, {k*8192}')
            a(f'buffer_load_dword v{V_TMP+4+k}, v{V_TMP}, s[{SRD_WS}:{SRD_WS+3}], s62 offen sc1')
        a(f'ds_read_b32 v{V_TMP+2}, v{V_ZERO} offset:{L_WFLAG}')
        a('s_waitcnt vmcnt(0) lgkmcnt(0)')
        a(f'v_add3_u32 v{V_TMP+4}, v{V_TMP+4}, v{V_TMP+5}, v{V_TMP+6}')
        a(f'v_add_u32 v{V_TMP+4}, v{V_TMP+4}, v{V_TMP+7}')
        for st in (1, 2, 4, 8):
            a.nop(2)
            a(f'v_add_u32_dpp v{V_TMP+4}, v{V_TMP+4}, v{V_TMP+4} row_ror:{st} row_mask:0xf bank_mask:0xf')
        a.nop(2)
        a(f'v_add_u32_dpp v{V_TMP+4}, v{V_TMP+4}, v{V_TMP+4} row_bcast:15 row_mask:0xa bank_mask:0xf')
        a.nop(2)
        a(f'v_add_u32_dpp v{V_TMP+4}, v{V_TMP+4}, v{V_TMP+4} row_bcast:31 row_mask:0xc bank_mask:0xf')
        a.nop(1)
        a(f'v_readlane_b32 s62, v{V_TMP+4}, 63')
        a(f'v_readfirstlane_b32 s63, v{V_TMP+2}')
        a('s_nop 1')
        a(f'v_mov_b32 v{V_TMP+3}, s62')
        a('s_mov_b32 exec_hi, 0')
        a(f'buffer_store_dword v{V_TMP+3}, v{V_TMP+1}, s[{SRD_WS}:{SRD_WS+3}], 0 offen sc1')
        a('s_mov_b64 exec, -1')
        a('s_cmp_lg_u32 s63, 0\ns_cbranch_scc1 L_W_monx')
        a(f's_sleep {cfg.msleep}')
        a('s_add_u32 s66, s66, 1')
        a(f's_cmp_lt_u32 s66, {SPIN_LIMIT}\ns_cbranch_scc1 L_W_mon')
        a('s_branch L_W_monx')
        a.label('L_W_nomon')
    slice_loads(a, SRD_0, V_OFF0, V_W0, cfg.bpol, 'rows', cfg.wthr)
    slice_loads(a, SRD_1, V_OFF1, V_W1, cfg.bpol, 'wo', cfg.wthr)
    if cfg.ctl: a.label('L_W_monx')
    if cfg.cpf2:
        a(f's_cmp_lg_u32 s{S_W}, 7\ns_cbranch_scc1 L_W_nopf')
        code_prefetch(a, 'W', V_TMP, V_TMP + 4, 'L_A_loopb', cfg.cpf2_kb)
        a.label('L_W_nopf')
    if '1' in cfg.ct:
        code_touch(a, 'W1', 5, 244)
    if cfg.wstop == 2:
        a('s_waitcnt vmcnt(0)'); a('s_endpgm'); return
    if cfg.ctl:
        a(f's_cmp_lg_u32 s{S_W}, 0\ns_cbranch_scc1 L_wc_Wc')
        poll(a, CNT_C, 32, V_TMP, V_ZERO, 'Wc')
        a(f'v_mov_b32 v{V_TMP}, 1')
        a(f'ds_write_b32 v{V_ZERO}, v{V_TMP} offset:9000')
        a('s_waitcnt lgkmcnt(0)')
        a.label('L_wc_Wc')
        a('s_barrier')
    elif cfg.tag:
        if cfg.mon > 1 and 'W' in cfg.ghost:
            a(f's_cmp_lg_u32 s{S_W}, 7\ns_cbranch_scc1 L_W_nogm')
            a(f's_cmp_ge_u32 s{S_H}, 8\ns_cbranch_scc1 L_W_nogm')
            role_a4.exchange(a, cfg, 'W', V_TMP + 8, V_ZERO, L_QB + 512)
            a.label('L_W_nogm')
        if 'W' in cfg.asst:
            a(f's_cmp_lg_u32 s{S_W}, 6\ns_cbranch_scc1 L_W_noas')
            role_a4.assist(a, cfg, 'W', V_TMP + 8, V_ZERO, L_QB + 512)
            a.label('L_W_noas')
        a(f's_cmp_lg_u32 s{S_W}, 0\ns_cbranch_scc1 L_wc_Wc')
        c_ = 'c' in cfg.fl
        a(f's_lshl_b32 s62, s{S_H}, {4 if c_ else 9}\ns_add_u32 s62, s62, {WS_CSTAT:#x}')
        a(f'v_and_b32 v{V_TMP+1}, 31, v{V_LANE}')
        a(f'v_lshl_add_u32 v{V_TMP}, v{V_TMP+1}, {9 if c_ else 4}, s62')
        if c_:
            a(f's_lshl_b64 exec, 1, s{S_H}')
            tag_poll(a, 'Wc0', V_TMP + 4, V_TMP, SRD_WS, cfg.tsleep)
            a('s_mov_b32 exec_lo, -1\ns_mov_b32 exec_hi, 0')
            tag_poll(a, 'Wc', V_TMP + 4, V_TMP, SRD_WS, cfg.tsl2, shrink=True)
            a('s_mov_b32 exec_lo, -1\ns_mov_b32 exec_hi, 0')
        else:
            a('s_mov_b32 exec_hi, 0')
            tag_poll(a, 'Wc', V_TMP + 4, V_TMP, SRD_WS, cfg.tsleep)
        a(f'v_lshlrev_b32 v{V_TMP+1}, 3, v{V_TMP+1}')
        a(f'v_mov_b32 v{V_TMP+5}, v{V_TMP+6}')
        a(f'ds_write_b64 v{V_TMP+1}, {vr(V_TMP+4,2)} offset:{L_QB}')
        if cfg.mon > 1:
            a(f'v_mov_b32 v{V_TMP+7}, s{S_TAG}')
            a(f'ds_write_b32 v{V_ZERO}, v{V_TMP+7} offset:{L_QB + 512}')
        a('s_mov_b64 exec, -1')
        a('s_waitcnt lgkmcnt(0)')
        a.label('L_wc_Wc')
        a('s_barrier')
    else:
        wait_counter(a, CNT_C, 32, V_TMP, V_ZERO, 'Wc')
    stamp(a, cfg, 3)
    if cfg.wstop == 3: a('s_endpgm'); return
    for _ in range(cfg.xdel): a('s_sleep 32')
    S_B, S_Q4 = 35, 36
    a(f's_lshr_b32 s{S_B}, s{S_W}, 2')
    a(f's_and_b32 s{S_Q4}, s{S_W}, 3')
    a(f's_lshl_b32 s62, s{S_B}, 5\ns_add_u32 s62, s62, s{S_H}')
    a(f's_lshl_b32 s63, s62, 7\ns_add_u32 s63, s63, {WS_CSTAT:#x}')
    a(f'v_lshl_add_u32 v{V_TMP}, v{V_C}, 3, s63')
    if cfg.tag:
        a(f's_lshl_b32 s63, s{S_B}, 7')
        a(f'v_lshl_add_u32 v{V_TMP}, v{V_C}, 3, s63')
        a(f'ds_read_b64 {vr(V_TMP+2,2)}, v{V_TMP} offset:{L_QB}')
    else: a(f'buffer_load_dwordx2 {vr(V_TMP+2,2)}, v{V_TMP}, s[{SRD_WS}:{SRD_WS+3}], 0 offen sc1')
    a(f's_lshl_b32 s63, s62, 14\ns_add_u32 s63, s63, {WS_CPART:#x}')
    a(f's_lshl_b32 s64, s{S_Q4}, 12\ns_add_u32 s63, s63, s64')
    a(f'v_lshl_add_u32 v{V_TMP+1}, v{V_LANE}, 4, s63')
    PT = V_TMP + 8
    for kk in range(4):
        if 'l' in cfg.xs and kk: a('s_waitcnt vmcnt(0)')
        if cfg.emu:
            if kk == 0:
                a(f's_and_b32 s63, s{S_H}, 3\ns_mul_i32 s63, s63, {16384 - 1024}')
                a(f'v_subrev_u32 v{V_TMP+1}, s63, v{V_TMP+1}')
            else: continue
        a(f'buffer_load_dwordx4 {vr(PT+4*kk,4)}, v{V_TMP+1}, s[{SRD_WS}:{SRD_WS+3}], 0 offen offset:{kk*1024} {cfg.rppol.replace("+", " ")}')
    a('s_waitcnt vmcnt(4) lgkmcnt(0)')
    m, l, M, e = V_TMP + 2, V_TMP + 3, V_TMP + 4, V_TMP + 5
    a(f'v_mov_b32 v{M}, v{m}')
    for st in (8, 4, 2, 1):
        a.nop(2)
        a(f'v_max_f32_dpp v{M}, v{M}, v{M} row_ror:{st} row_mask:0xf bank_mask:0xf')
    a(f'v_sub_f32 v{e}, v{m}, v{M}')
    a(f'v_exp_f32 v{e}, v{e}')
    a('s_nop 0')
    a(f'v_mul_f32 v{l}, v{l}, v{e}')
    for st in (8, 4, 2, 1):
        a.nop(2)
        a(f'v_add_f32_dpp v{l}, v{l}, v{l} row_ror:{st} row_mask:0xf bank_mask:0xf')
    a(f'v_rcp_f32 v{l}, v{l}')
    a('s_nop 0')
    a(f'v_mul_f32 v{e}, v{e}, v{l}')
    a(f's_lshl_b32 s64, s{S_Q4}, 2')
    for kk in range(4):
        a(f's_add_u32 s65, s64, {kk}')
        a(f'v_readlane_b32 s{66+kk}, v{e}, s65')
    ACC = V_TMP + 40
    UP = PT + 16
    for kk in range(4):
        a(f's_waitcnt vmcnt({3-kk})')
        for k in range(4):
            a(f'v_lshlrev_b32 v{UP+2*k}, 16, v{PT+4*kk+k}')
            a(f'v_and_b32 v{UP+2*k+1}, 0xffff0000, v{PT+4*kk+k}')
        for k in range(8):
            if kk == 0: a(f'v_mul_f32 v{ACC+k}, s{66+kk}, v{UP+k}')
            else: a(f'v_fma_f32 v{ACC+k}, v{UP+k}, s{66+kk}, v{ACC+k}')
    if cfg.wstop == 4: a('s_endpgm'); return
    a(f's_lshl_b32 s62, s{S_W}, 11')
    a(f'v_lshl_add_u32 v{V_TMP}, v{V_LANE}, 5, s62')
    a(f'ds_write_b128 v{V_TMP}, {vr(ACC,4)} offset:{L_CC}')
    a(f'ds_write_b128 v{V_TMP}, {vr(ACC+4,4)} offset:{L_CC+16}')
    a('s_waitcnt lgkmcnt(0)\ns_barrier')
    a(f'v_lshrrev_b32 v{V_TMP}, 3, v{V_C}')
    a(f'v_lshlrev_b32 v{V_TMP}, 13, v{V_TMP}')
    a(f'v_lshl_add_u32 v{V_TMP}, v{V_G}, 6, v{V_TMP}')
    a(f's_lshl_b32 s62, s{S_W}, 8')
    a(f'v_add_u32 v{V_TMP}, s62, v{V_TMP}')
    for hf in range(2):
        for q4 in range(4):
            a(f'ds_read_b128 {vr(PT+16*hf+4*q4,4)}, v{V_TMP} offset:{L_CC + 2048*hf + 16*q4}')
    a('s_waitcnt lgkmcnt(0)')
    for i in range(16):
        a(f'v_add_f32 v{PT+i}, v{PT+i}, v{PT+16+i}')
    for hf in range(2, 4):
        for q4 in range(4):
            a(f'ds_read_b128 {vr(PT+16+4*q4,4)}, v{V_TMP} offset:{L_CC + 2048*hf + 16*q4}')
        a('s_waitcnt lgkmcnt(0)')
        for i in range(16):
            a(f'v_add_f32 v{PT+i}, v{PT+i}, v{PT+16+i}')
    for i in range(8):
        a(f'v_cvt_pk_bf16_f32 v{V_X+i}, v{PT+2*i}, v{PT+2*i+1}')
    rowcomb(a, cfg, V_X, V_W0, V_Y, V_A, V_TMP, 63)
    dtile_to_lds(a, V_Y, V_TMP, L_CT, 10, 9, 1)
    a('s_waitcnt lgkmcnt(0)\ns_barrier')
    a(f'v_lshrrev_b32 v{V_TMP}, 3, v{V_C}')
    a(f'v_lshlrev_b32 v{V_TMP}, 9, v{V_TMP}')
    a(f'v_lshl_add_u32 v{V_TMP}, v{V_G}, 4, v{V_TMP}')
    a(f's_lshl_b32 s62, s{S_W}, 6')
    a(f'v_add_u32 v{V_TMP}, s62, v{V_TMP}')
    for w in range(8):
        a(f'ds_read_b128 {vr(PT+4*w,4)}, v{V_TMP} offset:{L_CT + 1024*w}')
    for w in range(1, 8):
        a(f's_waitcnt lgkmcnt({7-w})')
        for k in range(4):
            a(f'v_add_f32 v{PT+k}, v{PT+k}, v{PT+4*w+k}')
    for s_ in range(4):
        a(f'v_cvt_pk_bf16_f32 v{V_T+s_}, v{PT+s_}, v{PT+s_}')
    for s_ in range(4):
        for k in range(4):
            a(f'v_and_b32 v{V_A+4*s_+k}, v{V_T+s_}, v{V_MASK+k}')
    a('s_nop 1')
    for s_ in range(4):
        for cb in range(4):
            c = '0' if s_ == 0 else vr(V_Y+4*cb, 4)
            a(f'v_mfma_f32_16x16x32_bf16 {vr(V_Y+4*cb,4)}, {vr(V_A+4*s_,4)}, {vr(V_W1+16*s_+4*cb,4)}, {c}')
    dtile_to_lds(a, V_Y, V_TMP, L_YB, 12, 11, 4)
    a('s_waitcnt lgkmcnt(0)\ns_barrier')
    a(f's_cmp_ge_u32 s{S_W}, 4\ns_cbranch_scc1 L_W_yskip')
    a(f'v_lshlrev_b32 v{V_TMP}, 4, v0')
    for w in range(8):
        a(f'ds_read_b128 {vr(PT+4*w,4)}, v{V_TMP} offset:{L_YB + 4096*w}')
    a(f'v_lshrrev_b32 v{V_TMP+1}, 7, v0')
    a(f'v_lshlrev_b32 v{V_TMP+1}, 16, v{V_TMP+1}')
    a(f'v_and_b32 v{V_TMP+2}, 127, v0')
    a(f'v_lshl_add_u32 v{V_TMP+1}, v{V_TMP+2}, 4, v{V_TMP+1}')
    a(f's_lshl_b32 s63, s{S_H}, 11\ns_add_u32 s63, s63, {WS_YB:#x}')
    a(f'v_add_u32 v{V_TMP+1}, s63, v{V_TMP+1}')
    for w in range(1, 8):
        a(f's_waitcnt lgkmcnt({7-w})')
        for k in range(4):
            a(f'v_add_f32 v{PT+k}, v{PT+k}, v{PT+4*w+k}')
    if cfg.tag:
        a(f'v_cvt_pk_bf16_f32 v{PT}, v{PT}, v{PT+1}')
        a(f'v_cvt_pk_bf16_f32 v{PT+2}, v{PT+2}, v{PT+3}')
        a(f'v_mov_b32 v{PT+1}, s{S_TAG}\nv_mov_b32 v{PT+3}, s{S_TAG}')
    elif cfg.ybs:
        for k in range(4): a(f'v_min_u32 v{PT+k}, 0xfffffffe, v{PT+k}')
    a(f'buffer_store_dwordx4 {vr(PT,4)}, v{V_TMP+1}, s[{SRD_WS}:{SRD_WS+3}], 0 offen sc1')
    a.label('L_W_yskip')
    if not cfg.ybs and not cfg.tag: signal(a, CNT_YB, V_ZERO, V_TMP, 'Wyb')
    stamp(a, cfg, 4)
    if cfg.wstop == 5: a('s_endpgm'); return
    if not cfg.ybs and not cfg.tag: wait_counter(a, CNT_YB, 32, V_TMP, V_ZERO, 'Wyb2')
    S_RB, S_SL = 35, 36
    a(f's_lshr_b32 s{S_RB}, s{S_H}, 4\ns_and_b32 s{S_SL}, s{S_H}, 15')
    for k in range(4): a(f'v_mov_b32 v{ACC+k}, 0')
    a(f's_cmp_ge_u32 s{S_W}, 4\ns_cbranch_scc1 L_W_bskip')
    a(f'v_lshrrev_b32 v{V_TMP}, 3, v0')
    a(f'v_lshlrev_b32 v{V_TMP}, 11, v{V_TMP}')
    a(f'v_and_b32 v{V_TMP+1}, 7, v0')
    a(f'v_lshl_add_u32 v{V_TMP}, v{V_TMP+1}, 4, v{V_TMP}')
    a(f's_lshl_b32 s62, s{S_RB}, 16\ns_lshl_b32 s63, s{S_SL}, 7\ns_add_u32 s62, s62, s63')
    a(f's_add_u32 s62, s62, {WS_YB:#x}')
    a(f'v_add_u32 v{V_TMP}, s62, v{V_TMP}')
    if cfg.tag:
        tag_poll(a, 'Wyb', ACC, V_TMP, SRD_WS, cfg.ysleep, shrink='b' in cfg.fl)
        if 'b' in cfg.fl: a('s_mov_b64 exec, -1')
        a(f'v_and_b32 v{ACC+1}, 0xffff0000, v{ACC}')
        a(f'v_lshlrev_b32 v{ACC}, 16, v{ACC}')
        a(f'v_and_b32 v{ACC+3}, 0xffff0000, v{ACC+2}')
        a(f'v_lshlrev_b32 v{ACC+2}, 16, v{ACC+2}')
    if cfg.ybs:
        a('s_mov_b32 s64, 0')
        a.label('L_W_ybp')
    if not cfg.tag:
        a(f'buffer_load_dwordx4 {vr(ACC,4)}, v{V_TMP}, s[{SRD_WS}:{SRD_WS+3}], 0 offen sc1')
        a('s_waitcnt vmcnt(0)')
    if cfg.ybs:
        a(f'v_max3_u32 v{V_TMP+1}, v{ACC}, v{ACC+1}, v{ACC+2}')
        a(f'v_max_u32 v{V_TMP+1}, v{V_TMP+1}, v{ACC+3}')
        a(f'v_cmp_eq_u32 vcc, -1, v{V_TMP+1}')
        a('s_add_u32 s64, s64, 1')
        a('s_nop 0')
        a('s_cmp_eq_u64 vcc, 0\ns_cbranch_scc1 L_W_bskip')
        a(f's_cmp_lt_u32 s64, {SPIN_LIMIT}\ns_cbranch_scc1 L_W_ybp')
    a.label('L_W_bskip')
    V_CFL, V_CFO = 240, 243
    if cfg.cf: col_fast_prep(a, cfg, V_CFL, V_CFO, V_TMP, V_ZERO)
    col_finish(a, ACC, V_TMP, L_RED, 4, 512, 'Wb')
    stamp(a, cfg, 5)
    if cfg.wstop == 6: a('s_endpgm'); return
    if 'A' not in cfg.roles:
        a('s_endpgm'); return
    Y = V_W0
    ST = V_W0 + 16
    YF = V_W0 + 24
    a(f'v_lshrrev_b32 v{V_TMP}, 3, v{V_LANE}')
    a(f's_lshl_b32 s62, s{S_RB}, 8\ns_lshl_b32 s63, s{S_W}, 3\ns_add_u32 s62, s62, s63')
    a(f'v_add_u32 v{V_TMP}, s62, v{V_TMP}')
    a(f'v_lshlrev_b32 v{V_OFF0}, {4 if cfg.tag else 3}, v{V_TMP}')
    a(f'v_add_u32 v{V_OFF0}, {WS_YSTAT:#x}, v{V_OFF0}')
    if 'y' in cfg.fl:
        a(f'v_and_b32 v{V_OFF0}, 255, v{V_TMP}')
        a(f's_lshl_b32 s63, s{S_RB}, 4\ns_add_u32 s63, s63, {WS_YST2:#x}')
        a(f'v_lshl_add_u32 v{V_OFF0}, v{V_OFF0}, 7, s63')
    a(f'v_lshlrev_b32 v{V_OFF1}, 10, v{V_TMP}')
    a(f'v_and_b32 v{V_TMP+1}, 7, v{V_LANE}')
    a(f'v_lshl_add_u32 v{V_OFF1}, v{V_TMP+1}, 3, v{V_OFF1}')
    a(f's_lshl_b32 s63, s{S_SL}, 6\ns_add_u32 s63, s63, {WS_YA:#x}')
    a(f'v_add_u32 v{V_OFF1}, s63, v{V_OFF1}')
    for k in range(4):
        a(f'v_mov_b32 v{ST+2*k}, 0xff800000\nv_mov_b32 v{ST+2*k+1}, 0')
        for i in range(2): a(f'v_mov_b32 v{Y+2*k+i}, 0')
    PEND = 66
    for k in range(4):
        a(f's_mov_b32 s{PEND+2*k}, -1\ns_mov_b32 s{PEND+2*k+1}, 0xffff')
    if cfg.two:
        final_two(a, cfg, locals())
        return
    a('s_mov_b32 s64, 0')
    a.label('L_W_gate')
    a(f's_mov_b64 exec, s[{PEND}:{PEND+1}]')
    a(f'buffer_load_dword v{V_TMP+2}, v{V_OFF0}, s[{SRD_WS}:{SRD_WS+3}], 0 offen sc1')
    a('s_mov_b64 exec, -1')
    a('s_waitcnt vmcnt(0)')
    a(f'v_cmp_ne_u32 vcc, -1, v{V_TMP+2}')
    a('s_add_u32 s64, s64, 1')
    a('s_nop 0')
    a(f's_and_b64 s[74:75], vcc, s[{PEND}:{PEND+1}]')
    a('s_cbranch_scc1 L_W_gate_done')
    a(f's_sleep {cfg.gsleep}')
    a(f's_cmp_lt_u32 s64, {SPIN_LIMIT}\ns_cbranch_scc1 L_W_gate')
    a.label('L_W_gate_done')
    stamp(a, cfg, 6)
    a('s_mov_b32 s64, 0')
    if cfg.inc:
        assert not cfg.smart
        a('s_mov_b32 s86, 0')
        for i in range(4): a(f'v_mov_b32 v{ACC+i}, 0')
    if cfg.smart:
        PENY = 78
        for k in range(4):
            a(f's_mov_b64 s[{PENY+2*k}:{PENY+2*k+1}], s[{PEND+2*k}:{PEND+2*k+1}]')
        a('s_mov_b32 s86, 0')
    def add_heads(tag):
        for k in range(4):
            a(f's_bitcmp1_b32 s86, {k}\ns_cbranch_scc1 L_W_inc{tag}{k}')
            a(f's_cmp_lg_u64 s[{PEND+2*k}:{PEND+2*k+1}], 0\ns_cbranch_scc1 L_W_inc{tag}{k}')
            a(f's_bitset1_b32 s86, {k}')
            MM, TT, LL = V_TMP + 4, V_TMP + 5, V_TMP + 6
            def allred(x, op):
                a.nop(2)
                a(f'{op}_dpp v{x}, v{x}, v{x} row_ror:8 row_mask:0xf bank_mask:0xf')
                for st in (16, 32):
                    a(f'v_mov_b32 v{TT}, v{x}')
                    a.nop(2)
                    a(f'v_permlane{st}_swap_b32 v{x}, v{TT}')
                    a.nop(1)
                    a(f'{op} v{x}, v{x}, v{TT}')
            a(f'v_mov_b32 v{MM}, v{ST+2*k}')
            for i in range(2):
                a(f'v_lshlrev_b32 v{YF+2*i}, 16, v{Y+2*k+i}')
                a(f'v_and_b32 v{YF+2*i+1}, 0xffff0000, v{Y+2*k+i}')
            allred(MM, 'v_max_f32')
            a(f'v_sub_f32 v{MM}, v{ST+2*k}, v{MM}')
            a(f'v_exp_f32 v{MM}, v{MM}')
            a('s_nop 0')
            a(f'v_mul_f32 v{LL}, v{ST+2*k+1}, v{MM}')
            allred(LL, 'v_add_f32')
            a(f'v_rcp_f32 v{LL}, v{LL}')
            a('s_nop 0')
            a(f'v_mul_f32 v{MM}, v{MM}, v{LL}')
            for i in range(4):
                a(f'v_fma_f32 v{ACC+i}, v{MM}, v{YF+i}, v{ACC+i}')
            a.label(f'L_W_inc{tag}{k}')
    if cfg.pipe:
        assert cfg.inc
        SA, SB = V_W0 + 40, V_W0 + 56
        def sweep(S):
            for k in range(4):
                a(f's_or_b32 s75, s{PEND+2*k+1}, 0x80000000')
                a(f's_mov_b32 s74, s{PEND+2*k}')
                a('s_mov_b64 exec, s[74:75]')
                a(f's_mov_b32 s63, {k*65536}')
                a(f'buffer_load_dwordx2 {vr(S+4*k,2)}, v{V_OFF0}, s[{SRD_WS}:{SRD_WS+3}], 0 offen offset:{k*512} sc1')
                a(f'buffer_load_dwordx2 {vr(S+4*k+2,2)}, v{V_OFF1}, s[{SRD_WS}:{SRD_WS+3}], s63 offen sc1')
            a('s_mov_b64 exec, -1')
        def check(S, tag):
            for k in range(4):
                t = V_TMP + k
                a(f'v_max3_u32 v{t}, v{S+4*k}, v{S+4*k+1}, v{S+4*k+2}')
                a(f'v_max_u32 v{t}, v{t}, v{S+4*k+3}')
            for k in range(4):
                a(f'v_cmp_ne_u32 vcc, -1, v{V_TMP+k}')
                a('s_nop 0')
                a(f's_and_b64 s[74:75], vcc, s[{PEND+2*k}:{PEND+2*k+1}]')
                a(f's_andn2_b64 s[{PEND+2*k}:{PEND+2*k+1}], s[{PEND+2*k}:{PEND+2*k+1}], s[74:75]')
                a('s_mov_b64 exec, s[74:75]')
                a(f'v_mov_b32 v{ST+2*k}, v{S+4*k}')
                a(f'v_mov_b32 v{ST+2*k+1}, v{S+4*k+1}')
                a(f'v_mov_b32 v{Y+2*k}, v{S+4*k+2}')
                a(f'v_mov_b32 v{Y+2*k+1}, v{S+4*k+3}')
                a('s_mov_b64 exec, -1')
            add_heads(tag)
            a(f's_or_b64 s[74:75], s[{PEND}:{PEND+1}], s[{PEND+2}:{PEND+3}]')
            a(f's_or_b64 s[76:77], s[{PEND+4}:{PEND+5}], s[{PEND+6}:{PEND+7}]')
            a('s_or_b64 s[74:75], s[74:75], s[76:77]')
            a('s_cbranch_scc0 L_W_sweep_done')
        sweep(SA)
        a.label('L_W_sweep')
        sweep(SB)
        a('s_waitcnt vmcnt(8)')
        check(SA, 'a')
        sweep(SA)
        a('s_waitcnt vmcnt(8)')
        check(SB, 'b')
        a('s_add_u32 s64, s64, 1')
        a(f's_cmp_lt_u32 s64, {SPIN_LIMIT}\ns_cbranch_scc1 L_W_sweep')
    else:
        a.label('L_W_sweep')
        for k in range(4):
            a(f's_mov_b64 exec, s[{PEND+2*k}:{PEND+2*k+1}]')
            a(f's_cbranch_execz L_W_sw{k}')
            a(f'buffer_load_dwordx2 {vr(ST+2*k,2)}, v{V_OFF0}, s[{SRD_WS}:{SRD_WS+3}], 0 offen offset:{k*512} sc1')
            if not cfg.smart:
                a(f's_mov_b32 s63, {k*65536}')
                a(f'buffer_load_dwordx2 {vr(Y+2*k,2)}, v{V_OFF1}, s[{SRD_WS}:{SRD_WS+3}], s63 offen sc1')
            a.label(f'L_W_sw{k}')
            if cfg.smart:
                a(f's_andn2_b64 s[74:75], s[{PENY+2*k}:{PENY+2*k+1}], s[{PEND+2*k}:{PEND+2*k+1}]')
                a('s_cmp_eq_u32 s86, 0')
                a(f's_cselect_b64 exec, s[74:75], s[{PENY+2*k}:{PENY+2*k+1}]')
                a(f's_cbranch_execz L_W_sy{k}')
                a(f's_mov_b32 s63, {k*65536}')
                a(f'buffer_load_dwordx2 {vr(Y+2*k,2)}, v{V_OFF1}, s[{SRD_WS}:{SRD_WS+3}], s63 offen sc1')
                a.label(f'L_W_sy{k}')
                a(f's_mov_b64 s[{88+2*k}:{89+2*k}], exec')
        a('s_mov_b64 exec, -1')
        a('s_waitcnt vmcnt(0)')
        if not cfg.smart:
            for k in range(4):
                t = V_TMP + k
                a(f'v_max3_u32 v{t}, v{ST+2*k}, v{ST+2*k+1}, v{Y+2*k}')
                a(f'v_max_u32 v{t}, v{t}, v{Y+2*k+1}')
            for k in range(4):
                a(f'v_cmp_eq_u32 vcc, -1, v{V_TMP+k}')
                a('s_nop 0')
                a(f's_and_b64 s[{PEND+2*k}:{PEND+2*k+1}], vcc, s[{PEND+2*k}:{PEND+2*k+1}]')
            if cfg.inc:
                add_heads('')
            a(f's_or_b64 s[74:75], s[{PEND}:{PEND+1}], s[{PEND+2}:{PEND+3}]')
            a(f's_or_b64 s[76:77], s[{PEND+4}:{PEND+5}], s[{PEND+6}:{PEND+7}]')
            a('s_or_b64 s[74:75], s[74:75], s[76:77]')
        else:
            for k in range(4):
                a(f'v_max_u32 v{V_TMP+k}, v{ST+2*k}, v{ST+2*k+1}')
                a(f'v_max_u32 v{V_TMP+4+k}, v{Y+2*k}, v{Y+2*k+1}')
            for k in range(4):
                a(f'v_cmp_eq_u32 vcc, -1, v{V_TMP+k}')
                a('s_nop 0')
                a(f's_and_b64 s[{PEND+2*k}:{PEND+2*k+1}], vcc, s[{PEND+2*k}:{PEND+2*k+1}]')
                a(f'v_cmp_ne_u32 vcc, -1, v{V_TMP+4+k}')
                a('s_nop 0')
                a(f's_and_b64 s[74:75], vcc, s[{88+2*k}:{89+2*k}]')
                a(f's_andn2_b64 s[{PENY+2*k}:{PENY+2*k+1}], s[{PENY+2*k}:{PENY+2*k+1}], s[74:75]')
            a('s_mov_b32 s87, 0')
            for k in range(4):
                a(f's_bcnt1_i32_b64 s62, s[{PEND+2*k}:{PEND+2*k+1}]')
                a('s_add_u32 s87, s87, s62')
            a(f's_cmp_le_u32 s87, {8*cfg.late}\ns_cselect_b32 s86, 1, 0')
            for k in range(4):
                a(f's_or_b64 s[{88+2*k}:{89+2*k}], s[{PEND+2*k}:{PEND+2*k+1}], s[{PENY+2*k}:{PENY+2*k+1}]')
            a('s_or_b64 s[74:75], s[88:89], s[90:91]')
            a('s_or_b64 s[76:77], s[92:93], s[94:95]')
            a('s_or_b64 s[74:75], s[74:75], s[76:77]')
        a('s_cbranch_scc0 L_W_sweep_done')
        a('s_add_u32 s64, s64, 1')
        a(f's_cmp_lt_u32 s64, {SPIN_LIMIT}\ns_cbranch_scc1 L_W_sweep')
    a.label('L_W_sweep_done')
    stamp(a, cfg, 7)
    if not cfg.inc:
        for k in range(4):
            for i in range(2):
                a(f'v_lshlrev_b32 v{YF+4*k+2*i}, 16, v{Y+2*k+i}')
                a(f'v_and_b32 v{YF+4*k+2*i+1}, 0xffff0000, v{Y+2*k+i}')
        Y = YF
        MM = V_TMP
        TT = V_TMP + 4
        for k in range(4): a(f'v_mov_b32 v{MM+k}, v{ST+2*k}')
        a.nop(2)
        for k in range(4):
            a(f'v_max_f32_dpp v{MM+k}, v{MM+k}, v{MM+k} row_ror:8 row_mask:0xf bank_mask:0xf')
        for st in (16, 32):
            for k in range(4): a(f'v_mov_b32 v{TT+k}, v{MM+k}')
            a.nop(2)
            for k in range(4): a(f'v_permlane{st}_swap_b32 v{MM+k}, v{TT+k}')
            a.nop(1)
            for k in range(4): a(f'v_max_f32 v{MM+k}, v{MM+k}, v{TT+k}')
        for k in range(4): a(f'v_sub_f32 v{MM+k}, v{ST+2*k}, v{MM+k}')
        for k in range(4): a(f'v_exp_f32 v{MM+k}, v{MM+k}')
        a('s_nop 0')
        for k in range(4): a(f'v_mul_f32 v{ST+2*k+1}, v{ST+2*k+1}, v{MM+k}')
        LL = V_TMP + 8
        for k in range(4): a(f'v_mov_b32 v{LL+k}, v{ST+2*k+1}')
        a.nop(2)
        for k in range(4):
            a(f'v_add_f32_dpp v{LL+k}, v{LL+k}, v{LL+k} row_ror:8 row_mask:0xf bank_mask:0xf')
        for st in (16, 32):
            for k in range(4): a(f'v_mov_b32 v{TT+k}, v{LL+k}')
            a.nop(2)
            for k in range(4): a(f'v_permlane{st}_swap_b32 v{LL+k}, v{TT+k}')
            a.nop(1)
            for k in range(4): a(f'v_add_f32 v{LL+k}, v{LL+k}, v{TT+k}')
        for k in range(4): a(f'v_rcp_f32 v{LL+k}, v{LL+k}')
        a('s_nop 0')
        for k in range(4): a(f'v_mul_f32 v{MM+k}, v{MM+k}, v{LL+k}')
        for i in range(4):
            a(f'v_mul_f32 v{ACC+i}, v{MM}, v{Y+i}')
        for k in range(1, 4):
            for i in range(4):
                a(f'v_fma_f32 v{ACC+i}, v{MM+k}, v{Y+4*k+i}, v{ACC+i}')
    col_finish(a, ACC, V_TMP + 12, 0, 8, 0, 'Wa')
    if use_nonce:
        a(f's_cmp_lg_u32 s{S_H}, 0\ns_cbranch_scc1 L_W_nonce')
        a(f's_cmp_lg_u32 s{S_W}, 0\ns_cbranch_scc1 L_W_nonce')
        a(f'v_add_u32 v{V_NONCE}, {GOLDEN:#x}, v{V_NONCE}')
        a(f'v_mov_b32 v{V_TMP}, {WS_NONCE:#x}')
        a('s_mov_b64 exec, 1')
        a(f'buffer_store_dword v{V_NONCE}, v{V_TMP}, s[{SRD_WS}:{SRD_WS+3}], 0 offen')
        a.label('L_W_nonce')
    if not cfg.aend: span_mark(a, cfg, True)
    a('s_endpgm')

def final_two(a, cfg, R):
    Y, ST, YF, PEND, ACC, V_TMP, V_OFF0, V_OFF1, SRD_WS = [R[n] for n in ('Y', 'ST', 'YF', 'PEND', 'ACC', 'V_TMP', 'V_OFF0', 'V_OFF1', 'SRD_WS')]
    if cfg.tag:
        TG = YF + 8
        a('s_mov_b32 s64, 0')
        a(f's_mov_b64 exec, s[{PEND}:{PEND+1}]')
        a.label('L_W_stt')
        for k in range(4):
            if 'y' in cfg.fl:
                a(f's_mov_b32 s63, {k*8192}')
                a(f'buffer_load_dwordx4 {vr(TG+4*k,4)}, v{V_OFF0}, s[{SRD_WS}:{SRD_WS+3}], s63 offen sc1')
            else: a(f'buffer_load_dwordx4 {vr(TG+4*k,4)}, v{V_OFF0}, s[{SRD_WS}:{SRD_WS+3}], 0 offen offset:{k*1024} sc1')
        a('s_waitcnt vmcnt(0)')
        for k in range(8): a(f'v_xor_b32 v{TG+2*k+1}, s{S_TAG}, v{TG+2*k+1}')
        a(f'v_or3_b32 v{V_TMP}, v{TG+1}, v{TG+3}, v{TG+5}')
        a(f'v_or3_b32 v{V_TMP}, v{V_TMP}, v{TG+7}, v{TG+9}')
        a(f'v_or3_b32 v{V_TMP}, v{V_TMP}, v{TG+11}, v{TG+13}')
        a(f'v_or_b32 v{V_TMP}, v{V_TMP}, v{TG+15}')
        a(f'v_cmp_ne_u32 vcc, 0, v{V_TMP}')
        a('s_add_u32 s64, s64, 1')
        a('s_nop 0')
        a('s_cmp_eq_u64 vcc, 0\ns_cbranch_scc1 L_W_stt_done')
        a('s_sleep 16')
        a(f's_cmp_lt_u32 s64, {SPIN_LIMIT}\ns_cbranch_scc1 L_W_stt')
        a.label('L_W_stt_done')
        for k in range(8): a(f'v_mov_b32 v{ST+k}, v{TG+2*k}')
        a('s_mov_b64 exec, -1')
    else:
        a('s_mov_b32 s64, 0')
        a.label('L_W_st')
        a(f's_mov_b64 exec, s[{PEND}:{PEND+1}]')
        for k in range(4):
            a(f'buffer_load_dwordx2 {vr(ST+2*k,2)}, v{V_OFF0}, s[{SRD_WS}:{SRD_WS+3}], 0 offen offset:{k*512} sc1')
        a('s_mov_b64 exec, -1')
        a('s_waitcnt vmcnt(0)')
        a(f'v_max3_u32 v{V_TMP}, v{ST}, v{ST+1}, v{ST+2}')
        a(f'v_max3_u32 v{V_TMP}, v{V_TMP}, v{ST+3}, v{ST+4}')
        a(f'v_max3_u32 v{V_TMP}, v{V_TMP}, v{ST+5}, v{ST+6}')
        a(f'v_max_u32 v{V_TMP}, v{V_TMP}, v{ST+7}')
        a(f'v_cmp_eq_u32 vcc, -1, v{V_TMP}')
        a('s_add_u32 s64, s64, 1')
        a('s_nop 0')
        a('s_cmp_eq_u64 vcc, 0\ns_cbranch_scc1 L_W_st_done')
        a('s_sleep 16')
        a(f's_cmp_lt_u32 s64, {SPIN_LIMIT}\ns_cbranch_scc1 L_W_st')
        a.label('L_W_st_done')
    MM, TT, LL = V_TMP, V_TMP + 4, V_TMP + 8
    def allred(x, op):
        a.nop(2)
        for k in range(4): a(f'{op}_dpp v{x+k}, v{x+k}, v{x+k} row_ror:8 row_mask:0xf bank_mask:0xf')
        for st in (16, 32):
            for k in range(4): a(f'v_mov_b32 v{TT+k}, v{x+k}')
            a.nop(2)
            for k in range(4): a(f'v_permlane{st}_swap_b32 v{x+k}, v{TT+k}')
            a.nop(1)
            for k in range(4): a(f'{op} v{x+k}, v{x+k}, v{TT+k}')
    for k in range(4): a(f'v_mov_b32 v{MM+k}, v{ST+2*k}')
    allred(MM, 'v_max_f32')
    for k in range(4): a(f'v_sub_f32 v{MM+k}, v{ST+2*k}, v{MM+k}')
    for k in range(4): a(f'v_exp_f32 v{MM+k}, v{MM+k}')
    a('s_nop 0')
    for k in range(4): a(f'v_mul_f32 v{LL+k}, v{ST+2*k+1}, v{MM+k}')
    allred(LL, 'v_add_f32')
    for k in range(4): a(f'v_rcp_f32 v{LL+k}, v{LL+k}')
    a('s_nop 0')
    F = ST
    for k in range(4): a(f'v_mul_f32 v{F+k}, v{MM+k}, v{LL+k}')
    for i in range(4): a(f'v_mov_b32 v{ACC+i}, 0')
    if cfg.wstop == 7: a('s_endpgm'); return
    if cfg.fp:
        a('s_mov_b32 s63, 0x40000000')
        a(f'v_writelane_b32 v{V_OFF1}, s63, 63')
    a('s_mov_b32 s64, 0')
    a(f's_mov_b32 s74, {0x01010101 if cfg.gate == 6 else 0x0101 if cfg.gate == 2 else 1:#x}\ns_mov_b32 s75, {0x0101 if cfg.gate == 6 else 0:#x}')
    a.label('L_W_gate')
    a('s_mov_b64 exec, s[74:75]')
    a(f'buffer_load_dword v{V_TMP}, v{V_OFF1}, s[{SRD_WS}:{SRD_WS+3}], 0 offen {cfg.lpol.replace("+", " ")}')
    a('s_waitcnt vmcnt(0)')
    a(f'v_cmp_ne_u32 vcc, -1, v{V_TMP}')
    a('s_mov_b64 exec, -1')
    a('s_add_u32 s64, s64, 1')
    a('s_cmp_lg_u64 vcc, 0\ns_cbranch_scc1 L_W_gate_done')
    L_GF = R['L_QB'] + 516
    if cfg.fg:
        for i in range(cfg.fg):
            a(f'ds_read_b32 v{V_TMP}, v{R["V_ZERO"]} offset:{L_GF}')
            a('s_waitcnt lgkmcnt(0)')
            a(f'v_readfirstlane_b32 s63, v{V_TMP}')
            a(f's_cmp_eq_u32 s63, s{S_TAG}\ns_cbranch_scc1 L_W_gate_done')
            a(f's_sleep {cfg.gsleep}')
    else: a(f's_sleep {cfg.gsleep}')
    a(f's_cmp_lt_u32 s64, {SPIN_LIMIT}\ns_cbranch_scc1 L_W_gate')
    a.label('L_W_gate_done')
    if cfg.fg:
        a(f'v_mov_b32 v{V_TMP}, s{S_TAG}')
        a(f'ds_write_b32 v{R["V_ZERO"]}, v{V_TMP} offset:{L_GF}')
    stamp(a, cfg, 6)
    if cfg.wstop == 8: a('s_endpgm'); return
    a('s_mov_b32 s64, 0')
    for k in range(1, 4): a(f's_mov_b32 s{76+k}, {k*65536}')
    if cfg.fp and cfg.fth >= 24: a('s_branch L_W_pipe')
    a.label('L_W_sweep')
    for k in range(4):
        a(f's_mov_b64 exec, s[{PEND+2*k}:{PEND+2*k+1}]')
        a(f's_cbranch_execz L_W_sw{k}')
        so = '0' if k == 0 else f's{76+k}'
        a(f'buffer_load_dwordx2 {vr(Y+2*k,2)}, v{V_OFF1}, s[{SRD_WS}:{SRD_WS+3}], {so} offen {cfg.lpol.replace("+", " ")}')
        a.label(f'L_W_sw{k}')
    a('s_waitcnt vmcnt(0)')
    for k in range(4):
        a(f's_mov_b64 exec, s[{PEND+2*k}:{PEND+2*k+1}]')
        a(f's_cbranch_execz L_W_sx{k}')
        a(f'v_max_u32 v{V_TMP}, v{Y+2*k}, v{Y+2*k+1}')
        a(f'v_cmp_ne_u32 vcc, -1, v{V_TMP}')
        for i in range(2):
            a(f'v_lshlrev_b32 v{YF+2*i}, 16, v{Y+2*k+i}')
            a(f'v_and_b32 v{YF+2*i+1}, 0xffff0000, v{Y+2*k+i}')
        a(f's_andn2_b64 s[{PEND+2*k}:{PEND+2*k+1}], exec, vcc')
        a('s_mov_b64 exec, vcc')
        for i in range(4): a(f'v_fma_f32 v{ACC+i}, v{F+k}, v{YF+i}, v{ACC+i}')
        a.label(f'L_W_sx{k}')
    a('s_mov_b64 exec, -1')
    a(f's_or_b64 s[74:75], s[{PEND}:{PEND+1}], s[{PEND+2}:{PEND+3}]')
    a(f's_or_b64 s[80:81], s[{PEND+4}:{PEND+5}], s[{PEND+6}:{PEND+7}]')
    a('s_or_b64 s[74:75], s[74:75], s[80:81]')
    a('s_cbranch_scc0 L_W_sweep_done')
    if cfg.fp:
        for k in range(4): a(f's_bcnt1_i32_b64 s{80+k}, s[{PEND+2*k}:{PEND+2*k+1}]')
        a('s_add_u32 s80, s80, s81\ns_add_u32 s82, s82, s83\ns_add_u32 s80, s80, s82')
        a(f's_cmp_le_u32 s80, {8*cfg.fth}\ns_cbranch_scc1 L_W_pipe')
    if cfg.sw1:
        for k in range(4): a(f's_bcnt1_i32_b64 s{80+k}, s[{PEND+2*k}:{PEND+2*k+1}]')
        a('s_add_u32 s80, s80, s81\ns_add_u32 s82, s82, s83\ns_add_u32 s80, s80, s82')
        a(f's_cmp_le_u32 s80, {8*cfg.sw1}\ns_cbranch_scc1 L_W_nosl')
        a(f's_sleep {cfg.sl1}')
        a(f's_cmp_le_u32 s80, {8*cfg.sw2}\ns_cbranch_scc1 L_W_nosl')
        a(f's_sleep {cfg.sl2}')
        a.label('L_W_nosl')
    a('s_add_u32 s64, s64, 1')
    a(f's_cmp_lt_u32 s64, {SPIN_LIMIT}\ns_cbranch_scc1 L_W_sweep')
    if cfg.fp:
        a('s_branch L_W_sweep_done')
        a.label('L_W_pipe')
        YS = [YF + 16 + 8 * i for i in range(cfg.fp)]
        def issue(y):
            for k in range(4):
                a(f's_mov_b32 exec_lo, s{PEND+2*k}')
                a(f's_or_b32 exec_hi, s{PEND+2*k+1}, 0x80000000')
                so = '0' if k == 0 else f's{76+k}'
                a(f'buffer_load_dwordx2 {vr(y+2*k,2)}, v{V_OFF1}, s[{SRD_WS}:{SRD_WS+3}], {so} offen {cfg.lpol.replace("+", " ")}')
        for i in range(cfg.fp - 1):
            issue(YS[i])
            a(f's_sleep {cfg.fsl}')
        a('.p2align 6')
        a.label('L_W_pipel')
        for i in range(cfg.fp):
            issue(YS[(i + cfg.fp - 1) % cfg.fp])
            a(f's_waitcnt vmcnt({4 * (cfg.fp - 1)})')
            y = YS[i]
            for k in range(4):
                a(f's_mov_b64 exec, s[{PEND+2*k}:{PEND+2*k+1}]')
                a(f's_cbranch_execz L_W_px{i}{k}')
                a(f'v_max_u32 v{V_TMP}, v{y+2*k}, v{y+2*k+1}')
                a(f'v_cmp_ne_u32 vcc, -1, v{V_TMP}')
                for e in range(2):
                    a(f'v_lshlrev_b32 v{YF+2*e}, 16, v{y+2*k+e}')
                    a(f'v_and_b32 v{YF+2*e+1}, 0xffff0000, v{y+2*k+e}')
                a(f's_andn2_b64 s[{PEND+2*k}:{PEND+2*k+1}], exec, vcc')
                a('s_mov_b64 exec, vcc')
                for e in range(4): a(f'v_fma_f32 v{ACC+e}, v{F+k}, v{YF+e}, v{ACC+e}')
                a.label(f'L_W_px{i}{k}')
            a(f's_or_b64 s[74:75], s[{PEND}:{PEND+1}], s[{PEND+2}:{PEND+3}]')
            a(f's_or_b64 s[80:81], s[{PEND+4}:{PEND+5}], s[{PEND+6}:{PEND+7}]')
            a('s_or_b64 s[74:75], s[74:75], s[80:81]')
            a('s_cbranch_scc0 L_W_sweep_done')
        a('s_add_u32 s64, s64, 1')
        a(f's_cmp_lt_u32 s64, {SPIN_LIMIT}\ns_cbranch_scc1 L_W_pipel')
    a.label('L_W_sweep_done')
    if cfg.fp: a('s_mov_b64 exec, -1')
    stamp(a, cfg, 7)
    if cfg.cf: col_fast(a, cfg, ACC, R['V_CFL'], R['V_CFO'], V_TMP + 12)
    else: col_finish(a, ACC, V_TMP + 12, 0, 8, 0, 'Wa', perm=cfg.smf)
    if cfg.tag:
        a(f's_or_b32 s62, s{S_H}, s{S_W}\ns_cbranch_scc1 L_W_nonext')
        a(f'v_mov_b32 v{V_TMP}, {WS_NONCE:#x}\nv_mov_b32 v{V_TMP+1}, s{S_TAG}')
        a('s_mov_b64 exec, 1')
        a(f'buffer_store_dword v{V_TMP+1}, v{V_TMP}, s[{SRD_WS}:{SRD_WS+3}], 0 offen {cfg.opol.replace("+", " ")}')
        a('s_mov_b64 exec, -1')
        a.label('L_W_nonext')
    if not cfg.aend: span_mark(a, cfg, True)
    lite_end(a, cfg, 0, 7)
    a('s_endpgm')

def q_for_A(a, cfg, SRD_WS, L_QP):
    SRD_0, SRD_X = 52, 56
    V_OFF, V_X, V_A, V_Y, V_W, V_TMP = 10, 12, 28, 44, 64, 192
    a(f's_lshl_b32 s60, s{S_HP}, 8')
    a(f's_sub_u32 s61, {512*8192:#x}, s60')
    srd(a, SRD_0, P_AWQ, off_s=60, nrec_s=61)
    srd(a, SRD_X, P_AX, nrec=2048)
    a(f'v_lshrrev_b32 v{V_TMP}, 3, v{V_C}')
    a(f'v_lshlrev_b32 v{V_TMP}, 10, v{V_TMP}')
    a(f'v_lshl_add_u32 v{V_TMP}, v{V_G}, 5, v{V_TMP}')
    a(f's_lshl_b32 s62, s{S_W}, 7')
    a(f'v_add_u32 v{V_TMP}, s62, v{V_TMP}')
    a(f'buffer_load_dwordx4 {vr(V_X,4)}, v{V_TMP}, s[{SRD_X}:{SRD_X+3}], 0 offen')
    a(f'buffer_load_dwordx4 {vr(V_X+4,4)}, v{V_TMP}, s[{SRD_X}:{SRD_X+3}], 0 offen offset:16')
    rows_voff(a, V_OFF)
    Lq = cfg.cq
    def load(s_):
        a(f's_mov_b32 s62, {s_*8192}')
        a(f'buffer_load_dwordx4 {vr(V_W+4*s_,4)}, v{V_OFF}, s[{SRD_0}:{SRD_0+3}], s62 offen {cfg.bpol}')
    for s_ in range(Lq): load(s_)
    a(f'v_lshrrev_b32 v{V_TMP}, 1, v{V_G}')
    a(f'v_lshlrev_b32 v{V_TMP}, 9, v{V_TMP}')
    a(f'v_lshl_add_u32 v{V_TMP}, v{V_C}, 5, v{V_TMP}')
    a(f'v_and_b32 v{V_TMP+1}, 1, v{V_G}')
    a(f'v_lshl_add_u32 v{V_TMP}, v{V_TMP+1}, 4, v{V_TMP}')
    a(f's_lshl_b32 s63, s{S_W}, 10\ns_add_u32 s63, s63, {L_QP}')
    a(f'v_add_u32 v{V_TMP}, s63, v{V_TMP}')
    a(f'v_lshlrev_b32 v{V_TMP+1}, 4, v{V_LANE}')
    a(f's_lshl_b32 s63, s{S_H}, 10\ns_add_u32 s63, s63, {WS_QA:#x}')
    a(f'v_add_u32 v{V_TMP+2}, s63, v{V_TMP+1}')
    a(f'v_add_u32 v{V_TMP+1}, {L_QP}, v{V_TMP+1}')
    a('s_mov_b32 s66, 0x01000100\ns_mov_b32 s67, 0x03020302')
    for s_ in range(16):
        A = V_A + 4 * (s_ & 1)
        a(f's_waitcnt vmcnt({min(Lq - 1, 15 - s_)})')
        if s_ + Lq < 16: load(s_ + Lq)
        a(f'v_perm_b32 v{V_TMP+3}, v{V_X + s_//2}, v{V_X + s_//2}, s{66 + (s_ & 1)}')
        for i in range(4): a(f'v_and_b32 v{A+i}, v{V_TMP+3}, v{V_MASK+i}')
        a('s_nop 1')
        c = '0' if s_ == 0 else vr(V_Y, 4)
        a(f'v_mfma_f32_16x16x32_bf16 {vr(V_Y,4)}, {vr(A,4)}, {vr(V_W+4*s_,4)}, {c}')
    a.nop(8)
    a(f'ds_write_b128 v{V_TMP}, {vr(V_Y,4)}')
    get_tag(a)
    a('s_barrier')
    a(f's_cmp_lg_u32 s{S_W}, 0\ns_cbranch_scc1 L_C_qdone')
    for w in range(8): a(f'ds_read_b128 {vr(V_W+4*w,4)}, v{V_TMP+1} offset:{1024*w}')
    for w in range(1, 8):
        a(f's_waitcnt lgkmcnt({7-w})')
        for k in range(4): a(f'v_add_f32 v{V_W+k}, v{V_W+k}, v{V_W+4*w+k}')
    a(f'v_cvt_pk_bf16_f32 v{V_W}, v{V_W}, v{V_W+1}')
    a(f'v_cvt_pk_bf16_f32 v{V_W+2}, v{V_W+2}, v{V_W+3}')
    a(f'v_mov_b32 v{V_W+1}, s{S_TAG}\nv_mov_b32 v{V_W+3}, s{S_TAG}')
    a(f'buffer_store_dwordx4 {vr(V_W,4)}, v{V_TMP+2}, s[{SRD_WS}:{SRD_WS+3}], 0 offen sc1')
    a.label('L_C_qdone')
    if cfg.cqbar: a('s_barrier')
    stamp(a, cfg, 4)

def role_C(a, cfg):
    TS = 1056
    BUF = 64 * TS
    L_TMAX, L_P = 0, 512
    PS = 144
    L_T0 = 5120
    L_T1 = L_T0 + BUF
    assert L_P + 32*PS <= L_T0 and L_T1 + BUF <= LDS_BYTES
    SRD_C, SRD_WS = 40, 44
    S_B, S_KB, S_HB, S_LB, S_IT, S_BUF = 35, 36, 37, 38, 39, 48
    V_ZERO, V_COFF, V_SA, V_TA, V_PW, V_PR, V_TW, V_TRS, V_TRP = 8, 9, 10, 11, 12, 13, 14, 15, 16
    V_SC, V_MS, V_MP, V_LS, V_AL = 17, 18, 19, 20, 21
    V_T = 24
    V_SD = 28
    V_Q = 32
    V_ACC = 96
    V_SF = 128
    V_PB = 192
    V_TF = 128
    V_STG = 208
    V_TMP = 240
    V_STA, V_STW = 22, 23
    a.label('L_roleC')
    late_entry(a, cfg)
    stamp(a, cfg, 0)
    if cfg.tag: load_tag(a)
    a(f'v_mov_b32 v{V_ZERO}, 0')
    a(f's_lshr_b32 s{S_B}, s{S_H}, 4')
    a(f's_lshr_b32 s{S_KB}, s{S_W}, 1\ns_and_b32 s{S_HB}, s{S_W}, 1')
    a(f's_lshl_b32 s60, s{S_H}, 19')
    a(f's_mov_b32 s61, {512*1024:#x}')
    srd(a, SRD_C, P_BC, off_s=60, nrec_s=61)
    srd(a, SRD_WS, P_WS, nrec=0x1000000)
    if cfg.dyn:
        a(f's_cmp_lg_u32 s{S_W}, 0\ns_cbranch_scc1 L_C_noz')
        a(f's_lshl_b32 s62, s{S_H}, 7\ns_add_u32 s62, s62, {WS_CTR:#x}')
        a(f'v_lshl_add_u32 v{V_TMP}, v{V_LANE}, 12, s62')
        a(f'v_mov_b32 v{V_TMP+1}, 1')
        a('s_mov_b64 exec, 3')
        a(f'buffer_store_dword v{V_ZERO}, v{V_TMP}, s[{SRD_WS}:{SRD_WS+3}], 0 offen sc1')
        a('s_waitcnt vmcnt(0)')
        a('s_mov_b64 exec, 1')
        a(f'global_atomic_add v{V_ZERO}, v{V_TMP+1}, s[{P_DBG}:{P_DBG+1}] offset:{CNT_Z} sc1')
        a('s_mov_b64 exec, -1')
        a.label('L_C_noz')
    if cfg.cpf:
        a(f's_cmp_lg_u32 s{S_W}, 7\ns_cbranch_scc1 L_C_nopf')
        code_prefetch(a, 'C', V_TMP, V_SF, f'{NAME}_kernel', cfg.cpf_kb)
        a.label('L_C_nopf')
    if '0' in cfg.ct: code_touch(a, 'C0', 7, 244)
    def q_part(n):
        if n != cfg.cfirst: return
        if cfg.tag and cfg.qc: q_for_A(a, cfg, SRD_WS, L_T1 + BUF)
        elif cfg.tag: get_tag(a)
    q_part(0)
    a(f'v_lshlrev_b32 v{V_COFF}, 4, v{V_LANE}')
    a(f's_lshl_b32 s62, s{S_W}, 13')
    a(f'v_add_u32 v{V_COFF}, s62, v{V_COFF}')
    S_RO, S_TB, S_TN = 68, 76, 77
    if cfg.cperm:
        a(f's_lshl_b32 s62, s{S_W}, 16')
        a(f'v_lshl_add_u32 v{V_COFF}, v{V_LANE}, 4, s62')
        a(f's_lshr_b32 s62, s{S_W}, 1' if cfg.cperm < 3 else 's_mov_b32 s62, 0')
        a(f's_and_b32 s{S_TB}, s{S_W}, {1 if cfg.cperm == 1 else 0}\ns_lshl_b32 s{S_TB}, s{S_TB}, 15')
        for i in range(8): a(f's_xor_b32 s{S_RO+i}, s62, {i}\ns_lshl_b32 s{S_RO+i}, s{S_RO+i}, 10')
        a(f'v_add_u32 v{V_COFF}, s{S_TB}, v{V_COFF}')
        a(f's_mov_b32 s{S_TN}, 0')
    def caddr(i):
        if cfg.cperm: return f's{S_RO+i} offen'
        return f'{"0" if i < 4 else "s51"} offen offset:{(i%4)*1024}'
    def next_tile():
        if not cfg.cperm:
            a(f'v_add_u32 v{V_COFF}, 0x10000, v{V_COFF}')
            return
        a(f's_add_u32 s62, s{S_TB}, 0x2000\ns_and_b32 s62, s62, 0xffff')
        a(f's_add_u32 s{S_TN}, s{S_TN}, 1\ns_cmp_eq_u32 s{S_TN}, 8\ns_cselect_b32 s62, 0x40000000, s62')
        a(f's_sub_u32 s63, s62, s{S_TB}\ns_mov_b32 s{S_TB}, s62')
        a(f'v_add_u32 v{V_COFF}, s63, v{V_COFF}')
    a(f's_mul_i32 s{S_LB}, s{S_W}, {8*TS}')
    def dma(bufreg_or_imm):
        for i in range(8):
            hi, lo = i // 4, i % 4
            if bufreg_or_imm == 'thr' and cfg.cthr: a(f's_waitcnt vmcnt({cfg.cthr-1})')
            a(f's_add_u32 m0, s50, {i*TS if cfg.cperm else hi*4*TS + lo*(TS-1024)}')
            a('s_nop 0')
            a(f'buffer_load_dwordx4 v{V_COFF}, s[{SRD_C}:{SRD_C+3}], {caddr(i)} {cfg.cpol} lds')
        next_tile()
    a('s_mov_b32 s51, 4096')
    if cfg.cfast:
        for t in range(cfg.cfast):
            for i in range(8):
                a(f's_waitcnt vmcnt({cfg.cthr - 1})')
                a(f'buffer_load_dwordx4 {vr(V_STG+4*i,4)}, v{V_COFF}, s[{SRD_C}:{SRD_C+3}], {caddr(i)} {cfg.cpol}')
            next_tile()
        a('s_waitcnt vmcnt(0)')
        stamp(a, cfg, 2)
        a('s_endpgm')
        return
    a(f's_add_u32 s50, s{S_LB}, {L_T0}'); dma('thr')
    q_part(1)
    a(f's_add_u32 s50, s{S_LB}, {L_T1}'); dma('thr')
    q_part(2)
    def stage_load(i):
        a(f'buffer_load_dwordx4 {vr(V_STG+4*i,4)}, v{V_COFF}, s[{SRD_C}:{SRD_C+3}], {caddr(i)} {cfg.cpol}')
    if not cfg.clate:
        for i in range(8):
            if cfg.cthr: a(f's_waitcnt vmcnt({cfg.cthr-1})')
            stage_load(i)
        next_tile()
    q_part(3)
    a(f's_add_u32 s62, s{S_LB}, {L_T0}')
    a(f'v_lshl_add_u32 v{V_STA}, v{V_LANE}, 4, s62')
    a(f's_lshl_b32 s62, s{S_KB}, 4')
    a(f'v_add_u32 v{V_TMP}, s62, v{V_C}')
    a(f'v_mul_u32_u24 v{V_SA}, {TS}, v{V_TMP}')
    a(f'v_lshl_add_u32 v{V_SA}, v{V_G}, 4, v{V_SA}')
    a(f'v_add_u32 v{V_SA}, {L_T0}, v{V_SA}')
    a(f'v_lshrrev_b32 v{V_TMP}, 1, v{V_G}')
    a(f'v_lshlrev_b32 v{V_TMP}, 3, v{V_TMP}')
    a(f'v_lshrrev_b32 v{V_TMP+1}, 2, v{V_C}')
    a(f'v_add_u32 v{V_TMP}, v{V_TMP}, v{V_TMP+1}')
    a(f'v_mul_u32_u24 v{V_TA}, {TS}, v{V_TMP}')
    a(f'v_and_b32 v{V_TMP}, 1, v{V_G}')
    a(f'v_lshl_add_u32 v{V_TA}, v{V_TMP}, 5, v{V_TA}')
    a(f'v_and_b32 v{V_TMP}, 3, v{V_C}')
    a(f'v_lshl_add_u32 v{V_TA}, v{V_TMP}, 3, v{V_TA}')
    a(f's_lshl_b32 s62, s{S_W}, 7\ns_add_u32 s62, s62, {L_T0}')
    a(f'v_add_u32 v{V_TA}, s62, v{V_TA}')
    a(f's_lshl_b32 s62, s{S_HB}, 4')
    a(f'v_add_u32 v{V_TMP}, s62, v{V_C}')
    a(f'v_mul_u32_u24 v{V_PW}, {PS}, v{V_TMP}')
    a(f'v_lshl_add_u32 v{V_PW}, v{V_G}, 3, v{V_PW}')
    a(f's_lshl_b32 s62, s{S_KB}, 5')
    a(f'v_add_u32 v{V_PW}, s62, v{V_PW}')
    a(f'v_lshlrev_b32 v{V_TRS}, 4, v{V_TMP}')
    a(f's_lshl_b32 s62, s{S_KB}, 2')
    a(f'v_add_u32 v{V_TW}, s62, v{V_TRS}')
    a(f'v_and_b32 v{V_TMP}, 31, v{V_LANE}')
    a(f'v_mul_u32_u24 v{V_PR}, {PS}, v{V_TMP}')
    a(f'v_lshrrev_b32 v{V_TMP+1}, 5, v{V_LANE}')
    a(f'v_lshl_add_u32 v{V_PR}, v{V_TMP+1}, 4, v{V_PR}')
    a(f'v_lshlrev_b32 v{V_TRP}, 4, v{V_TMP}')
    a(f'v_mov_b32 v{V_SC}, {f2u(SCALE):#x}')
    a(f'v_mov_b32 v{V_MS}, 0xff800000\nv_mov_b32 v{V_MP}, 0xff800000\nv_mov_b32 v{V_LS}, 0')
    for k in range(32): a(f'v_mov_b32 v{V_ACC+k}, 0')
    if cfg.tag:
        a(f's_cmp_lg_u32 s{S_W}, 0\ns_cbranch_scc1 L_wc_Cq')
        if 'q' in cfg.fl:
            a(f's_mov_b32 s62, {WS_MBOX:#x}')
            a(f'v_lshl_add_u32 v{V_TMP}, v{V_LANE}, 8, s62')
            a(f's_lshl_b64 exec, 1, s{S_H}')
            tag_poll(a, 'Cq0', V_TMP + 1, V_TMP, SRD_WS, cfg.tsleep, 1)
            a('s_mov_b32 exec_lo, -1\ns_mov_b32 exec_hi, 0')
            tag_poll(a, 'Cq', V_TMP + 1, V_TMP, SRD_WS, cfg.tsl2, 1, shrink=True)
        else:
            a(f's_lshl_b32 s62, s{S_H}, 8\ns_add_u32 s62, s62, {WS_MBOX:#x}')
            a(f'v_lshl_add_u32 v{V_TMP}, v{V_LANE}, 2, s62')
            a('s_mov_b32 exec_hi, 0')
            if not cfg.nowait: tag_poll(a, 'Cq', V_TMP + 1, V_TMP, SRD_WS, cfg.tsleep, 1)
        a('s_mov_b64 exec, -1')
        a.label('L_wc_Cq')
        a('s_barrier')
    else: wait_counter(a, CNT_Q, 0 if cfg.nowait else 32, V_TMP, V_ZERO, 'Cq', acquire=cfg.qacq)
    stamp(a, cfg, 1)
    if cfg.cstop == 2:
        a('s_waitcnt vmcnt(0)'); a('s_endpgm'); return
    a(f's_lshl_b32 s62, s{S_B}, 5\ns_lshl_b32 s63, s{S_HB}, 4\ns_add_u32 s62, s62, s63')
    a(f'v_add_u32 v{V_TMP}, s62, v{V_C}')
    a(f'v_lshlrev_b32 v{V_TMP}, 10, v{V_TMP}')
    a(f'v_lshl_add_u32 v{V_TMP}, v{V_G}, 4, v{V_TMP}')
    a(f'v_add_u32 v{V_TMP}, {WS_QABS:#x}, v{V_TMP}')
    for s_ in range(16):
        a(f'buffer_load_dwordx4 {vr(V_Q+4*s_,4)}, v{V_TMP}, s[{SRD_WS}:{SRD_WS+3}], 0 offen offset:{64*s_} {"" if cfg.qacq else "sc1"}')
    if cfg.cstop == 3:
        a('s_waitcnt vmcnt(0)'); a('s_endpgm'); return
    if cfg.clate:
        for i in range(8): stage_load(i)
        a(f'v_add_u32 v{V_COFF}, 0x10000, v{V_COFF}')
    a(f's_mov_b32 s{S_IT}, 0\ns_mov_b32 s{S_BUF}, 0')
    a('.p2align 6')
    a.label('L_C_loop')
    a(f's_cmp_lg_u32 s{S_IT}, 0\ns_cbranch_scc1 L_C_top')
    a('s_waitcnt vmcnt(8)' if cfg.clate else 's_waitcnt vmcnt(0)')
    a.label('L_C_top')
    a('s_waitcnt lgkmcnt(0)\ns_barrier')
    S_STG = 52
    a(f's_mov_b32 s{S_STG}, 1')
    a(f's_cmp_eq_u32 s{S_IT}, 0\ns_cselect_b32 s{S_STG}, 0, s{S_STG}')
    a(f's_cmp_ge_u32 s{S_IT}, 7\ns_cselect_b32 s{S_STG}, 0, s{S_STG}')
    a(f's_sub_u32 s50, {BUF}, s{S_BUF}')
    a(f'v_add_u32 v{V_STW}, s50, v{V_STA}')
    nstage = [0]
    def stage(rows):
        lab = f'L_C_st{nstage[0]}'; nstage[0] += 1
        a(f's_cmp_eq_u32 s{S_STG}, 0\ns_cbranch_scc1 {lab}')
        for i in rows:
            a('s_waitcnt vmcnt(7)')
            a(f'ds_write_b128 v{V_STW}, {vr(V_STG+4*i,4)} offset:{i*TS}')
            stage_load(i)
        if rows[-1] == 7: next_tile()
        a.label(lab)
    groups = [[0, 1], [2, 3], [4, 5], [6, 7]] if cfg.cspread else [list(range(8)), [], [], []]
    stage(groups[0])
    a(f'v_add_u32 v{V_TMP}, s{S_BUF}, v{V_SA}')
    a(f'v_add_u32 v{V_TMP+1}, s{S_BUF}, v{V_TA}')
    for s_ in range(16):
        a(f'ds_read_b128 {vr(V_SF+4*s_,4)}, v{V_TMP} offset:{64*s_}')
    for s_ in range(16):
        a(f's_waitcnt lgkmcnt({15-s_})')
        c = '0' if s_ == 0 else vr(V_SD, 4)
        a(f'v_mfma_f32_16x16x32_bf16 {vr(V_SD,4)}, {vr(V_SF+4*s_,4)}, {vr(V_Q+4*s_,4)}, {c}')
    if groups[1]: stage(groups[1])
    a.nop(8)
    for i in range(4): a(f'v_mul_f32 v{V_T+i}, v{V_SD+i}, v{V_SC}')
    a(f'v_max3_f32 v{V_TMP+2}, v{V_T}, v{V_T+1}, v{V_T+2}')
    a(f'v_max_f32 v{V_TMP+2}, v{V_TMP+2}, v{V_T+3}')
    xrow_allreduce(a, 'v_max_f32', V_TMP+2, V_TMP+3)
    a('s_mov_b64 exec, 0xffff')
    a(f'ds_write_b32 v{V_TW}, v{V_TMP+2} offset:{L_TMAX}')
    a('s_mov_b64 exec, -1')
    a('s_waitcnt lgkmcnt(0)\ns_barrier')
    a(f'ds_read_b128 {vr(V_PB,4)}, v{V_TRS} offset:{L_TMAX}')
    a(f'ds_read_b128 {vr(V_PB+4,4)}, v{V_TRP} offset:{L_TMAX}')
    a('s_waitcnt lgkmcnt(1)')
    a(f'v_max3_f32 v{V_TMP+2}, v{V_PB}, v{V_PB+1}, v{V_PB+2}')
    a(f'v_max3_f32 v{V_TMP+2}, v{V_TMP+2}, v{V_PB+3}, v{V_MS}')
    a(f'v_sub_f32 v{V_AL}, v{V_MS}, v{V_TMP+2}')
    for i in range(4): a(f'v_sub_f32 v{V_T+i}, v{V_T+i}, v{V_TMP+2}')
    a(f'v_exp_f32 v{V_AL}, v{V_AL}')
    for i in range(4): a(f'v_exp_f32 v{V_T+i}, v{V_T+i}')
    a(f'v_mov_b32 v{V_MS}, v{V_TMP+2}')
    a(f'v_cvt_pk_bf16_f32 v{V_TMP+4}, v{V_T}, v{V_T+1}')
    a(f'v_cvt_pk_bf16_f32 v{V_TMP+5}, v{V_T+2}, v{V_T+3}')
    a(f'ds_write_b64 v{V_PW}, {vr(V_TMP+4,2)} offset:{L_P}')
    a(f'v_add_f32 v{V_T}, v{V_T}, v{V_T+1}')
    a(f'v_add_f32 v{V_T+2}, v{V_T+2}, v{V_T+3}')
    a(f'v_fma_f32 v{V_LS}, v{V_LS}, v{V_AL}, v{V_T}')
    a(f'v_add_f32 v{V_LS}, v{V_LS}, v{V_T+2}')
    a('s_waitcnt lgkmcnt(1)')
    a(f'v_max3_f32 v{V_TMP+2}, v{V_PB+4}, v{V_PB+5}, v{V_PB+6}')
    a(f'v_max3_f32 v{V_TMP+2}, v{V_TMP+2}, v{V_PB+7}, v{V_MP}')
    a(f'v_sub_f32 v{V_AL}, v{V_MP}, v{V_TMP+2}')
    a(f'v_exp_f32 v{V_AL}, v{V_AL}')
    a(f'v_mov_b32 v{V_MP}, v{V_TMP+2}')
    for k in range(32): a(f'v_mul_f32 v{V_ACC+k}, v{V_ACC+k}, v{V_AL}')
    if groups[2]: stage(groups[2])
    a('s_waitcnt lgkmcnt(0)\ns_barrier')
    for t in range(4):
        a(f'ds_read_b128 {vr(V_PB+4*t,4)}, v{V_PR} offset:{L_P + 32*t}')
    for t in range(4):
        for cb in range(2):
            f = V_TF + 8*t + 4*cb
            off = t*16*TS + cb*64
            a(f'ds_read_b64_tr_b16 {vr(f,2)}, v{V_TMP+1} offset:{off}')
            a(f'ds_read_b64_tr_b16 {vr(f+2,2)}, v{V_TMP+1} offset:{off + 4*TS}')
    for t in range(4):
        a(f's_waitcnt lgkmcnt({12 - 4*t})')
        for cb in range(2):
            f = V_TF + 8*t + 4*cb
            a(f'v_mfma_f32_32x32x16_bf16 {vr(V_ACC+16*cb,16)}, {vr(f,4)}, {vr(V_PB+4*t,4)}, {vr(V_ACC+16*cb,16)}')
    if groups[3]: stage(groups[3])
    a(f's_sub_u32 s{S_BUF}, {BUF}, s{S_BUF}')
    a(f's_add_u32 s{S_IT}, s{S_IT}, 1')
    a(f's_cmp_lt_u32 s{S_IT}, 8\ns_cbranch_scc1 L_C_loop')
    stamp(a, cfg, 2)
    if cfg.cstop == 1: a('s_endpgm'); return
    xrow_allreduce(a, 'v_add_f32', V_LS, V_TMP+3)
    a('s_barrier')
    a('s_mov_b64 exec, 0xffff')
    a(f'ds_write_b32 v{V_TW}, v{V_LS} offset:{L_TMAX}')
    a('s_mov_b64 exec, -1')
    RS = 2064
    a(f'v_and_b32 v{V_TMP}, 31, v{V_LANE}')
    a(f'v_mul_u32_u24 v{V_TMP}, {RS}, v{V_TMP}')
    a(f'v_lshrrev_b32 v{V_TMP+1}, 5, v{V_LANE}')
    a(f'v_lshl_add_u32 v{V_TMP}, v{V_TMP+1}, 4, v{V_TMP}')
    a(f's_lshl_b32 s62, s{S_W}, 8\ns_add_u32 s62, s62, {L_T0}')
    a(f'v_add_u32 v{V_TMP}, s62, v{V_TMP}')
    a.nop(6)
    for cb in range(2):
        for k in range(4):
            a(f'ds_write_b128 v{V_TMP}, {vr(V_ACC+16*cb+4*k,4)} offset:{128*cb + 32*k}')
    a('s_waitcnt lgkmcnt(0)\ns_barrier')
    a(f's_mul_i32 s62, s{S_W}, {4*RS}\ns_add_u32 s62, s62, {L_T0}')
    a(f'v_lshl_add_u32 v{V_TMP}, v{V_LANE}, 5, s62')
    for r_ in range(4):
        for hf in range(2):
            a(f'ds_read_b128 {vr(V_SF+8*r_+4*hf,4)}, v{V_TMP} offset:{r_*RS + hf*16}')
    if cfg.cswz:
        K0 = {1: 0x83, 2: 0x02, 3: 0x00}[cfg.cswz]; K1 = 0x04 if cfg.cswz < 3 else 0; K2 = 0x08 if cfg.cswz < 3 else 0
        a(f'v_and_b32 v{V_TMP+2}, 1, v{V_G}')
        a(f'v_mul_u32_u24 v{V_TMP+1}, {(K0 << 8) | 0x10000:#x}, v{V_TMP+2}')
        a(f'v_lshrrev_b32 v{V_TMP+2}, 1, v{V_G}')
        a(f'v_mul_u32_u24 v{V_TMP+2}, {(K1 << 8) | 0x20000:#x}, v{V_TMP+2}')
        a(f'v_xor_b32 v{V_TMP+1}, v{V_TMP+1}, v{V_TMP+2}')
        a(f'v_lshl_add_u32 v{V_TMP+1}, v{V_C}, 4, v{V_TMP+1}')
        a(f's_and_b32 s62, s{S_H}, 15\ns_lshl_b32 s62, s62, 12\ns_lshl_b32 s63, s{S_W}, 9\ns_add_u32 s62, s62, s63')
        a(f's_lshl_b32 s63, s{S_B}, 19\ns_add_u32 s62, s62, s63')
        a(f'v_xor_b32 v{V_TMP+1}, s62, v{V_TMP+1}')
    else:
        a(f's_lshl_b32 s62, s{S_B}, 5\ns_lshl_b32 s63, s{S_W}, 2\ns_add_u32 s62, s62, s63')
        a(f's_lshl_b32 s62, s62, 4\ns_and_b32 s63, s{S_H}, 15\ns_add_u32 s62, s62, s63')
        a(f's_lshl_b32 s62, s62, 10\ns_add_u32 s62, s62, {WS_CPART:#x}')
        a(f'v_lshl_add_u32 v{V_TMP+1}, v{V_LANE}, 4, s62')
    for r_ in range(4):
        a(f's_waitcnt lgkmcnt({6 - 2*r_})')
        for k in range(4):
            a(f'v_cvt_pk_bf16_f32 v{V_SF+32+4*r_+k}, v{V_SF+8*r_+2*k}, v{V_SF+8*r_+2*k+1}')
        if cfg.cswz:
            a(f'v_xor_b32 v{V_TMP+2}, {((r_ & 1) * ((K2 << 8) | 0x40000)) ^ ((r_ >> 1) << 8):#x}, v{V_TMP+1}')
            a(f's_mov_b32 s63, {WS_CPART:#x}')
            a(f'buffer_store_dwordx4 {vr(V_SF+32+4*r_,4)}, v{V_TMP+2}, s[{SRD_WS}:{SRD_WS+3}], s63 offen {cfg.cppol.replace("+", " ")}')
            continue
        a(f's_mov_b32 s63, {r_*16384}')
        if 's' in cfg.xs and r_: a('s_waitcnt vmcnt(0)')
        if cfg.emu and r_:
            if cfg.emu >= 2: a(f'buffer_store_dwordx4 {vr(V_SF+32+4*r_,4)}, v{V_TMP+1}, s[{SRD_WS}:{SRD_WS+3}], s63 offen')
            if cfg.emu >= 3 and r_ == 3:
                a('s_waitcnt vmcnt(0)')
                a(f'v_xor_b32 v{V_TMP+2}, 0x2000, v{V_TMP+1}')
                for r2 in range(1, 4):
                    a(f's_mov_b32 s63, {r2*16384}')
                    a(f'buffer_load_dwordx4 {vr(V_SF+4*r2,4)}, v{V_TMP+2}, s[{SRD_WS}:{SRD_WS+3}], s63 offen {"nt" if cfg.emu == 3 else ""}')
            continue
        if cfg.cstop != 4: a(f'buffer_store_dwordx4 {vr(V_SF+32+4*r_,4)}, v{V_TMP+1}, s[{SRD_WS}:{SRD_WS+3}], s63 offen {cfg.cppol.replace("+", " ")}')
    if cfg.tag:
        a(f'ds_read_b128 {vr(V_PB,4)}, v{V_TRP} offset:{L_TMAX}')
        a(f'v_and_b32 v{V_TMP}, 31, v{V_LANE}')
        a(f's_lshl_b32 s63, s{S_H}, {9 if "c" in cfg.fl else 4}\ns_add_u32 s63, s63, {WS_CSTAT:#x}')
        a(f'v_lshl_add_u32 v{V_TMP}, v{V_TMP}, {4 if "c" in cfg.fl else 9}, s63')
        a('s_waitcnt lgkmcnt(0)')
        a(f'v_add_f32 v{V_PB}, v{V_PB}, v{V_PB+1}')
        a(f'v_add_f32 v{V_PB+2}, v{V_PB+2}, v{V_PB+3}')
        a(f'v_add_f32 v{V_PB+2}, v{V_PB}, v{V_PB+2}')
        a(f'v_mov_b32 v{V_PB}, v{V_MP}')
        a(f'v_mov_b32 v{V_PB+1}, s{S_TAG}\nv_mov_b32 v{V_PB+3}, s{S_TAG}')
        a('s_waitcnt vmcnt(0)\ns_barrier')
        if 'C' in cfg.asst:
            a(f's_cmp_lg_u32 s{S_W}, 1\ns_cbranch_scc1 L_C_noas')
            role_a4.assist(a, cfg, 'C', V_SF, V_ZERO, None)
            a.label('L_C_noas')
        a(f's_cmp_lg_u32 s{S_W}, 0\ns_cbranch_scc1 L_C_done')
        a('s_mov_b32 exec_hi, 0')
        a(f'buffer_store_dwordx4 {vr(V_PB,4)}, v{V_TMP}, s[{SRD_WS}:{SRD_WS+3}], 0 offen sc1')
        a('s_mov_b64 exec, -1')
        if cfg.mon > 1 and 'C' in cfg.ghost:
            a(f's_cmp_ge_u32 s{S_H}, 8\ns_cbranch_scc1 L_C_done')
            role_a4.exchange(a, cfg, 'C', V_SF, V_ZERO, None)
        a.label('L_C_done')
        if '2' in cfg.ct:
            code_touch(a, 'C2', 2, 244)
            a('s_waitcnt vmcnt(0)')
        stamp(a, cfg, 3)
        if cfg.pfx:
            a(f's_lshl_b32 s62, s{S_HP}, 21')
            a(f's_sub_u32 s63, {128 << 20:#x}, s62')
            srd(a, SRD_C, P_AV, off_s=62, nrec_s=63)
            a(f's_lshr_b32 s62, s{S_W}, 2\ns_lshl_b32 s62, s62, 26\ns_and_b32 s63, s{S_W}, 3\ns_lshl_b32 s63, s63, 12\ns_add_u32 s62, s62, s63')
            a(f'v_lshl_add_u32 v{V_TMP}, v{V_LANE}, 4, s62')
            rng = range(cfg.pf1, cfg.pf0 - 1, -1) if cfg.pfx == 1 else range(cfg.pf0, cfg.pf1 + 1)
            for t in rng:
                a(f's_mov_b32 s62, {t * 24 * 4096:#x}')
                for k in range(4):
                    a(f's_waitcnt vmcnt({cfg.pfl - 1})')
                    a(f'buffer_load_dwordx4 {vr(V_SF+4*k,4)}, v{V_TMP}, s[{SRD_C}:{SRD_C+3}], s62 offen offset:{1024*k} {cfg.pfpol}')
            a('s_waitcnt vmcnt(0)')
            stamp(a, cfg, 5)
        a('s_endpgm')
        return
    a(f's_cmp_lg_u32 s{S_W}, 0\ns_cbranch_scc1 L_C_nostat')
    a(f'ds_read_b128 {vr(V_PB,4)}, v{V_TRP} offset:{L_TMAX}')
    a(f's_lshl_b32 s62, s{S_B}, 5')
    a(f'v_and_b32 v{V_TMP}, 31, v{V_LANE}')
    a(f'v_add_u32 v{V_TMP}, s62, v{V_TMP}')
    a(f'v_lshlrev_b32 v{V_TMP}, 7, v{V_TMP}')
    a(f's_and_b32 s63, s{S_H}, 15\ns_lshl_b32 s63, s63, 3\ns_add_u32 s63, s63, {WS_CSTAT:#x}')
    a(f'v_add_u32 v{V_TMP}, s63, v{V_TMP}')
    a('s_waitcnt lgkmcnt(0)')
    a(f'v_add_f32 v{V_PB}, v{V_PB}, v{V_PB+1}')
    a(f'v_add_f32 v{V_PB+2}, v{V_PB+2}, v{V_PB+3}')
    a(f'v_add_f32 v{V_TMP+3}, v{V_PB}, v{V_PB+2}')
    a(f'v_mov_b32 v{V_TMP+2}, v{V_MP}')
    a('s_mov_b32 exec_hi, 0')
    a(f'buffer_store_dwordx2 {vr(V_TMP+2,2)}, v{V_TMP}, s[{SRD_WS}:{SRD_WS+3}], 0 offen sc1')
    a('s_mov_b64 exec, -1')
    a.label('L_C_nostat')
    signal(a, CNT_C, V_ZERO, V_TMP+4, 'Cc')
    stamp(a, cfg, 3)
    a('s_endpgm')
```

```python
import sys, math
from asmlib import Asm, vr, sr, lint

NAME = 'concat_heads__gqa_block_cached__compressed_kv_cla__decode'
NA = 6
LDS_BYTES = 150 * 1024
SCALE = (128 ** -0.5) * math.log2(math.e)
def f2u(x):
    import struct
    return struct.unpack('<I', struct.pack('<f', x))[0]
NEG_INF = 0xff800000
SENT = 0xffffffff

WS_QABS  = 0x000000
WS_CSTAT = 0x010000
WS_YSTAT = 0x014000
WS_YB    = 0x020000
WS_NONCE = 0x018000
WS_CTR   = 0x01A000
WS_PROG  = 0x0C0000
WS_GLOB  = 0x0D0000
WS_MEAN  = 0x01D000
WS_QA    = 0x040000
GOLDEN   = 0x9E3779B9
WS_YA    = 0x100000
WS_CPART = 0x200000
WS_STAMP = 0x800000

P_AX, P_AK, P_AV, P_AWQ, P_AWO, P_BX, P_BC, P_BWQ = 4, 6, 8, 10, 12, 14, 16, 18
P_BWUK, P_BWUV, P_BWO, P_OUT, P_DBG, P_WS = 20, 22, 24, 26, 28, 30
S_H, S_R, S_W = 32, 33, 34
S_HP = 89
S_TAG = 88
WS_YST2  = 0x050000
WS_MBOX  = 0x01A000

CNT_Q, CNT_C, CNT_YB, CNT_Z = 0, 64, 128, 192
SPIN_LIMIT = 1 << 16

DESCRIPTION = """
Generated by gen/gen.py (hand-written generator).  One launch, 256 workgroups of 8 waves, one per CU.
id -> xcd = id & 7 (expected placement, speed only), slot = id >> 3, head h = xcd + 8*(slot >> 3), role = slot & 7.
role 0..5 (A): K/V-cache attention of head h, both batches.  Waves 0-3 first read the weights and c_kv rows that
  roles 6 and 7 of the head need into the L2 (speed only).  Then they stream: first their whole share of K
  (scores by v_dot2 + DPP row sums, kept in registers), softmax numerators relative to the wave's true maximum, then
  the same rows of V (MFMA: A = p times a unit pattern, B = the V rows as loaded).  Waves 4-7 hold wo[h], fetch q,
  publish the workgroup's (max, sum) and finally y = o wo[h] (bf16).  Wave 6 posts the workgroup's progress, wave 5
  compares it with that of the others; a workgroup that has fallen behind keeps more loads in flight, and an idle wave
  of role 6 / 7 reads some of its next rows into the L2 (speed only).
role 6 (W): q_B = x w_q, q_abs = q_B w_uk^T (absorbed up-projection), later: merge of the C partials, w_uv, w_o,
  output columns of part B, and the softmax-weighted sum of the A partials for 32 output columns.
role 7 (C): q = x wq of head h for the A workgroups, then latent attention over 512 keys of c_kv for all 32 heads
  (MFMA, LDS tiles, online softmax).
Hand-offs: sc1 stores that carry a tag (a word of d_ws read on entry plus a constant; the last workgroup replaces the
  word, so no earlier launch's tag matches); the y rows are polled against a sentinel written earlier in the same
  launch.  Every spin is bounded.
"""

class Cfg:
    two = True
    R = 32
    L0 = 8
    La = 7
    Lb = 6
    Lc = 6
    NKa = 7
    NVa = 9
    Lq = 4
    Lo = 4
    catch = 3
    sprio = 0
    cperm = 0
    spf = 'q,k,a,v,o,c38'
    spol = ''
    L0k = 8
    ct = ''
    fb = 0
    jp = ''
    fs = 3
    ist = 0
    hmap = '01234'
    bx = 0
    hx = ''
    pat = 0
    seq = 0
    cf = 1
    smf = 1
    ypol = 'sc1'
    zpol = 'sc1'
    lpol = 'sc1'
    fp = 0
    fsl = 5
    fth = 24
    fg = 0
    emu = 0
    opol = ''
    tlb = ''
    tn = 4
    tat = 260
    tpol = ''
    grot = 9
    gstr = 0x100
    gback = 2
    gpol = 'nt'
    ag = 0
    xs = ''
    tctl = 0
    gpar = 1
    cfirst = 1
    spm = 1
    st0 = 0
    post = 4
    psl = 2
    pend = 640
    asst = 'WC'
    ath = 25
    lead = 48
    agap = 2
    acs = 4
    acr = 7
    apol = ''
    await_ = 3
    asl = 4
    spw = 0
    xdel = 0
    rppol = 'sc1'
    wlate = 0
    cfast = 0
    apf = 0
    Lp = 4
    fl = 'qcyb'
    tsl2 = 8
    idrot = 0
    st7 = False
    ghost = 'WC'
    gmix = 0
    ggain = 100
    gtest = 0
    mtest = 0
    mon = 2
    HK = 8
    HV = 8
    Ld = 9
    tha = -10
    thb = -10
    mp1 = 400
    mend = 620
    mdef = 0
    msl = 0
    gsl = 0
    pfx = 0
    pf0 = 13
    pf1 = 20
    pfl = 4
    pfpol = ''
    qtry = '20,24'
    rmap = 0x76543210
    hwid = False
    Lj = 0
    sw1 = 0
    sw2 = 16
    sl1 = 12
    sl2 = 20
    gate = 6
    clr0 = True
    tag = True
    qc = True
    cq = 6
    cqbar = True
    tsleep = 32
    ysleep = 8
    qsleep = 0
    lite = False
    cswz = 0
    cppol = 'sc1'
    noclr = False
    nowq = False
    nowo = False
    stamps = False
    roles = 'AWC'
    kpol = 'nt'
    vpol = 'nt'
    wqpol = ''
    wopol = ''
    U = 8
    thr = 4
    half = False
    NF = 16
    xmix = False
    smix = False
    smix_order = 0x76543210
    noT = True
    cpf = False
    cpf2 = False
    cpf_kb = 17
    cpf2_kb = 12
    ybs = False
    ctl = False
    theta = 200
    msleep = 8
    xthr = -1
    xa = 1
    xb = 7
    slowd = 1
    wthr1 = 0
    clate = False
    wthr0 = 3
    pipe = False
    inc = True
    d4 = False
    idxor = 0
    wox = True
    q2 = True
    chk_it = 5
    fake = False
    gsc = 'sc1'
    hyb = True
    NS = 9
    twop = False
    afirst = False
    qacq = False
    smart = False
    late = 6
    step = False
    gsleep = 4
    brot = 5
    hrot2 = 0
    jrot = 2
    phi = 23
    ilv = False
    Lv = False
    Lpat = '+-'
    hrot = 0
    wthr = 3
    cthr = 4
    cspread = False
    aend = False
    ring = True
    L1 = 4
    L2 = 8
    N1 = 99
    dyn = False
    wstop = 0
    cstop = 0
    nowait = False
    psleep = 2
    spin = 16
    loopst = False
    qmode = 'red'
    early = 4
    rot = True
    qbar = True
    wo_stag = 1
    bpol = 'nt'
    cpol = 'nt'
    fine = False
    span = False
    swapb = False
    wo_iter = 0

def srd(a, d, ptr, off_s=None, off_hi=None, nrec=None, nrec_s=None):
    if off_s is None:
        a(f's_mov_b32 s{d}, s{ptr}')
        a(f's_and_b32 s{d+1}, s{ptr+1}, 0xffff')
    else:
        a(f's_add_u32 s{d}, s{ptr}, s{off_s}')
        a(f's_addc_u32 s{d+1}, s{ptr+1}, {("s%d" % off_hi) if off_hi is not None else 0}')
        a(f's_and_b32 s{d+1}, s{d+1}, 0xffff')
    if nrec_s is not None: a(f's_mov_b32 s{d+2}, s{nrec_s}')
    else: a(f's_mov_b32 s{d+2}, {nrec:#x}')
    a(f's_mov_b32 s{d+3}, 0x20000')

def stamp(a, cfg, idx, waited=False):
    if cfg.lite and idx == 0: a('s_memrealtime s[96:97]')
    if not cfg.stamps: return
    a('s_memrealtime s[90:91]')
    a(f's_lshl_b32 s92, s2, 3\ns_add_u32 s92, s92, s{S_W}\ns_lshl_b32 s92, s92, 6')
    a(f's_add_u32 s92, s92, {WS_STAMP + idx*8:#x}')
    a('s_waitcnt lgkmcnt(0)')
    a('v_mov_b32 v250, s92\nv_mov_b32 v252, s90\nv_mov_b32 v253, s91')
    a('s_mov_b64 s[94:95], exec\ns_mov_b64 exec, 1')
    a(f'global_store_dwordx2 v250, v[252:253], s[{P_WS}:{P_WS+1}] nt')
    a('s_mov_b64 exec, s[94:95]')
stamp.n = 0
def ist(a, cfg, i):
    if not cfg.ist: return
    if i >= 0:
        a(f's_memrealtime s[{90+2*i}:{91+2*i}]')
        return
    a(f's_lshl_b32 s62, s2, 3\ns_add_u32 s62, s62, s{S_W}\ns_lshl_b32 s62, s62, 6\ns_add_u32 s62, s62, {WS_STAMP:#x}')
    a('s_memrealtime s[64:65]\ns_waitcnt lgkmcnt(0)')
    a('v_mov_b32 v250, s62')
    for k in range(12): a(f'v_mov_b32 v{200+k}, s{90+k}')
    a('v_mov_b32 v212, s64\nv_mov_b32 v213, s65')
    a('s_mov_b64 exec, 1')
    for k in range(3): a(f'global_store_dwordx4 v250, v[{200+4*k}:{203+4*k}], s[{P_WS}:{P_WS+1}] offset:{16*k} nt')
    a(f'global_store_dwordx2 v250, v[212:213], s[{P_WS}:{P_WS+1}] offset:48 nt')
def lite_end(a, cfg, wave, idx):
    if not cfg.lite: return
    lab = f'L_lite_{stamp.n}'; stamp.n += 1
    a(f's_cmp_lg_u32 s{S_W}, {wave}\ns_cbranch_scc1 {lab}')
    a('s_memrealtime s[90:91]')
    a(f's_lshl_b32 s92, s2, 3\ns_add_u32 s92, s92, s{S_W}\ns_lshl_b32 s92, s92, 6')
    a(f's_add_u32 s92, s92, {WS_STAMP:#x}')
    a('s_waitcnt lgkmcnt(0)')
    a('v_mov_b32 v250, s92\nv_mov_b32 v252, s90\nv_mov_b32 v253, s91\nv_mov_b32 v254, s96\nv_mov_b32 v255, s97')
    a('s_mov_b64 exec, 1')
    a(f'global_store_dwordx2 v250, v[254:255], s[{P_WS}:{P_WS+1}] nt')
    a(f'global_store_dwordx2 v250, v[252:253], s[{P_WS}:{P_WS+1}] offset:{idx*8} nt')
    if cfg.hwid:
        a('s_getreg_b32 s90, hwreg(HW_REG_HW_ID)\ns_getreg_b32 s91, hwreg(HW_REG_XCC_ID)')
        a('v_mov_b32 v246, s90\nv_mov_b32 v247, s91')
        a(f'global_store_dwordx2 v250, v[246:247], s[{P_WS}:{P_WS+1}] offset:64 nt')
    a.label(lab)
def span_mark(a, cfg, end, wave=0):
    if not cfg.span: return
    lab = f'L_span_{stamp.n}'; stamp.n += 1
    a(f's_cmp_lg_u32 s{S_W}, {wave}\ns_cbranch_scc1 {lab}')
    if not end: a(f's_cmp_ge_u32 s2, 8\ns_cbranch_scc1 {lab}')
    a('s_memrealtime s[90:91]')
    a('s_waitcnt lgkmcnt(0)')
    if not end: a('s_not_b32 s90, s90')
    a('v_mov_b32 v252, s90\nv_mov_b32 v250, 0')
    a('s_mov_b64 s[94:95], exec\ns_mov_b64 exec, 1')
    a(f'global_atomic_umax v250, v252, s[{P_DBG}:{P_DBG+1}] offset:{36 if end else 32} sc1')
    a('s_mov_b64 exec, s[94:95]')
    a.label(lab)

V_LANE, V_C, V_G = 1, 2, 3
V_MASK = 4

def common_lane_setup(a, masks=True):
    a(f'v_and_b32 v{V_LANE}, 63, v0')
    a(f'v_and_b32 v{V_C}, 15, v0')
    a(f'v_bfe_u32 v{V_G}, v0, 4, 2')
    if masks: mask_setup(a)

def mask_setup(a, t=8):
    a(f'v_and_b32 v{t}, 1, v0')
    a(f'v_lshlrev_b32 v{t}, 4, v{t}')
    a(f'v_mov_b32 v{t+1}, 0xffff')
    a(f'v_lshlrev_b32 v{t}, v{t}, v{t+1}')
    a(f'v_bfe_u32 v{t+1}, v0, 1, 2')
    for i in range(4):
        a(f'v_cmp_eq_u32 vcc, {i}, v{t+1}')
        a('s_nop 1')
        a(f'v_cndmask_b32 v{V_MASK+i}, 0, v{t}, vcc')

def late_entry(a, cfg, masks=True):
    if not cfg.fs: return
    if masks: mask_setup(a)
    a('s_waitcnt lgkmcnt(0)')
    ist(a, cfg, 1)

def rowcomb(a, cfg, X, Wr, ACC, AOP, TMP, wait_first, after=None):
    for s in range(16):
        sel = '0x01000100' if s % 2 == 0 else '0x03020302'
        t = TMP + (s & 1)
        A = AOP + 4 * (s & 1)
        a(f's_mov_b32 s60, {sel}')
        a(f'v_perm_b32 v{t}, v{X + s//2}, v{X + s//2}, s60')
        for i in range(4):
            a(f'v_and_b32 v{A+i}, v{t}, v{V_MASK+i}')
        n = 15 - s + wait_first + (s if after else 0)
        a(f's_waitcnt vmcnt({min(63, n)})')
        a('s_nop 0')
        c = '0' if s == 0 else vr(ACC, 4)
        a(f'v_mfma_f32_16x16x32_bf16 {vr(ACC,4)}, {vr(A,4)}, {vr(Wr+4*s,4)}, {c}')
        if after: after(s)

def poll(a, cnt_off, target, vt, vz, tag):
    a(f's_mov_b32 s64, 0')
    a.label(f'L_poll_{tag}')
    a(f'global_load_dword v{vt}, v{vz}, s[{P_DBG}:{P_DBG+1}] offset:{cnt_off} sc1')
    a('s_waitcnt vmcnt(0)')
    a(f'v_readfirstlane_b32 s65, v{vt}')
    a('s_add_u32 s64, s64, 1')
    a('s_nop 2')
    a(f's_cmp_ge_u32 s65, {target}\ns_cbranch_scc1 L_done_{tag}')
    a(f's_sleep {CFG.psleep}')
    a(f's_cmp_lt_u32 s64, {1 << CFG.spin}\ns_cbranch_scc1 L_poll_{tag}')
    a.label(f'L_done_{tag}')

def load_tag(a):
    a(f's_load_dword s{S_TAG}, s[{P_WS}:{P_WS+1}], {WS_NONCE:#x}')

def get_tag(a):
    a('s_waitcnt lgkmcnt(0)')
    a(f's_add_u32 s{S_TAG}, s{S_TAG}, {GOLDEN:#x}')

def tag_poll(a, tag, dst, vaddr, srd_, sleep, n=4, shrink=False):
    a('s_mov_b32 s64, 0')
    a.label(f'L_tp_{tag}')
    if n == 4: a(f'buffer_load_dwordx4 {vr(dst,4)}, v{vaddr}, s[{srd_}:{srd_+3}], 0 offen sc1')
    else: a(f'buffer_load_dword v{dst}, v{vaddr}, s[{srd_}:{srd_+3}], 0 offen sc1')
    a('s_waitcnt vmcnt(0)')
    if n == 4:
        a(f'v_cmp_ne_u32 s[62:63], s{S_TAG}, v{dst+1}')
        a(f'v_cmp_ne_u32 vcc, s{S_TAG}, v{dst+3}')
        a('s_add_u32 s64, s64, 1')
        a('s_nop 0')
        a('s_or_b64 vcc, vcc, s[62:63]')
    else:
        a(f'v_cmp_ne_u32 vcc, s{S_TAG}, v{dst}')
        a('s_add_u32 s64, s64, 1')
        a('s_nop 0')
        a('s_or_b64 vcc, vcc, vcc')
    a(f's_cbranch_scc0 L_tp_{tag}_ok')
    if shrink: a('s_mov_b64 exec, vcc')
    if sleep: a(f's_sleep {sleep}')
    a(f's_cmp_lt_u32 s64, {SPIN_LIMIT}\ns_cbranch_scc1 L_tp_{tag}')
    a.label(f'L_tp_{tag}_ok')

def signal(a, cnt_off, vz, vt, tag):
    a('s_waitcnt vmcnt(0)\ns_barrier')
    a(f's_cmp_lg_u32 s{S_W}, 0\ns_cbranch_scc1 L_sig_{tag}')
    a(f'v_mov_b32 v{vt}, 1')
    a('s_mov_b64 exec, 1')
    a(f'global_atomic_add v{vz}, v{vt}, s[{P_DBG}:{P_DBG+1}] offset:{cnt_off} sc1')
    a('s_mov_b64 exec, -1')
    a.label(f'L_sig_{tag}')

def wait_counter(a, cnt_off, target, vt, vz, tag, acquire=False):
    a(f's_cmp_lg_u32 s{S_W}, 0\ns_cbranch_scc1 L_wc_{tag}')
    poll(a, cnt_off, target, vt, vz, tag)
    if acquire:
        a('buffer_inv sc1')
        a('s_waitcnt vmcnt(0)')
    a.label(f'L_wc_{tag}')
    a('s_barrier')

def code_prefetch(a, tag, tmp, dst, first_label, kib):
    a('s_getpc_b64 s[62:63]')
    a.label(f'L_pc_{tag}')
    a(f's_sub_u32 s62, s62, L_pc_{tag}-{first_label}')
    a('s_subb_u32 s63, s63, 0')
    a(f'v_lshlrev_b32 v{tmp}, 4, v{V_LANE}')
    a(f'v_mov_b32 v{tmp+1}, s63')
    a(f'v_add_co_u32 v{tmp}, vcc, s62, v{tmp}')
    a('s_nop 1')
    a(f'v_addc_co_u32 v{tmp+1}, vcc, 0, v{tmp+1}, vcc')
    for k in range(kib):
        a(f'global_load_dwordx4 {vr(dst,4)}, {vr(tmp,2)}, off')
        if k + 1 < kib:
            a(f'v_add_co_u32 v{tmp}, vcc, 0x400, v{tmp}')
            a('s_nop 1')
            a(f'v_addc_co_u32 v{tmp+1}, vcc, 0, v{tmp+1}, vcc')

def code_touch(a, tag, wave, t):
    a(f's_cmp_lg_u32 s{S_W}, {wave}\ns_cbranch_scc1 L_ct_{tag}')
    a('s_getpc_b64 s[62:63]')
    a.label(f'L_pc_{tag}')
    a(f's_sub_u32 s62, s62, L_pc_{tag}-{NAME}_kernel')
    a('s_subb_u32 s63, s63, 0')
    a(f's_lshr_b32 s61, s{S_H}, 3\ns_lshl_b32 s61, s61, 13')
    a(f'v_lshl_add_u32 v{t}, v{V_LANE}, 7, s61')
    a(f'v_min_u32 v{t}, L_exit-{NAME}_kernel, v{t}')
    a(f'v_mov_b32 v{t+1}, s63')
    a(f'v_add_co_u32 v{t}, vcc, s62, v{t}')
    a('s_nop 1')
    a(f'v_addc_co_u32 v{t+1}, vcc, 0, v{t+1}, vcc')
    a(f'global_load_dword v{t+2}, {vr(t,2)}, off')
    a.label(f'L_ct_{tag}')

def xrow_allreduce(a, op, x, tmp, steps=(16, 32)):
    for st in steps:
        a(f'v_mov_b32 v{tmp}, v{x}')
        a.nop(2)
        a(f'v_permlane{st}_swap_b32 v{x}, v{tmp}')
        a.nop(1)
        a(f'{op} v{x}, v{x}, v{tmp}')

def slice_loads(a, srd_, voff, dst, pol, kind, thr=0):
    n = 0
    if kind == 'rows':
        for s_ in range(16):
            if thr: a(f's_waitcnt vmcnt({thr-1})')
            a(f's_mov_b32 s62, {s_*(256 if CFG.fake else 8192)}')
            a(f'buffer_load_dwordx4 {vr(dst+4*s_,4)}, v{voff}, s[{srd_}:{srd_+3}], s62 offen {pol}')
    else:
        for s_ in range(4):
            for cb in range(4):
                if thr: a(f's_waitcnt vmcnt({thr-1})')
                a(f'buffer_load_dwordx4 {vr(dst+16*s_+4*cb,4)}, v{voff}, s[{srd_}:{srd_+3}], 0 offen offset:{s_*1024+cb*256} {pol}')

def rows_voff(a, v):
    a(f'v_lshlrev_b32 v{v}, {12 if CFG.fake else 17}, v{V_G}')
    a(f'v_lshl_add_u32 v{v}, v{V_C}, 4, v{v}')
    a(f's_lshl_b32 s62, s{S_W}, {14 if CFG.fake else 19}')
    if CFG.fake: a(f's_mul_i32 s61, s{S_H}, {131072 - 256}\ns_add_u32 s62, s62, s61')
    a(f'v_add_u32 v{v}, s62, v{v}')
def wo_voff(a, v):
    a(f'v_lshlrev_b32 v{v}, 12, v{V_G}')
    a(f'v_lshl_add_u32 v{v}, v{V_C}, 4, v{v}')
    a(f's_lshl_b32 s62, s{S_W}, 14')
    a(f'v_add_u32 v{v}, s62, v{v}')

def dtile_to_lds(a, D, tmp, base, wstride_sh, bstride_sh, ncb):
    a(f'v_lshrrev_b32 v{tmp}, 1, v{V_G}')
    a(f'v_lshlrev_b32 v{tmp}, {bstride_sh}, v{tmp}')
    a(f'v_lshl_add_u32 v{tmp}, v{V_C}, 5, v{tmp}')
    a(f'v_and_b32 v{tmp+1}, 1, v{V_G}')
    a(f'v_lshl_add_u32 v{tmp}, v{tmp+1}, 4, v{tmp}')
    a(f's_lshl_b32 s63, s{S_W}, {wstride_sh}')
    a(f'v_add_u32 v{tmp}, s63, v{tmp}')
    a.nop(2)
    for cb in range(ncb):
        if cb == ncb - 1: a.nop(6)
        a(f'ds_write_b128 v{tmp}, {vr(D+4*cb,4)} offset:{base + 512*cb}')


def q_reduce(a, D, tmp, L_QP, L_QB, tag):
    dtile_to_lds(a, D, tmp, L_QP, 10, 9, 1)
    a('s_waitcnt lgkmcnt(0)\ns_barrier')
    a(f's_cmp_ge_u32 s{S_W}, 4\ns_cbranch_scc1 L_{tag}_qskip')
    a(f'v_lshlrev_b32 v{tmp+2}, 2, v0')
    for w in range(8):
        a(f'ds_read_b32 v{tmp+4+w}, v{tmp+2} offset:{L_QP + 1024*w}')
    a('s_waitcnt lgkmcnt(0)')
    for w in range(1, 8):
        a(f'v_add_f32 v{tmp+4}, v{tmp+4}, v{tmp+4+w}')
    a(f'v_cvt_pk_bf16_f32 v{tmp+4}, v{tmp+4}, v{tmp+4}')
    a(f'v_lshlrev_b32 v{tmp+2}, 1, v0')
    a(f'ds_write_b16 v{tmp+2}, v{tmp+4} offset:{L_QB}')
    a('s_waitcnt lgkmcnt(0)')
    a.label(f'L_{tag}_qskip')
    a('s_barrier')

def role_A2(a, cfg):
    L_QP, L_QB, L_OB, L_SB, L_YB = 0, 8192, 8704, 12800, 16384
    SRD_K, SRD_V, SRD_W, SRD_X = 40, 44, 48, 52
    S_B, S_W4, S_N, S_SIG, S_IT = 35, 36, 37, 38, 39
    S_WOIT, S_RHO = 56, 57
    S_BIAS = 66
    U = cfg.U
    V_WOFF, V_Q = 9, 10
    V_OC, V_ON = [8, 14], [15, 250 - 1]
    V_K = 16
    V_V = V_K + 4 * U
    V_W = V_V + 4 * U
    V_X = V_W + 64
    V_T = V_X + 8
    V_P = V_T + U
    V_A = V_P + max(U, 4)
    V_ACC = V_A + 4 * max(U, 4)
    V_M, V_L, V_AL, V_MN, V_SC, V_XX, V_CLR, V_ZERO = [V_ACC + 4 + k for k in range(8)]
    V_Y = V_ACC + 12
    V_TMP = V_Y + 16
    V_CADDR, V_GRAB, V_ONE = V_TMP + 12, V_TMP + 13, V_TMP + 14
    V_ST = V_TMP + 12
    assert not (cfg.step and (cfg.dyn or cfg.ilv))
    S_UN = 59
    S_CU = 58
    NU, NWV = 2048 // U, 4 * NA
    dyn = cfg.dyn
    assert V_TMP + 15 <= 249 and V_M % 2 == 0
    V_S = V_K
    starts = [2048 * j // NA for j in range(NA + 1)]
    NIT = -(-max(starts[j+1] - starts[j] for j in range(NA)) // (4 * U))
    STEP = 4 * U * 1024
    L1, L2, N1 = cfg.L1, cfg.L2 or cfg.L1, min(cfg.N1, NIT)
    assert 1 <= L1 <= L2 <= 2 * U
    a.label('L_roleA')
    stamp(a, cfg, 0)
    a(f's_lshr_b32 s{S_B}, s{S_W}, 2')
    a(f's_and_b32 s{S_W4}, s{S_W}, 3')
    L_XA = 49152
    S_BASE = S_RHO
    srd(a, SRD_X, P_AX, nrec=2048)
    a(f's_cmp_ge_u32 s{S_W}, 2\ns_cbranch_scc1 L_A_nox')
    a(f'v_lshlrev_b32 v{V_TMP+2}, 4, v0')
    a(f'buffer_load_dwordx4 {vr(V_X,4)}, v{V_TMP+2}, s[{SRD_X}:{SRD_X+3}], 0 offen')
    a.label('L_A_nox')
    a(f's_lshl_b32 s62, s{S_H}, 8')
    a(f's_sub_u32 s63, {512*8192:#x}, s62')
    srd(a, SRD_W, P_AWQ, off_s=62, nrec_s=63)
    a(f's_mul_i32 s60, s{S_R}, {171 if cfg.rot else 0}\ns_lshr_b32 s60, s60, 3')
    a(f's_lshl_b32 s61, s{S_B}, 6\ns_add_u32 s60, s60, s61\ns_add_u32 s60, s60, s{S_W4}')
    a(f's_and_b32 s{S_BASE}, s60, 127')
    a(f'v_lshlrev_b32 v{V_TMP+1}, 13, v{V_G}')
    a(f'v_lshl_add_u32 v{V_TMP+1}, v{V_C}, 4, v{V_TMP+1}')
    for s in range(16):
        a(f's_add_u32 s62, s{S_BASE}, {4*s}\ns_and_b32 s62, s62, 127\ns_lshl_b32 s62, s62, 15')
        a(f'buffer_load_dwordx4 {vr(V_W+4*s,4)}, v{V_TMP+1}, s[{SRD_W}:{SRD_W+3}], s62 offen {cfg.wqpol}')
    a(f's_cmp_ge_u32 s{S_W}, 2\ns_cbranch_scc1 L_A_nox2')
    a(f'v_lshlrev_b32 v{V_TMP+2}, 4, v{V_LANE}')
    a(f's_lshl_b32 s62, s{S_W}, 11')
    a(f'v_add_u32 v{V_TMP+2}, s62, v{V_TMP+2}')
    a('s_waitcnt vmcnt(16)')
    a(f'ds_write_b128 v{V_TMP+2}, {vr(V_X,4)} offset:{L_XA}')
    a(f'ds_write_b128 v{V_TMP+2}, {vr(V_X,4)} offset:{L_XA + 1024}')
    a('s_waitcnt lgkmcnt(0)')
    a.label('L_A_nox2')
    if dyn:
        a(f's_lshl_b32 s62, s{S_B}, 5\ns_add_u32 s62, s62, s{S_H}')
        a(f's_lshl_b32 s61, s62, 7\ns_add_u32 s61, s61, {WS_CTR:#x}')
        a(f'v_mov_b32 v{V_CADDR}, s61')
        a(f'v_mov_b32 v{V_ONE}, 1')
        a(f's_lshl_b32 s62, s62, 21')
        a(f's_mov_b32 s63, {2 << 20:#x}')
        srd(a, SRD_K, P_AK, off_s=62, nrec_s=63)
        srd(a, SRD_V, P_AV, off_s=62, nrec_s=63)
        a(f's_lshl_b32 s60, s{S_R}, 2\ns_add_u32 s60, s60, s{S_W4}')
        a(f's_mul_i32 s62, s60, {U*1024}')
        a(f'v_lshl_add_u32 v{V_OC[0]}, v{V_LANE}, 4, s62')
        if U > 4: a(f'v_add_u32 v{V_OC[1]}, 0x1000, v{V_OC[0]}')
    elif cfg.ilv:
        UB = 4 * U * 1024
        NFULL = (2048 // (4 * U)) // NA
        REM0 = NFULL * NA * 4 * U
        rst = [REM0 + (2048 - REM0) * j // NA for j in range(NA + 1)]
        assert max(rst[j+1] - rst[j] for j in range(NA)) <= 4 * U and NFULL + 1 == NIT
        a(f's_mov_b32 s60, {rst[0]}\ns_mov_b32 s61, {rst[1]}')
        for j in range(1, NA):
            a(f's_cmp_eq_u32 s{S_R}, {j}')
            a(f's_cselect_b32 s60, {rst[j]}, s60')
            a(f's_cselect_b32 s61, {rst[j+1]}, s61')
        S_LAST = 58
        a(f's_lshl_b32 s{S_LAST}, s60, 10')
        a(f's_sub_u32 s{S_N}, s61, s60')
        a(f's_lshl_b32 s63, s61, 10')
        a(f's_lshl_b32 s62, s{S_B}, 5\ns_add_u32 s62, s62, s{S_H}')
        a(f's_lshl_b32 s62, s62, 21')
        srd(a, SRD_K, P_AK, off_s=62, nrec_s=63)
        srd(a, SRD_V, P_AV, off_s=62, nrec_s=63)
        NR = NFULL * NA
        S_U, S_WOF = 64, 65
        a(f's_mul_i32 s{S_WOF}, s{S_W4}, {U*1024}')
        a(f's_add_u32 s{S_LAST}, s{S_LAST}, s{S_WOF}')
        a(f's_lshl_b32 s62, s{S_B}, 5\ns_add_u32 s62, s62, s{S_H}')
        a(f's_mul_i32 s62, s62, {cfg.phi}')
        a(f's_mul_hi_u32 s61, s62, {-(-(1 << 32) // NR):#x}\ns_mul_i32 s61, s61, {NR}\ns_sub_u32 s62, s62, s61')
        a(f's_add_u32 s{S_U}, s62, s{S_R}')
        def wrap_u():
            a(f's_sub_u32 s61, s{S_U}, {NR}\ns_cmp_ge_u32 s{S_U}, {NR}\ns_cselect_b32 s{S_U}, s61, s{S_U}')
        def unit_off(dst):
            a(f's_mul_i32 s62, s{S_U}, {UB}\ns_add_u32 s62, s62, s{S_WOF}')
            a(f'v_lshl_add_u32 v{dst[0]}, v{V_LANE}, 4, s62')
            if U > 4: a(f'v_add_u32 v{dst[1]}, 0x1000, v{dst[0]}')
        wrap_u(); unit_off(V_OC)
        a(f's_add_u32 s{S_U}, s{S_U}, {NA}')
        wrap_u(); unit_off(V_ON)
    else:
        S_BA, S_BB = 74, 75
        if cfg.twop:
            NH = 5 if U == 8 else 10
            LO = NA * NH * 4 * U
            sb = [LO + (2048 - LO) * j // NA for j in range(NA + 1)]
            a(f's_mov_b32 s60, {sb[0]}\ns_mov_b32 s61, {sb[1]}')
            for j in range(1, NA):
                a(f's_cmp_eq_u32 s{S_R}, {j}')
                a(f's_cselect_b32 s60, {sb[j]}, s60')
                a(f's_cselect_b32 s61, {sb[j+1]}, s61')
            a(f's_sub_u32 s{S_N}, s61, s60\ns_add_u32 s{S_N}, s{S_N}, {NH*4*U}')
            a(f's_mul_i32 s{S_BA}, s{S_R}, {NH*4*U*1024}')
            a(f's_sub_u32 s{S_BB}, s60, {NH*4*U}\ns_lshl_b32 s{S_BB}, s{S_BB}, 10')
            a(f's_lshl_b32 s63, s61, 10')
            a(f's_lshl_b32 s62, s{S_B}, 5\ns_add_u32 s62, s62, s{S_H}')
            a(f's_lshl_b32 s62, s62, 21')
        else:
            a(f's_mov_b32 s60, 0\ns_mov_b32 s61, {starts[1]}')
            for j in range(1, NA):
                a(f's_cmp_eq_u32 s{S_R}, {j}')
                a(f's_cselect_b32 s60, {starts[j]}, s60')
                a(f's_cselect_b32 s61, {starts[j+1]}, s61')
            a(f's_sub_u32 s{S_N}, s61, s60')
            a(f's_lshl_b32 s62, s{S_B}, 5\ns_add_u32 s62, s62, s{S_H}')
            a(f's_lshl_b32 s62, s62, 21')
            a(f's_lshl_b32 s63, s60, 10\ns_add_u32 s62, s62, s63')
            a(f's_lshl_b32 s63, s{S_N}, 10')
        srd(a, SRD_K, P_AK, off_s=62, nrec_s=63)
        srd(a, SRD_V, P_AV, off_s=62, nrec_s=63)
        def part_base():
            if cfg.twop:
                a(f's_cmp_lt_u32 s{S_U}, {NH}\ns_cselect_b32 s61, s{S_BA}, s{S_BB}\ns_add_u32 s62, s62, s61')
        S_U, S_WOF = 64, 65
        a(f's_mul_i32 s{S_WOF}, s{S_W4}, {1024 if cfg.step else U*1024}')
        a(f's_mul_i32 s62, s{S_B}, {cfg.brot}')
        a(f's_mul_i32 s61, s{S_H}, {cfg.hrot2}\ns_add_u32 s62, s62, s61')
        a(f's_mul_i32 s61, s{S_R}, {cfg.jrot}\ns_add_u32 s62, s62, s61')
        a(f's_mul_hi_u32 s61, s62, {-(-(1 << 32) // NIT):#x}\ns_mul_i32 s61, s61, {NIT}\ns_sub_u32 s{S_U}, s62, s61')
        def wrap_u():
            a(f's_sub_u32 s61, s{S_U}, {NIT}\ns_cmp_ge_u32 s{S_U}, {NIT}\ns_cselect_b32 s{S_U}, s61, s{S_U}')
        def unit_off(dst):
            a(f's_mul_i32 s62, s{S_U}, {STEP}\ns_add_u32 s62, s62, s{S_WOF}')
            part_base()
            a(f'v_lshl_add_u32 v{dst[0]}, v{V_LANE}, 4, s62')
            if U > 4: a(f'v_add_u32 v{dst[1]}, 0x1000, v{dst[0]}')
        unit_off(V_OC)
        a(f's_mul_i32 s{S_CU}, s{S_U}, {4*U}')
        a(f's_add_u32 s{S_U}, s{S_U}, 1')
        wrap_u(); unit_off(V_ON)
    tog = [0]
    def slot_load(m):
        offs = V_OC if m < 2 * U else V_ON
        m %= 2 * U
        isv, i = m >= U, m % U
        dst = (V_V if isv else V_K) + 4 * i
        srd_ = SRD_V if isv else SRD_K
        pol = cfg.vpol if isv else cfg.kpol
        if cfg.step:
            if i == 0:
                a(f'buffer_load_dwordx4 {vr(dst,4)}, v{offs[0]}, s[{srd_}:{srd_+3}], 0 offen {pol}')
            else:
                t = V_ST + tog[0]; tog[0] ^= 1
                a(f'v_add_u32 v{t}, {4096*i}, v{offs[0]}')
                a(f'buffer_load_dwordx4 {vr(dst,4)}, v{t}, s[{srd_}:{srd_+3}], 0 offen {pol}')
        else:
            a(f'buffer_load_dwordx4 {vr(dst,4)}, v{offs[i // 4]}, s[{srd_}:{srd_+3}], 0 offen offset:{1024*(i%4)} {pol}')
    a(f'v_mov_b32 v{V_M}, 0xf149f2ca')
    a(f'v_mov_b32 v{V_L}, 0')
    for k in range(4): a(f'v_mov_b32 v{V_ACC+k}, 0')
    a(f'v_mov_b32 v{V_SC}, {f2u(SCALE):#x}')
    a(f'v_mov_b32 v{V_ZERO}, 0')
    if cfg.fine: stamp(a, cfg, 4)
    a('s_barrier')
    if cfg.fine: stamp(a, cfg, 5)
    ne = min(cfg.early, L1)
    XV = V_V
    a(f'v_lshrrev_b32 v{V_TMP}, 3, v{V_C}')
    a(f'v_lshlrev_b32 v{V_TMP}, 11, v{V_TMP}')
    a(f'v_lshl_add_u32 v{V_TMP}, v{V_G}, 1, v{V_TMP}')
    a(f's_lshl_b32 s62, s{S_BASE}, 3')
    a(f'v_add_u32 v{V_TMP}, s62, v{V_TMP}')
    for s in range(16):
        a(f'ds_read_u16 v{XV+s}, v{V_TMP} offset:{L_XA + 32*s}')
    nkv = 0
    nz = 0
    if dyn:
        a(f'global_load_dword v{V_GRAB}, v{V_ZERO}, s[{P_DBG}:{P_DBG+1}] offset:{CNT_Z} sc1'); nz = 1
    for s in range(16):
        t = V_TMP + 2 + (s & 1); A = V_A + 4 * (s & 1)
        a(f's_waitcnt lgkmcnt({15 - s})')
        a(f'v_lshl_or_b32 v{t}, v{XV+s}, 16, v{XV+s}')
        for i in range(4): a(f'v_and_b32 v{A+i}, v{t}, v{V_MASK+i}')
        a(f's_waitcnt vmcnt({15 - s + nkv + nz})')
        a('s_nop 0')
        c = '0' if s == 0 else vr(V_Y, 4)
        a(f'v_mfma_f32_16x16x32_bf16 {vr(V_Y,4)}, {vr(A,4)}, {vr(V_W+4*s,4)}, {c}')
        if s >= 16 - ne: slot_load(nkv); nkv += 1
    assert ne <= U
    if cfg.fine: stamp(a, cfg, 6)
    q_reduce(a, V_Y, V_TMP, L_QP, L_QB, 'A')
    for m in range(nkv, L1): slot_load(m)
    a(f'v_lshlrev_b32 v{V_TMP+2}, 4, v{V_C}')
    a(f's_lshl_b32 s62, s{S_B}, 8')
    a(f'v_add_u32 v{V_TMP+2}, s62, v{V_TMP+2}')
    a(f'ds_read_b128 {vr(V_Q,4)}, v{V_TMP+2} offset:{L_QB}')
    a(f's_lshl_b32 s62, s{S_H}, 17')
    a(f's_mov_b32 s63, {128*1024:#x}')
    srd(a, SRD_W, P_AWO, off_s=62, nrec_s=63)
    wo_voff(a, V_WOFF)
    a(f's_mul_i32 s{S_SIG}, s{S_W4}, {1 if cfg.step else U}')
    a(f's_mov_b32 s{S_IT}, 0')
    a(f's_mul_i32 s{S_WOIT}, s{S_R}, {cfg.wo_stag}\ns_add_u32 s{S_WOIT}, s{S_WOIT}, {cfg.wo_iter}')
    a('s_waitcnt lgkmcnt(0)')
    stamp(a, cfg, 1)
    if dyn:
        assert L1 == L2 and L1 < U
        a(f's_waitcnt vmcnt({L1})')
        a(f'v_readfirstlane_b32 s62, v{V_GRAB}')
        a('s_nop 3')
        a('s_cmp_ge_u32 s62, 32\ns_cbranch_scc1 L_A_z_ok')
        poll(a, CNT_Z, 32, V_GRAB, V_ZERO, 'A_z')
        a.label('L_A_z_ok')
    else:
        assert cfg.wo_iter + cfg.wo_stag * (NA - 1) < NIT - 1
    def body(L, tag, last_it):
        LK = [L] * (2 * U)
        if cfg.Lv:
            for n in range(2 * U):
                if cfg.Lpat[n % len(cfg.Lpat)] == '-' and n != 2 * U - 1: LK[n] = L - 1
        def issue(n):
            prev = (n - 1 + LK[n - 1]) if n > 0 else (L - 1)
            for m in range(prev + 1, n + LK[n] + 1): slot_load(m)
        def waitn(n):
            v = (LK[n - 1] if n > 0 else L) - 1
            if dyn and n < L: v += 1
            a(f's_waitcnt vmcnt({v})')
        N0 = 2 * U - L
        def next_unit():
            a(f'v_readfirstlane_b32 s{S_UN}, v{V_GRAB}')
            a('s_nop 3')
            a(f's_add_u32 s{S_UN}, s{S_UN}, {NWV}')
            a(f's_mul_i32 s62, s{S_UN}, {U*1024}')
            a(f'v_lshl_add_u32 v{V_ON[0]}, v{V_LANE}, 4, s62')
            if U > 4: a(f'v_add_u32 v{V_ON[1]}, 0x1000, v{V_ON[0]}')
            a(f's_cmp_lt_u32 s{S_UN}, {NU}\ns_cbranch_scc1 L_A_more{tag}')
            a(f'global_load_dword v{V_CLR}, v{V_ZERO}, s[{P_DBG}:{P_DBG+1}] offset:{CNT_Q} sc1')
            a.label(f'L_A_more{tag}')
        a('.p2align 6')
        a.label(f'L_A_loop{tag}')
        a(f's_cmp_lg_u32 s{S_IT}, s{S_WOIT}\ns_cbranch_scc1 L_A_nowo{tag}')
        slice_loads(a, SRD_W, V_WOFF, V_W, cfg.wopol, 'wo')
        if not dyn: a(f'global_load_dword v{V_CLR}, v{V_ZERO}, s[{P_DBG}:{P_DBG+1}] offset:{CNT_Q} sc1')
        a.label(f'L_A_nowo{tag}')
        if dyn:
            a('s_mov_b64 exec, 1')
            a(f'global_atomic_add v{V_GRAB}, v{V_CADDR}, v{V_ONE}, s[{P_WS}:{P_WS+1}] sc0 sc1')
            a('s_mov_b64 exec, -1')
        if cfg.loopst:
            for n, it in enumerate((2, 4, 6, 8)):
                a(f's_cmp_lg_u32 s{S_IT}, {it}\ns_cbranch_scc1 L_A_ls{n}{tag}')
                stamp(a, cfg, 4 + n)
                a.label(f'L_A_ls{n}{tag}')
        if cfg.ilv and not dyn:
            a(f's_cmp_eq_u32 s{S_IT}, {NIT-1}')
            a(f's_cselect_b32 s63, s{S_N}, {4*U}')
            for i in range(U):
                a(f's_add_u32 s62, s{S_SIG}, {i}')
                a(f's_cmp_lt_u32 s62, s63')
                a(f's_cselect_b32 s{S_BIAS+i}, 0, 0xff800000')
        elif not dyn:
            a(f's_add_u32 s63, s{S_SIG}, s{S_CU}')
            for i in range(U):
                a(f's_add_u32 s62, s63, {4*i if cfg.step else i}')
                a(f's_cmp_lt_u32 s62, s{S_N}')
                a(f's_cselect_b32 s{S_BIAS+i}, 0, 0xff800000')
        for i in range(U):
            waitn(i)
            a(f'v_dot2_f32_bf16 v{V_T+i}, v{V_K+4*i}, v{V_Q}, 0')
            for k in range(1, 4):
                a(f'v_dot2_f32_bf16 v{V_T+i}, v{V_K+4*i+k}, v{V_Q+k}, v{V_T+i}')
            issue(i)
        a.nop(2)
        for st in (8, 4, 2, 1):
            for i in range(U):
                a(f'v_add_f32_dpp v{V_T+i}, v{V_T+i}, v{V_T+i} row_ror:{st} row_mask:0xf bank_mask:0xf')
        for i in range(U):
            if dyn: a(f'v_mul_f32 v{V_T+i}, v{V_T+i}, v{V_SC}')
            else: a(f'v_fma_f32 v{V_T+i}, v{V_T+i}, v{V_SC}, s{S_BIAS+i}')
        a(f'v_max3_f32 v{V_XX}, v{V_T}, v{V_T+1}, v{V_T+2}')
        i = 3
        while i < U:
            if i + 1 < U: a(f'v_max3_f32 v{V_XX}, v{V_XX}, v{V_T+i}, v{V_T+i+1}'); i += 2
            else: a(f'v_max_f32 v{V_XX}, v{V_XX}, v{V_T+i}'); i += 1
        a.nop(2)
        a(f'v_max_f32_dpp v{V_XX}, v{V_XX}, v{V_XX} row_bcast:15 row_mask:0xa bank_mask:0xf')
        a.nop(2)
        a(f'v_max_f32_dpp v{V_XX}, v{V_XX}, v{V_XX} row_bcast:31 row_mask:0xc bank_mask:0xf')
        a.nop(1)
        a(f'v_readlane_b32 s62, v{V_XX}, 63')
        a.nop(2)
        a(f'v_max_f32 v{V_MN}, s62, v{V_M}')
        a(f'v_sub_f32 v{V_AL}, v{V_M}, v{V_MN}')
        for i in range(U):
            a(f'v_sub_f32 v{V_T+i}, v{V_T+i}, v{V_MN}')
        a(f'v_exp_f32 v{V_AL}, v{V_AL}')
        for i in range(U):
            a(f'v_exp_f32 v{V_T+i}, v{V_T+i}')
        a(f'v_mov_b32 v{V_M}, v{V_MN}')
        for k in range(4):
            a(f'v_mul_f32 v{V_ACC+k}, v{V_ACC+k}, v{V_AL}')
        for i in range(U):
            a(f'v_cvt_pk_bf16_f32 v{V_P+i}, v{V_T+i}, v{V_T+i}')
        a(f'v_mul_f32 v{V_L}, v{V_L}, v{V_AL}')
        for i in range(0, U, 2):
            a(f'v_add_f32 v{V_T+i}, v{V_T+i}, v{V_T+i+1}')
        for i in range(U):
            for k in range(4):
                a(f'v_and_b32 v{V_A+4*i+k}, v{V_P+i}, v{V_MASK+k}')
        for i in range(0, U, 2):
            a(f'v_add_f32 v{V_L}, v{V_L}, v{V_T+i}')
        for i in range(U):
            waitn(U + i)
            a(f'v_mfma_f32_16x16x32_bf16 {vr(V_ACC,4)}, {vr(V_A+4*i,4)}, {vr(V_V+4*i,4)}, {vr(V_ACC,4)}')
            if dyn and U + i == N0: next_unit()
            issue(U + i)
        for k in range(2 if U > 4 else 1):
            a(f'v_mov_b32 v{V_OC[k]}, v{V_ON[k]}')
        a(f's_add_u32 s{S_IT}, s{S_IT}, 1')
        if cfg.ilv and not dyn:
            a(f's_add_u32 s{S_U}, s{S_U}, {NA}')
            wrap_u()
            a(f's_mul_i32 s62, s{S_U}, {UB}\ns_add_u32 s62, s62, s{S_WOF}')
            a(f's_cmp_eq_u32 s{S_IT}, {NIT-2}\ns_cselect_b32 s62, s58, s62')
            a(f's_cmp_eq_u32 s{S_IT}, {NIT-1}\ns_cselect_b32 s62, {4 << 20:#x}, s62')
            a(f'v_lshl_add_u32 v{V_ON[0]}, v{V_LANE}, 4, s62')
            if U > 4: a(f'v_add_u32 v{V_ON[1]}, 0x1000, v{V_ON[0]}')
            a(f's_cmp_lt_u32 s{S_IT}, {last_it}')
        elif dyn:
            a(f's_cmp_lt_u32 s{S_UN}, {NU}')
        else:
            a(f's_mul_i32 s{S_CU}, s{S_U}, {4*U}')
            a(f's_add_u32 s{S_U}, s{S_U}, 1')
            wrap_u()
            a(f's_mul_i32 s62, s{S_U}, {STEP}\ns_add_u32 s62, s62, s{S_WOF}')
            part_base()
            a(f's_cmp_eq_u32 s{S_IT}, {NIT-1}\ns_cselect_b32 s62, {4 << 20:#x}, s62')
            a(f'v_lshl_add_u32 v{V_ON[0]}, v{V_LANE}, 4, s62')
            if U > 4: a(f'v_add_u32 v{V_ON[1]}, 0x1000, v{V_ON[0]}')
            a(f's_cmp_lt_u32 s{S_IT}, {last_it}')
        a(f's_cbranch_scc1 L_A_loop{tag}')
    if L2 != L1 and N1 < NIT:
        body(L1, 'a', N1)
        for m in range(L1, L2): slot_load(m)
        body(L2, 'b', NIT)
    else:
        body(L1, 'a', NIT)
    if dyn:
        a(f's_cmp_gt_u32 s{S_IT}, s{S_WOIT}\ns_cbranch_scc1 L_A_wo_ok')
        slice_loads(a, SRD_W, V_WOFF, V_W, cfg.wopol, 'wo')
        a.label('L_A_wo_ok')
    a('s_waitcnt vmcnt(0)')
    stamp(a, cfg, 2)
    role_A_tail(a, cfg, locals())

def role_A3(a, cfg):
    L_QP, L_QB, L_OB, L_SB, L_YB = 0, 8192, 8704, 12800, 16384
    SRD_K, SRD_V, SRD_W, SRD_X = 40, 44, 48, 52
    S_B, S_W4, S_N, S_SIG, S_IT = 35, 36, 37, 38, 39
    S_WOIT, S_RHO = 56, 57
    S_BIAS = 66
    U = cfg.U
    V_WOFF, V_Q = 9, 10
    V_OC, V_ON = [8, 14], [15, 250 - 1]
    V_K = 16
    V_V = V_K + 4 * U
    V_W = V_V + 4 * U
    V_X = V_W + 64
    V_T = V_X + 8
    V_P = V_T + U
    V_A = V_P + max(U, 4)
    V_ACC = V_A + 4 * max(U, 4)
    V_M, V_L, V_AL, V_MN, V_SC, V_XX, V_CLR, V_ZERO = [V_ACC + 4 + k for k in range(8)]
    V_Y = V_ACC + 12
    V_TMP = V_Y + 16
    V_CADDR, V_GRAB, V_ONE = V_TMP + 12, V_TMP + 13, V_TMP + 14
    V_ST = V_TMP + 12
    assert not (cfg.step and (cfg.dyn or cfg.ilv))
    S_UN = 59
    NOCLR = True
    S_CU = 58
    NU, NWV = 2048 // U, 4 * NA
    dyn = True
    assert V_TMP + 15 <= 249 and V_M % 2 == 0
    V_S = V_K
    starts = [2048 * j // NA for j in range(NA + 1)]
    NIT = -(-max(starts[j+1] - starts[j] for j in range(NA)) // (4 * U))
    STEP = 4 * U * 1024
    L1, L2, N1 = cfg.L1, cfg.L2 or cfg.L1, min(cfg.N1, NIT)
    assert 1 <= L1 <= L2 <= 2 * U
    a.label('L_roleA')
    stamp(a, cfg, 0)
    a(f's_lshr_b32 s{S_B}, s{S_W}, 2')
    a(f's_and_b32 s{S_W4}, s{S_W}, 3')
    L_XA = 49152
    S_BASE = S_RHO
    srd(a, SRD_X, P_AX, nrec=2048)
    a(f's_cmp_ge_u32 s{S_W}, 2\ns_cbranch_scc1 L_A_nox')
    a(f'v_lshlrev_b32 v{V_TMP+2}, 4, v0')
    a(f'buffer_load_dwordx4 {vr(V_X,4)}, v{V_TMP+2}, s[{SRD_X}:{SRD_X+3}], 0 offen')
    a.label('L_A_nox')
    a(f's_lshl_b32 s62, s{S_H}, 8')
    a(f's_sub_u32 s63, {512*8192:#x}, s62')
    srd(a, SRD_W, P_AWQ, off_s=62, nrec_s=63)
    a(f's_mul_i32 s60, s{S_R}, {171 if cfg.rot else 0}\ns_lshr_b32 s60, s60, 3')
    a(f's_lshl_b32 s61, s{S_B}, 6\ns_add_u32 s60, s60, s61\ns_add_u32 s60, s60, s{S_W4}')
    a(f's_and_b32 s{S_BASE}, s60, 127')
    a(f'v_lshlrev_b32 v{V_TMP+1}, 13, v{V_G}')
    a(f'v_lshl_add_u32 v{V_TMP+1}, v{V_C}, 4, v{V_TMP+1}')
    for s in range(16):
        a(f's_add_u32 s62, s{S_BASE}, {4*s}\ns_and_b32 s62, s62, 127\ns_lshl_b32 s62, s62, 15')
        a(f'buffer_load_dwordx4 {vr(V_W+4*s,4)}, v{V_TMP+1}, s[{SRD_W}:{SRD_W+3}], s62 offen {cfg.wqpol}')
    a(f's_cmp_ge_u32 s{S_W}, 2\ns_cbranch_scc1 L_A_nox2')
    a(f'v_lshlrev_b32 v{V_TMP+2}, 4, v{V_LANE}')
    a(f's_lshl_b32 s62, s{S_W}, 11')
    a(f'v_add_u32 v{V_TMP+2}, s62, v{V_TMP+2}')
    a('s_waitcnt vmcnt(16)')
    a(f'ds_write_b128 v{V_TMP+2}, {vr(V_X,4)} offset:{L_XA}')
    a(f'ds_write_b128 v{V_TMP+2}, {vr(V_X,4)} offset:{L_XA + 1024}')
    a('s_waitcnt lgkmcnt(0)')
    a.label('L_A_nox2')
    NS = cfg.NS
    assert U == 8 and not cfg.step and L1 <= U and L2 <= U and cfg.wo_iter + cfg.wo_stag * (NA - 1) < NS - 1
    a(f's_lshl_b32 s62, s{S_B}, 5\ns_add_u32 s62, s62, s{S_H}')
    a(f's_lshl_b32 s61, s62, 7\ns_add_u32 s61, s61, {WS_CTR:#x}')
    a(f'v_mov_b32 v{V_CADDR}, s61')
    a(f'v_mov_b32 v{V_ONE}, 1')
    a(f's_lshl_b32 s62, s62, 21')
    a(f's_mov_b32 s63, {2 << 20:#x}')
    srd(a, SRD_K, P_AK, off_s=62, nrec_s=63)
    srd(a, SRD_V, P_AV, off_s=62, nrec_s=63)
    S_U, S_WOF = 76, 77
    a(f's_mul_i32 s{S_WOF}, s{S_W4}, {U*1024}')
    a(f's_mul_i32 s61, s{S_R}, {NS*STEP}\ns_add_u32 s{S_WOF}, s{S_WOF}, s61')
    a(f's_mul_i32 s62, s{S_B}, {cfg.brot}')
    a(f's_mul_i32 s61, s{S_R}, {cfg.jrot}\ns_add_u32 s62, s62, s61')
    a(f's_mul_hi_u32 s61, s62, {-(-(1 << 32) // NS):#x}\ns_mul_i32 s61, s61, {NS}\ns_sub_u32 s{S_U}, s62, s61')
    def wrap_u():
        a(f's_sub_u32 s61, s{S_U}, {NS}\ns_cmp_ge_u32 s{S_U}, {NS}\ns_cselect_b32 s{S_U}, s61, s{S_U}')
    def unit_off(dst):
        a(f's_mul_i32 s62, s{S_U}, {STEP}\ns_add_u32 s62, s62, s{S_WOF}')
        a(f'v_lshl_add_u32 v{dst[0]}, v{V_LANE}, 4, s62')
        a(f'v_add_u32 v{dst[1]}, 0x1000, v{dst[0]}')
    unit_off(V_OC)
    a(f's_add_u32 s{S_U}, s{S_U}, 1')
    wrap_u(); unit_off(V_ON)
    tog = [0]
    def slot_load(m):
        offs = V_OC if m < 2 * U else V_ON
        m %= 2 * U
        isv, i = m >= U, m % U
        dst = (V_V if isv else V_K) + 4 * i
        srd_ = SRD_V if isv else SRD_K
        pol = cfg.vpol if isv else cfg.kpol
        if cfg.step:
            if i == 0:
                a(f'buffer_load_dwordx4 {vr(dst,4)}, v{offs[0]}, s[{srd_}:{srd_+3}], 0 offen {pol}')
            else:
                t = V_ST + tog[0]; tog[0] ^= 1
                a(f'v_add_u32 v{t}, {4096*i}, v{offs[0]}')
                a(f'buffer_load_dwordx4 {vr(dst,4)}, v{t}, s[{srd_}:{srd_+3}], 0 offen {pol}')
        else:
            a(f'buffer_load_dwordx4 {vr(dst,4)}, v{offs[i // 4]}, s[{srd_}:{srd_+3}], 0 offen offset:{1024*(i%4)} {pol}')
    a(f'v_mov_b32 v{V_M}, 0xff800000')
    a(f'v_mov_b32 v{V_L}, 0')
    for k in range(4): a(f'v_mov_b32 v{V_ACC+k}, 0')
    a(f'v_mov_b32 v{V_SC}, {f2u(SCALE):#x}')
    a(f'v_mov_b32 v{V_ZERO}, 0')
    a(f'ds_write_b32 v{V_ZERO}, v{V_ZERO} offset:12928')
    if cfg.ctl: a(f'ds_write_b32 v{V_ZERO}, v{V_ZERO} offset:12932')
    a('s_waitcnt lgkmcnt(0)')
    if cfg.fine: stamp(a, cfg, 4)
    a('s_barrier')
    if cfg.fine: stamp(a, cfg, 5)
    ne = min(cfg.early, L1)
    XV = V_V
    a(f'v_lshrrev_b32 v{V_TMP}, 3, v{V_C}')
    a(f'v_lshlrev_b32 v{V_TMP}, 11, v{V_TMP}')
    a(f'v_lshl_add_u32 v{V_TMP}, v{V_G}, 1, v{V_TMP}')
    a(f's_lshl_b32 s62, s{S_BASE}, 3')
    a(f'v_add_u32 v{V_TMP}, s62, v{V_TMP}')
    for s in range(16):
        a(f'ds_read_u16 v{XV+s}, v{V_TMP} offset:{L_XA + 32*s}')
    nkv = 0
    nz = 0
    if cfg.q2:
        AO = [V_A + 4 * s for s in range(8)] + [V_V + 16 + 4 * s for s in range(4)] + [V_T + 4 * s for s in range(4)]
        assert V_P == V_T + 8
        for s in range(16):
            t = V_TMP + 2 + (s & 1)
            a(f's_waitcnt lgkmcnt({15 - s})')
            a(f'v_lshl_or_b32 v{t}, v{XV+s}, 16, v{XV+s}')
            for i in range(4): a(f'v_and_b32 v{AO[s]+i}, v{t}, v{V_MASK+i}')
        a('s_nop 0')
        for s in range(16):
            a(f's_waitcnt vmcnt({15 - s + nkv + nz})')
            acc = V_Y + 4 * (s & 1)
            c = '0' if s < 2 else vr(acc, 4)
            a(f'v_mfma_f32_16x16x32_bf16 {vr(acc,4)}, {vr(AO[s],4)}, {vr(V_W+4*s,4)}, {c}')
            if s >= 16 - ne: slot_load(nkv); nkv += 1
        a.nop(8)
        for k in range(4): a(f'v_add_f32 v{V_Y+k}, v{V_Y+k}, v{V_Y+4+k}')
    else:
      for s in range(16):
        t = V_TMP + 2 + (s & 1); A = V_A + 4 * (s & 1)
        a(f's_waitcnt lgkmcnt({15 - s})')
        a(f'v_lshl_or_b32 v{t}, v{XV+s}, 16, v{XV+s}')
        for i in range(4): a(f'v_and_b32 v{A+i}, v{t}, v{V_MASK+i}')
        a(f's_waitcnt vmcnt({15 - s + nkv + nz})')
        a('s_nop 0')
        c = '0' if s == 0 else vr(V_Y, 4)
        a(f'v_mfma_f32_16x16x32_bf16 {vr(V_Y,4)}, {vr(A,4)}, {vr(V_W+4*s,4)}, {c}')
        if s >= 16 - ne: slot_load(nkv); nkv += 1
    assert ne <= U
    if cfg.fine: stamp(a, cfg, 6)
    q_reduce(a, V_Y, V_TMP, L_QP, L_QB, 'A')
    for m in range(nkv, L1): slot_load(m)
    a(f'v_lshlrev_b32 v{V_TMP+2}, 4, v{V_C}')
    a(f's_lshl_b32 s62, s{S_B}, 8')
    a(f'v_add_u32 v{V_TMP+2}, s62, v{V_TMP+2}')
    a(f'ds_read_b128 {vr(V_Q,4)}, v{V_TMP+2} offset:{L_QB}')
    a(f's_lshl_b32 s62, s{S_H}, 17')
    a(f's_mov_b32 s63, {128*1024:#x}')
    srd(a, SRD_W, P_AWO, off_s=62, nrec_s=63)
    wo_voff(a, V_WOFF)
    a(f's_mul_i32 s{S_SIG}, s{S_W4}, {1 if cfg.step else U}')
    a(f's_mov_b32 s{S_IT}, 0')
    a(f's_mul_i32 s{S_WOIT}, s{S_R}, {cfg.wo_stag}\ns_add_u32 s{S_WOIT}, s{S_WOIT}, {cfg.wo_iter}')
    a('s_waitcnt lgkmcnt(0)')
    stamp(a, cfg, 1)
    L_FLAG = 12928
    L_MODE = 12932
    V_PADR, V_MADR, V_MODE, V_PRG = V_TMP + 15, V_TMP + 16, V_TMP + 17, V_TMP + 18
    S_SLOW, S_FLG = 79, 80
    if cfg.ctl:
        assert V_PRG < 249 and cfg.xthr < 0
        a(f's_lshl_b32 s62, s{S_H}, 3\ns_add_u32 s62, s62, s{S_R}\ns_lshl_b32 s62, s62, 7\ns_add_u32 s62, s62, {WS_PROG:#x}')
        a(f'v_mov_b32 v{V_PADR}, s62')
        a(f's_lshl_b32 s62, s{S_H}, 7\ns_add_u32 s62, s62, {WS_MEAN:#x}')
        a(f'v_mov_b32 v{V_MADR}, s62')
        a(f'v_mov_b32 v{V_MODE}, 0')
        a(f's_mov_b32 s{S_SLOW}, 0\ns_mov_b32 s{S_FLG}, 0')
    assert cfg.chk_it + 1 < NS - 1
    S_BHC, S_BHN = 81, 82
    def softmax(U, hb=False):
        a.nop(2)
        for st in (8, 4, 2, 1):
            for i in range(U):
                a(f'v_add_f32_dpp v{V_T+i}, v{V_T+i}, v{V_T+i} row_ror:{st} row_mask:0xf bank_mask:0xf')
        for i in range(U):
            if hb and i >= 4: a(f'v_fma_f32 v{V_T+i}, v{V_T+i}, v{V_SC}, s{S_BHC}')
            else: a(f'v_mul_f32 v{V_T+i}, v{V_T+i}, v{V_SC}')
        a(f'v_max3_f32 v{V_XX}, v{V_T}, v{V_T+1}, v{V_T+2}')
        i = 3
        while i < U:
            if i + 1 < U: a(f'v_max3_f32 v{V_XX}, v{V_XX}, v{V_T+i}, v{V_T+i+1}'); i += 2
            else: a(f'v_max_f32 v{V_XX}, v{V_XX}, v{V_T+i}'); i += 1
        a.nop(2)
        a(f'v_max_f32_dpp v{V_XX}, v{V_XX}, v{V_XX} row_bcast:15 row_mask:0xa bank_mask:0xf')
        a.nop(2)
        a(f'v_max_f32_dpp v{V_XX}, v{V_XX}, v{V_XX} row_bcast:31 row_mask:0xc bank_mask:0xf')
        a.nop(1)
        a(f'v_readlane_b32 s62, v{V_XX}, 63')
        a.nop(2)
        a(f'v_max_f32 v{V_MN}, s62, v{V_M}')
        a(f'v_sub_f32 v{V_AL}, v{V_M}, v{V_MN}')
        for i in range(U):
            a(f'v_sub_f32 v{V_T+i}, v{V_T+i}, v{V_MN}')
        a(f'v_exp_f32 v{V_AL}, v{V_AL}')
        for i in range(U):
            a(f'v_exp_f32 v{V_T+i}, v{V_T+i}')
        a(f'v_mov_b32 v{V_M}, v{V_MN}')
        for k in range(4):
            a(f'v_mul_f32 v{V_ACC+k}, v{V_ACC+k}, v{V_AL}')
        for i in range(U):
            a(f'v_cvt_pk_bf16_f32 v{V_P+i}, v{V_T+i}, v{V_T+i}')
        a(f'v_mul_f32 v{V_L}, v{V_L}, v{V_AL}')
        for i in range(0, U, 2):
            a(f'v_add_f32 v{V_T+i}, v{V_T+i}, v{V_T+i+1}')
        for i in range(U):
            for k in range(4):
                a(f'v_and_b32 v{V_A+4*i+k}, v{V_P+i}, v{V_MASK+k}')
        for i in range(0, U, 2):
            a(f'v_add_f32 v{V_L}, v{V_L}, v{V_T+i}')
    HF = 2 if cfg.d4 else 1
    def flag_wait():
        a('s_mov_b32 s64, 0')
        a.label('L_A_flag')
        a(f'ds_read_b32 v{V_CLR}, v{V_ZERO} offset:{L_FLAG}')
        a('s_waitcnt lgkmcnt(0)')
        a(f'v_readfirstlane_b32 s62, v{V_CLR}')
        a('s_add_u32 s64, s64, 1')
        a('s_nop 2')
        a('s_cmp_lg_u32 s62, 0\ns_cbranch_scc1 L_A_flag_ok')
        a('s_sleep 8')
        a(f's_cmp_lt_u32 s64, {1 << 20}\ns_cbranch_scc1 L_A_flag')
        a.label('L_A_flag_ok')
    def body(L, tag, mode, last=None, slow=False):
        grab = mode != 'S'
        LK = [L] * (2 * U)
        if slow: LK = [L - cfg.slowd] * (2 * U - 1) + [L]
        def issue(n):
            prev = (n - 1 + LK[n - 1]) if n > 0 else (L - 1)
            for m in range(prev + 1, n + LK[n] + 1): slot_load(m)
        def waitn(n):
            v = (LK[n - 1] if n > 0 else L) - 1
            if grab and n < L: v += 1
            if mode == 'S' and n < L and cfg.wox:
                a(f's_cmp_eq_u32 s{S_IT}, s{S_WOIT}\ns_cbranch_scc1 L_A_wx{tag}{n}')
                a(f's_waitcnt vmcnt({v})')
                a.label(f'L_A_wx{tag}{n}')
                a(f's_waitcnt vmcnt({v + 16})')
                return
            a(f's_waitcnt vmcnt({v})')
        N0 = 2 * U - L
        def next_unit():
            a(f'v_readfirstlane_b32 s{S_UN}, v{V_GRAB}')
            a('s_nop 3')
            if cfg.half:
                NF = cfg.NF
                POOL0 = NS * NWV * 2
                a(f's_lshl_b32 s62, s{S_UN}, 1')
                a(f's_add_u32 s63, s{S_UN}, {NF}')
                a(f's_cmp_lt_u32 s{S_UN}, {NF}')
                a(f's_cselect_b32 s{S_UN}, s62, s63')
                a(f's_cselect_b32 s{S_BHN}, 0, 0xff800000')
                a(f's_mov_b32 s63, {4 << 20:#x}\ns_cselect_b32 s63, 0x1000, s63')
                a(f's_add_u32 s{S_UN}, s{S_UN}, {POOL0}')
                a(f's_lshl_b32 s62, s{S_UN}, 12')
                a(f'v_lshl_add_u32 v{V_ON[0]}, v{V_LANE}, 4, s62')
                a(f'v_add_u32 v{V_ON[1]}, s63, v{V_ON[0]}')
            else:
                a(f's_add_u32 s{S_UN}, s{S_UN}, {NS*NWV*HF}')
                a(f's_mul_i32 s62, s{S_UN}, {U*1024//HF}')
                a(f'v_lshl_add_u32 v{V_ON[0]}, v{V_LANE}, 4, s62')
                a(f'v_add_u32 v{V_ON[1]}, 0x1000, v{V_ON[0]}')
            if cfg.d4:
                a('s_mov_b64 exec, 1')
                a(f'global_atomic_add v{V_GRAB}, v{V_CADDR}, v{V_ONE}, s[{P_WS}:{P_WS+1}] sc0 {cfg.gsc}')
                a('s_mov_b64 exec, -1')
        if mode != 'T': a('.p2align 6')
        a.label(f'L_A_loop{tag}')
        if mode == 'S':
            a(f's_cmp_lg_u32 s{S_IT}, s{S_WOIT}\ns_cbranch_scc1 L_A_nowo{tag}')
            slice_loads(a, SRD_W, V_WOFF, V_W, cfg.wopol, 'wo')
            a.label(f'L_A_nowo{tag}')
            if not cfg.ctl:
                a(f's_cmp_lg_u32 s{S_W}, 0\ns_cbranch_scc1 L_A_nochk{tag}')
                a(f's_cmp_lg_u32 s{S_IT}, {cfg.chk_it}\ns_cbranch_scc1 L_A_nold{tag}')
                a(f'global_load_dword v{V_CLR}, v{V_ZERO}, s[{P_DBG}:{P_DBG+1}] offset:{CNT_Q} sc1')
                a.label(f'L_A_nold{tag}')
                a(f's_cmp_lg_u32 s{S_IT}, {cfg.chk_it + 1}\ns_cbranch_scc1 L_A_nochk{tag}')
                a(f'v_readfirstlane_b32 s62, v{V_CLR}')
                a('s_nop 3')
                a(f's_cmp_ge_u32 s62, 32\ns_cbranch_scc1 L_A_q_ok{tag}')
                poll(a, CNT_Q, 32, V_CLR, V_ZERO, f'A_q{tag}')
                a.label(f'L_A_q_ok{tag}')
                a(f'v_mov_b32 v{V_CLR}, 1')
                a(f'ds_write_b32 v{V_ZERO}, v{V_CLR} offset:{L_FLAG}')
                a.label(f'L_A_nochk{tag}')
            else:
                a(f's_cmp_lg_u32 s{S_W}, 0\ns_cbranch_scc1 L_A_nochk{tag}')
                a(f's_cmp_lt_u32 s{S_IT}, 2\ns_cbranch_scc1 L_A_c0{tag}')
                a(f's_cmp_lg_u32 s{S_FLG}, 0\ns_cbranch_scc1 L_A_c1{tag}')
                a(f's_cmp_lt_u32 s{S_IT}, 3\ns_cbranch_scc1 L_A_c2{tag}')
                a(f'v_readfirstlane_b32 s62, v{V_CLR}')
                a('s_nop 3')
                a(f's_cmp_ge_u32 s62, 32\ns_cbranch_scc1 L_A_c3{tag}')
                a(f's_cmp_lt_u32 s{S_IT}, {NS - 2}\ns_cbranch_scc1 L_A_c2{tag}')
                poll(a, CNT_Q, 32, V_CLR, V_ZERO, f'A_q{tag}')
                a.label(f'L_A_c3{tag}')
                a(f's_mov_b32 s{S_FLG}, 1')
                a(f'v_mov_b32 v{V_CLR}, 1')
                a(f'ds_write_b32 v{V_ZERO}, v{V_CLR} offset:{L_FLAG}')
                a(f'global_load_dword v{V_GRAB}, v{V_MADR}, s[{P_WS}:{P_WS+1}] sc1')
                a(f's_branch L_A_c0{tag}')
                a.label(f'L_A_c2{tag}')
                a(f'global_load_dword v{V_CLR}, v{V_ZERO}, s[{P_DBG}:{P_DBG+1}] offset:{CNT_Q} sc1')
                a(f's_branch L_A_c0{tag}')
                a.label(f'L_A_c1{tag}')
                a(f'v_readfirstlane_b32 s62, v{V_GRAB}')
                a(f's_sub_u32 s63, s{S_IT}, 1\ns_mul_i32 s63, s63, 192')
                a('s_nop 1')
                a(f's_add_u32 s62, s62, {cfg.theta}')
                a('s_cmp_gt_u32 s63, s62\ns_cselect_b32 s63, 1, 0')
                a(f's_cmp_eq_u32 s62, {cfg.theta}\ns_cselect_b32 s63, 0, s63')
                a(f'v_mov_b32 v{V_PRG}, s63')
                a(f'ds_write_b32 v{V_ZERO}, v{V_PRG} offset:{L_MODE}')
                a(f'global_load_dword v{V_GRAB}, v{V_MADR}, s[{P_WS}:{P_WS+1}] sc1')
                a.label(f'L_A_c0{tag}')
                a(f'v_mov_b32 v{V_PRG}, s{S_IT}')
                a('s_mov_b64 exec, 1')
                a(f'global_store_dword v{V_PADR}, v{V_PRG}, s[{P_WS}:{P_WS+1}] sc1')
                a('s_mov_b64 exec, -1')
                a.label(f'L_A_nochk{tag}')
        if mode == 'T': flag_wait()
        if grab:
            a('s_mov_b64 exec, 1')
            a(f'global_atomic_add v{V_GRAB}, v{V_CADDR}, v{V_ONE}, s[{P_WS}:{P_WS+1}] sc0 {cfg.gsc}')
            a('s_mov_b64 exec, -1')
        for i in range(U):
            waitn(i)
            a(f'v_dot2_f32_bf16 v{V_T+i}, v{V_K+4*i}, v{V_Q}, 0')
            for k in range(1, 4):
                a(f'v_dot2_f32_bf16 v{V_T+i}, v{V_K+4*i+k}, v{V_Q+k}, v{V_T+i}')
            if grab and i == N0: next_unit()
            issue(i)
        softmax(U, hb=(cfg.half and mode == 'D'))
        for i in range(U):
            waitn(U + i)
            a(f'v_mfma_f32_16x16x32_bf16 {vr(V_ACC,4)}, {vr(V_A+4*i,4)}, {vr(V_V+4*i,4)}, {vr(V_ACC,4)}')
            if grab and U + i == N0: next_unit()
            issue(U + i)
        for k in range(2):
            a(f'v_mov_b32 v{V_OC[k]}, v{V_ON[k]}')
        a(f's_add_u32 s{S_IT}, s{S_IT}, 1')
        if mode == 'S':
            if cfg.ctl: a(f'ds_read_b32 v{V_MODE}, v{V_ZERO} offset:{L_MODE}')
            a(f's_add_u32 s{S_U}, s{S_U}, 1')
            wrap_u(); unit_off(V_ON)
            a(f's_cmp_lt_u32 s{S_IT}, {last}')
            if cfg.xthr >= 0 or cfg.ctl:
                a(f's_cbranch_scc1 L_A_sel')
                if not slow: a('s_branch L_A_sdone')
            else:
                a(f's_cbranch_scc1 L_A_loop{tag}')
        elif mode == 'T':
            a(f's_cmp_ge_u32 s{S_UN}, {NU*HF}\ns_cbranch_scc1 L_A_done')
        else:
            if cfg.half: a(f's_mov_b32 s{S_BHC}, s{S_BHN}')
            a(f's_cmp_lt_u32 s{S_UN}, {NU * (2 if cfg.half else 1)}')
            a(f's_cbranch_scc1 L_A_loop{tag}')
    NH1 = min(cfg.N1, NS - 1)
    if cfg.ctl:
        a.label('L_A_sel')
        a('s_waitcnt lgkmcnt(0)')
        a(f'v_readfirstlane_b32 s{S_SLOW}, v{V_MODE}')
        a('s_nop 3')
        a(f's_cmp_eq_u32 s{S_SLOW}, 0\ns_cbranch_scc0 L_A_loopw')
        body(L1, 'a', 'S', NH1)
        body(L1, 'w', 'S', NH1, slow=True)
        a.label('L_A_sdone')
    elif cfg.xthr >= 0:
        S_SLOW = 79
        a(f's_and_b32 s62, s2, 7\ns_lshr_b32 s{S_SLOW}, {cfg.xthr}, s62\ns_and_b32 s{S_SLOW}, s{S_SLOW}, 1')
        a.label('L_A_sel')
        a(f's_cmp_eq_u32 s{S_SLOW}, 0\ns_cbranch_scc1 L_A_loopa')
        a(f's_cmp_lt_u32 s{S_IT}, {cfg.xa}\ns_cbranch_scc1 L_A_loopa')
        a(f's_cmp_lt_u32 s{S_IT}, {cfg.xb}\ns_cbranch_scc1 L_A_loopw')
        a('s_branch L_A_loopa')
        body(L1, 'a', 'S', NH1)
        body(L1, 'w', 'S', NH1, slow=True)
        a.label('L_A_sdone')
    else:
        body(L1, 'a', 'S', NH1)
    if cfg.d4:
        assert NH1 == NS - 1 and L1 == 4
        body(L1, 't', 'T')
        for i in range(4): slot_load(U + i)
        a('.p2align 6')
        a.label('L_A_loopd')
        a('s_waitcnt vmcnt(6)')
        a(f'v_readfirstlane_b32 s{S_UN}, v{V_GRAB}')
        a('s_nop 3')
        a(f's_add_u32 s{S_UN}, s{S_UN}, {NS*NWV*HF}')
        a(f's_mul_i32 s62, s{S_UN}, {U*1024//HF}')
        a(f'v_lshl_add_u32 v{V_ON[0]}, v{V_LANE}, 4, s62')
        for n in range(4):
            a(f's_waitcnt vmcnt({7 if n <= 2 else 8})')
            a(f'v_dot2_f32_bf16 v{V_T+n}, v{V_K+4*n}, v{V_Q}, 0')
            for k in range(1, 4):
                a(f'v_dot2_f32_bf16 v{V_T+n}, v{V_K+4*n+k}, v{V_Q+k}, v{V_T+n}')
            if n == 2:
                a('s_mov_b64 exec, 1')
                a(f'global_atomic_add v{V_GRAB}, v{V_CADDR}, v{V_ONE}, s[{P_WS}:{P_WS+1}] sc0 {cfg.gsc}')
                a('s_mov_b64 exec, -1')
            slot_load(2 * U + n)
        softmax(4)
        for n in range(4):
            a('s_waitcnt vmcnt(8)')
            a(f'v_mfma_f32_16x16x32_bf16 {vr(V_ACC,4)}, {vr(V_A+4*n,4)}, {vr(V_V+4*n,4)}, {vr(V_ACC,4)}')
            slot_load(2 * U + U + n)
        a(f's_cmp_lt_u32 s{S_UN}, {NU*HF}')
        a('s_cbranch_scc1 L_A_loopd')
    elif cfg.noT:
        assert NH1 == NS - 1
        for m in range(L1, L2): slot_load(m)
        flag_wait()
        if cfg.half: a(f's_mov_b32 s{S_BHC}, 0')
        body(L2, 'b', 'D')
    else:
        if NH1 < NS - 1:
            for m in range(L1, L2): slot_load(m)
            body(L2, 's', 'S', NS - 1)
            body(L2, 't', 'T')
        else:
            body(L1, 't', 'T')
            for m in range(L1, L2): slot_load(m)
        body(L2, 'b', 'D')
    a.label('L_A_done')
    stamp(a, cfg, 2)
    TAIL_ST, TAIL_OV = V_T, V_A + 16
    role_A_tail(a, cfg, locals())

def role_A_tail(a, cfg, R):
    g = lambda n: R[n]
    V_CLR, V_ZERO, V_L, V_M, V_TMP, V_ACC, V_MN, V_XX = [g(n) for n in ('V_CLR', 'V_ZERO', 'V_L', 'V_M', 'V_TMP', 'V_ACC', 'V_MN', 'V_XX')]
    V_S, V_P, V_A, V_Y, V_W = [g(n) for n in ('V_S', 'V_P', 'V_A', 'V_Y', 'V_W')]
    S_B, S_W4 = g('S_B'), g('S_W4')
    L_OB, L_SB, L_YB = g('L_OB'), g('L_SB'), g('L_YB')
    if 'W' in cfg.roles and 'NOCLR' not in R:
        a(f'v_readfirstlane_b32 s62, v{V_CLR}')
        a('s_nop 3')
        a('s_cmp_ge_u32 s62, 32\ns_cbranch_scc1 L_A_clr_ok')
        poll(a, CNT_Q, 32, V_CLR, V_ZERO, 'A_clr')
        a.label('L_A_clr_ok')
    a(f'v_add_f32_dpp v{V_L}, v{V_L}, v{V_L} row_bcast:15 row_mask:0xa bank_mask:0xf')
    a.nop(2)
    a(f'v_add_f32_dpp v{V_L}, v{V_L}, v{V_L} row_bcast:31 row_mask:0xc bank_mask:0xf')
    a.nop(1)
    a(f'v_readlane_b32 s62, v{V_L}, 63')
    a(f'v_lshlrev_b32 v{V_TMP}, 5, v{V_C}')
    a(f'v_lshl_add_u32 v{V_TMP}, v{V_G}, 4, v{V_TMP}')
    a(f's_lshl_b32 s60, s{S_B}, 2\ns_add_u32 s60, s60, s{S_W4}')
    a(f's_lshl_b32 s63, s60, 9')
    a(f'v_add_u32 v{V_TMP}, s63, v{V_TMP}')
    a(f'v_mov_b32 v{V_M+1}, s62')
    a(f's_lshl_b32 s63, s60, 3')
    a(f'v_mov_b32 v{V_TMP+1}, s63')
    a('s_mov_b32 exec_hi, 0')
    a(f'ds_write_b128 v{V_TMP}, {vr(V_ACC,4)} offset:{L_OB}')
    a('s_mov_b64 exec, 1')
    a(f'ds_write_b64 v{V_TMP+1}, {vr(V_M,2)} offset:{L_SB}')
    a('s_mov_b64 exec, -1')
    a('s_waitcnt lgkmcnt(0)\ns_barrier')
    a(f'v_lshrrev_b32 v{V_TMP}, 3, v{V_C}')
    a(f'v_lshlrev_b32 v{V_TMP+1}, 5, v{V_TMP}')
    ST = R.get('TAIL_ST', V_S)
    OV = R.get('TAIL_OV', V_S + 8)
    a(f'ds_read_b128 {vr(ST,4)}, v{V_TMP+1} offset:{L_SB}')
    a(f'ds_read_b128 {vr(ST+4,4)}, v{V_TMP+1} offset:{L_SB+16}')
    a(f'v_lshlrev_b32 v{V_TMP+1}, 11, v{V_TMP}')
    a(f'v_lshl_add_u32 v{V_TMP+1}, v{V_G}, 4, v{V_TMP+1}')
    a(f's_lshl_b32 s63, s{S_W}, 6')
    a(f'v_add_u32 v{V_TMP+1}, s63, v{V_TMP+1}')
    for k in range(4):
        a(f'ds_read_b128 {vr(OV+4*k,4)}, v{V_TMP+1} offset:{L_OB + 512*k}')
    a('s_waitcnt lgkmcnt(4)')
    m0, l0, m1, l1, m2, l2, m3, l3 = [ST + i for i in range(8)]
    a(f'v_max3_f32 v{V_MN}, v{m0}, v{m1}, v{m2}')
    a(f'v_max_f32 v{V_MN}, v{V_MN}, v{m3}')
    for m in (m0, m1, m2, m3): a(f'v_sub_f32 v{m}, v{m}, v{V_MN}')
    for m in (m0, m1, m2, m3): a(f'v_exp_f32 v{m}, v{m}')
    a('s_nop 0')
    a(f'v_mul_f32 v{V_XX}, v{m0}, v{l0}')
    a(f'v_fma_f32 v{V_XX}, v{m1}, v{l1}, v{V_XX}')
    a(f'v_fma_f32 v{V_XX}, v{m2}, v{l2}, v{V_XX}')
    a(f'v_fma_f32 v{V_XX}, v{m3}, v{l3}, v{V_XX}')
    a('s_waitcnt lgkmcnt(0)')
    for s in range(4):
        a(f'v_mul_f32 v{OV+s}, v{OV+s}, v{m0}')
    for k, m in ((1, m1), (2, m2), (3, m3)):
        for s in range(4):
            a(f'v_fma_f32 v{OV+s}, v{OV+4*k+s}, v{m}, v{OV+s}')
    for s in range(4):
        a(f'v_cvt_pk_bf16_f32 v{V_P+s}, v{OV+s}, v{OV+s}')
    for s in range(4):
        for k in range(4):
            a(f'v_and_b32 v{V_A+4*s+k}, v{V_P+s}, v{V_MASK+k}')
    a('s_nop 1')
    for s in range(4):
        for cb in range(4):
            c = '0' if s == 0 else vr(V_Y+4*cb, 4)
            a(f'v_mfma_f32_16x16x32_bf16 {vr(V_Y+4*cb,4)}, {vr(V_A+4*s,4)}, {vr(V_W+16*s+4*cb,4)}, {c}')
    dtile_to_lds(a, V_Y, V_TMP, L_YB, 12, 11, 4)
    a(f's_lshl_b32 s62, s{S_H}, 3\ns_add_u32 s62, s62, s{S_R}')
    a('s_waitcnt lgkmcnt(0)\ns_barrier')
    a(f's_cmp_ge_u32 s{S_W}, 4\ns_cbranch_scc1 L_A_stats')
    a(f'v_lshlrev_b32 v{V_TMP}, 4, v0')
    for w in range(8):
        a(f'ds_read_b128 {vr(V_W+4*w,4)}, v{V_TMP} offset:{L_YB + 4096*w}')
    a(f'v_lshrrev_b32 v{V_TMP+1}, 7, v0')
    a(f'v_lshlrev_b32 v{V_TMP+1}, 18, v{V_TMP+1}')
    a(f'v_and_b32 v{V_TMP+2}, 127, v0')
    a(f'v_lshl_add_u32 v{V_TMP+1}, v{V_TMP+2}, 3, v{V_TMP+1}')
    a(f's_lshl_b32 s63, s62, 10\ns_add_u32 s63, s63, {WS_YA:#x}')
    a(f'v_add_u32 v{V_TMP+1}, s63, v{V_TMP+1}')
    for w in range(1, 8):
        a(f's_waitcnt lgkmcnt({7-w})')
        for k in range(4):
            a(f'v_add_f32 v{V_W+k}, v{V_W+k}, v{V_W+4*w+k}')
    a(f'v_cvt_pk_bf16_f32 v{V_W}, v{V_W}, v{V_W+1}')
    a(f'v_cvt_pk_bf16_f32 v{V_W+1}, v{V_W+2}, v{V_W+3}')
    for k in range(2):
        a(f'v_min_u32 v{V_W+k}, 0xfffffffe, v{V_W+k}')
    a(f'global_store_dwordx2 v{V_TMP+1}, {vr(V_W,2)}, s[{P_WS}:{P_WS+1}] sc1')
    a('s_branch L_A_end')
    a.label('L_A_stats')
    a(f's_cmp_lg_u32 s{S_W}, 4\ns_cbranch_scc1 L_A_end')
    a(f'v_lshrrev_b32 v{V_TMP}, 3, v{V_LANE}')
    a(f'v_lshlrev_b32 v{V_TMP}, 11, v{V_TMP}')
    a(f's_lshl_b32 s63, s62, 3\ns_add_u32 s63, s63, {WS_YSTAT:#x}')
    a(f'v_add_u32 v{V_TMP}, s63, v{V_TMP}')
    a(f'v_min_u32 v{V_TMP+2}, 0xfffffffe, v{V_MN}')
    a(f'v_min_u32 v{V_TMP+3}, 0xfffffffe, v{V_XX}')
    a('s_mov_b64 exec, 0x101')
    a(f'global_store_dwordx2 v{V_TMP}, {vr(V_TMP+2,2)}, s[{P_WS}:{P_WS+1}] sc1')
    a.label('L_A_end')
    stamp(a, cfg, 3)
    if cfg.aend: span_mark(a, cfg, True)
    a('s_endpgm')

def role_A(a, cfg):
    L_QP, L_QB, L_OB, L_SB, L_YB = 0, 8192, 8704, 12800, 16384
    SRD_K, SRD_V, SRD_W, SRD_X = 40, 44, 48, 52
    S_B, S_W4, S_N, S_SIG, S_IT = 35, 36, 37, 38, 39
    S_WOIT, S_RHO = 56, 57
    S_BIAS = 66
    U = cfg.U
    V_OFF, V_WOFF, V_Q, V_OFF2 = 8, 9, 10, 14
    V_K = 16
    V_V = V_K + 4 * U
    V_W = V_V + 4 * U
    V_X = V_W + 64
    V_T = V_X + 8
    V_P = V_T + U
    V_A = V_P + max(U, 4)
    V_ACC = V_A + 4 * max(U, 4)
    V_M, V_L, V_AL, V_MN, V_SC, V_XX, V_CLR, V_ZERO = [V_ACC + 4 + k for k in range(8)]
    V_Y = V_ACC + 12
    V_TMP = V_Y + 16
    assert V_TMP + 15 <= 250 and V_M % 2 == 0
    V_S = V_K
    a.label('L_roleA')
    stamp(a, cfg, 0)
    S_NONCE, S_BLK = 58, 59
    SRD_WS = SRD_X
    a(f's_lshr_b32 s{S_B}, s{S_W}, 2')
    if cfg.swapb: a(f's_xor_b32 s{S_B}, s{S_B}, 1')
    a(f's_and_b32 s{S_W4}, s{S_W}, 3')
    starts = [2048 * j // NA for j in range(NA + 1)]
    NU = 2048 // U
    NWV = 4 * NA
    S_UN, V_CADDR, V_GRAB, V_ONE = 59, V_TMP + 12, V_TMP + 13, V_TMP + 14
    if cfg.dyn:
        a(f's_lshl_b32 s62, s{S_B}, 5\ns_add_u32 s62, s62, s{S_H}')
        a(f's_lshl_b32 s61, s62, 7\ns_add_u32 s61, s61, {WS_CTR:#x}')
        a(f'v_mov_b32 v{V_CADDR}, s61')
        a(f'v_mov_b32 v{V_ONE}, 1')
        a(f's_lshl_b32 s62, s62, 21')
        a(f's_mov_b32 s63, {2 << 20:#x}')
        srd(a, SRD_K, P_AK, off_s=62, nrec_s=63)
        srd(a, SRD_V, P_AV, off_s=62, nrec_s=63)
        a(f's_lshl_b32 s{S_UN}, s{S_R}, 2\ns_add_u32 s{S_UN}, s{S_UN}, s{S_W4}')
        a(f's_mul_i32 s62, s{S_UN}, {U*1024}')
        a(f'v_lshl_add_u32 v{V_OFF}, v{V_LANE}, 4, s62')
        a(f'v_add_u32 v{V_OFF2}, 0x1000, v{V_OFF}')
    else:
        a(f's_mov_b32 s60, 0\ns_mov_b32 s61, {starts[1]}')
        for j in range(1, NA):
            a(f's_cmp_eq_u32 s{S_R}, {j}')
            a(f's_cselect_b32 s60, {starts[j]}, s60')
            a(f's_cselect_b32 s61, {starts[j+1]}, s61')
        a(f's_sub_u32 s{S_N}, s61, s60')
        a(f's_lshl_b32 s62, s{S_B}, 5\ns_add_u32 s62, s62, s{S_H}')
        a(f's_lshl_b32 s62, s62, 21')
        a(f's_lshl_b32 s63, s60, 10\ns_add_u32 s62, s62, s63')
        a(f's_lshl_b32 s63, s{S_N}, 10')
        srd(a, SRD_K, P_AK, off_s=62, nrec_s=63)
        srd(a, SRD_V, P_AV, off_s=62, nrec_s=63)
        a(f'v_lshlrev_b32 v{V_OFF}, 4, v{V_LANE}')
        a(f's_mul_i32 s62, s{S_W4}, {U*1024}')
        a(f'v_add_u32 v{V_OFF}, s62, v{V_OFF}')
        a(f'v_add_u32 v{V_OFF2}, 0x1000, v{V_OFF}')
    def kv_load(dst, srd_, i, pol):
        vo = V_OFF if i < 4 else V_OFF2
        a(f'buffer_load_dwordx4 {vr(dst+4*i,4)}, v{vo}, s[{srd_}:{srd_+3}], 0 offen offset:{1024*(i%4)} {pol}')
    STEP = (NWV if cfg.dyn else 4) * U * 1024
    a(f'v_mov_b32 v{V_M}, 0xff800000')
    a(f'v_mov_b32 v{V_L}, 0')
    for k in range(4): a(f'v_mov_b32 v{V_ACC+k}, 0')
    a(f'v_mov_b32 v{V_SC}, {f2u(SCALE):#x}')
    a(f'v_mov_b32 v{V_ZERO}, 0')
    if cfg.qmode == 'red':
        srd(a, SRD_X, P_AX, nrec=2048)
        a(f's_lshl_b32 s62, s{S_H}, 8')
        a(f's_sub_u32 s63, {512*8192:#x}, s62')
        srd(a, SRD_W, P_AWQ, off_s=62, nrec_s=63)
        a(f's_and_b32 s60, s{S_R}, 1\ns_lshl_b32 s60, s60, 2\ns_add_u32 s60, s60, s{S_W}\ns_and_b32 s60, s60, 7')
        a(f's_bfe_u32 s{S_RHO}, s{S_R}, 0x10001')
        if not cfg.rot:
            a(f's_mov_b32 s60, s{S_W}\ns_mov_b32 s{S_RHO}, 0')
        a(f'v_lshrrev_b32 v{V_TMP}, 3, v{V_C}')
        a(f'v_lshlrev_b32 v{V_TMP}, 10, v{V_TMP}')
        a(f'v_lshl_add_u32 v{V_TMP}, v{V_G}, 5, v{V_TMP}')
        a(f's_lshl_b32 s62, s60, 7')
        a(f'v_add_u32 v{V_TMP}, s62, v{V_TMP}')
        a(f's_lshl_b32 s62, s{S_RHO}, 4\ns_xor_b32 s63, s62, 16')
        a(f'buffer_load_dwordx4 {vr(V_X,4)}, v{V_TMP}, s[{SRD_X}:{SRD_X+3}], s62 offen')
        a(f'buffer_load_dwordx4 {vr(V_X+4,4)}, v{V_TMP}, s[{SRD_X}:{SRD_X+3}], s63 offen')
        a(f'v_lshlrev_b32 v{V_TMP+1}, 17, v{V_G}')
        a(f'v_lshl_add_u32 v{V_TMP+1}, v{V_C}, 4, v{V_TMP+1}')
        a(f's_lshl_b32 s62, s60, 19')
        a(f'v_add_u32 v{V_TMP+1}, s62, v{V_TMP+1}')
        a(f's_lshl_b32 s61, s{S_RHO}, 16')
        for s in range(16):
            a(f's_xor_b32 s62, s61, {(s // 8) * 65536}\ns_add_u32 s62, s62, {(s % 8) * 8192}')
            a(f'buffer_load_dwordx4 {vr(V_W+4*s,4)}, v{V_TMP+1}, s[{SRD_W}:{SRD_W+3}], s62 offen {cfg.wqpol}')
        a('s_barrier')
        kvl = [(V_K, SRD_K, i, cfg.kpol) for i in range(U)] + [(V_V, SRD_V, i, cfg.vpol) for i in range(U)]
        ne = cfg.early
        a(f's_waitcnt vmcnt(16)')
        if cfg.dyn: a(f'global_load_dword v{V_GRAB}, v{V_ZERO}, s[{P_DBG}:{P_DBG+1}] offset:{CNT_Z} sc1')
        done = [1 if cfg.dyn else 0]
        first = done[0]
        def early(s):
            if s >= 16 - ne: kv_load(*kvl[done[0] - first]); done[0] += 1
        for s in range(16):
            sel = '0x01000100' if s % 2 == 0 else '0x03020302'
            t = V_TMP + (s & 1); A = V_A + 4 * (s & 1)
            a(f's_mov_b32 s60, {sel}')
            a(f'v_perm_b32 v{t}, v{V_X + s//2}, v{V_X + s//2}, s60')
            for i in range(4): a(f'v_and_b32 v{A+i}, v{t}, v{V_MASK+i}')
            a(f's_waitcnt vmcnt({15 - s + done[0]})')
            a('s_nop 0')
            c = '0' if s == 0 else vr(V_Y, 4)
            a(f'v_mfma_f32_16x16x32_bf16 {vr(V_Y,4)}, {vr(A,4)}, {vr(V_W+4*s,4)}, {c}')
            early(s)
        q_reduce(a, V_Y, V_TMP, L_QP, L_QB, 'A')
        for x in kvl[done[0] - first:]: kv_load(*x)
        a(f'v_add_u32 v{V_OFF}, {STEP:#x}, v{V_OFF}')
        a(f'v_add_u32 v{V_OFF2}, {STEP:#x}, v{V_OFF2}')
    else:
        a(f's_mov_b32 s{S_BLK}, s{S_R}')
        a(f's_cmp_eq_u32 s{S_W}, 0\ns_cbranch_scc1 L_A_task')
        a(f's_add_u32 s{S_BLK}, s{S_R}, 6')
        a(f's_cmp_lg_u32 s{S_W}, 1\ns_cbranch_scc1 L_A_notask')
        a(f's_cmp_ge_u32 s{S_R}, 2\ns_cbranch_scc1 L_A_notask')
        a.label('L_A_task')
        a('s_setprio 3')
        a(f'v_mov_b32 v{V_TMP+2}, {WS_NONCE:#x}')
        a(f'global_load_dword v{V_CLR}, v{V_TMP+2}, s[{P_WS}:{P_WS+1}]')
        srd(a, SRD_X, P_AX, nrec=2048)
        a(f's_lshl_b32 s62, s{S_H}, 8')
        a(f's_sub_u32 s63, {512*8192:#x}, s62')
        srd(a, SRD_W, P_AWQ, off_s=62, nrec_s=63)
        a(f'v_lshrrev_b32 v{V_TMP}, 3, v{V_C}')
        a(f'v_lshlrev_b32 v{V_TMP}, 10, v{V_TMP}')
        a(f'v_lshl_add_u32 v{V_TMP}, v{V_G}, 5, v{V_TMP}')
        a(f's_lshl_b32 s62, s{S_BLK}, 7')
        a(f'v_add_u32 v{V_TMP}, s62, v{V_TMP}')
        a(f'buffer_load_dwordx4 {vr(V_X,4)}, v{V_TMP}, s[{SRD_X}:{SRD_X+3}], 0 offen')
        a(f'buffer_load_dwordx4 {vr(V_X+4,4)}, v{V_TMP}, s[{SRD_X}:{SRD_X+3}], 0 offen offset:16')
        a(f'v_lshlrev_b32 v{V_TMP+1}, 17, v{V_G}')
        a(f'v_lshl_add_u32 v{V_TMP+1}, v{V_C}, 4, v{V_TMP+1}')
        a(f's_lshl_b32 s62, s{S_BLK}, 19')
        a(f'v_add_u32 v{V_TMP+1}, s62, v{V_TMP+1}')
        for s in range(16):
            a(f's_mov_b32 s62, {s*8192}')
            a(f'buffer_load_dwordx4 {vr(V_W+4*s,4)}, v{V_TMP+1}, s[{SRD_W}:{SRD_W+3}], s62 offen {cfg.wqpol}')
        a('s_barrier')
        srd(a, SRD_WS, P_WS, nrec=0x1000000)
        a(f's_waitcnt vmcnt(16)')
        a(f'v_readfirstlane_b32 s{S_NONCE}, v{V_CLR}')
        rowcomb(a, cfg, V_X, V_W, V_Y, V_A, V_TMP, 0)
        a(f's_add_u32 s{S_NONCE}, s{S_NONCE}, {GOLDEN:#x}')
        a(f's_lshl_b32 s62, s{S_H}, 3\ns_add_u32 s62, s62, s{S_BLK}\ns_lshl_b32 s62, s62, 11\ns_add_u32 s62, s62, {WS_QA:#x}')
        a(f'v_lshl_add_u32 v{V_TMP}, v{V_LANE}, 5, s62')
        G0 = V_A
        for k in (1, 3, 5, 7): a(f'v_mov_b32 v{G0+k}, s{S_NONCE}')
        a.nop(3)
        for k in range(4): a(f'v_mov_b32 v{G0+2*k}, v{V_Y+k}')
        a(f'buffer_store_dwordx4 {vr(G0,4)}, v{V_TMP}, s[{SRD_WS}:{SRD_WS+3}], 0 offen sc1')
        a(f'buffer_store_dwordx4 {vr(G0+4,4)}, v{V_TMP}, s[{SRD_WS}:{SRD_WS+3}], 0 offen offset:16 sc1')
        if cfg.fine: stamp(a, cfg, 4)
        a(f's_cmp_lg_u32 s{S_W}, 0\ns_cbranch_scc1 L_A_kv0p')
        a(f's_lshl_b32 s62, s{S_H}, 14\ns_add_u32 s62, s62, {WS_QA:#x}')
        a(f'v_lshl_add_u32 v{V_TMP}, v{V_LANE}, 5, s62')
        a(f'v_mov_b32 v{V_TMP+1}, s{S_NONCE}')
        R = V_W
        a('s_mov_b32 s64, 0xff\ns_mov_b32 s65, 0')
        a.label('L_A_qpoll')
        for r in range(8):
            a(f's_bitcmp1_b32 s64, {r}\ns_cbranch_scc0 L_A_qp{r}')
            a(f's_mov_b32 s62, {r*2048}')
            a(f'buffer_load_dwordx4 {vr(R+8*r,4)}, v{V_TMP}, s[{SRD_WS}:{SRD_WS+3}], s62 offen sc1')
            a(f'buffer_load_dwordx4 {vr(R+8*r+4,4)}, v{V_TMP}, s[{SRD_WS}:{SRD_WS+3}], s62 offen offset:16 sc1')
            a.label(f'L_A_qp{r}')
        a('s_waitcnt vmcnt(0)')
        for r in range(8):
            t = V_TMP + 2 + (r % 4)
            a(f'v_xor_b32 v{t}, v{R+8*r+1}, v{V_TMP+1}')
            a(f'v_xor_b32 v{V_TMP+6}, v{R+8*r+3}, v{V_TMP+1}')
            a(f'v_xor_b32 v{V_TMP+7}, v{R+8*r+5}, v{V_TMP+1}')
            a(f'v_or3_b32 v{t}, v{t}, v{V_TMP+6}, v{V_TMP+7}')
            a(f'v_xor_b32 v{V_TMP+6}, v{R+8*r+7}, v{V_TMP+1}')
            a(f'v_or_b32 v{t}, v{t}, v{V_TMP+6}')
            a(f'v_cmp_ne_u32 vcc, 0, v{t}')
            a('s_nop 0')
            a(f's_cmp_eq_u64 vcc, 0')
            a(f's_cselect_b32 s62, {(~(1 << r)) & 0xffffffff:#x}, -1')
            a('s_and_b32 s64, s64, s62')
        a('s_cmp_eq_u32 s64, 0\ns_cbranch_scc1 L_A_qdone')
        a('s_add_u32 s65, s65, 1')
        a(f's_cmp_lt_u32 s65, {SPIN_LIMIT}\ns_cbranch_scc1 L_A_qpoll')
        a.label('L_A_qdone')
        for k in range(4):
            a(f'v_add_f32 v{V_Y+k}, v{R+2*k}, v{R+8+2*k}')
        for r in range(2, 8):
            for k in range(4):
                a(f'v_add_f32 v{V_Y+k}, v{V_Y+k}, v{R+8*r+2*k}')
        a(f'v_cvt_pk_bf16_f32 v{V_TMP+2}, v{V_Y}, v{V_Y+1}')
        a(f'v_cvt_pk_bf16_f32 v{V_TMP+3}, v{V_Y+2}, v{V_Y+3}')
        a(f'v_lshrrev_b32 v{V_TMP}, 1, v{V_G}')
        a(f'v_lshlrev_b32 v{V_TMP}, 8, v{V_TMP}')
        a(f'v_lshl_add_u32 v{V_TMP}, v{V_C}, 4, v{V_TMP}')
        a(f'v_and_b32 v{V_TMP+1}, 1, v{V_G}')
        a(f'v_lshl_add_u32 v{V_TMP}, v{V_TMP+1}, 3, v{V_TMP}')
        a(f'ds_write_b64 v{V_TMP}, {vr(V_TMP+2,2)} offset:{L_QB}')
        if cfg.fine: stamp(a, cfg, 5)
        a.label('L_A_kv0p')
        a('s_setprio 0')
        a('s_branch L_A_kv0')
        a.label('L_A_notask')
        a('s_barrier')
        a.label('L_A_kv0')
        n = 0
        for dst, srd_, pol in ((V_K, SRD_K, cfg.kpol), (V_V, SRD_V, cfg.vpol)):
            for i in range(U):
                if n >= cfg.thr: a(f's_waitcnt vmcnt({cfg.thr - 1})')
                kv_load(dst, srd_, i, pol); n += 1
        a(f'v_add_u32 v{V_OFF}, {STEP:#x}, v{V_OFF}')
        a(f'v_add_u32 v{V_OFF2}, {STEP:#x}, v{V_OFF2}')
        if cfg.fine: stamp(a, cfg, 6)
        a('s_waitcnt lgkmcnt(0)\ns_barrier')
    a(f'v_lshlrev_b32 v{V_TMP+2}, 4, v{V_C}')
    a(f's_lshl_b32 s62, s{S_B}, 8')
    a(f'v_add_u32 v{V_TMP+2}, s62, v{V_TMP+2}')
    a(f'ds_read_b128 {vr(V_Q,4)}, v{V_TMP+2} offset:{L_QB}')
    a(f's_lshl_b32 s62, s{S_H}, 17')
    a(f's_mov_b32 s63, {128*1024:#x}')
    srd(a, SRD_W, P_AWO, off_s=62, nrec_s=63)
    wo_voff(a, V_WOFF)
    a(f's_mul_i32 s{S_SIG}, s{S_W4}, {U}')
    a(f's_mov_b32 s{S_IT}, 0')
    a(f's_mul_i32 s{S_WOIT}, s{S_R}, {cfg.wo_stag}\ns_add_u32 s{S_WOIT}, s{S_WOIT}, {cfg.wo_iter}')
    a('s_waitcnt lgkmcnt(0)')
    stamp(a, cfg, 1)
    NIT = -(-max(starts[j+1] - starts[j] for j in range(NA)) // (4 * U))
    NV = 2 * U - 1
    if cfg.dyn:
        NV = 2 * U
        assert cfg.qmode == 'red'
        a(f's_waitcnt vmcnt({2*U})')
        a(f'v_readfirstlane_b32 s62, v{V_GRAB}')
        a('s_nop 3')
        a('s_cmp_ge_u32 s62, 32\ns_cbranch_scc1 L_A_z_ok')
        poll(a, CNT_Z, 32, V_GRAB, V_ZERO, 'A_z')
        a.label('L_A_z_ok')
        a(f's_sub_u32 s62, s{S_UN}, {NWV}')
        a(f'v_mov_b32 v{V_GRAB}, s62')
    else:
        assert cfg.wo_iter + cfg.wo_stag * (NA - 1) < NIT - 1
    a('.p2align 6')
    a.label('L_A_loop')
    if cfg.dyn:
        a(f's_waitcnt vmcnt({2*U - 1})')
        a(f'v_readfirstlane_b32 s{S_UN}, v{V_GRAB}')
        a('s_mov_b64 exec, 1')
        a(f'global_atomic_add v{V_GRAB}, v{V_CADDR}, v{V_ONE}, s[{P_WS}:{P_WS+1}] sc0 sc1')
        a('s_mov_b64 exec, -1')
        a(f's_add_u32 s{S_UN}, s{S_UN}, {2*NWV}')
        a(f's_mul_i32 s62, s{S_UN}, {U*1024}')
        a(f'v_lshl_add_u32 v{V_OFF}, v{V_LANE}, 4, s62')
        a(f'v_add_u32 v{V_OFF2}, 0x1000, v{V_OFF}')
        a(f's_cmp_lt_u32 s{S_UN}, {NU}\ns_cbranch_scc1 L_A_more')
        a(f'global_load_dword v{V_CLR}, v{V_ZERO}, s[{P_DBG}:{P_DBG+1}] offset:{CNT_Q} sc1')
        a.label('L_A_more')
        a(f's_cmp_lg_u32 s{S_IT}, 1\ns_cbranch_scc1 L_A_nowo')
        slice_loads(a, SRD_W, V_WOFF, V_W, cfg.wopol, 'wo')
        a.label('L_A_nowo')
    else:
        a(f's_cmp_lg_u32 s{S_IT}, s{S_WOIT}\ns_cbranch_scc1 L_A_nowo')
        slice_loads(a, SRD_W, V_WOFF, V_W, cfg.wopol, 'wo')
        a(f'global_load_dword v{V_CLR}, v{V_ZERO}, s[{P_DBG}:{P_DBG+1}] offset:{CNT_Q} sc1')
        a.label('L_A_nowo')
    if cfg.loopst:
        for n, it in enumerate((2, 5, 8)):
            a(f's_cmp_lg_u32 s{S_IT}, {it}\ns_cbranch_scc1 L_A_ls{n}')
            stamp(a, cfg, 4 + n)
            a.label(f'L_A_ls{n}')
    if not cfg.dyn:
        for i in range(U):
            a(f's_add_u32 s62, s{S_SIG}, {i}')
            a(f's_cmp_lt_u32 s62, s{S_N}')
            a(f's_cselect_b32 s{S_BIAS+i}, 0, 0xff800000')
    for i in range(U):
        a(f's_waitcnt vmcnt({NV})')
        a(f'v_dot2_f32_bf16 v{V_T+i}, v{V_K+4*i}, v{V_Q}, 0')
        for k in range(1, 4):
            a(f'v_dot2_f32_bf16 v{V_T+i}, v{V_K+4*i+k}, v{V_Q+k}, v{V_T+i}')
        kv_load(V_K, SRD_K, i, cfg.kpol)
    a.nop(2)
    for st in (8, 4, 2, 1):
        for i in range(U):
            a(f'v_add_f32_dpp v{V_T+i}, v{V_T+i}, v{V_T+i} row_ror:{st} row_mask:0xf bank_mask:0xf')
    for i in range(U):
        if cfg.dyn: a(f'v_mul_f32 v{V_T+i}, v{V_T+i}, v{V_SC}')
        else: a(f'v_fma_f32 v{V_T+i}, v{V_T+i}, v{V_SC}, s{S_BIAS+i}')
    a(f'v_max3_f32 v{V_XX}, v{V_T}, v{V_T+1}, v{V_T+2}')
    i = 3
    while i < U:
        if i + 1 < U: a(f'v_max3_f32 v{V_XX}, v{V_XX}, v{V_T+i}, v{V_T+i+1}'); i += 2
        else: a(f'v_max_f32 v{V_XX}, v{V_XX}, v{V_T+i}'); i += 1
    a.nop(2)
    a(f'v_max_f32_dpp v{V_XX}, v{V_XX}, v{V_XX} row_bcast:15 row_mask:0xa bank_mask:0xf')
    a.nop(2)
    a(f'v_max_f32_dpp v{V_XX}, v{V_XX}, v{V_XX} row_bcast:31 row_mask:0xc bank_mask:0xf')
    a.nop(1)
    a(f'v_readlane_b32 s62, v{V_XX}, 63')
    a.nop(2)
    a(f'v_max_f32 v{V_MN}, s62, v{V_M}')
    a(f'v_sub_f32 v{V_AL}, v{V_M}, v{V_MN}')
    for i in range(U):
        a(f'v_sub_f32 v{V_T+i}, v{V_T+i}, v{V_MN}')
    a(f'v_exp_f32 v{V_AL}, v{V_AL}')
    for i in range(U):
        a(f'v_exp_f32 v{V_T+i}, v{V_T+i}')
    a(f'v_mov_b32 v{V_M}, v{V_MN}')
    for k in range(4):
        a(f'v_mul_f32 v{V_ACC+k}, v{V_ACC+k}, v{V_AL}')
    for i in range(U):
        a(f'v_cvt_pk_bf16_f32 v{V_P+i}, v{V_T+i}, v{V_T+i}')
    a(f'v_mul_f32 v{V_L}, v{V_L}, v{V_AL}')
    for i in range(0, U, 2):
        a(f'v_add_f32 v{V_T+i}, v{V_T+i}, v{V_T+i+1}')
    for i in range(U):
        for k in range(4):
            a(f'v_and_b32 v{V_A+4*i+k}, v{V_P+i}, v{V_MASK+k}')
    for i in range(0, U, 2):
        a(f'v_add_f32 v{V_L}, v{V_L}, v{V_T+i}')
    for i in range(U):
        a(f's_waitcnt vmcnt({NV})')
        a(f'v_mfma_f32_16x16x32_bf16 {vr(V_ACC,4)}, {vr(V_A+4*i,4)}, {vr(V_V+4*i,4)}, {vr(V_ACC,4)}')
        kv_load(V_V, SRD_V, i, cfg.vpol)
    a(f's_add_u32 s{S_IT}, s{S_IT}, 1')
    if cfg.dyn:
        a(f's_cmp_lt_u32 s{S_UN}, {NU}')
    else:
        a(f'v_add_u32 v{V_OFF}, {STEP:#x}, v{V_OFF}')
        a(f'v_add_u32 v{V_OFF2}, {STEP:#x}, v{V_OFF2}')
        a(f's_add_u32 s{S_SIG}, s{S_SIG}, {4*U}')
        a(f's_cmp_lt_u32 s{S_IT}, {NIT}')
    a('s_cbranch_scc1 L_A_loop')
    a('s_waitcnt vmcnt(0)')
    stamp(a, cfg, 2)
    role_A_tail(a, cfg, locals())

def build(cfg):
    global CFG
    CFG = cfg
    a = Asm()
    hdr = open(__import__('os').path.join(__import__('os').path.dirname(__import__('os').path.abspath(__file__)), 'header.txt')).read().rstrip('\n')
    a(hdr)
    a(f'; @launch grid=(256,1,1) block=(512,1,1) lds={LDS_BYTES}')
    for l in DESCRIPTION.strip().split('\n'): a('; ' + l)
    a('.amdgcn_target "amdgcn-amd-amdhsa--gfx950"')
    a('.text')
    a(f'.globl {NAME}_kernel')
    a('.p2align 8')
    a(f'.type {NAME}_kernel,@function')
    a.label(f'{NAME}_kernel')
    ist(a, cfg, 0)
    a('s_cmp_ge_u32 s2, 256\ns_cbranch_scc1 L_exit')
    if cfg.idrot: a(f's_lshl_b32 s60, s2, {cfg.idrot}\ns_lshr_b32 s2, s2, {8 - cfg.idrot}\ns_or_b32 s2, s2, s60\ns_and_b32 s2, s2, 255')
    if cfg.idxor: a(f's_mul_i32 s2, s2, {cfg.idxor}\ns_and_b32 s2, s2, 255')
    a('s_load_dwordx16 s[4:19], s[0:1], 0')
    a('s_load_dwordx8 s[20:27], s[0:1], 64')
    a('s_load_dwordx4 s[28:31], s[0:1], 96')
    a(f'v_lshrrev_b32 v8, 6, v0')
    if cfg.hrot: a(f's_add_u32 s60, s2, {cfg.hrot}\ns_and_b32 s60, s60, 7')
    else: a('s_and_b32 s60, s2, 7')
    a(f's_lshr_b32 s61, s2, 3')
    a(f'v_readfirstlane_b32 s{S_W}, v8')
    if cfg.afirst:
        a('s_mul_i32 s62, s61, 43\ns_lshr_b32 s62, s62, 8')
        a('s_mul_i32 s63, s62, 6\ns_sub_u32 s63, s61, s63')
        a('s_sub_u32 s64, s61, 24\ns_and_b32 s65, s64, 3\ns_lshr_b32 s64, s64, 2\ns_add_u32 s64, s64, 6')
        a('s_cmp_lt_u32 s61, 24')
        a(f's_cselect_b32 s{S_R}, s63, s64')
        a('s_cselect_b32 s61, s62, s65')
        a('s_lshl_b32 s61, s61, 3')
    elif cfg.xmix:
        a(f's_add_u32 s{S_R}, s60, s61\ns_and_b32 s{S_R}, s{S_R}, 7')
        a('s_mov_b32 s60, 0')
    elif cfg.smix:
        order = cfg.smix_order
        a('s_lshr_b32 s62, s61, 2\ns_lshl_b32 s62, s62, 2')
        a(f's_lshr_b32 s{S_R}, {order:#x}, s62\ns_and_b32 s{S_R}, s{S_R}, 15')
        a('s_and_b32 s61, s61, 3\ns_lshl_b32 s61, s61, 3')
    else:
        a(f's_and_b32 s{S_R}, s61, 7')
        if cfg.rmap != 0x76543210:
            a(f's_lshl_b32 s{S_R}, s{S_R}, 2\ns_lshr_b32 s{S_R}, {cfg.rmap:#x}, s{S_R}\ns_and_b32 s{S_R}, s{S_R}, 7')
        a(f's_and_b32 s61, s61, 24')
    a(f's_add_u32 s{S_H}, s60, s61')
    if cfg.hmap == '01234': a(f's_mov_b32 s{S_HP}, s{S_H}')
    elif cfg.hmap == '23401': a(f's_lshr_b32 s61, s61, 3\ns_lshl2_add_u32 s{S_HP}, s60, s61')
    else:
        a(f's_mov_b32 s{S_HP}, 0')
        for i, d in enumerate(cfg.hmap[:5]):
            a(f's_bfe_u32 s62, s{S_H}, {0x10000 + i:#x}\ns_lshl_b32 s62, s62, {d}\ns_or_b32 s{S_HP}, s{S_HP}, s62')
    common_lane_setup(a, not cfg.fs)
    if not cfg.fs:
        a('s_waitcnt lgkmcnt(0)')
        ist(a, cfg, 1)
        span_mark(a, cfg, False)
    if not cfg.two: cfg.tag = False
    a(f's_cmp_eq_u32 s{S_R}, {NA}\ns_cbranch_scc1 L_roleW')
    a(f's_cmp_eq_u32 s{S_R}, {NA+1}\ns_cbranch_scc1 L_roleC')
    import role_a4
    if 'A' in cfg.roles: (role_a4.role_A4 if cfg.two else role_A3 if cfg.hyb else role_A2 if cfg.ring else role_A)(a, cfg)
    else: a('s_endpgm')
    import roles_wc
    if 'W' in cfg.roles: roles_wc.role_W(a, cfg)
    else: a.label('L_roleW'); a('s_endpgm')
    if 'C' in cfg.roles: roles_wc.role_C(a, cfg)
    else: a.label('L_roleC'); a('s_endpgm')
    a.label('L_exit')
    a('s_endpgm')
    a(f'''.section .rodata,"a"
.p2align 6
.amdhsa_kernel {NAME}_kernel
  .amdhsa_next_free_vgpr 256
  .amdhsa_next_free_sgpr 102
  .amdhsa_accum_offset 256
  .amdhsa_group_segment_fixed_size 0
  .amdhsa_kernarg_size 112
  .amdhsa_user_sgpr_count 2
  .amdhsa_user_sgpr_kernarg_segment_ptr 1
  .amdhsa_system_sgpr_workgroup_id_x 1
.end_amdhsa_kernel''')
    return a.text()

if __name__ == '__main__':
    sys.modules['gen'] = sys.modules['__main__']
    cfg = Cfg()
    out = None
    for arg in sys.argv[1:]:
        if '=' in arg:
            k, v = arg.split('=', 1)
            cur = getattr(cfg, k)
            setattr(cfg, k, v == '1' if isinstance(cur, bool) else int(v, 0) if isinstance(cur, int) else v)
        else: out = arg
    t = build(cfg)
    for p in lint(t):
        print('HAZARD line %d -> %d need %d have %d\n   %s\n   %s' % p, file=sys.stderr)
    if out: open(out, 'w').write(t)
    else: print(t)
```

```python
import re
from asmlib import vr, sr
import gen as G
from gen import *

def bitrev4(c): return int(f'{c:04b}'[::-1], 2)

L_FLAGQ, L_FLAGS, L_CTL, L_STAT, L_PROG, L_QP, L_OB = 0, 4, 8, 64, 256, 1024, 8192
OB_RS = 272
SP_RS = 144
STEP = 24 * 4096
REM = 21 * STEP
NREG, NLD = 168, 172
POS = {168: 8, 169: 9, 170: 12, 171: 13}
def pos(n): return POS.get(n, n % 16)
def batch(n): return (pos(n) >> 2) & 1

def pattern(cfg):
    M = 1 << 20
    return {0: (1, [0, 1024, 2048, 3072]), 1: (2, [0, 1024, 2048, 3072]), 2: (2, [0, 1024, M, M + 1024]),
            3: (4, [0, M // 2, M, 3 * M // 2]), 4: (4, [0, 1024, 2048, 3072]), 5: (2, [0, 1024, 2048, 3072]),
            6: (1, [0, 4096, 8192, 12288]), 7: (1, [0, 24576, 49152, 73728]), 8: (1, [0, 1024, 2048, 3072]),
            9: (1, [0, 1024, 49152, 50176])}[cfg.pat]

def pat_base(a, cfg, d, j, w):
    if cfg.pat == 1:
        a(f's_cmp_ge_u32 s{j}, 3\ns_cselect_b32 s62, {(1 << 20) - 3*16384:#x}, 0')
        a(f's_lshl_b32 s{d}, s{j}, 2\ns_add_u32 s{d}, s{d}, s{w}\ns_lshl_b32 s{d}, s{d}, 12\ns_add_u32 s{d}, s{d}, s62')
    if cfg.pat in (2, 3, 7, 9):
        a(f's_lshl_b32 s{d}, s{j}, 2\ns_add_u32 s{d}, s{d}, s{w}\ns_lshl_b32 s{d}, s{d}, {11 if cfg.pat in (2, 9) else 10}')
    if cfg.pat == 4:
        a(f's_lshl_b32 s{d}, s{w}, 19\ns_lshl_b32 s62, s{j}, 12\ns_add_u32 s{d}, s{d}, s62')
    if cfg.pat == 5:
        a(f's_lshr_b32 s{d}, s{w}, 1\ns_lshl_b32 s{d}, s{d}, 20\ns_lshl_b32 s62, s{j}, 13\ns_add_u32 s{d}, s{d}, s62')
        a(f's_and_b32 s62, s{w}, 1\ns_lshl_b32 s62, s62, 12\ns_add_u32 s{d}, s{d}, s62')
    if cfg.pat == 6:
        a(f's_lshl_b32 s{d}, s{j}, 14\ns_lshl_b32 s62, s{w}, 10\ns_add_u32 s{d}, s{d}, s62')
    if cfg.pat == 8:
        a(f's_mul_i32 s{d}, s{w}, 6\ns_add_u32 s{d}, s{d}, s{j}\ns_lshl_b32 s{d}, s{d}, 12')

def xor_masks(a, cfg, d):
    a(f's_mov_b32 s{d}, 0')
    for t in cfg.hx.split(','):
        if not t: continue
        bit, m = t.split(':')
        a(f's_bitcmp1_b32 s{S_HP}, {bit}\ns_cselect_b32 s62, {int(m) << 15:#x}, 0\ns_xor_b32 s{d}, s{d}, s62')
    a(f's_xor_b32 s{d+1}, s{d}, {cfg.bx << 15:#x}')

def lds_spin(a, tag, vt, vz, off, target, sleep):
    a('s_mov_b32 s64, 0')
    a.label(f'L_{tag}')
    a(f'ds_read_b32 v{vt}, v{vz} offset:{off}')
    a('s_waitcnt lgkmcnt(0)')
    a(f'v_readfirstlane_b32 s65, v{vt}')
    a('s_add_u32 s64, s64, 1')
    a('s_nop 2')
    a(f's_cmp_ge_u32 s65, {target}\ns_cbranch_scc1 L_{tag}_ok')
    if sleep: a(f's_sleep {sleep}')
    a(f's_cmp_lt_u32 s64, {1 << 20}\ns_cbranch_scc1 L_{tag}')
    a.label(f'L_{tag}_ok')

def role_A4(a, cfg):
    a.label('L_roleA')
    if not cfg.fs: stamp(a, cfg, 0)
    if cfg.jp:
        for k in range(4): a(f's_cmp_eq_u32 s{S_W}, {4 + k}\ns_cbranch_scc1 L_A_jp{k}')
    else: a(f's_cmp_ge_u32 s{S_W}, 4\ns_cbranch_scc1 L_A_helper')
    n0 = len(a.lines)
    streamer(a, cfg)
    for k, t in reversed(list(enumerate(int(x) for x in cfg.jp.split(',') if x))):
        i = n0 + t
        while a.lines[i].startswith(('s_addc', 's_cselect', 's_cbranch', 'buffer_', 's_waitcnt', 's_nop')) or a.lines[i+1].startswith('s_cselect') and not a.lines[i].startswith(('s_cmp', 's_sub')): i += 1
        a.lines[i:i] = [f's_branch L_A_jq{k}', f'L_A_jp{k}:', 's_branch L_A_helper', f'L_A_jq{k}:']
    a.label('L_A_helper')
    helper(a, cfg)

def streamer(a, cfg):
    SRD_K, SRD_V = 40, 44
    S_OFF, S_A, S_REM, S_IT = 35, 36, 37, 38
    S_M3, S_M4, S_VAL = 48, 50, 52
    R = cfg.R
    V_OFF = [8, 9]; V_SP = [10, 11]
    V_MK = [V_MASK, 12]
    V_Q = [16, 20]
    V_T, V_M1, V_M2, V_M3, V_TA, V_TB = 24, 28, 30, 32, 34, 35
    V_S = 36
    V_ZERO = 47
    V_ACC, V_A = 48, 52
    V_X, V_Y, V_Z, V_F = 60, 61, 62, 63
    V_R = 64
    V_TMP = V_R + 4 * max(R, 32)
    assert R % 16 == 0 and V_R + 4 * R <= 249
    if cfg.sprio: a(f's_setprio {cfg.sprio}')
    if not cfg.fs:
        a(f's_lshl_b32 s62, s{S_HP}, 21')
        a(f's_sub_u32 s63, {128 << 20:#x}, s62')
        srd(a, SRD_K, P_AK, off_s=62, nrec_s=63)
    def stream_offsets():
        a(f's_lshl_b32 s{S_OFF}, s{S_R}, 2\ns_add_u32 s{S_OFF}, s{S_OFF}, s{S_W}\ns_lshl_b32 s{S_OFF}, s{S_OFF}, 12')
        a(f's_mov_b32 s{S_A}, s{S_OFF}')
        a(f'v_lshlrev_b32 v{V_OFF[0]}, 4, v{V_LANE}')
        a(f'v_add_u32 v{V_OFF[1]}, {64 << 20:#x}, v{V_OFF[0]}')
    if cfg.fs > 2: assert not (cfg.seq or cfg.pat)
    else: stream_offsets()
    S_SW, V_O2 = 84, V_TMP + 3
    if cfg.seq:
        a(f's_lshl_b32 s{S_SW}, s{S_OFF}, 1\ns_add_u32 s{S_SW}, s{S_SW}, {18*STEP:#x}')
        a(f's_mov_b32 s{S_SW+1}, {(64 << 20) - 18*STEP:#x}\ns_mov_b32 s{S_SW+2}, {2*STEP:#x}')
        a(f'v_add_u32 v{V_O2}, 4096, v{V_OFF[0]}')
    if cfg.bx or cfg.hx:
        xor_masks(a, cfg, S_SW + 1)
    V_PO = V_TMP + 4
    NQ, KO = pattern(cfg)
    if cfg.pat:
        pat_base(a, cfg, S_SW, S_R, S_W)
        for b in range(2):
            for k in range(4): a(f'v_add_u32 v{V_PO + 4*b + k}, {KO[k]:#x}, v{V_OFF[b]}')
    def rem_off(d, r):
        sh = 5 - (NQ.bit_length() - 1)
        a(f's_lshr_b32 s63, s{r}, {sh}\ns_mul_i32 s63, s63, {(2 << 20) // NQ - (1024 << sh):#x}')
        a(f's_lshl_b32 s{d}, s{r}, 10\ns_add_u32 s{d}, s{d}, s63\ns_add_u32 s{d}, s{d}, {REM // NQ:#x}')
    def slotK(n): return n if n < R else n % 16
    def slotV(n): return (n + NLD) % 16
    V_PA, V_ONE, V_CTL = V_TMP, V_TMP + 1, V_TMP + 2
    nlab = [0]
    def wait2(lo, hi=None):
        if cfg.mon and hi and hi > lo:
            nlab[0] += 1
            a(f's_cbranch_vccnz L_A_w{nlab[0]}')
            a(f's_waitcnt vmcnt({lo-1})')
            a.label(f'L_A_w{nlab[0]}')
            a(f's_waitcnt vmcnt({hi-1})')
        else: a(f's_waitcnt vmcnt({lo-1})')
    def ctl(i):
        if not cfg.mon: return
        if i % 8 == 0: a(f'ds_read_b32 v{V_CTL}, v{V_ZERO} offset:{L_CTL}')
        if i % 8 == 1:
            a('s_waitcnt lgkmcnt(1)')
            a(f'v_cmp_ne_u32 vcc, 0, v{V_CTL}')
    def issue(isv, n):
        issue0(isv, n)
        if cfg.mon and n % 2 and (isv or n >= 8): a(f'ds_add_u32 v{V_PA}, v{V_ONE} offset:{L_PROG}')
    def issue0(isv, n):
        srd_ = SRD_V if isv else SRD_K
        pol = cfg.vpol if isv else cfg.kpol
        dst = V_R + 4 * (slotV(n) if isv else slotK(n))
        if cfg.seq and n < NREG:
            if n % 8 == 0:
                if n == 0: a(f's_lshl_b32 s{S_A}, s{S_OFF}, 1')
                elif n == 160: a(f's_add_u32 s{S_A}, s{S_OFF}, {20*STEP:#x}')
                else:
                    a(f's_cmp_eq_u32 s{S_A}, s{S_SW}')
                    a(f's_cselect_b32 s60, s{S_SW+1}, s{S_SW+2}')
                    a(f's_add_u32 s{S_A}, s{S_A}, s60')
            v = V_OFF[batch(n)] if n >= 160 or not batch(n) else V_O2
            a(f'buffer_load_dwordx4 {vr(dst,4)}, v{v}, s[{srd_}:{srd_+3}], s{S_A} offen offset:{1024*(n%4)} {pol}')
        elif cfg.pat and n < NREG:
            if n % 8 == 0:
                if n > 0: a(f's_add_u32 s{S_A}, s{S_A}, {STEP // NQ:#x}')
                else: a(f's_mov_b32 s{S_A}, s{S_SW}')
            a(f'buffer_load_dwordx4 {vr(dst,4)}, v{V_PO + n % 8}, s[{srd_}:{srd_+3}], s{S_A} offen {pol}')
        elif n < NREG:
            if n % 8 == 0:
                if n > 0: a(f's_add_u32 s{S_A}, s{S_A}, {STEP:#x}')
                elif isv: a(f's_mov_b32 s{S_A}, s{S_OFF}')
            so = S_A
            if cfg.bx or cfg.hx:
                so = S_SW
                if n % 4 == 0: a(f's_xor_b32 s{so}, s{S_A}, s{S_SW + 1 + batch(n)}')
            a(f'buffer_load_dwordx4 {vr(dst,4)}, v{V_OFF[batch(n)]}, s[{srd_}:{srd_+3}], s{so} offen offset:{1024*(n%4)} {pol}')
        else:
            v = (V_SP if n % 2 else V_OFF)[batch(n)]
            so = S_REM
            if cfg.bx or cfg.hx:
                so = S_SW
                a(f's_xor_b32 s{so}, s{S_REM}, s{S_SW + 1 + batch(n)}')
            a(f'buffer_load_dwordx4 {vr(dst,4)}, v{v}, s[{srd_}:{srd_+3}], s{so} offen {pol}')
    L0, L1, L2, L3 = cfg.L0, cfg.La, cfg.Lb, cfg.Lc
    seq = []
    S_I = 54
    rot = [0]
    def job(kind, sb):
        def setup():
            if kind[0] == 'c':
                t0, t1 = int(kind[1]), int(kind[2]) if len(kind) > 2 else 8
                a(f's_lshl_b32 s60, s{S_H}, 19\ns_add_u32 s60, s60, {t0 << 16:#x}\ns_mov_b32 s61, {(t1 - t0) << 16:#x}')
                srd(a, sb, P_BC, off_s=60, nrec_s=61)
            elif kind in 'ow':
                a(f's_lshl_b32 s60, s{S_HP}, 17\ns_mov_b32 s61, {128*1024:#x}')
                srd(a, sb, P_BWO if kind == 'o' else P_AWO, off_s=60, nrec_s=61)
            else:
                a(f's_lshl_b32 s60, s{S_HP}, 8\ns_sub_u32 s61, {512*8192:#x}, s60')
                srd(a, sb, {'v': P_BWUV, 'k': P_BWUK, 'q': P_BWQ, 'a': P_AWQ}[kind], off_s=60, nrec_s=61)
        rows = kind in 'vkqa'
        sh = (15 if rows else 10) + cfg.spw
        nl = (128 if kind[0] != 'c' else 64 * ((int(kind[2]) if len(kind) > 2 else 8) - int(kind[1]))) >> cfg.spw
        r = rot[0]; rot[0] = (r + (nl % 24) // 8) % 3
        base, ex = nl // 24, (nl % 24) // 4
        for m in range((nl + 23) // 24):
            def ld(m=m, slot=len(seq) % 8):
                if m == 0: setup()
                if rows and cfg.fs > 2:
                    a(f'v_readlane_b32 s39, v{V_Z}, {8 * r + m}')
                elif cfg.spm:
                    if m == 0:
                        a(f's_lshr_b32 s58, s{S_I + r}, 2\ns_min_u32 s60, s58, {ex}\ns_mul_i32 s59, s58, {base}\ns_add_u32 s59, s59, s60')
                        a(f's_lshl_b32 s59, s59, 2\ns_add_u32 s59, s59, s{S_W}')
                    else: a('s_add_u32 s59, s59, 4')
                    if m == base: a(f's_cmp_lt_u32 s58, {ex}\ns_cselect_b32 s59, s59, {nl}')
                    if rows:
                        b = 4 - cfg.spw
                        a(f's_lshr_b32 s60, s59, 1\ns_xor_b32 s60, s60, s59\ns_and_b32 s60, s60, {1 << b}\ns_mul_i32 s60, s60, 3')
                        a(f's_xor_b32 s60, s60, s59\ns_lshl_b32 s39, s60, {sh}')
                    else: a(f's_lshl_b32 s39, s59, {sh}')
                elif m == 0: a(f's_lshl_b32 s39, s{S_I + r}, {sh}')
                else: a(f's_add_u32 s39, s39, {24 << sh:#x}')
                if cfg.spw: a(f'buffer_load_dword v{V_R + 4*(16 + slot)}, v{V_Y if rows else V_X}, s[{sb}:{sb+3}], s39 offen {cfg.spol.replace("+", " ")}')
                else: a(f'buffer_load_dwordx4 {vr(V_R + 4*(16 + slot),4)}, v{V_Y if rows else V_OFF[0]}, s[{sb}:{sb+3}], s39 offen {cfg.spol.replace("+", " ")}')
            seq.append(ld)
    def rotations():
        a(f's_lshr_b32 s{S_I}, s{S_OFF}, 12\ns_mov_b32 s57, 0xff')
        for r in (1, 2):
            a(f's_sub_u32 s{S_I+r}, s{S_I+r-1}, 8')
            a(f's_cselect_b32 s60, 24, 0')
            a(f's_add_u32 s{S_I+r}, s{S_I+r}, s60')
    def first_loads():
        k0, k1 = cfg.spf.split(',')[:2]
        ptr = {'v': P_BWUV, 'k': P_BWUK, 'q': P_BWQ, 'a': P_AWQ}
        pol = cfg.spol.replace("+", " ")
        def ld(sb, slot): a(f'buffer_load_dwordx4 {vr(V_R + 4*(16 + slot % 8),4)}, v{V_Y}, s[{sb}:{sb+3}], s39 offen {pol}')
        def base(sb, k):
            a(f's_add_u32 s{sb}, s{ptr[k]}, s60\ns_addc_u32 s{sb+1}, s{ptr[k]+1}, 0\ns_pack_ll_b32_b16 s{sb+1}, s{sb+1}, 0')
        a(f'v_and_b32 v{V_C}, 15, v0')
        a(f'v_lshrrev_b32 v{V_T}, 4, v0')
        a(f'v_lshlrev_b32 v{V_Y}, 4, v{V_C}')
        a(f'v_lshl_add_u32 v{V_Y}, v{V_T}, 13, v{V_Y}')
        a(f's_lshl_b32 s60, s{S_H}, 8\ns_sub_u32 s70, {512*8192:#x}, s60\ns_mov_b32 s71, 0x20000\ns_mov_b64 s[74:75], s[70:71]')
        a(f's_lshl_b32 s39, s{S_R}, 19')
        a('s_waitcnt lgkmcnt(0)')
        ist(a, cfg, 1)
        stamp(a, cfg, 0)
        span_mark(a, cfg, False)
        base(68, k0)
        for m in range(4):
            if m: a('s_add_u32 s39, s39, s71')
            ld(68, m)
        ist(a, cfg, 2)
        base(72, k1)
        a('s_xor_b32 s39, s39, 0x100000')
        for m in range(4):
            if m: a('s_sub_u32 s39, s39, s71')
            ld(72, 4 + m)
        ist(a, cfg, 3)
        a(f's_mov_b32 s{S_HP}, s{S_H}')
        common_lane_setup(a, False)
        seq.extend([None] * 8)
        def rest(sb, x0, n):
            def f():
                a(f's_add_u32 s39, s{S_R}, {x0}')
                if x0 == 20: a(f's_sub_u32 s60, s{S_R}, 2\ns_cmp_lt_u32 s60, 2\ns_cselect_b32 s39, s39, 32')
                a('s_lshl_b32 s39, s39, 17')
                ld(sb, n)
            seq.append(f)
        for n, (sb, x0) in enumerate(((68, 24), (68, 30), (72, 16), (72, 20))): rest(sb, x0, n)
        rot[0] = 2
    marks = []
    def mark(): marks.append(len(a.lines))
    if cfg.fs > 3:
        assert L0 == 8
        first_loads()
        mark()
    if cfg.spf:
        if cfg.fs > 2:
            assert cfg.spm and not cfg.spw and cfg.spf[0] in 'vkqa' and cfg.spf[2] in 'vkqa'
            t, u = V_T, V_T + 1
            a(f'v_bfe_u32 v{t}, v0, 3, 2')
            a(f'v_mad_i32_i24 v{t}, v{t}, -2, s{S_R}')
            a(f'v_add_u32 v{u}, 6, v{t}')
            a(f'v_min_u32 v{t}, v{t}, v{u}')
            a(f'v_min_u32 v{u}, 2, v{t}')
            a(f'v_mad_u32_u24 v{t}, v{t}, 5, v{u}')
            a(f'v_and_b32 v{V_F}, 7, v0')
            a(f'v_add_u32 v{t}, v{t}, v{V_F}')
            a(f'v_lshrrev_b32 v{V_Z}, 1, v{t}')
            a(f'v_add_u32 v{u}, v{u}, v{V_F}')
            a(f'v_xor_b32 v{V_Z}, v{V_Z}, v{t}')
            a(f'v_cmp_gt_u32 vcc, 7, v{u}')
            a(f'v_and_b32 v{V_Z}, 4, v{V_Z}')
            a(f'v_mul_u32_u24 v{V_Z}, 3, v{V_Z}')
            a(f'v_xor_b32 v{V_Z}, v{V_Z}, v{t}')
            a(f'v_cndmask_b32 v{V_Z}, 32, v{V_Z}, vcc')
            a(f'v_lshlrev_b32 v{V_Z}, 17, v{V_Z}')
            if cfg.fs == 3:
                a(f'v_lshrrev_b32 v{t}, 4, v0')
                a(f'v_lshlrev_b32 v{V_Y}, 4, v{V_C}')
                a(f'v_lshl_add_u32 v{V_Y}, v{t}, 13, v{V_Y}')
        else: rotations()
        if cfg.fs > 2: pass
        elif cfg.spw:
            a(f'v_lshlrev_b32 v{V_X}, {4 + cfg.spw}, v{V_LANE}')
            a(f'v_lshrrev_b32 v{V_Y}, 8, v{V_X}')
            a(f'v_lshlrev_b32 v{V_Y}, 13, v{V_Y}')
            a(f'v_bfi_b32 v{V_Y}, s57, v{V_X}, v{V_Y}')
        else:
            a(f'v_lshlrev_b32 v{V_Y}, 4, v{V_C}')
            a(f'v_lshl_add_u32 v{V_Y}, v{V_G}, 13, v{V_Y}')
        for i, k in enumerate(cfg.spf.split(',')):
            if cfg.fs < 4 or i > 1: job(k, 68 + 4 * (i % 4))
    npre = len(seq)
    for n in range(R): seq.append(lambda n=n: issue(False, n))
    if cfg.fs > 3:
        assert not cfg.fb
        mark()
        stream_offsets()
        rotations()
        mark()
        mask_setup(a, V_T)
        mark()
    elif cfg.fs:
        assert npre >= L0 and L0 <= 8
        post = []
        for i, f in enumerate(seq[:L0]):
            n0 = len(a.lines); f()
            new = a.lines[n0:]; del a.lines[n0:]
            for l in new:
                l = re.sub(r'\bs39\b', f's{44+i}', l)
                m = re.match(r's_add_u32 (s\d+), s(\d+), s60$', l)
                if m and P_AX <= int(m.group(2)) <= P_WS:
                    a(f's_mov_b32 {m.group(1)}, s60')
                    post.append(f's_add_u32 {m.group(1)}, s{m.group(2)}, {m.group(1)}')
                elif l.startswith(('s_addc_u32', 'buffer_load')) or l.endswith(', 0xffff'): post.append(l)
                else: a(l)
        late_entry(a, cfg, False)
        stamp(a, cfg, 0)
        span_mark(a, cfg, False)
        first = True
        for l in post:
            a(l)
            if first and l.startswith('buffer'): ist(a, cfg, 2); first = False
        ist(a, cfg, 3)
        if cfg.fb: a('s_barrier')
        if cfg.fs > 2:
            stream_offsets()
            rotations()
        mask_setup(a, V_T)
    else:
        for i, f in enumerate(seq[:L0]):
            f()
            if i == 0: ist(a, cfg, 2)
        ist(a, cfg, 3)
    a(f's_lshl_b32 s62, s{S_HP}, 21')
    a(f's_sub_u32 s63, {128 << 20:#x}, s62')
    if cfg.fs: srd(a, SRD_K, P_AK, off_s=62, nrec_s=63)
    srd(a, SRD_V, P_AV, off_s=62, nrec_s=63)
    mark()
    a(f's_mul_i32 s60, s{S_W}, 6\ns_add_u32 s60, s60, s{S_R}')
    if cfg.pat:
        rem_off(S_REM, 60)
        a('s_and_b32 s61, s60, 7\ns_add_u32 s61, s61, 24')
        rem_off(S_SW + 1, 61)
        a(f's_sub_u32 s{S_SW+1}, s{S_SW+1}, s{S_REM}')
    else: a(f's_lshl_b32 s{S_REM}, s60, 10\ns_add_u32 s{S_REM}, s{S_REM}, {REM:#x}')
    base_valid = sum(1 << bitrev4(c) for c in list(range(9)) + [12])
    a(f's_mov_b32 s{S_VAL}, {base_valid:#x}')
    a(f's_cmp_lt_u32 s60, 8')
    a(f's_cselect_b32 s61, {24*1024}, 0x80000000' if False else f's_cselect_b32 s61, 0, 1')
    a(f's_cselect_b32 s62, {1 << bitrev4(9):#x}, 0')
    a(f's_or_b32 s{S_VAL}, s{S_VAL}, s62')
    a(f's_lshl_b32 s61, s61, 31\ns_add_u32 s61, s61, {f"s{S_SW+1}" if cfg.pat else 24*1024}')
    a(f'v_add_u32 v{V_SP[0]}, s61, v{V_OFF[0]}')
    a(f's_sub_u32 s60, s60, 8\ns_cmp_lt_u32 s60, 8')
    a(f's_cselect_b32 s61, 0, 1')
    a(f's_cselect_b32 s62, {1 << bitrev4(13):#x}, 0')
    a(f's_or_b32 s{S_VAL}, s{S_VAL}, s62')
    a(f's_lshl_b32 s61, s61, 31\ns_add_u32 s61, s61, {f"s{S_SW+1}" if cfg.pat else 16*1024}')
    a(f'v_add_u32 v{V_SP[1]}, s61, v{V_OFF[1]}')
    a(f's_mul_i32 s{S_VAL}, s{S_VAL}, 0x10001\ns_mov_b32 s{S_VAL+1}, s{S_VAL}')
    mark()
    a(f's_mov_b32 s{S_M3}, 0xcccccccc\ns_mov_b32 s{S_M3+1}, 0xcccccccc')
    a(f's_mov_b32 s{S_M4}, 0xaaaaaaaa\ns_mov_b32 s{S_M4+1}, 0xaaaaaaaa')
    a(f'v_cmp_gt_u32 vcc, 8, v{V_C}')
    a(f'v_mov_b32 v{V_ZERO}, 0')
    for k in range(4): a(f'v_mov_b32 v{V_ACC+k}, 0')
    for k in range(4): a(f'v_cndmask_b32 v{V_MK[1]+k}, v{V_MASK+k}, v{V_ZERO}, vcc')
    for k in range(4): a(f'v_cndmask_b32 v{V_MK[0]+k}, v{V_ZERO}, v{V_MASK+k}, vcc')
    if cfg.mon:
        a(f'v_lshlrev_b32 v{V_PA}, 2, v{V_LANE}')
        a(f'v_mov_b32 v{V_ONE}, 1')
        a('s_mov_b64 vcc, 0')
    nbar = max(L0, min(npre + 8, cfg.wlate or cfg.nb))
    late = {}
    if cfg.dfr:
        mark()
        at = [int(x) for x in cfg.dfr.split(',')]
        assert cfg.fs > 3 and len(at) == 6 and at[0] <= 12 and at[0] <= at[2] <= at[5] <= npre + 8 and at[1] <= 24 and at[1] <= at[4] < len(seq) and at[3] <= npre
        for k in range(6): late.setdefault(at[k], []).extend(a.lines[marks[k]:marks[k+1]])
        del a.lines[marks[0]:]
    for i in range(L0, len(seq)):
        a.lines.extend(late.get(i, []))
        if i == nbar and not cfg.fb: a('s_barrier')
        if i == nbar: ist(a, cfg, 4)
        if i == cfg.ist: ist(a, cfg, 5)
        if cfg.st0 and i in (L0 + 1, 18, npre): stamp(a, cfg, {L0 + 1: 7, 18: 3, npre: 5}[i])
        n0 = len(a.lines); seq[i]()
        k = next(k for k in range(n0, len(a.lines)) if a.lines[k].startswith('buffer_load')) if cfg.fs else n0
        w = [f's_waitcnt vmcnt({(L0 if i < npre or not cfg.L0k else cfg.L0k) - 1})']
        if a.lines[k-1].startswith('v_readlane'): w.insert(0, 's_nop 3')
        a.lines[k:k] = w
    L0 = cfg.L0k or L0
    if cfg.fine: stamp(a, cfg, 4)
    qc = cfg.tag and cfg.qc
    a(f'v_lshlrev_b32 v{V_Y}, 4, v{V_C}')
    lds_spin(a, 'A_qw', V_X, V_ZERO, L_FLAGQ, 1 if qc else 4, 1)
    a(f'v_lshlrev_b32 v{V_X}, 5, v{V_C}')
    QT = [24, 28, 36, 40]
    if qc:
        for b in range(2): a(f'ds_read_b128 {vr(V_Q[b],4)}, v{V_Y} offset:{L_QP + 256*b}')
        a('s_waitcnt lgkmcnt(0)')
    for b in range(0 if qc else 2):
        for hf in range(2):
            for k in range(4):
                a(f'ds_read_b128 {vr(QT[k],4)}, v{V_X} offset:{L_QP + 1024*k + 512*b + 16*hf}')
            a('s_waitcnt lgkmcnt(2)')
            for e in range(4): a(f'v_add_f32 v{QT[0]+e}, v{QT[0]+e}, v{QT[1]+e}')
            a('s_waitcnt lgkmcnt(0)')
            for e in range(4): a(f'v_add_f32 v{QT[2]+e}, v{QT[2]+e}, v{QT[3]+e}')
            for e in range(4): a(f'v_add_f32 v{QT[0]+e}, v{QT[0]+e}, v{QT[2]+e}')
            for e in range(2): a(f'v_cvt_pk_bf16_f32 v{V_Q[b]+2*hf+e}, v{QT[0]+2*e}, v{QT[0]+2*e+1}')
    stamp(a, cfg, 1)

    class Merge:
        def __init__(s, carry): s.q = [('l1', 7, V_T + 2, V_T + 3, False)] if carry else []
        def pre(s):
            for t in s.q:
                if t[0] == 'l1': a(f'v_add_f32_dpp v{V_M1 + (t[1] & 1)}, v{t[2]}, v{t[2]} row_ror:8 row_mask:0xf bank_mask:0x3')
                if t[0] == 'l2' and not t[2]: a(f'v_add_f32_dpp v{V_M2 + (t[1] & 1)}, v{V_M1}, v{V_M1} row_shl:4 row_mask:0xf bank_mask:0x5')
                if t[0] == 'l3': a(f'v_add_f32_dpp v{V_TA}, v{V_M2}, v{V_M2} quad_perm:[2,3,0,1] row_mask:0xf bank_mask:0xf')
                if t[0] == 'l4':
                    a(f'v_add_f32_dpp v{V_TA}, v{V_M3}, v{V_M3} quad_perm:[1,0,3,2] row_mask:0xf bank_mask:0xf')
                    for k in range(10): a(f'v_mov_b32 v{V_S+k}, v{V_S+k+1}')
        def post(s, n):
            nxt = []
            for t in s.q:
                if t[0] == 'l1':
                    a(f'v_add_f32_dpp v{V_M1 + (t[1] & 1)}, v{t[3]}, v{t[3]} row_ror:8 row_mask:0xf bank_mask:0xc')
                    if t[1] & 1 or t[4]: nxt.append(('l2', t[1] >> 1, t[4]))
                if t[0] == 'l2':
                    if t[2]: a(f'v_add_f32_dpp v{V_M2 + (t[1] & 1)}, v{V_M1}, v{V_M1} row_shl:4 row_mask:0xf bank_mask:0x5')
                    else: a(f'v_add_f32_dpp v{V_M2 + (t[1] & 1)}, v{V_M1+1}, v{V_M1+1} row_shr:4 row_mask:0xf bank_mask:0xa')
                    if t[1] & 1: nxt.append(('l3', t[1] >> 1))
                if t[0] == 'l3':
                    a(f'v_add_f32_dpp v{V_TB}, v{V_M2+1}, v{V_M2+1} quad_perm:[2,3,0,1] row_mask:0xf bank_mask:0xf')
                    a(f'v_cndmask_b32 v{V_M3 + t[1]}, v{V_TA}, v{V_TB}, s[{S_M3}:{S_M3+1}]')
                    if t[1]: nxt.append(('l4',))
                if t[0] == 'l4':
                    a(f'v_add_f32_dpp v{V_TB}, v{V_M3+1}, v{V_M3+1} quad_perm:[1,0,3,2] row_mask:0xf bank_mask:0xf')
                    a(f'v_cndmask_b32 v{V_S+10}, v{V_TA}, v{V_TB}, s[{S_M4}:{S_M4+1}]')
            if n is not None and n % 2: nxt.append(('l1', pos(n) >> 1, V_T + (n - 1) % 4, V_T + n % 4, n >= NREG))
            s.q = nxt
    def consumeK(mg, n):
        src = V_R + 4 * slotK(n); t = V_T + n % 4; q = V_Q[batch(n)]
        mg.pre()
        a(f'v_dot2_f32_bf16 v{t}, v{src}, v{q}, 0')
        for k in range(1, 4): a(f'v_dot2_f32_bf16 v{t}, v{src+k}, v{q+k}, v{t}')
        mg.post(n)
    D = 8
    mg = Merge(False)
    G0 = R // 16 + 1
    issued, landed, n = R, R - L0, 0
    def occupant(m): return m % 16 if m < R + 16 else m - 16
    since = 0; nissue = 0
    while n < 16 * G0:
        free = occupant(issued) < n
        want = issued - n <= D or nissue < L1 or since >= cfg.catch
        if free and want and issued < 16 * G0 + D and (issued - n < D + 1 or True):
            if issued - n <= D or issued - n > D:
                a(f's_waitcnt vmcnt({L1-1})'); landed = max(landed, issued - (L1 - 1))
                issue(False, issued); issued += 1; since = 0; nissue += 1
        if n >= landed:
            a(f's_waitcnt vmcnt({issued - 1 - n})'); landed = n + 1
        consumeK(mg, n); n += 1; since += 1
    while issued < 16 * G0 + D:
        a(f's_waitcnt vmcnt({L1-1})'); issue(False, issued); issued += 1
    def kloop(tag, L, count, G0=G0):
        if count <= 0: return
        a(f's_mov_b32 s{S_IT}, {count}')
        a('.p2align 6')
        a.label(f'L_A_k{tag}')
        m = Merge(True)
        for i in range(16):
            nn = 16 * G0 + i
            wait2(L, cfg.HK)
            issue(False, nn + D)
            ctl(i)
            consumeK(m, nn)
        a(f's_sub_u32 s{S_IT}, s{S_IT}, 1\ns_cmp_lg_u32 s{S_IT}, 0\ns_cbranch_scc1 L_A_k{tag}')
    na = min(cfg.NKa, 10 - G0)
    if cfg.seq:
        kloop('a', L1, 9 - G0)
        kloop('b', L1 if na == 10 - G0 else L2, 1, 9)
    else: kloop('a', L1, na)
    if cfg.fine and not cfg.st0: stamp(a, cfg, 5)
    if not cfg.seq: kloop('b', L2, 10 - G0 - na)
    mg = Merge(True)
    for nn in range(160, NLD):
        wait2(L2, cfg.HK)
        m = nn + D
        if m < NLD: issue(False, m)
        else: issue(True, m - NLD)
        consumeK(mg, nn)
    DV = 12
    extra = list(range(D, DV))
    def vissue():
        if extra:
            a(f's_waitcnt vmcnt({L2-1})')
            issue(True, extra.pop(0))
    while mg.q:
        a.nop(3); mg.pre(); a.nop(2); mg.post(None)
    if cfg.fine: stamp(a, cfg, 6)
    a(f'v_mov_b32 v{V_X}, 0xff800000')
    a(f'v_cndmask_b32 v{V_S+10}, v{V_X}, v{V_S+10}, s[{S_VAL}:{S_VAL+1}]')
    a(f'v_max3_f32 v{V_X}, v{V_S}, v{V_S+1}, v{V_S+2}')
    for k in range(3, 11, 2): a(f'v_max3_f32 v{V_X}, v{V_X}, v{V_S+k}, v{V_S+k+1}')
    def batch_allreduce(op, x):
        for ctl in ('quad_perm:[1,0,3,2]', 'row_ror:4', 'row_ror:8'):
            a.nop(2)
            a(f'{op}_dpp v{x}, v{x}, v{x} {ctl} row_mask:0xf bank_mask:0xf')
        xrow_allreduce(a, op, x, V_TA)
    vissue()
    batch_allreduce('v_max_f32', V_X)
    a(f's_mov_b32 s62, {f2u(SCALE):#x}')
    a(f'v_mul_f32 v{V_X}, s62, v{V_X}')
    vissue()
    for k in range(11): a(f'v_fma_f32 v{V_S+k}, v{V_S+k}, s62, -v{V_X}')
    for k in range(11): a(f'v_exp_f32 v{V_S+k}, v{V_S+k}')
    vissue()
    a(f'v_add_f32 v{V_Y}, v{V_S}, v{V_S+1}')
    for k in range(2, 11): a(f'v_add_f32 v{V_Y}, v{V_Y}, v{V_S+k}')
    for k in range(11): a(f'v_cvt_pk_bf16_f32 v{V_S+k}, v{V_S+k}, v{V_S+k}')
    vissue()
    batch_allreduce('v_add_f32', V_Y)
    a(f's_lshl_b32 s62, s{S_W}, 2')
    a(f'v_lshl_add_u32 v{V_Z}, v{V_LANE}, 3, s62')
    a(f'v_mov_b32 v{V_F}, 1')
    a('s_mov_b64 exec, 5')
    a(f'ds_write_b32 v{V_Z}, v{V_X} offset:{L_STAT}')
    a(f'ds_write_b32 v{V_Z}, v{V_Y} offset:{L_STAT + 32}')
    a('s_mov_b64 exec, 1')
    a(f'ds_add_u32 v{V_ZERO}, v{V_F} offset:{L_FLAGS}')
    a('s_mov_b64 exec, -1')
    assert not extra
    if cfg.fine and not cfg.st7 and not cfg.st0: stamp(a, cfg, 7)
    def prepA(n):
        if n % 16 == 0 and n > 0:
            for k in range(10): a(f'v_mov_b32 v{V_S+k}, v{V_S+k+1}')
        for k in range(4):
            a(f'v_and_b32_dpp v{V_A + 4*(n&1) + k}, v{V_S}, v{V_MK[batch(n)]+k} row_newbcast:{bitrev4(pos(n))} row_mask:0xf bank_mask:0xf')
    def mfma(n):
        a(f'v_mfma_f32_16x16x32_bf16 {vr(V_ACC,4)}, {vr(V_A + 4*(n&1),4)}, {vr(V_R + 4*slotV(n),4)}, {vr(V_ACC,4)}')
    prepA(0)
    def vloop(tag, L, count):
        if count <= 0: return
        a(f's_mov_b32 s{S_IT}, {count}')
        a('.p2align 6')
        a.label(f'L_A_v{tag}')
        for i in range(16):
            wait2(L, cfg.HV)
            issue(True, 16 + i + DV)
            mfma(16 + i); ctl(i); prepA(16 + i + 1)
        a(f's_sub_u32 s{S_IT}, s{S_IT}, 1\ns_cmp_lg_u32 s{S_IT}, 0\ns_cbranch_scc1 L_A_v{tag}')
    nva = min(cfg.NVa, 9)
    if cfg.Lj:
        a(f's_cmp_lg_u32 s{S_R}, 0\ns_cbranch_scc1 L_A_vn')
        vloop('j', cfg.Lj, 9)
        a('s_branch L_A_vx')
        a.label('L_A_vn')
    vloop('a', L2, nva)
    vloop('b', L3, 9 - nva)
    if cfg.Lj: a.label('L_A_vx')
    ST = V_T
    if cfg.fine and not cfg.st0: stamp(a, cfg, 3)
    L3 = cfg.Ld or L3
    for nn in range(144, NLD):
        m = nn + DV
        if m < NLD:
            if cfg.tctl: wait2(cfg.tctl, L3)
            else: a(f's_waitcnt vmcnt({L3-1})')
            issue(True, m)
            if cfg.tctl and nn in (148, 149): ctl(nn - 148)
        else:
            a(f's_waitcnt vmcnt({min(L3 - 1, NLD - 1 - nn)})' if NLD - 1 - nn < L3 else 's_nop 0')
            a('s_nop 0')
        mfma(nn)
        if nn + 1 < NLD: prepA(nn + 1)
        if nn == 144:
            lds_spin(a, 'A_sw', V_X, V_ZERO, L_FLAGS, 4, 1)
            a(f'v_lshrrev_b32 v{V_X}, 1, v{V_G}')
            a(f'v_lshlrev_b32 v{V_X}, 4, v{V_X}')
            a(f's_lshl_b32 s62, s{S_W}, 2')
            a(f'v_add_u32 v{V_Y}, s62, v{V_X}')
            a(f'ds_read_b128 {vr(ST,4)}, v{V_X} offset:{L_STAT}')
            a(f'ds_read_b32 v{V_F}, v{V_Y} offset:{L_STAT}')
        if nn == 146:
            a('s_waitcnt lgkmcnt(0)')
            a(f'v_max3_f32 v{V_X}, v{ST}, v{ST+1}, v{ST+2}')
            a(f'v_max_f32 v{V_X}, v{V_X}, v{ST+3}')
            a(f'v_sub_f32 v{V_F}, v{V_F}, v{V_X}')
            a(f'v_exp_f32 v{V_F}, v{V_F}')
            rs = 2 * SP_RS if cfg.smf else OB_RS
            a(f'v_lshrrev_b32 v{V_Z}, 1, v{V_G}')
            a(f'v_mul_u32_u24 v{V_Z}, {4*rs}, v{V_Z}')
            a(f'v_lshl_add_u32 v{V_Z}, v{V_C}, {3 if cfg.smf else 4}, v{V_Z}')
            a(f'v_and_b32 v{V_Y}, 1, v{V_G}')
            a(f'v_lshl_add_u32 v{V_Z}, v{V_Y}, {2 if cfg.smf else 3}, v{V_Z}')
            a(f's_mul_i32 s62, s{S_W}, {rs}')
            if cfg.smf: a(f's_add_u32 s62, s62, {L_OB}')
            a(f'v_add_u32 v{V_Z}, s62, v{V_Z}')
    if cfg.fine and cfg.st7: stamp(a, cfg, 7)
    a.nop(8)
    for k in (0, 2): a(f'v_pk_mul_f32 {vr(V_ACC+k,2)}, {vr(V_ACC+k,2)}, {vr(V_F-1,2)} op_sel:[0,1] op_sel_hi:[1,1]')
    a(f'v_cvt_pk_bf16_f32 v{V_ACC}, v{V_ACC}, v{V_ACC+1}')
    a(f'v_cvt_pk_bf16_f32 v{V_ACC+1}, v{V_ACC+2}, v{V_ACC+3}')
    if cfg.smf: a(f'ds_write2_b32 v{V_Z}, v{V_ACC}, v{V_ACC+1} offset1:{SP_RS // 4}')
    else: a(f'ds_write_b64 v{V_Z}, {vr(V_ACC,2)} offset:{L_OB}')
    a('s_waitcnt lgkmcnt(0)\ns_barrier')
    stamp(a, cfg, 2)
    ist(a, cfg, -1)
    a('s_endpgm')

def group_base(a, S_BASE):
    a(f's_and_b32 s63, s{S_H}, 7\ns_mul_i32 s63, s63, {G.CFG.gstr:#x}\ns_add_u32 s63, s63, {WS_PROG:#x}')
    a(f's_add_u32 s{S_BASE}, s{P_WS}, s63\ns_addc_u32 s{S_BASE+1}, s{P_WS+1}, 0')

def group_sum(a, S_BASE, va, v, s_sum, s_g, own=None, six=None):
    a('s_mov_b64 exec, 0x1ffffff')
    if six: a('s_mov_b32 exec_hi, 0x3f')
    a(f'global_load_dword v{v}, v{va}, s[{S_BASE}:{S_BASE+1}] {G.CFG.gpol.replace("+", " ")}')
    a('s_waitcnt vmcnt(0)')
    a(f'v_subrev_u32 v{v}, s{S_TAG}, v{v}')
    a('s_mov_b64 exec, 0xffffff')
    a(f'v_cmp_le_u32 vcc, 0x400, v{v}')
    a(f'v_readlane_b32 s{s_g}, v{v}, 24')
    if own: a(f'v_readlane_b32 s{own[0]}, v{v}, s{own[1]}')
    for st in (1, 2, 4, 8):
        if st > 1: a.nop(2)
        a(f'v_add_u32_dpp v{v}, v{v}, v{v} row_shr:{st} row_mask:0xf bank_mask:0xf bound_ctrl:0')
    a.nop(1)
    a(f'v_readlane_b32 s{s_sum}, v{v}, 15')
    a(f'v_readlane_b32 s63, v{v}, 23')
    a(f's_add_u32 s{s_sum}, s{s_sum}, s63')

def monitor(a, cfg, S_K, V_ZERO, V_TMP):
    S_BASE, S_NOW, S_PREV, S_SUM, S_G, S_N = 56, 58, 59, 61, 62, 64
    U = 20 * 24
    if cfg.post: a(f's_sub_u32 s63, s{S_K}, 1\ns_cmp_gt_u32 s63, 1\ns_cbranch_scc1 L_A_monx')
    else: a(f's_cmp_lg_u32 s{S_K}, 1\ns_cbranch_scc1 L_A_monx')
    group_base(a, S_BASE)
    a(f's_mov_b32 s{S_N}, 0\ns_mov_b32 s{S_PREV}, 0')
    a(f's_lshr_b32 s62, s{S_H}, 3\ns_mul_i32 s62, s62, 6\ns_add_u32 s62, s62, s{S_R}\ns_lshl_b32 s62, s62, 2')
    a(f'v_mov_b32 v{V_TMP}, s62')
    a(f'v_lshlrev_b32 v{V_TMP+4}, 2, v{V_LANE}')
    if cfg.post:
        a('s_lshr_b32 s65, s62, 2')
        a(f's_cmp_eq_u32 s{S_K}, 1\ns_cbranch_scc1 L_A_mon')
        a('s_mov_b64 exec, 1')
        a(f's_mov_b32 s{S_PREV}, {-cfg.post}')
        a.label('L_A_post')
        a(f'ds_read_b32 v{V_TMP+1}, v{V_ZERO} offset:{L_PROG}')
        a('s_waitcnt lgkmcnt(0)')
        a(f'v_readfirstlane_b32 s{S_NOW}, v{V_TMP+1}')
        a(f'v_add_u32 v{V_TMP+2}, s{S_TAG}, v{V_TMP+1}')
        a(f's_sub_u32 s63, s{S_NOW}, s{S_PREV}\ns_cmp_lt_u32 s63, {cfg.post}\ns_cbranch_scc1 L_A_postn')
        a(f'global_store_dword v{V_TMP}, v{V_TMP+2}, s[{S_BASE}:{S_BASE+1}]')
        a(f's_mov_b32 s{S_PREV}, s{S_NOW}')
        a(f's_cmp_ge_u32 s{S_NOW}, {cfg.pend}\ns_cbranch_scc1 L_A_monx')
        a.label('L_A_postn')
        a(f's_sleep {cfg.psl}')
        a(f's_add_u32 s{S_N}, s{S_N}, 1\ns_cmp_lt_u32 s{S_N}, {1 << 16}\ns_cbranch_scc1 L_A_post')
        a('s_branch L_A_monx')
    a.label('L_A_mon')
    a('s_mov_b64 exec, 1')
    a(f'ds_read_b32 v{V_TMP+1}, v{V_ZERO} offset:{L_PROG}')
    a('s_waitcnt lgkmcnt(0)')
    a(f'v_add_u32 v{V_TMP+2}, s{S_TAG}, v{V_TMP+1}')
    a(f'v_readfirstlane_b32 s{S_NOW}, v{V_TMP+1}')
    if not cfg.post: a(f'global_store_dword v{V_TMP}, v{V_TMP+2}, s[{S_BASE}:{S_BASE+1}]')
    group_sum(a, S_BASE, V_TMP + 4, V_TMP + 5, S_SUM, S_G, own=(S_PREV, 65) if cfg.post else None)
    if cfg.post: a(f's_mul_i32 s63, s{S_PREV}, 24\ns_sub_u32 s{S_SUM}, s{S_SUM}, s63')
    else: a(f's_add_u32 s63, s{S_NOW}, s{S_PREV}\ns_mul_i32 s63, s63, 12\ns_sub_u32 s{S_SUM}, s{S_SUM}, s63')
    if cfg.mon > 1:
        a(f's_cmp_lt_u32 s{S_G}, 0x8000\ns_cselect_b32 s{S_G}, s{S_G}, 0x4000')
        a(f's_add_u32 s{S_SUM}, s{S_SUM}, s{S_G}\ns_sub_u32 s{S_SUM}, s{S_SUM}, 0x4000')
    a(f's_mov_b32 s63, {cfg.tha * U // 100}')
    a(f's_cmp_lt_u32 s{S_NOW}, {cfg.mp1}\ns_cselect_b32 s63, s63, {cfg.thb * U // 100}')
    a(f's_cmp_gt_i32 s{S_SUM}, s63\ns_cselect_b32 s63, 1, 0')
    a(f's_cmp_eq_u64 vcc, 0\ns_cselect_b32 s63, s63, {cfg.mdef}')
    if not cfg.tctl: a(f's_cmp_lt_u32 s{S_NOW}, {cfg.mend}\ns_cselect_b32 s63, s63, 1')
    a(f'v_mov_b32 v{V_TMP+3}, s63')
    a(f'ds_write_b32 v{V_ZERO}, v{V_TMP+3} offset:{L_CTL}')
    if cfg.lite: a(f's_add_u32 s98, s98, s63\ns_add_u32 s99, s99, 1')
    a(f's_mov_b32 s{S_PREV}, s{S_NOW}')
    a(f's_cmp_ge_u32 s{S_NOW}, {cfg.mend}\ns_cbranch_scc1 L_A_monx')
    if cfg.msl: a(f's_sleep {cfg.msl}')
    a(f's_add_u32 s{S_N}, s{S_N}, 1\ns_cmp_lt_u32 s{S_N}, 4096\ns_cbranch_scc1 L_A_mon')
    a.label('L_A_monx')
    a('s_mov_b64 exec, -1')

def exchange(a, cfg, tag, V, V_ZERO, L_STOP):
    if cfg.grot: return exchange_rot(a, cfg, tag, V, V_ZERO, L_STOP)
    S_BASE, S_PREV, S_SUM, S_G, S_N = 56, 59, 61, 62, 64
    group_base(a, S_BASE)
    a(f's_mov_b32 s{S_N}, 0\ns_mov_b32 s{S_PREV}, 0')
    a(f's_lshl_b32 s62, s{S_H}, 8\ns_add_u32 s62, s62, {WS_PROG + 0x1000:#x}')
    a(f'v_lshl_add_u32 v{V+4}, v{V_LANE}, 4, s62')
    a(f's_mov_b32 s62, {WS_PROG + 0x1000:#x}')
    a(f'v_lshl_add_u32 v{V+5}, v{V_LANE}, 8, s62')
    a(f'v_lshlrev_b32 v{V+6}, 2, v{V_LANE}')
    a(f'v_mov_b32 v{V+7}, 96')
    a.label(f'L_gm_{tag}')
    if cfg.gpar:
        a('s_mov_b64 exec, 0xff')
        a(f'global_load_dword v{V+9}, v{V+5}, s[{P_WS}:{P_WS+1}] sc1')
    group_sum(a, S_BASE, V + 6, V + 8, S_SUM, S_G)
    a('s_mov_b64 exec, 0xff')
    a(f's_cbranch_vccnz L_gm_{tag}_{"next" if L_STOP is not None else "x"}')
    a(f's_add_u32 s63, s{S_SUM}, s{S_TAG}')
    for k in range(4): a(f'v_mov_b32 v{V+k}, s63')
    a(f'global_store_dwordx4 v{V+4}, {vr(V,4)}, s[{P_WS}:{P_WS+1}] sc1')
    if not cfg.gpar: a(f'global_load_dword v{V+9}, v{V+5}, s[{P_WS}:{P_WS+1}] sc1')
    a(f's_mul_i32 s63, s{S_SUM}, {cfg.gmix}\ns_mul_i32 s65, s{S_PREV}, {8 - cfg.gmix}\ns_add_u32 s65, s65, s63')
    a(f's_cmp_eq_u32 s{S_PREV}, 0\ns_mov_b32 s{S_PREV}, s{S_SUM}')
    if not cfg.gpar: a('s_waitcnt vmcnt(0)')
    a(f's_cbranch_scc1 L_gm_{tag}_next')
    a(f'v_subrev_u32 v{V+9}, s{S_TAG}, v{V+9}')
    a(f'v_cmp_le_u32 vcc, 0x8000, v{V+9}')
    a('s_nop 0')
    for st in (1, 2, 4):
        if st > 1: a.nop(2)
        a(f'v_add_u32_dpp v{V+9}, v{V+9}, v{V+9} row_shr:{st} row_mask:0xf bank_mask:0xf bound_ctrl:0')
    a(f's_cbranch_vccnz L_gm_{tag}_next')
    a('s_nop 0')
    a(f'v_readlane_b32 s63, v{V+9}, 7')
    a(f's_sub_u32 s63, s63, s65\ns_ashr_i32 s63, s63, 3')
    if cfg.ggain != 100: a(f's_mul_i32 s63, s63, {cfg.ggain * 64 // 100}\ns_ashr_i32 s63, s63, 6')
    a(f's_add_u32 s63, s63, 0x4000\ns_add_u32 s63, s63, s{S_TAG}')
    a(f'v_mov_b32 v{V+10}, s63')
    a(f'global_store_dword v{V+7}, v{V+10}, s[{S_BASE}:{S_BASE+1}]')
    a.label(f'L_gm_{tag}_next')
    if L_STOP is not None:
        a(f'ds_read_b32 v{V+11}, v{V_ZERO} offset:{L_STOP}')
        a('s_waitcnt lgkmcnt(0)')
        a(f'v_readfirstlane_b32 s63, v{V+11}')
        a(f's_cmp_eq_u32 s63, s{S_TAG}\ns_cbranch_scc1 L_gm_{tag}_x')
    else: a(f's_cmp_ge_u32 s{S_SUM}, {24 * (cfg.mend - 20)}\ns_cbranch_scc1 L_gm_{tag}_x')
    if cfg.gsl: a(f's_sleep {cfg.gsl}')
    a(f's_add_u32 s{S_N}, s{S_N}, 1\ns_cmp_lt_u32 s{S_N}, {128 if cfg.gpar else 64}\ns_cbranch_scc1 L_gm_{tag}')
    a.label(f'L_gm_{tag}_x')
    a('s_mov_b64 exec, -1')

def exchange_rot(a, cfg, tag, V, V_ZERO, L_STOP):
    S_BASE, S_K, S_PREV, S_SUM, S_G, S_N = 56, 58, 59, 61, 62, 64
    VO, VX, VS, VA, VW, VP, VY, VM, VT = V + 4, V + 5, V + 6, V + 7, V + 8, V + 9, V + 10, V + 11, V + 12
    group_base(a, S_BASE)
    a(f's_mov_b32 s{S_N}, 0\ns_mov_b32 s{S_PREV}, 0\ns_mov_b32 s{S_K}, 0')
    a(f's_lshl_b32 s62, s{S_H}, 12\ns_add_u32 s62, s62, {WS_GLOB:#x}')
    a(f'v_lshl_add_u32 v{VO}, v{V_LANE}, 4, s62')
    a(f'v_lshrrev_b32 v{VX}, 2, v{V_LANE}')
    a(f's_mov_b32 s62, {WS_GLOB:#x}')
    a(f'v_lshl_add_u32 v{VX}, v{VX}, 12, s62')
    a(f'v_and_b32 v{VS}, 3, v{V_LANE}')
    a(f'v_lshlrev_b32 v{VW}, 2, v{V_LANE}')
    a(f'v_mov_b32 v{VM}, 0')
    a.label(f'L_gm_{tag}')
    a('s_mov_b32 exec_lo, -1\ns_mov_b32 exec_hi, 0')
    a(f'v_add_u32 v{VA}, s{S_K}, v{VS}')
    a(f'v_and_b32 v{VA}, 15, v{VA}')
    a(f'v_lshl_add_u32 v{VA}, v{VA}, 8, v{VX}')
    a(f'global_load_dword v{VY}, v{VA}, s[{P_WS}:{P_WS+1}] sc1')
    group_sum(a, S_BASE, VW, VP, S_SUM, S_G)
    a('s_mov_b64 exec, 0xff')
    a(f's_cbranch_vccnz L_gm_{tag}_{"next" if L_STOP is not None else "x"}')
    a(f's_add_u32 s63, s{S_SUM}, s{S_TAG}')
    for k in range(4): a(f'v_mov_b32 v{V+k}, s63')
    a(f's_lshr_b32 s{S_K}, s{S_SUM}, {cfg.grot}\ns_and_b32 s63, s{S_K}, 15\ns_lshl_b32 s63, s63, 8')
    a(f'v_add_u32 v{VA}, s63, v{VO}')
    a(f's_sub_u32 s{S_K}, s{S_K}, {cfg.gback}')
    a(f'global_store_dwordx4 v{VA}, {vr(V,4)}, s[{P_WS}:{P_WS+1}] sc1')
    a(f's_mul_i32 s63, s{S_SUM}, {cfg.gmix}\ns_mul_i32 s65, s{S_PREV}, {8 - cfg.gmix}\ns_add_u32 s65, s65, s63')
    a(f's_cmp_eq_u32 s{S_PREV}, 0\ns_mov_b32 s{S_PREV}, s{S_SUM}')
    a(f's_cbranch_scc1 L_gm_{tag}_next')
    a('s_mov_b32 exec_lo, -1')
    a(f'v_subrev_u32 v{VY}, s{S_TAG}, v{VY}')
    a(f'v_cmp_gt_u32 vcc, 0x8000, v{VY}')
    a.nop(2)
    a(f'v_cndmask_b32 v{VY}, 0, v{VY}, vcc')
    a(f'v_max_u32 v{VM}, v{VM}, v{VY}')
    for qp in ('[1,0,3,2]', '[2,3,0,1]'):
        a.nop(2)
        a(f'v_max_u32_dpp v{VM}, v{VM}, v{VM} quad_perm:{qp} row_mask:0xf bank_mask:0xf')
    a(f'v_cmp_eq_u32 vcc, 0, v{VM}')
    a.nop(1)
    a(f'v_add_u32_dpp v{VY}, v{VM}, v{VM} row_shr:4 row_mask:0xf bank_mask:0xf bound_ctrl:0')
    a.nop(2)
    a(f'v_add_u32_dpp v{VY}, v{VY}, v{VY} row_shr:8 row_mask:0xf bank_mask:0xf bound_ctrl:0')
    a(f's_cbranch_vccnz L_gm_{tag}_next')
    a('s_nop 0')
    a(f'v_readlane_b32 s63, v{VY}, 15')
    a(f'v_readlane_b32 s62, v{VY}, 31')
    a('s_add_u32 s63, s63, s62')
    a(f's_sub_u32 s63, s63, s65\ns_ashr_i32 s63, s63, 3')
    if cfg.ggain != 100: a(f's_mul_i32 s63, s63, {cfg.ggain * 64 // 100}\ns_ashr_i32 s63, s63, 6')
    a(f's_add_u32 s63, s63, 0x4000\ns_add_u32 s63, s63, s{S_TAG}')
    a('s_mov_b64 exec, 0x1000000')
    a(f'v_mov_b32 v{VT}, s63')
    a(f'global_store_dword v{VW}, v{VT}, s[{S_BASE}:{S_BASE+1}]')
    a.label(f'L_gm_{tag}_next')
    if L_STOP is not None:
        a(f'ds_read_b32 v{VP}, v{V_ZERO} offset:{L_STOP}')
        a('s_waitcnt lgkmcnt(0)')
        a(f'v_readfirstlane_b32 s63, v{VP}')
        a(f's_cmp_eq_u32 s63, s{S_TAG}\ns_cbranch_scc1 L_gm_{tag}_x')
    else: a(f's_cmp_ge_u32 s{S_SUM}, {24 * (cfg.mend - 20)}\ns_cbranch_scc1 L_gm_{tag}_x')
    if cfg.gsl: a(f's_sleep {cfg.gsl}')
    a(f's_add_u32 s{S_N}, s{S_N}, 1\ns_cmp_lt_u32 s{S_N}, 128\ns_cbranch_scc1 L_gm_{tag}')
    a.label(f'L_gm_{tag}_x')
    a('s_mov_b64 exec, -1')

def assist(a, cfg, tag, V, V_ZERO, L_STOP):
    S_BASE, S_SUM, S_G, S_N, SRD = 56, 61, 62, 64, 68
    VA, VP, VU, VK, VL, V0, V1, VD, VT = range(V, V + 9)
    U = 20 * 24
    group_base(a, S_BASE)
    a(f's_lshl_b32 s62, s{S_HP}, 21')
    a(f's_sub_u32 s63, {128 << 20:#x}, s62')
    srd(a, SRD, P_AK, off_s=62, nrec_s=63)
    srd(a, SRD + 4, P_AV, off_s=62, nrec_s=63)
    a(f's_mov_b64 s[{SRD+8}:{SRD+9}], s[{SRD}:{SRD+1}]\ns_mov_b64 s[{SRD+10}:{SRD+11}], s[{SRD+2}:{SRD+3}]')
    a(f's_lshr_b32 s62, s{S_H}, 3\ns_mul_i32 s62, s62, 6\ns_sub_u32 s62, s62, 32')
    a(f'v_add_u32 v{VT}, s62, v{V_LANE}')
    a(f'v_cmp_gt_u32 vcc, 32, v{V_LANE}')
    a(f'v_lshlrev_b32 v{V0}, 7, v{V_LANE}')
    a(f'v_add_u32 v{V1}, {64 << 20:#x}, v{V0}')
    a(f'v_cndmask_b32 v{VA}, v{VT}, v{V_LANE}, vcc')
    a(f'v_lshlrev_b32 v{VA}, 2, v{VA}')
    if cfg.lite: a('s_mov_b32 s98, 0')
    a(f'v_mov_b32 v{VL}, 0')
    a(f's_mov_b32 s{S_N}, 0')
    a.label(f'L_as_{tag}')
    group_sum(a, S_BASE, VA, VP, S_SUM, S_G, six=True)
    a(f's_cbranch_vccnz L_as_{tag}_{"idle" if L_STOP is not None else "x"}')
    if L_STOP is None: a(f's_cmp_ge_u32 s{S_SUM}, {24 * (cfg.pend - 8)}\ns_cbranch_scc1 L_as_{tag}_x')
    if cfg.ag:
        a(f's_cmp_lt_u32 s{S_G}, 0x8000\ns_cselect_b32 s{S_G}, s{S_G}, 0x4000')
        a(f's_add_u32 s{S_SUM}, s{S_SUM}, s{S_G}\ns_sub_u32 s{S_SUM}, s{S_SUM}, {0x4000 + cfg.ath * U // 100}')
    else: a(f's_sub_u32 s{S_SUM}, s{S_SUM}, {cfg.ath * U // 100}')
    a('s_mov_b32 exec_lo, 0\ns_mov_b32 exec_hi, 0x3f')
    a(f'v_cmp_gt_u32 vcc, {328 - cfg.lead}, v{VP}')
    a(f'v_add_u32 v{VU}, {cfg.lead + 8}, v{VP}')
    a('s_nop 0')
    a(f'v_cndmask_b32 v{VT}, 0, 8, vcc')
    a(f'v_add_u32 v{VU}, v{VU}, v{VT}')
    a(f'v_lshrrev_b32 v{VU}, 4, v{VU}')
    a(f'v_sub_u32 v{VT}, v{VU}, v{VL}')
    a(f'v_cmp_gt_i32 vcc, {cfg.acs}, v{VT}')
    a(f'v_cmp_le_i32 s[66:67], {cfg.agap}, v{VT}')
    a('s_nop 0')
    a(f'v_cndmask_b32 v{VK}, 0, {cfg.acr}, vcc')
    a(f'v_cmp_ge_u32 vcc, 41, v{VU}')
    a(f'v_add_u32 v{VK}, v{VK}, v{VP}')
    a(f'v_lshl_add_u32 v{VK}, v{VK}, 6, v{V_LANE}')
    a('s_and_b64 vcc, vcc, s[66:67]')
    a(f'v_cndmask_b32 v{VK}, -1, v{VK}, vcc')
    for st in (1, 2, 4):
        a.nop(2)
        a(f'v_min_u32_dpp v{VK}, v{VK}, v{VK} row_shr:{st} row_mask:0xf bank_mask:0xf')
    a.nop(1)
    a(f'v_readlane_b32 s63, v{VK}, 37')
    a('s_lshr_b32 s65, s63, 6\ns_and_b32 s63, s63, 63\ns_mul_i32 s65, s65, 24')
    a(f's_cmp_ge_i32 s65, s{S_SUM}\ns_cbranch_scc1 L_as_{tag}_idle')
    a(f'v_readlane_b32 s65, v{VU}, s63')
    a(f's_mov_b32 m0, s63')
    a('s_mov_b64 exec, -1')
    a('s_cmp_lt_u32 s65, 21')
    a(f's_cselect_b64 s[{SRD+8}:{SRD+9}], s[{SRD}:{SRD+1}], s[{SRD+4}:{SRD+5}]')
    a(f'v_writelane_b32 v{VL}, s65, m0')
    a('s_cselect_b32 s66, 0, 21\ns_sub_u32 s65, s65, s66')
    a(f's_mul_i32 s65, s65, {STEP:#x}\ns_and_b32 s63, s63, 7\ns_lshl_b32 s63, s63, 14\ns_add_u32 s65, s65, s63')
    a('s_add_u32 s66, s65, 0x2000')
    for v in (V0, V1):
        for so in (65, 66): a(f'buffer_load_dword v{VD}, v{v}, s[{SRD+8}:{SRD+11}], s{so} offen {cfg.apol.replace("+", " ")}')
    if cfg.lite: a('s_add_u32 s98, s98, 1')
    if cfg.await_: a(f's_waitcnt vmcnt({4 - cfg.await_})')
    a(f's_branch L_as_{tag}_next')
    a.label(f'L_as_{tag}_idle')
    if cfg.asl: a(f's_sleep {cfg.asl}')
    a.label(f'L_as_{tag}_next')
    if L_STOP is not None:
        a('s_mov_b64 exec, 1')
        a(f'ds_read_b32 v{VT}, v{V_ZERO} offset:{L_STOP}')
        a('s_waitcnt lgkmcnt(0)')
        a(f'v_readfirstlane_b32 s63, v{VT}')
        a(f's_cmp_eq_u32 s63, s{S_TAG}\ns_cbranch_scc1 L_as_{tag}_x')
    a(f's_add_u32 s{S_N}, s{S_N}, 1\ns_cmp_lt_u32 s{S_N}, 96\ns_cbranch_scc1 L_as_{tag}')
    a.label(f'L_as_{tag}_x')
    if cfg.lite:
        a(f's_lshl_b32 s92, s2, 9\ns_add_u32 s92, s92, {WS_STAMP + 6*64:#x}')
        a('s_mov_b64 exec, 1')
        a(f'v_mov_b32 v250, s92\nv_mov_b32 v252, s98\nv_mov_b32 v253, s{S_N}')
        a(f'global_store_dwordx2 v250, v[252:253], s[{P_WS}:{P_WS+1}] nt')
    a('s_mov_b64 exec, -1')
    a('s_waitcnt vmcnt(0)')

def helper(a, cfg):
    SRD_W, SRD_X = 40, 44
    S_K, S_ROT, S_P = 35, 36, 37
    V_ZERO, V_OFF, V_T0, V_T1 = 8, 9, 10, 11
    V_X = 12
    V_A = 28
    V_Y = 36
    V_TMP = 44
    V_W = 56
    V_B = V_W + 128
    assert V_B + 64 <= 249
    def zero_flags():
        a(f'v_mov_b32 v{V_ZERO}, 0')
        a(f'v_mov_b32 v{V_T1}, 0')
        a(f'ds_write_b32 v{V_ZERO}, v{V_ZERO} offset:{L_FLAGQ}')
        a(f'ds_write_b32 v{V_ZERO}, v{V_ZERO} offset:{L_FLAGS}')
        if cfg.mon:
            a(f'ds_write_b32 v{V_ZERO}, v{V_ZERO} offset:{L_CTL}')
            a(f'ds_write_b32 v{V_ZERO}, v{V_ZERO} offset:{L_PROG}')
        a('s_waitcnt lgkmcnt(0)\ns_barrier')
    qc = cfg.tag and cfg.qc
    if cfg.fb:
        assert qc
        zero_flags()
    late_entry(a, cfg, not qc)
    if cfg.fs: stamp(a, cfg, 0)
    a(f's_sub_u32 s{S_K}, s{S_W}, 4')
    if cfg.lite and cfg.mon: a('s_mov_b32 s98, 0\ns_mov_b32 s99, 0')
    a(f's_lshl_b32 s{S_P}, s{S_H}, 3\ns_add_u32 s{S_P}, s{S_P}, s{S_R}')
    def clear_rows():
        a(f's_cmp_lg_u32 s{S_K}, 0\ns_cbranch_scc1 L_A_noclr')
        a(f's_lshl_b32 s63, s{S_P}, 10\ns_add_u32 s63, s63, {WS_YA:#x}')
        a(f'v_lshl_add_u32 v{V_T0}, v{V_LANE}, 4, s63')
        a(f'v_add_u32 v{V_T1}, {1 << 18:#x}, v{V_T0}')
        for k in range(4): a(f'v_mov_b32 v{V_TMP+k}, -1')
        a(f'global_store_dwordx4 v{V_T0}, {vr(V_TMP,4)}, s[{P_WS}:{P_WS+1}] {cfg.zpol.replace("+", " ")}')
        a(f'global_store_dwordx4 v{V_T1}, {vr(V_TMP,4)}, s[{P_WS}:{P_WS+1}] {cfg.zpol.replace("+", " ")}')
        a.label('L_A_noclr')
    def wo_setup():
        a(f's_lshl_b32 s62, s{S_HP}, 17')
        a(f's_mov_b32 s63, {128*1024:#x}')
        srd(a, SRD_W, P_AWO, off_s=62, nrec_s=63)
        a(f'v_lshlrev_b32 v{V_OFF}, 13, v{V_G}')
        a(f'v_lshl_add_u32 v{V_OFF}, v{V_C}, 4, v{V_OFF}')
        a(f's_lshl_b32 s62, s{S_K}, 8')
        a(f'v_add_u32 v{V_OFF}, s62, v{V_OFF}')
    Lo = cfg.Lo
    assert Lo <= 8
    def wo_load(n):
        s, e = n // 8, n % 8
        if e % 4 == 0: a(f's_mov_b32 s61, {s*32768 + e*1024}')
        if not cfg.nowo: a(f'buffer_load_dwordx4 {vr(V_B + 32*(s&1) + 4*e,4)}, v{V_OFF}, s[{SRD_W}:{SRD_W+3}], s61 offen offset:{(e%4)*1024} {cfg.wopol}')
    def touch(ptr, dst):
        lab = f'L_A_tch{dst}'
        a(f's_cmp_lg_u32 s{S_K}, 3\ns_cbranch_scc1 {lab}')
        a(f's_lshl_b32 s62, s{S_HP}, 21')
        a(f's_sub_u32 s63, {128 << 20:#x}, s62')
        srd(a, 68, ptr, off_s=62, nrec_s=63)
        n = cfg.tn
        a(f'v_and_b32 v{V_T0}, {n - 1}, v{V_LANE}')
        a(f'v_mul_u32_u24 v{V_T0}, {((2 << 20) - 128) // (n - 1) // 128 * 128:#x}, v{V_T0}')
        a(f'v_bfe_u32 v{V_T1}, v{V_LANE}, {n.bit_length() - 1}, 1')
        a(f'v_lshl_add_u32 v{V_T0}, v{V_T1}, 26, v{V_T0}')
        a(f's_mov_b64 exec, {hex((1 << (2 * n)) - 1) if n < 16 else -1}')
        if n == 16: a('s_mov_b32 exec_hi, 0')
        a(f'buffer_load_dword v{dst}, v{V_T0}, s[68:71], 0 offen {cfg.tpol}')
        a('s_mov_b64 exec, -1')
        a.label(lab)
    if 'k' in cfg.tlb: touch(P_AK, V_Y)
    if 'v' in cfg.tlb: touch(P_AV, V_Y + 1)
    if cfg.tag and cfg.clr0 and not cfg.noclr: clear_rows()
    if qc:
        wo_setup()
        if not cfg.wlate:
            for n in range(Lo): wo_load(n)
    else:
        srd(a, SRD_X, P_AX, nrec=2048)
        a(f's_lshl_b32 s62, s{S_HP}, 8')
        a(f's_sub_u32 s63, {512*8192:#x}, s62')
        srd(a, SRD_W, P_AWQ, off_s=62, nrec_s=63)
        if cfg.rot: a(f's_and_b32 s{S_ROT}, s{S_R}, 3')
        else: a(f's_mov_b32 s{S_ROT}, 0')
        a(f'v_lshrrev_b32 v{V_T0}, 3, v{V_C}')
        a(f'v_lshlrev_b32 v{V_T0}, 10, v{V_T0}')
        a(f'v_lshl_add_u32 v{V_T0}, v{V_G}, 6, v{V_T0}')
        a(f's_lshl_b32 s62, s{S_K}, 8')
        a(f'v_add_u32 v{V_T0}, s62, v{V_T0}')
        a(f'v_lshlrev_b32 v{V_OFF}, 18, v{V_G}')
        a(f'v_lshl_add_u32 v{V_OFF}, v{V_C}, 4, v{V_OFF}')
        a(f's_lshl_b32 s62, s{S_K}, 20')
        a(f'v_add_u32 v{V_OFF}, s62, v{V_OFF}')
        for i in range(4):
            a(f's_add_u32 s62, s{S_ROT}, {i}\ns_and_b32 s62, s62, 3\ns_lshl_b32 s62, s62, 4')
            a(f'v_add_u32 v{V_T1}, s62, v{V_T0}')
            a(f'buffer_load_dwordx4 {vr(V_X+4*i,4)}, v{V_T1}, s[{SRD_X}:{SRD_X+3}], 0 offen')
        def wq_load(s):
            if s % 8 == 0: a(f's_add_u32 s61, s{S_ROT}, {s//8}\ns_and_b32 s61, s61, 3\ns_lshl_b32 s61, s61, 16')
            else: a(f's_add_u32 s61, s61, 0x2000')
            if not cfg.nowq: a(f'buffer_load_dwordx4 {vr(V_W+4*s,4)}, v{V_OFF}, s[{SRD_W}:{SRD_W+3}], s61 offen {cfg.wqpol}')
        Lq = cfg.Lq
        for s in range(Lq): wq_load(s)
    if not cfg.fb: zero_flags()
    if cfg.tag: load_tag(a)
    if qc and cfg.wlate:
        for n in range(Lo): wo_load(n)
    if not qc:
        a('s_mov_b32 s66, 0x01000100\ns_mov_b32 s67, 0x03020302')
        for s in range(32):
            A = V_A + 4 * (s & 1)
            a(f's_waitcnt vmcnt({min(Lq - 1, 31 - s)})')
            if s + Lq < 32: wq_load(s + Lq)
            a(f'v_perm_b32 v{V_T0}, v{V_X + s//2}, v{V_X + s//2}, s{66 + (s & 1)}')
            for i in range(4): a(f'v_and_b32 v{A+i}, v{V_T0}, v{V_MASK+i}')
            a('s_nop 1')
            acc = V_Y + 4 * (s & 1)
            c = '0' if s < 2 else vr(acc, 4)
            a(f'v_mfma_f32_16x16x32_bf16 {vr(acc,4)}, {vr(A,4)}, {vr(V_W+4*s,4)}, {c}')
        wo_setup()
        a(f'v_lshrrev_b32 v{V_T0}, 1, v{V_G}')
        a(f'v_lshlrev_b32 v{V_T0}, 9, v{V_T0}')
        a(f'v_lshl_add_u32 v{V_T0}, v{V_C}, 5, v{V_T0}')
        a(f'v_and_b32 v{V_T1}, 1, v{V_G}')
        a(f'v_lshl_add_u32 v{V_T0}, v{V_T1}, 4, v{V_T0}')
        a(f's_lshl_b32 s63, s{S_K}, 10')
        a(f'v_add_u32 v{V_T0}, s63, v{V_T0}')
        a(f'v_mov_b32 v{V_T1}, 1')
        for k in range(4): a(f'v_add_f32 v{V_Y+k}, v{V_Y+k}, v{V_Y+4+k}')
        a(f'ds_write_b128 v{V_T0}, {vr(V_Y,4)} offset:{L_QP}')
        a('s_mov_b64 exec, 1')
        a(f'ds_add_u32 v{V_ZERO}, v{V_T1} offset:{L_FLAGQ}')
        a('s_mov_b64 exec, -1')
        stamp(a, cfg, 1)
        for n in range(Lo): wo_load(n)
    a('s_mov_b32 s66, 0x05040100\ns_mov_b32 s67, 0x07060302')
    S_QOK = 38
    tries = [int(t) for t in cfg.qtry.split(',') if t] if qc else []
    def q_to_lds():
        a(f'v_mov_b32 v{V_TMP+1}, v{V_TMP+2}')
        a(f'v_mov_b32 v{V_TMP+2}, 1')
        a(f'ds_write_b64 v{V_T1}, {vr(V_TMP,2)} offset:{L_QP}')
        a(f'ds_write_b32 v{V_ZERO}, v{V_TMP+2} offset:{L_FLAGQ}')
        stamp(a, cfg, 1)
    if qc:
        srd(a, SRD_X, P_WS, nrec=0x1000000)
        a(f's_lshl_b32 s63, s{S_H}, 10\ns_add_u32 s63, s63, {WS_QA:#x}')
        a(f'v_lshl_add_u32 v{V_T0}, v{V_LANE}, 4, s63')
        a(f'v_lshlrev_b32 v{V_T1}, 3, v{V_LANE}')
        a(f's_mov_b32 s{S_QOK}, s{S_K}')
    if cfg.tag: get_tag(a)
    for n in range(32):
        a(f's_waitcnt vmcnt({min(Lo - 1, 31 - n)})')
        if n - Lo in tries:
            a(f's_cmp_lg_u32 s{S_QOK}, 0\ns_cbranch_scc1 L_A_qc{n}')
            a(f'v_cmp_ne_u32 s[62:63], s{S_TAG}, v{V_TMP+1}')
            a(f'v_cmp_ne_u32 vcc, s{S_TAG}, v{V_TMP+3}')
            a('s_nop 1')
            a(f's_or_b64 vcc, vcc, s[62:63]\ns_cbranch_scc1 L_A_qc{n}')
            a(f's_mov_b32 s{S_QOK}, 1')
            q_to_lds()
            a.label(f'L_A_qc{n}')
        if n in tries:
            assert n + 2 * Lo <= 32 and all(abs(n - t) >= Lo for t in tries if t != n)
            a(f's_cmp_lg_u32 s{S_QOK}, 0\ns_cbranch_scc1 L_A_qt{n}')
            a(f'buffer_load_dwordx4 {vr(V_TMP,4)}, v{V_T0}, s[{SRD_X}:{SRD_X+3}], 0 offen sc1')
            a.label(f'L_A_qt{n}')
        if n + Lo < 32: wo_load(n + Lo)
        if n % 2:
            s, e = n // 8, n % 8
            lo, hi = V_B + 32*(s&1) + 4*(e-1), V_B + 32*(s&1) + 4*e
            for cb in range(8):
                w = V_W + 64*(s >> 1) + 8*cb + 4*(s & 1) if cfg.smf else V_W + 32*s + 4*cb
                a(f'v_perm_b32 v{w + e//2}, v{hi + cb//2}, v{lo + cb//2}, s{66 + (cb & 1)}')
    if cfg.smf:
        for k in range(32): a(f'v_mov_b32 v{V_B + k}, 0')
    if cfg.apf:
        a(f's_lshl_b32 s62, s{S_H}, 19\ns_add_u32 s62, s62, {(8 - cfg.apf) << 16:#x}')
        a(f's_mov_b32 s63, {cfg.apf << 16:#x}')
        srd(a, SRD_W, P_BC, off_s=62, nrec_s=63)
        a(f's_lshl_b32 s62, s{S_R}, 2\ns_add_u32 s62, s62, s{S_K}\ns_lshl_b32 s62, s62, 10')
        a(f'v_lshl_add_u32 v{V_OFF}, v{V_LANE}, 4, s62')
        for i in range((cfg.apf * 64 + 23) // 24):
            a(f's_waitcnt vmcnt({cfg.Lp - 1})')
            a(f's_mov_b32 s61, {i * 24 * 1024}')
            a(f'buffer_load_dwordx4 {vr(V_B + 4*(i%8),4)}, v{V_OFF}, s[{SRD_W}:{SRD_W+3}], s61 offen')
        a('s_waitcnt vmcnt(0)')
    if 'V' in cfg.tlb: touch(P_AV, V_Y + 2)
    if 'L' in cfg.tlb:
        a(f's_cmp_lg_u32 s{S_K}, 3\ns_cbranch_scc1 L_A_tl')
        lds_spin(a, 'A_tw', V_T0, V_ZERO, L_PROG, cfg.tat, 32)
        a.label('L_A_tl')
        touch(P_AV, V_Y + 3)
    if cfg.tlb: a('s_waitcnt vmcnt(0)')
    if cfg.fine: stamp(a, cfg, 4)
    a(f's_mov_b32 s60, s{S_P}')
    a(f's_cmp_lg_u32 s{S_K}, 0\ns_cbranch_scc1 L_A_nostat')
    if qc:
        a(f's_cmp_lg_u32 s{S_QOK}, 0\ns_cbranch_scc1 L_A_qdone')
        if 'C' in cfg.roles: tag_poll(a, 'Aq', V_TMP, V_T0, SRD_X, cfg.qsleep)
        q_to_lds()
        a.label('L_A_qdone')
    if cfg.tag and not cfg.clr0:
        clear_rows()
    lds_spin(a, 'A_hs', V_T0, V_ZERO, L_FLAGS, 4, 16)
    if cfg.tag: a('s_waitcnt vmcnt(0)')
    elif 'W' in cfg.roles: poll(a, CNT_Q, 32, V_T0, V_ZERO, 'A_q')
    a(f'v_and_b32 v{V_T0}, 1, v{V_LANE}')
    a(f'v_lshlrev_b32 v{V_T1}, 4, v{V_T0}')
    m, l = V_TMP, V_TMP + 4
    a(f'ds_read_b128 {vr(m,4)}, v{V_T1} offset:{L_STAT}')
    a(f'ds_read_b128 {vr(l,4)}, v{V_T1} offset:{L_STAT + 32}')
    a(f'v_lshlrev_b32 v{V_T0}, {12 if cfg.tag else 11}, v{V_T0}')
    a(f's_lshl_b32 s63, s60, {4 if cfg.tag else 3}\ns_add_u32 s63, s63, {WS_YSTAT:#x}')
    a(f'v_add_u32 v{V_T0}, s63, v{V_T0}')
    if 'y' in cfg.fl:
        a(f's_lshl_b32 s63, s60, 7\ns_add_u32 s63, s63, {WS_YST2:#x}')
        a(f'v_lshl_add_u32 v{V_T0}, v{V_LANE}, 4, s63')
    a('s_waitcnt lgkmcnt(0)')
    M, L = V_TMP + 8, V_TMP + (10 if cfg.tag else 9)
    a(f'v_max3_f32 v{M}, v{m}, v{m+1}, v{m+2}')
    a(f'v_max_f32 v{M}, v{M}, v{m+3}')
    for k in range(4): a(f'v_sub_f32 v{m+k}, v{m+k}, v{M}')
    for k in range(4): a(f'v_exp_f32 v{m+k}, v{m+k}')
    a('s_nop 0')
    a(f'v_mul_f32 v{L}, v{m}, v{l}')
    for k in range(1, 4): a(f'v_fma_f32 v{L}, v{m+k}, v{l+k}, v{L}')
    if cfg.tag:
        a(f'v_mov_b32 v{M+1}, s{S_TAG}\nv_mov_b32 v{M+3}, s{S_TAG}')
        a(f's_mov_b64 exec, {0xff if "y" in cfg.fl else 3}')
        a(f'global_store_dwordx4 v{V_T0}, {vr(M,4)}, s[{P_WS}:{P_WS+1}] sc1')
    else:
        a(f'v_min_u32 v{M}, 0xfffffffe, v{M}')
        a(f'v_min_u32 v{L}, 0xfffffffe, v{L}')
        a('s_mov_b64 exec, 3')
        a(f'global_store_dwordx2 v{V_T0}, {vr(M,2)}, s[{P_WS}:{P_WS+1}] sc1')
    a('s_mov_b64 exec, -1')
    a.label('L_A_nostat')
    if cfg.mon: monitor(a, cfg, S_K, V_ZERO, V_TMP)
    if cfg.smf: return tail_sparse(a, cfg, locals())
    a(f'v_and_b32 v{V_T0}, 7, v{V_C}')
    a(f'v_mul_u32_u24 v{V_T0}, {OB_RS}, v{V_T0}')
    a(f'v_lshl_add_u32 v{V_T0}, v{V_G}, 4, v{V_T0}')
    a(f'v_lshlrev_b32 v{V_T1}, 18, v{V_G}')
    a(f'v_lshl_add_u32 v{V_T1}, v{V_C}, 4, v{V_T1}')
    a(f's_lshl_b32 s63, s60, 10\ns_lshl_b32 s62, s{S_K}, 8\ns_add_u32 s63, s63, s62\ns_add_u32 s63, s63, {WS_YA:#x}')
    a(f'v_add_u32 v{V_T1}, s63, v{V_T1}')
    if cfg.fine: stamp(a, cfg, 5)
    a('s_barrier')
    for s in range(4): a(f'ds_read_b128 {vr(V_X+4*s,4)}, v{V_T0} offset:{L_OB + 64*s}')
    def red(cb):
        d = V_B + 4 * cb
        a(f'v_add_f32 v{d}, v{d}, v{d+1}')
        a(f'v_add_f32 v{d+2}, v{d+2}, v{d+3}')
        a(f'v_add_f32 v{d}, v{d}, v{d+2}')
    def pack(cp):
        a(f'v_cvt_pk_bf16_f32 v{V_Y+cp}, v{V_B + 8*cp}, v{V_B + 8*cp + 4}')
        a(f'v_min_u32 v{V_Y+cp}, 0xfffffffe, v{V_Y+cp}')
    for cp in range(4):
        for s in range(4):
            if cp == 0: a(f's_waitcnt lgkmcnt({3-s})')
            for cb in (2*cp, 2*cp + 1):
                d = V_B + 4 * cb
                c = '0' if s == 0 else vr(d, 4)
                a(f'v_mfma_f32_16x16x32_bf16 {vr(d,4)}, {vr(V_X+4*s,4)}, {vr(V_W + 32*s + 4*cb,4)}, {c}')
        if cp > 0: red(2*cp - 2); red(2*cp - 1); pack(cp - 1)
    a.nop(1)
    red(6); red(7); pack(3)
    a('s_mov_b32 exec_hi, 0')
    a(f'global_store_dwordx4 v{V_T1}, {vr(V_Y,4)}, s[{P_WS}:{P_WS+1}] {cfg.ypol.replace("+", " ")}')
    helper_end(a, cfg)

def tail_sparse(a, cfg, R):
    V_T0, V_T1, V_X, V_W, V_B, V_Y, V_A, S_K = [R[n] for n in ('V_T0', 'V_T1', 'V_X', 'V_W', 'V_B', 'V_Y', 'V_A', 'S_K')]
    a(f'v_mul_u32_u24 v{V_T0}, {SP_RS}, v{V_C}')
    a(f'v_lshl_add_u32 v{V_T0}, v{V_G}, 4, v{V_T0}')
    a(f'v_and_b32 v{V_A}, 1, v{V_C}')
    a(f'v_mul_u32_u24 v{V_A}, 0xaaaa, v{V_A}')
    a(f'v_add_u32 v{V_A}, 0x4444, v{V_A}')
    a(f'v_lshrrev_b32 v{V_T1}, 1, v{V_G}')
    a(f'v_lshlrev_b32 v{V_T1}, 18, v{V_T1}')
    a(f'v_and_b32 v{V_A+1}, 31, v{V_LANE}')
    a(f'v_lshl_add_u32 v{V_T1}, v{V_A+1}, 3, v{V_T1}')
    a(f's_lshl_b32 s63, s60, 10\ns_lshl_b32 s62, s{S_K}, 8\ns_add_u32 s63, s63, s62\ns_add_u32 s63, s63, {WS_YA:#x}')
    a(f'v_add_u32 v{V_T1}, s63, v{V_T1}')
    if cfg.fine: stamp(a, cfg, 5)
    a('s_barrier')
    for s in range(2): a(f'ds_read_b128 {vr(V_X+4*s,4)}, v{V_T0} offset:{L_OB + 64*s}')
    D = lambda cb: V_B + 4 * cb
    def smf(cb, s): a(f'v_smfmac_f32_16x16x64_bf16 {vr(D(cb),4)}, {vr(V_X+4*s,4)}, {vr(V_W + 64*s + 8*cb,8)}, v{V_A}')
    def pk(cb): a(f'v_pk_add_f32 {vr(D(cb),2)}, {vr(D(cb),2)}, {vr(D(cb)+2,2)}')
    def ad(cb): a(f'v_add_f32 v{D(cb)}, v{D(cb)}, v{D(cb)+1}')
    def sw(i): a(f'v_permlane16_swap_b32 v{D(i)}, v{D(i+4)}')
    def rs(i): a(f'v_add_f32 v{D(i)}, v{D(i)}, v{D(i+4)}')
    def cv(j): a(f'v_cvt_pk_bf16_f32 v{V_Y+j}, v{D(2*j)}, v{D(2*j+1)}')
    def mn(j): a(f'v_min_u32 v{V_Y+j}, 0xfffffffe, v{V_Y+j}')
    a('s_waitcnt lgkmcnt(1)')
    smf(0, 0); smf(4, 0)
    a('s_waitcnt lgkmcnt(0)')
    smf(0, 1); smf(4, 1)
    for i in (1, 2, 3):
        for s in range(2): smf(i, s); smf(i + 4, s)
    pk(0); pk(4); ad(0); ad(4); pk(1); pk(5); sw(0); ad(1); ad(5); pk(2); pk(6); rs(0); sw(1)
    ad(2); ad(6); rs(1); pk(3); pk(7); sw(2); ad(3); ad(7); cv(0); rs(2); sw(3); mn(0); rs(3); cv(1); mn(1)
    a(f'global_store_dwordx2 v{V_T1}, {vr(V_Y,2)}, s[{P_WS}:{P_WS+1}] {cfg.ypol.replace("+", " ")}')
    helper_end(a, cfg)

def helper_end(a, cfg):
    stamp(a, cfg, 3)
    if cfg.aend: span_mark(a, cfg, True, 4)
    lite_end(a, cfg, 4, 3)
    if cfg.lite and cfg.mon:
        a(f's_cmp_lg_u32 s{S_W}, 5\ns_cbranch_scc1 L_A_nomst')
        a(f's_lshl_b32 s92, s2, 9\ns_add_u32 s92, s92, {WS_STAMP + 6*64:#x}')
        a('v_mov_b32 v250, s92\nv_mov_b32 v252, s98\nv_mov_b32 v253, s99')
        a('s_mov_b64 exec, 1')
        a(f'global_store_dwordx2 v250, v[252:253], s[{P_WS}:{P_WS+1}] nt')
        a.label('L_A_nomst')
    a('s_endpgm')
```

```python
import sys, math
from asmlib import Asm, vr, sr, lint

NAME = 'concat_heads__gqa_block_cached__compressed_kv_cla__decode'
NA = 6
LDS_BYTES = 150 * 1024
SCALE = (128 ** -0.5) * math.log2(math.e)
def f2u(x):
    import struct
    return struct.unpack('<I', struct.pack('<f', x))[0]
NEG_INF = 0xff800000
SENT = 0xffffffff

WS_QABS  = 0x000000
WS_CSTAT = 0x010000
WS_YSTAT = 0x014000
WS_YB    = 0x020000
WS_NONCE = 0x018000
WS_CTR   = 0x01A000
WS_PROG  = 0x0C0000
WS_GLOB  = 0x0D0000
WS_MEAN  = 0x01D000
WS_QA    = 0x040000
GOLDEN   = 0x9E3779B9
WS_YA    = 0x100000
WS_CPART = 0x200000
WS_STAMP = 0x800000

P_AX, P_AK, P_AV, P_AWQ, P_AWO, P_BX, P_BC, P_BWQ = 4, 6, 8, 10, 12, 14, 16, 18
P_BWUK, P_BWUV, P_BWO, P_OUT, P_DBG, P_WS = 20, 22, 24, 26, 28, 30
S_H, S_R, S_W = 32, 33, 34
S_HP = 89
S_TAG = 88
WS_YST2  = 0x050000
WS_MBOX  = 0x01A000

CNT_Q, CNT_C, CNT_YB, CNT_Z = 0, 64, 128, 192
SPIN_LIMIT = 1 << 16

DESCRIPTION = """
Generated by gen/gen.py (hand-written generator).  One launch, 256 workgroups of 8 waves, one per CU.
id -> xcd = id & 7 (expected placement, speed only), slot = id >> 3, head h = xcd + 8*(slot >> 3), role = slot & 7.
role 0..5 (A): K/V-cache attention of head h, both batches.  Waves 0-3 first read the weights and c_kv rows that
  roles 6 and 7 of the head need into the L2 (speed only).  Then they stream: first their whole share of K
  (scores by v_dot2 + DPP row sums, kept in registers), softmax numerators relative to the wave's true maximum, then
  the same rows of V (MFMA: A = p times a unit pattern, B = the V rows as loaded).  Waves 4-7 hold wo[h], fetch q,
  publish the workgroup's (max, sum) and finally y = o wo[h] (bf16).  Wave 6 posts the workgroup's progress, wave 5
  compares it with that of the others; a workgroup that has fallen behind keeps more loads in flight, and an idle wave
  of role 6 / 7 reads some of its next rows into the L2 (speed only).
role 6 (W): q_B = x w_q, q_abs = q_B w_uk^T (absorbed up-projection), later: merge of the C partials, w_uv, w_o,
  output columns of part B, and the softmax-weighted sum of the A partials for 32 output columns.
role 7 (C): q = x wq of head h for the A workgroups, then latent attention over 512 keys of c_kv for all 32 heads
  (MFMA, LDS tiles, online softmax).
Hand-offs: sc1 stores that carry a tag (a word of d_ws read on entry plus a constant; the last workgroup replaces the
  word, so no earlier launch's tag matches); the y rows are polled against a sentinel written earlier in the same
  launch.  Every spin is bounded.
"""

class Cfg:
    two = True
    R = 32
    L0 = 8
    La = 7
    Lb = 6
    Lc = 6
    NKa = 7
    NVa = 9
    Lq = 4
    Lo = 4
    catch = 3
    sprio = 0
    cperm = 0
    spf = 'q,k,a,v,o,c38'
    spol = ''
    L0k = 8
    ct = ''
    nb = 12
    dfr = '8,18,22,26,30,34'
    fb = 0
    jp = ''
    fs = 4
    ist = 0
    hmap = '01234'
    bx = 0
    hx = ''
    pat = 0
    seq = 0
    cf = 1
    smf = 1
    ypol = 'sc1'
    zpol = 'sc1'
    lpol = 'sc1'
    fp = 0
    fsl = 5
    fth = 24
    fg = 0
    emu = 0
    opol = ''
    tlb = ''
    tn = 4
    tat = 260
    tpol = ''
    grot = 9
    gstr = 0x100
    gback = 2
    gpol = 'nt'
    ag = 0
    xs = ''
    tctl = 0
    gpar = 1
    cfirst = 1
    spm = 1
    st0 = 0
    post = 4
    psl = 2
    pend = 640
    asst = 'WC'
    ath = 25
    lead = 48
    agap = 2
    acs = 4
    acr = 7
    apol = ''
    await_ = 3
    asl = 4
    spw = 0
    xdel = 0
    rppol = 'sc1'
    wlate = 0
    cfast = 0
    apf = 0
    Lp = 4
    fl = 'qcyb'
    tsl2 = 8
    idrot = 0
    st7 = False
    ghost = 'WC'
    gmix = 0
    ggain = 100
    gtest = 0
    mtest = 0
    mon = 2
    HK = 8
    HV = 8
    Ld = 9
    tha = -10
    thb = -10
    mp1 = 400
    mend = 620
    mdef = 0
    msl = 0
    gsl = 0
    pfx = 0
    pf0 = 13
    pf1 = 20
    pfl = 4
    pfpol = ''
    qtry = '20,24'
    rmap = 0x76543210
    hwid = False
    Lj = 0
    sw1 = 0
    sw2 = 16
    sl1 = 12
    sl2 = 20
    gate = 6
    clr0 = True
    tag = True
    qc = True
    cq = 6
    cqbar = True
    tsleep = 32
    ysleep = 8
    qsleep = 0
    lite = False
    cswz = 0
    cppol = 'sc1'
    noclr = False
    nowq = False
    nowo = False
    stamps = False
    roles = 'AWC'
    kpol = 'nt'
    vpol = 'nt'
    wqpol = ''
    wopol = ''
    U = 8
    thr = 4
    half = False
    NF = 16
    xmix = False
    smix = False
    smix_order = 0x76543210
    noT = True
    cpf = False
    cpf2 = False
    cpf_kb = 17
    cpf2_kb = 12
    ybs = False
    ctl = False
    theta = 200
    msleep = 8
    xthr = -1
    xa = 1
    xb = 7
    slowd = 1
    wthr1 = 0
    clate = False
    wthr0 = 3
    pipe = False
    inc = True
    d4 = False
    idxor = 0
    wox = True
    q2 = True
    chk_it = 5
    fake = False
    gsc = 'sc1'
    hyb = True
    NS = 9
    twop = False
    afirst = False
    qacq = False
    smart = False
    late = 6
    step = False
    gsleep = 4
    brot = 5
    hrot2 = 0
    jrot = 2
    phi = 23
    ilv = False
    Lv = False
    Lpat = '+-'
    hrot = 0
    wthr = 3
    cthr = 4
    cspread = False
    aend = False
    ring = True
    L1 = 4
    L2 = 8
    N1 = 99
    dyn = False
    wstop = 0
    cstop = 0
    nowait = False
    psleep = 2
    spin = 16
    loopst = False
    qmode = 'red'
    early = 4
    rot = True
    qbar = True
    wo_stag = 1
    bpol = 'nt'
    cpol = 'nt'
    fine = False
    span = False
    swapb = False
    wo_iter = 0

def srd(a, d, ptr, off_s=None, off_hi=None, nrec=None, nrec_s=None):
    if off_s is None:
        a(f's_mov_b32 s{d}, s{ptr}')
        a(f's_and_b32 s{d+1}, s{ptr+1}, 0xffff')
    else:
        a(f's_add_u32 s{d}, s{ptr}, s{off_s}')
        a(f's_addc_u32 s{d+1}, s{ptr+1}, {("s%d" % off_hi) if off_hi is not None else 0}')
        a(f's_and_b32 s{d+1}, s{d+1}, 0xffff')
    if nrec_s is not None: a(f's_mov_b32 s{d+2}, s{nrec_s}')
    else: a(f's_mov_b32 s{d+2}, {nrec:#x}')
    a(f's_mov_b32 s{d+3}, 0x20000')

def stamp(a, cfg, idx, waited=False):
    if cfg.lite and idx == 0: a('s_memrealtime s[96:97]')
    if not cfg.stamps: return
    a('s_memrealtime s[90:91]')
    a(f's_lshl_b32 s92, s2, 3\ns_add_u32 s92, s92, s{S_W}\ns_lshl_b32 s92, s92, 6')
    a(f's_add_u32 s92, s92, {WS_STAMP + idx*8:#x}')
    a('s_waitcnt lgkmcnt(0)')
    a('v_mov_b32 v250, s92\nv_mov_b32 v252, s90\nv_mov_b32 v253, s91')
    a('s_mov_b64 s[94:95], exec\ns_mov_b64 exec, 1')
    a(f'global_store_dwordx2 v250, v[252:253], s[{P_WS}:{P_WS+1}] nt')
    a('s_mov_b64 exec, s[94:95]')
stamp.n = 0
def ist(a, cfg, i):
    if not cfg.ist: return
    if i >= 0:
        a(f's_memrealtime s[{90+2*i}:{91+2*i}]')
        return
    a(f's_lshl_b32 s62, s2, 3\ns_add_u32 s62, s62, s{S_W}\ns_lshl_b32 s62, s62, 6\ns_add_u32 s62, s62, {WS_STAMP:#x}')
    a('s_memrealtime s[64:65]\ns_waitcnt lgkmcnt(0)')
    a('v_mov_b32 v250, s62')
    for k in range(12): a(f'v_mov_b32 v{200+k}, s{90+k}')
    a('v_mov_b32 v212, s64\nv_mov_b32 v213, s65')
    a('s_mov_b64 exec, 1')
    for k in range(3): a(f'global_store_dwordx4 v250, v[{200+4*k}:{203+4*k}], s[{P_WS}:{P_WS+1}] offset:{16*k} nt')
    a(f'global_store_dwordx2 v250, v[212:213], s[{P_WS}:{P_WS+1}] offset:48 nt')
def lite_end(a, cfg, wave, idx):
    if not cfg.lite: return
    lab = f'L_lite_{stamp.n}'; stamp.n += 1
    a(f's_cmp_lg_u32 s{S_W}, {wave}\ns_cbranch_scc1 {lab}')
    a('s_memrealtime s[90:91]')
    a(f's_lshl_b32 s92, s2, 3\ns_add_u32 s92, s92, s{S_W}\ns_lshl_b32 s92, s92, 6')
    a(f's_add_u32 s92, s92, {WS_STAMP:#x}')
    a('s_waitcnt lgkmcnt(0)')
    a('v_mov_b32 v250, s92\nv_mov_b32 v252, s90\nv_mov_b32 v253, s91\nv_mov_b32 v254, s96\nv_mov_b32 v255, s97')
    a('s_mov_b64 exec, 1')
    a(f'global_store_dwordx2 v250, v[254:255], s[{P_WS}:{P_WS+1}] nt')
    a(f'global_store_dwordx2 v250, v[252:253], s[{P_WS}:{P_WS+1}] offset:{idx*8} nt')
    if cfg.hwid:
        a('s_getreg_b32 s90, hwreg(HW_REG_HW_ID)\ns_getreg_b32 s91, hwreg(HW_REG_XCC_ID)')
        a('v_mov_b32 v246, s90\nv_mov_b32 v247, s91')
        a(f'global_store_dwordx2 v250, v[246:247], s[{P_WS}:{P_WS+1}] offset:64 nt')
    a.label(lab)
def span_mark(a, cfg, end, wave=0):
    if not cfg.span: return
    lab = f'L_span_{stamp.n}'; stamp.n += 1
    a(f's_cmp_lg_u32 s{S_W}, {wave}\ns_cbranch_scc1 {lab}')
    if not end: a(f's_cmp_ge_u32 s2, 8\ns_cbranch_scc1 {lab}')
    a('s_memrealtime s[90:91]')
    a('s_waitcnt lgkmcnt(0)')
    if not end: a('s_not_b32 s90, s90')
    a('v_mov_b32 v252, s90\nv_mov_b32 v250, 0')
    a('s_mov_b64 s[94:95], exec\ns_mov_b64 exec, 1')
    a(f'global_atomic_umax v250, v252, s[{P_DBG}:{P_DBG+1}] offset:{36 if end else 32} sc1')
    a('s_mov_b64 exec, s[94:95]')
    a.label(lab)

V_LANE, V_C, V_G = 1, 2, 3
V_MASK = 4

def common_lane_setup(a, masks=True):
    a(f'v_and_b32 v{V_LANE}, 63, v0')
    a(f'v_and_b32 v{V_C}, 15, v0')
    a(f'v_bfe_u32 v{V_G}, v0, 4, 2')
    if masks: mask_setup(a)

def mask_setup(a, t=8):
    a(f'v_and_b32 v{t}, 1, v0')
    a(f'v_lshlrev_b32 v{t}, 4, v{t}')
    a(f'v_mov_b32 v{t+1}, 0xffff')
    a(f'v_lshlrev_b32 v{t}, v{t}, v{t+1}')
    a(f'v_bfe_u32 v{t+1}, v0, 1, 2')
    for i in range(4):
        a(f'v_cmp_eq_u32 vcc, {i}, v{t+1}')
        a('s_nop 1')
        a(f'v_cndmask_b32 v{V_MASK+i}, 0, v{t}, vcc')

def late_entry(a, cfg, masks=True):
    if not cfg.fs: return
    if cfg.fs > 3:
        a(f's_mov_b32 s{S_HP}, s{S_H}')
        common_lane_setup(a, False)
    if masks: mask_setup(a)
    a('s_waitcnt lgkmcnt(0)')
    ist(a, cfg, 1)

def rowcomb(a, cfg, X, Wr, ACC, AOP, TMP, wait_first, after=None):
    for s in range(16):
        sel = '0x01000100' if s % 2 == 0 else '0x03020302'
        t = TMP + (s & 1)
        A = AOP + 4 * (s & 1)
        a(f's_mov_b32 s60, {sel}')
        a(f'v_perm_b32 v{t}, v{X + s//2}, v{X + s//2}, s60')
        for i in range(4):
            a(f'v_and_b32 v{A+i}, v{t}, v{V_MASK+i}')
        n = 15 - s + wait_first + (s if after else 0)
        a(f's_waitcnt vmcnt({min(63, n)})')
        a('s_nop 0')
        c = '0' if s == 0 else vr(ACC, 4)
        a(f'v_mfma_f32_16x16x32_bf16 {vr(ACC,4)}, {vr(A,4)}, {vr(Wr+4*s,4)}, {c}')
        if after: after(s)

def poll(a, cnt_off, target, vt, vz, tag):
    a(f's_mov_b32 s64, 0')
    a.label(f'L_poll_{tag}')
    a(f'global_load_dword v{vt}, v{vz}, s[{P_DBG}:{P_DBG+1}] offset:{cnt_off} sc1')
    a('s_waitcnt vmcnt(0)')
    a(f'v_readfirstlane_b32 s65, v{vt}')
    a('s_add_u32 s64, s64, 1')
    a('s_nop 2')
    a(f's_cmp_ge_u32 s65, {target}\ns_cbranch_scc1 L_done_{tag}')
    a(f's_sleep {CFG.psleep}')
    a(f's_cmp_lt_u32 s64, {1 << CFG.spin}\ns_cbranch_scc1 L_poll_{tag}')
    a.label(f'L_done_{tag}')

def load_tag(a):
    a(f's_load_dword s{S_TAG}, s[{P_WS}:{P_WS+1}], {WS_NONCE:#x}')

def get_tag(a):
    a('s_waitcnt lgkmcnt(0)')
    a(f's_add_u32 s{S_TAG}, s{S_TAG}, {GOLDEN:#x}')

def tag_poll(a, tag, dst, vaddr, srd_, sleep, n=4, shrink=False):
    a('s_mov_b32 s64, 0')
    a.label(f'L_tp_{tag}')
    if n == 4: a(f'buffer_load_dwordx4 {vr(dst,4)}, v{vaddr}, s[{srd_}:{srd_+3}], 0 offen sc1')
    else: a(f'buffer_load_dword v{dst}, v{vaddr}, s[{srd_}:{srd_+3}], 0 offen sc1')
    a('s_waitcnt vmcnt(0)')
    if n == 4:
        a(f'v_cmp_ne_u32 s[62:63], s{S_TAG}, v{dst+1}')
        a(f'v_cmp_ne_u32 vcc, s{S_TAG}, v{dst+3}')
        a('s_add_u32 s64, s64, 1')
        a('s_nop 0')
        a('s_or_b64 vcc, vcc, s[62:63]')
    else:
        a(f'v_cmp_ne_u32 vcc, s{S_TAG}, v{dst}')
        a('s_add_u32 s64, s64, 1')
        a('s_nop 0')
        a('s_or_b64 vcc, vcc, vcc')
    a(f's_cbranch_scc0 L_tp_{tag}_ok')
    if shrink: a('s_mov_b64 exec, vcc')
    if sleep: a(f's_sleep {sleep}')
    a(f's_cmp_lt_u32 s64, {SPIN_LIMIT}\ns_cbranch_scc1 L_tp_{tag}')
    a.label(f'L_tp_{tag}_ok')

def signal(a, cnt_off, vz, vt, tag):
    a('s_waitcnt vmcnt(0)\ns_barrier')
    a(f's_cmp_lg_u32 s{S_W}, 0\ns_cbranch_scc1 L_sig_{tag}')
    a(f'v_mov_b32 v{vt}, 1')
    a('s_mov_b64 exec, 1')
    a(f'global_atomic_add v{vz}, v{vt}, s[{P_DBG}:{P_DBG+1}] offset:{cnt_off} sc1')
    a('s_mov_b64 exec, -1')
    a.label(f'L_sig_{tag}')

def wait_counter(a, cnt_off, target, vt, vz, tag, acquire=False):
    a(f's_cmp_lg_u32 s{S_W}, 0\ns_cbranch_scc1 L_wc_{tag}')
    poll(a, cnt_off, target, vt, vz, tag)
    if acquire:
        a('buffer_inv sc1')
        a('s_waitcnt vmcnt(0)')
    a.label(f'L_wc_{tag}')
    a('s_barrier')

def code_prefetch(a, tag, tmp, dst, first_label, kib):
    a('s_getpc_b64 s[62:63]')
    a.label(f'L_pc_{tag}')
    a(f's_sub_u32 s62, s62, L_pc_{tag}-{first_label}')
    a('s_subb_u32 s63, s63, 0')
    a(f'v_lshlrev_b32 v{tmp}, 4, v{V_LANE}')
    a(f'v_mov_b32 v{tmp+1}, s63')
    a(f'v_add_co_u32 v{tmp}, vcc, s62, v{tmp}')
    a('s_nop 1')
    a(f'v_addc_co_u32 v{tmp+1}, vcc, 0, v{tmp+1}, vcc')
    for k in range(kib):
        a(f'global_load_dwordx4 {vr(dst,4)}, {vr(tmp,2)}, off')
        if k + 1 < kib:
            a(f'v_add_co_u32 v{tmp}, vcc, 0x400, v{tmp}')
            a('s_nop 1')
            a(f'v_addc_co_u32 v{tmp+1}, vcc, 0, v{tmp+1}, vcc')

def code_touch(a, tag, wave, t):
    a(f's_cmp_lg_u32 s{S_W}, {wave}\ns_cbranch_scc1 L_ct_{tag}')
    a('s_getpc_b64 s[62:63]')
    a.label(f'L_pc_{tag}')
    a(f's_sub_u32 s62, s62, L_pc_{tag}-{NAME}_kernel')
    a('s_subb_u32 s63, s63, 0')
    a(f's_lshr_b32 s61, s{S_H}, 3\ns_lshl_b32 s61, s61, 13')
    a(f'v_lshl_add_u32 v{t}, v{V_LANE}, 7, s61')
    a(f'v_min_u32 v{t}, L_exit-{NAME}_kernel, v{t}')
    a(f'v_mov_b32 v{t+1}, s63')
    a(f'v_add_co_u32 v{t}, vcc, s62, v{t}')
    a('s_nop 1')
    a(f'v_addc_co_u32 v{t+1}, vcc, 0, v{t+1}, vcc')
    a(f'global_load_dword v{t+2}, {vr(t,2)}, off')
    a.label(f'L_ct_{tag}')

def xrow_allreduce(a, op, x, tmp, steps=(16, 32)):
    for st in steps:
        a(f'v_mov_b32 v{tmp}, v{x}')
        a.nop(2)
        a(f'v_permlane{st}_swap_b32 v{x}, v{tmp}')
        a.nop(1)
        a(f'{op} v{x}, v{x}, v{tmp}')

def slice_loads(a, srd_, voff, dst, pol, kind, thr=0):
    n = 0
    if kind == 'rows':
        for s_ in range(16):
            if thr: a(f's_waitcnt vmcnt({thr-1})')
            a(f's_mov_b32 s62, {s_*(256 if CFG.fake else 8192)}')
            a(f'buffer_load_dwordx4 {vr(dst+4*s_,4)}, v{voff}, s[{srd_}:{srd_+3}], s62 offen {pol}')
    else:
        for s_ in range(4):
            for cb in range(4):
                if thr: a(f's_waitcnt vmcnt({thr-1})')
                a(f'buffer_load_dwordx4 {vr(dst+16*s_+4*cb,4)}, v{voff}, s[{srd_}:{srd_+3}], 0 offen offset:{s_*1024+cb*256} {pol}')

def rows_voff(a, v):
    a(f'v_lshlrev_b32 v{v}, {12 if CFG.fake else 17}, v{V_G}')
    a(f'v_lshl_add_u32 v{v}, v{V_C}, 4, v{v}')
    a(f's_lshl_b32 s62, s{S_W}, {14 if CFG.fake else 19}')
    if CFG.fake: a(f's_mul_i32 s61, s{S_H}, {131072 - 256}\ns_add_u32 s62, s62, s61')
    a(f'v_add_u32 v{v}, s62, v{v}')
def wo_voff(a, v):
    a(f'v_lshlrev_b32 v{v}, 12, v{V_G}')
    a(f'v_lshl_add_u32 v{v}, v{V_C}, 4, v{v}')
    a(f's_lshl_b32 s62, s{S_W}, 14')
    a(f'v_add_u32 v{v}, s62, v{v}')

def dtile_to_lds(a, D, tmp, base, wstride_sh, bstride_sh, ncb):
    a(f'v_lshrrev_b32 v{tmp}, 1, v{V_G}')
    a(f'v_lshlrev_b32 v{tmp}, {bstride_sh}, v{tmp}')
    a(f'v_lshl_add_u32 v{tmp}, v{V_C}, 5, v{tmp}')
    a(f'v_and_b32 v{tmp+1}, 1, v{V_G}')
    a(f'v_lshl_add_u32 v{tmp}, v{tmp+1}, 4, v{tmp}')
    a(f's_lshl_b32 s63, s{S_W}, {wstride_sh}')
    a(f'v_add_u32 v{tmp}, s63, v{tmp}')
    a.nop(2)
    for cb in range(ncb):
        if cb == ncb - 1: a.nop(6)
        a(f'ds_write_b128 v{tmp}, {vr(D+4*cb,4)} offset:{base + 512*cb}')


def q_reduce(a, D, tmp, L_QP, L_QB, tag):
    dtile_to_lds(a, D, tmp, L_QP, 10, 9, 1)
    a('s_waitcnt lgkmcnt(0)\ns_barrier')
    a(f's_cmp_ge_u32 s{S_W}, 4\ns_cbranch_scc1 L_{tag}_qskip')
    a(f'v_lshlrev_b32 v{tmp+2}, 2, v0')
    for w in range(8):
        a(f'ds_read_b32 v{tmp+4+w}, v{tmp+2} offset:{L_QP + 1024*w}')
    a('s_waitcnt lgkmcnt(0)')
    for w in range(1, 8):
        a(f'v_add_f32 v{tmp+4}, v{tmp+4}, v{tmp+4+w}')
    a(f'v_cvt_pk_bf16_f32 v{tmp+4}, v{tmp+4}, v{tmp+4}')
    a(f'v_lshlrev_b32 v{tmp+2}, 1, v0')
    a(f'ds_write_b16 v{tmp+2}, v{tmp+4} offset:{L_QB}')
    a('s_waitcnt lgkmcnt(0)')
    a.label(f'L_{tag}_qskip')
    a('s_barrier')

def role_A2(a, cfg):
    L_QP, L_QB, L_OB, L_SB, L_YB = 0, 8192, 8704, 12800, 16384
    SRD_K, SRD_V, SRD_W, SRD_X = 40, 44, 48, 52
    S_B, S_W4, S_N, S_SIG, S_IT = 35, 36, 37, 38, 39
    S_WOIT, S_RHO = 56, 57
    S_BIAS = 66
    U = cfg.U
    V_WOFF, V_Q = 9, 10
    V_OC, V_ON = [8, 14], [15, 250 - 1]
    V_K = 16
    V_V = V_K + 4 * U
    V_W = V_V + 4 * U
    V_X = V_W + 64
    V_T = V_X + 8
    V_P = V_T + U
    V_A = V_P + max(U, 4)
    V_ACC = V_A + 4 * max(U, 4)
    V_M, V_L, V_AL, V_MN, V_SC, V_XX, V_CLR, V_ZERO = [V_ACC + 4 + k for k in range(8)]
    V_Y = V_ACC + 12
    V_TMP = V_Y + 16
    V_CADDR, V_GRAB, V_ONE = V_TMP + 12, V_TMP + 13, V_TMP + 14
    V_ST = V_TMP + 12
    assert not (cfg.step and (cfg.dyn or cfg.ilv))
    S_UN = 59
    S_CU = 58
    NU, NWV = 2048 // U, 4 * NA
    dyn = cfg.dyn
    assert V_TMP + 15 <= 249 and V_M % 2 == 0
    V_S = V_K
    starts = [2048 * j // NA for j in range(NA + 1)]
    NIT = -(-max(starts[j+1] - starts[j] for j in range(NA)) // (4 * U))
    STEP = 4 * U * 1024
    L1, L2, N1 = cfg.L1, cfg.L2 or cfg.L1, min(cfg.N1, NIT)
    assert 1 <= L1 <= L2 <= 2 * U
    a.label('L_roleA')
    stamp(a, cfg, 0)
    a(f's_lshr_b32 s{S_B}, s{S_W}, 2')
    a(f's_and_b32 s{S_W4}, s{S_W}, 3')
    L_XA = 49152
    S_BASE = S_RHO
    srd(a, SRD_X, P_AX, nrec=2048)
    a(f's_cmp_ge_u32 s{S_W}, 2\ns_cbranch_scc1 L_A_nox')
    a(f'v_lshlrev_b32 v{V_TMP+2}, 4, v0')
    a(f'buffer_load_dwordx4 {vr(V_X,4)}, v{V_TMP+2}, s[{SRD_X}:{SRD_X+3}], 0 offen')
    a.label('L_A_nox')
    a(f's_lshl_b32 s62, s{S_H}, 8')
    a(f's_sub_u32 s63, {512*8192:#x}, s62')
    srd(a, SRD_W, P_AWQ, off_s=62, nrec_s=63)
    a(f's_mul_i32 s60, s{S_R}, {171 if cfg.rot else 0}\ns_lshr_b32 s60, s60, 3')
    a(f's_lshl_b32 s61, s{S_B}, 6\ns_add_u32 s60, s60, s61\ns_add_u32 s60, s60, s{S_W4}')
    a(f's_and_b32 s{S_BASE}, s60, 127')
    a(f'v_lshlrev_b32 v{V_TMP+1}, 13, v{V_G}')
    a(f'v_lshl_add_u32 v{V_TMP+1}, v{V_C}, 4, v{V_TMP+1}')
    for s in range(16):
        a(f's_add_u32 s62, s{S_BASE}, {4*s}\ns_and_b32 s62, s62, 127\ns_lshl_b32 s62, s62, 15')
        a(f'buffer_load_dwordx4 {vr(V_W+4*s,4)}, v{V_TMP+1}, s[{SRD_W}:{SRD_W+3}], s62 offen {cfg.wqpol}')
    a(f's_cmp_ge_u32 s{S_W}, 2\ns_cbranch_scc1 L_A_nox2')
    a(f'v_lshlrev_b32 v{V_TMP+2}, 4, v{V_LANE}')
    a(f's_lshl_b32 s62, s{S_W}, 11')
    a(f'v_add_u32 v{V_TMP+2}, s62, v{V_TMP+2}')
    a('s_waitcnt vmcnt(16)')
    a(f'ds_write_b128 v{V_TMP+2}, {vr(V_X,4)} offset:{L_XA}')
    a(f'ds_write_b128 v{V_TMP+2}, {vr(V_X,4)} offset:{L_XA + 1024}')
    a('s_waitcnt lgkmcnt(0)')
    a.label('L_A_nox2')
    if dyn:
        a(f's_lshl_b32 s62, s{S_B}, 5\ns_add_u32 s62, s62, s{S_H}')
        a(f's_lshl_b32 s61, s62, 7\ns_add_u32 s61, s61, {WS_CTR:#x}')
        a(f'v_mov_b32 v{V_CADDR}, s61')
        a(f'v_mov_b32 v{V_ONE}, 1')
        a(f's_lshl_b32 s62, s62, 21')
        a(f's_mov_b32 s63, {2 << 20:#x}')
        srd(a, SRD_K, P_AK, off_s=62, nrec_s=63)
        srd(a, SRD_V, P_AV, off_s=62, nrec_s=63)
        a(f's_lshl_b32 s60, s{S_R}, 2\ns_add_u32 s60, s60, s{S_W4}')
        a(f's_mul_i32 s62, s60, {U*1024}')
        a(f'v_lshl_add_u32 v{V_OC[0]}, v{V_LANE}, 4, s62')
        if U > 4: a(f'v_add_u32 v{V_OC[1]}, 0x1000, v{V_OC[0]}')
    elif cfg.ilv:
        UB = 4 * U * 1024
        NFULL = (2048 // (4 * U)) // NA
        REM0 = NFULL * NA * 4 * U
        rst = [REM0 + (2048 - REM0) * j // NA for j in range(NA + 1)]
        assert max(rst[j+1] - rst[j] for j in range(NA)) <= 4 * U and NFULL + 1 == NIT
        a(f's_mov_b32 s60, {rst[0]}\ns_mov_b32 s61, {rst[1]}')
        for j in range(1, NA):
            a(f's_cmp_eq_u32 s{S_R}, {j}')
            a(f's_cselect_b32 s60, {rst[j]}, s60')
            a(f's_cselect_b32 s61, {rst[j+1]}, s61')
        S_LAST = 58
        a(f's_lshl_b32 s{S_LAST}, s60, 10')
        a(f's_sub_u32 s{S_N}, s61, s60')
        a(f's_lshl_b32 s63, s61, 10')
        a(f's_lshl_b32 s62, s{S_B}, 5\ns_add_u32 s62, s62, s{S_H}')
        a(f's_lshl_b32 s62, s62, 21')
        srd(a, SRD_K, P_AK, off_s=62, nrec_s=63)
        srd(a, SRD_V, P_AV, off_s=62, nrec_s=63)
        NR = NFULL * NA
        S_U, S_WOF = 64, 65
        a(f's_mul_i32 s{S_WOF}, s{S_W4}, {U*1024}')
        a(f's_add_u32 s{S_LAST}, s{S_LAST}, s{S_WOF}')
        a(f's_lshl_b32 s62, s{S_B}, 5\ns_add_u32 s62, s62, s{S_H}')
        a(f's_mul_i32 s62, s62, {cfg.phi}')
        a(f's_mul_hi_u32 s61, s62, {-(-(1 << 32) // NR):#x}\ns_mul_i32 s61, s61, {NR}\ns_sub_u32 s62, s62, s61')
        a(f's_add_u32 s{S_U}, s62, s{S_R}')
        def wrap_u():
            a(f's_sub_u32 s61, s{S_U}, {NR}\ns_cmp_ge_u32 s{S_U}, {NR}\ns_cselect_b32 s{S_U}, s61, s{S_U}')
        def unit_off(dst):
            a(f's_mul_i32 s62, s{S_U}, {UB}\ns_add_u32 s62, s62, s{S_WOF}')
            a(f'v_lshl_add_u32 v{dst[0]}, v{V_LANE}, 4, s62')
            if U > 4: a(f'v_add_u32 v{dst[1]}, 0x1000, v{dst[0]}')
        wrap_u(); unit_off(V_OC)
        a(f's_add_u32 s{S_U}, s{S_U}, {NA}')
        wrap_u(); unit_off(V_ON)
    else:
        S_BA, S_BB = 74, 75
        if cfg.twop:
            NH = 5 if U == 8 else 10
            LO = NA * NH * 4 * U
            sb = [LO + (2048 - LO) * j // NA for j in range(NA + 1)]
            a(f's_mov_b32 s60, {sb[0]}\ns_mov_b32 s61, {sb[1]}')
            for j in range(1, NA):
                a(f's_cmp_eq_u32 s{S_R}, {j}')
                a(f's_cselect_b32 s60, {sb[j]}, s60')
                a(f's_cselect_b32 s61, {sb[j+1]}, s61')
            a(f's_sub_u32 s{S_N}, s61, s60\ns_add_u32 s{S_N}, s{S_N}, {NH*4*U}')
            a(f's_mul_i32 s{S_BA}, s{S_R}, {NH*4*U*1024}')
            a(f's_sub_u32 s{S_BB}, s60, {NH*4*U}\ns_lshl_b32 s{S_BB}, s{S_BB}, 10')
            a(f's_lshl_b32 s63, s61, 10')
            a(f's_lshl_b32 s62, s{S_B}, 5\ns_add_u32 s62, s62, s{S_H}')
            a(f's_lshl_b32 s62, s62, 21')
        else:
            a(f's_mov_b32 s60, 0\ns_mov_b32 s61, {starts[1]}')
            for j in range(1, NA):
                a(f's_cmp_eq_u32 s{S_R}, {j}')
                a(f's_cselect_b32 s60, {starts[j]}, s60')
                a(f's_cselect_b32 s61, {starts[j+1]}, s61')
            a(f's_sub_u32 s{S_N}, s61, s60')
            a(f's_lshl_b32 s62, s{S_B}, 5\ns_add_u32 s62, s62, s{S_H}')
            a(f's_lshl_b32 s62, s62, 21')
            a(f's_lshl_b32 s63, s60, 10\ns_add_u32 s62, s62, s63')
            a(f's_lshl_b32 s63, s{S_N}, 10')
        srd(a, SRD_K, P_AK, off_s=62, nrec_s=63)
        srd(a, SRD_V, P_AV, off_s=62, nrec_s=63)
        def part_base():
            if cfg.twop:
                a(f's_cmp_lt_u32 s{S_U}, {NH}\ns_cselect_b32 s61, s{S_BA}, s{S_BB}\ns_add_u32 s62, s62, s61')
        S_U, S_WOF = 64, 65
        a(f's_mul_i32 s{S_WOF}, s{S_W4}, {1024 if cfg.step else U*1024}')
        a(f's_mul_i32 s62, s{S_B}, {cfg.brot}')
        a(f's_mul_i32 s61, s{S_H}, {cfg.hrot2}\ns_add_u32 s62, s62, s61')
        a(f's_mul_i32 s61, s{S_R}, {cfg.jrot}\ns_add_u32 s62, s62, s61')
        a(f's_mul_hi_u32 s61, s62, {-(-(1 << 32) // NIT):#x}\ns_mul_i32 s61, s61, {NIT}\ns_sub_u32 s{S_U}, s62, s61')
        def wrap_u():
            a(f's_sub_u32 s61, s{S_U}, {NIT}\ns_cmp_ge_u32 s{S_U}, {NIT}\ns_cselect_b32 s{S_U}, s61, s{S_U}')
        def unit_off(dst):
            a(f's_mul_i32 s62, s{S_U}, {STEP}\ns_add_u32 s62, s62, s{S_WOF}')
            part_base()
            a(f'v_lshl_add_u32 v{dst[0]}, v{V_LANE}, 4, s62')
            if U > 4: a(f'v_add_u32 v{dst[1]}, 0x1000, v{dst[0]}')
        unit_off(V_OC)
        a(f's_mul_i32 s{S_CU}, s{S_U}, {4*U}')
        a(f's_add_u32 s{S_U}, s{S_U}, 1')
        wrap_u(); unit_off(V_ON)
    tog = [0]
    def slot_load(m):
        offs = V_OC if m < 2 * U else V_ON
        m %= 2 * U
        isv, i = m >= U, m % U
        dst = (V_V if isv else V_K) + 4 * i
        srd_ = SRD_V if isv else SRD_K
        pol = cfg.vpol if isv else cfg.kpol
        if cfg.step:
            if i == 0:
                a(f'buffer_load_dwordx4 {vr(dst,4)}, v{offs[0]}, s[{srd_}:{srd_+3}], 0 offen {pol}')
            else:
                t = V_ST + tog[0]; tog[0] ^= 1
                a(f'v_add_u32 v{t}, {4096*i}, v{offs[0]}')
                a(f'buffer_load_dwordx4 {vr(dst,4)}, v{t}, s[{srd_}:{srd_+3}], 0 offen {pol}')
        else:
            a(f'buffer_load_dwordx4 {vr(dst,4)}, v{offs[i // 4]}, s[{srd_}:{srd_+3}], 0 offen offset:{1024*(i%4)} {pol}')
    a(f'v_mov_b32 v{V_M}, 0xf149f2ca')
    a(f'v_mov_b32 v{V_L}, 0')
    for k in range(4): a(f'v_mov_b32 v{V_ACC+k}, 0')
    a(f'v_mov_b32 v{V_SC}, {f2u(SCALE):#x}')
    a(f'v_mov_b32 v{V_ZERO}, 0')
    if cfg.fine: stamp(a, cfg, 4)
    a('s_barrier')
    if cfg.fine: stamp(a, cfg, 5)
    ne = min(cfg.early, L1)
    XV = V_V
    a(f'v_lshrrev_b32 v{V_TMP}, 3, v{V_C}')
    a(f'v_lshlrev_b32 v{V_TMP}, 11, v{V_TMP}')
    a(f'v_lshl_add_u32 v{V_TMP}, v{V_G}, 1, v{V_TMP}')
    a(f's_lshl_b32 s62, s{S_BASE}, 3')
    a(f'v_add_u32 v{V_TMP}, s62, v{V_TMP}')
    for s in range(16):
        a(f'ds_read_u16 v{XV+s}, v{V_TMP} offset:{L_XA + 32*s}')
    nkv = 0
    nz = 0
    if dyn:
        a(f'global_load_dword v{V_GRAB}, v{V_ZERO}, s[{P_DBG}:{P_DBG+1}] offset:{CNT_Z} sc1'); nz = 1
    for s in range(16):
        t = V_TMP + 2 + (s & 1); A = V_A + 4 * (s & 1)
        a(f's_waitcnt lgkmcnt({15 - s})')
        a(f'v_lshl_or_b32 v{t}, v{XV+s}, 16, v{XV+s}')
        for i in range(4): a(f'v_and_b32 v{A+i}, v{t}, v{V_MASK+i}')
        a(f's_waitcnt vmcnt({15 - s + nkv + nz})')
        a('s_nop 0')
        c = '0' if s == 0 else vr(V_Y, 4)
        a(f'v_mfma_f32_16x16x32_bf16 {vr(V_Y,4)}, {vr(A,4)}, {vr(V_W+4*s,4)}, {c}')
        if s >= 16 - ne: slot_load(nkv); nkv += 1
    assert ne <= U
    if cfg.fine: stamp(a, cfg, 6)
    q_reduce(a, V_Y, V_TMP, L_QP, L_QB, 'A')
    for m in range(nkv, L1): slot_load(m)
    a(f'v_lshlrev_b32 v{V_TMP+2}, 4, v{V_C}')
    a(f's_lshl_b32 s62, s{S_B}, 8')
    a(f'v_add_u32 v{V_TMP+2}, s62, v{V_TMP+2}')
    a(f'ds_read_b128 {vr(V_Q,4)}, v{V_TMP+2} offset:{L_QB}')
    a(f's_lshl_b32 s62, s{S_H}, 17')
    a(f's_mov_b32 s63, {128*1024:#x}')
    srd(a, SRD_W, P_AWO, off_s=62, nrec_s=63)
    wo_voff(a, V_WOFF)
    a(f's_mul_i32 s{S_SIG}, s{S_W4}, {1 if cfg.step else U}')
    a(f's_mov_b32 s{S_IT}, 0')
    a(f's_mul_i32 s{S_WOIT}, s{S_R}, {cfg.wo_stag}\ns_add_u32 s{S_WOIT}, s{S_WOIT}, {cfg.wo_iter}')
    a('s_waitcnt lgkmcnt(0)')
    stamp(a, cfg, 1)
    if dyn:
        assert L1 == L2 and L1 < U
        a(f's_waitcnt vmcnt({L1})')
        a(f'v_readfirstlane_b32 s62, v{V_GRAB}')
        a('s_nop 3')
        a('s_cmp_ge_u32 s62, 32\ns_cbranch_scc1 L_A_z_ok')
        poll(a, CNT_Z, 32, V_GRAB, V_ZERO, 'A_z')
        a.label('L_A_z_ok')
    else:
        assert cfg.wo_iter + cfg.wo_stag * (NA - 1) < NIT - 1
    def body(L, tag, last_it):
        LK = [L] * (2 * U)
        if cfg.Lv:
            for n in range(2 * U):
                if cfg.Lpat[n % len(cfg.Lpat)] == '-' and n != 2 * U - 1: LK[n] = L - 1
        def issue(n):
            prev = (n - 1 + LK[n - 1]) if n > 0 else (L - 1)
            for m in range(prev + 1, n + LK[n] + 1): slot_load(m)
        def waitn(n):
            v = (LK[n - 1] if n > 0 else L) - 1
            if dyn and n < L: v += 1
            a(f's_waitcnt vmcnt({v})')
        N0 = 2 * U - L
        def next_unit():
            a(f'v_readfirstlane_b32 s{S_UN}, v{V_GRAB}')
            a('s_nop 3')
            a(f's_add_u32 s{S_UN}, s{S_UN}, {NWV}')
            a(f's_mul_i32 s62, s{S_UN}, {U*1024}')
            a(f'v_lshl_add_u32 v{V_ON[0]}, v{V_LANE}, 4, s62')
            if U > 4: a(f'v_add_u32 v{V_ON[1]}, 0x1000, v{V_ON[0]}')
            a(f's_cmp_lt_u32 s{S_UN}, {NU}\ns_cbranch_scc1 L_A_more{tag}')
            a(f'global_load_dword v{V_CLR}, v{V_ZERO}, s[{P_DBG}:{P_DBG+1}] offset:{CNT_Q} sc1')
            a.label(f'L_A_more{tag}')
        a('.p2align 6')
        a.label(f'L_A_loop{tag}')
        a(f's_cmp_lg_u32 s{S_IT}, s{S_WOIT}\ns_cbranch_scc1 L_A_nowo{tag}')
        slice_loads(a, SRD_W, V_WOFF, V_W, cfg.wopol, 'wo')
        if not dyn: a(f'global_load_dword v{V_CLR}, v{V_ZERO}, s[{P_DBG}:{P_DBG+1}] offset:{CNT_Q} sc1')
        a.label(f'L_A_nowo{tag}')
        if dyn:
            a('s_mov_b64 exec, 1')
            a(f'global_atomic_add v{V_GRAB}, v{V_CADDR}, v{V_ONE}, s[{P_WS}:{P_WS+1}] sc0 sc1')
            a('s_mov_b64 exec, -1')
        if cfg.loopst:
            for n, it in enumerate((2, 4, 6, 8)):
                a(f's_cmp_lg_u32 s{S_IT}, {it}\ns_cbranch_scc1 L_A_ls{n}{tag}')
                stamp(a, cfg, 4 + n)
                a.label(f'L_A_ls{n}{tag}')
        if cfg.ilv and not dyn:
            a(f's_cmp_eq_u32 s{S_IT}, {NIT-1}')
            a(f's_cselect_b32 s63, s{S_N}, {4*U}')
            for i in range(U):
                a(f's_add_u32 s62, s{S_SIG}, {i}')
                a(f's_cmp_lt_u32 s62, s63')
                a(f's_cselect_b32 s{S_BIAS+i}, 0, 0xff800000')
        elif not dyn:
            a(f's_add_u32 s63, s{S_SIG}, s{S_CU}')
            for i in range(U):
                a(f's_add_u32 s62, s63, {4*i if cfg.step else i}')
                a(f's_cmp_lt_u32 s62, s{S_N}')
                a(f's_cselect_b32 s{S_BIAS+i}, 0, 0xff800000')
        for i in range(U):
            waitn(i)
            a(f'v_dot2_f32_bf16 v{V_T+i}, v{V_K+4*i}, v{V_Q}, 0')
            for k in range(1, 4):
                a(f'v_dot2_f32_bf16 v{V_T+i}, v{V_K+4*i+k}, v{V_Q+k}, v{V_T+i}')
            issue(i)
        a.nop(2)
        for st in (8, 4, 2, 1):
            for i in range(U):
                a(f'v_add_f32_dpp v{V_T+i}, v{V_T+i}, v{V_T+i} row_ror:{st} row_mask:0xf bank_mask:0xf')
        for i in range(U):
            if dyn: a(f'v_mul_f32 v{V_T+i}, v{V_T+i}, v{V_SC}')
            else: a(f'v_fma_f32 v{V_T+i}, v{V_T+i}, v{V_SC}, s{S_BIAS+i}')
        a(f'v_max3_f32 v{V_XX}, v{V_T}, v{V_T+1}, v{V_T+2}')
        i = 3
        while i < U:
            if i + 1 < U: a(f'v_max3_f32 v{V_XX}, v{V_XX}, v{V_T+i}, v{V_T+i+1}'); i += 2
            else: a(f'v_max_f32 v{V_XX}, v{V_XX}, v{V_T+i}'); i += 1
        a.nop(2)
        a(f'v_max_f32_dpp v{V_XX}, v{V_XX}, v{V_XX} row_bcast:15 row_mask:0xa bank_mask:0xf')
        a.nop(2)
        a(f'v_max_f32_dpp v{V_XX}, v{V_XX}, v{V_XX} row_bcast:31 row_mask:0xc bank_mask:0xf')
        a.nop(1)
        a(f'v_readlane_b32 s62, v{V_XX}, 63')
        a.nop(2)
        a(f'v_max_f32 v{V_MN}, s62, v{V_M}')
        a(f'v_sub_f32 v{V_AL}, v{V_M}, v{V_MN}')
        for i in range(U):
            a(f'v_sub_f32 v{V_T+i}, v{V_T+i}, v{V_MN}')
        a(f'v_exp_f32 v{V_AL}, v{V_AL}')
        for i in range(U):
            a(f'v_exp_f32 v{V_T+i}, v{V_T+i}')
        a(f'v_mov_b32 v{V_M}, v{V_MN}')
        for k in range(4):
            a(f'v_mul_f32 v{V_ACC+k}, v{V_ACC+k}, v{V_AL}')
        for i in range(U):
            a(f'v_cvt_pk_bf16_f32 v{V_P+i}, v{V_T+i}, v{V_T+i}')
        a(f'v_mul_f32 v{V_L}, v{V_L}, v{V_AL}')
        for i in range(0, U, 2):
            a(f'v_add_f32 v{V_T+i}, v{V_T+i}, v{V_T+i+1}')
        for i in range(U):
            for k in range(4):
                a(f'v_and_b32 v{V_A+4*i+k}, v{V_P+i}, v{V_MASK+k}')
        for i in range(0, U, 2):
            a(f'v_add_f32 v{V_L}, v{V_L}, v{V_T+i}')
        for i in range(U):
            waitn(U + i)
            a(f'v_mfma_f32_16x16x32_bf16 {vr(V_ACC,4)}, {vr(V_A+4*i,4)}, {vr(V_V+4*i,4)}, {vr(V_ACC,4)}')
            if dyn and U + i == N0: next_unit()
            issue(U + i)
        for k in range(2 if U > 4 else 1):
            a(f'v_mov_b32 v{V_OC[k]}, v{V_ON[k]}')
        a(f's_add_u32 s{S_IT}, s{S_IT}, 1')
        if cfg.ilv and not dyn:
            a(f's_add_u32 s{S_U}, s{S_U}, {NA}')
            wrap_u()
            a(f's_mul_i32 s62, s{S_U}, {UB}\ns_add_u32 s62, s62, s{S_WOF}')
            a(f's_cmp_eq_u32 s{S_IT}, {NIT-2}\ns_cselect_b32 s62, s58, s62')
            a(f's_cmp_eq_u32 s{S_IT}, {NIT-1}\ns_cselect_b32 s62, {4 << 20:#x}, s62')
            a(f'v_lshl_add_u32 v{V_ON[0]}, v{V_LANE}, 4, s62')
            if U > 4: a(f'v_add_u32 v{V_ON[1]}, 0x1000, v{V_ON[0]}')
            a(f's_cmp_lt_u32 s{S_IT}, {last_it}')
        elif dyn:
            a(f's_cmp_lt_u32 s{S_UN}, {NU}')
        else:
            a(f's_mul_i32 s{S_CU}, s{S_U}, {4*U}')
            a(f's_add_u32 s{S_U}, s{S_U}, 1')
            wrap_u()
            a(f's_mul_i32 s62, s{S_U}, {STEP}\ns_add_u32 s62, s62, s{S_WOF}')
            part_base()
            a(f's_cmp_eq_u32 s{S_IT}, {NIT-1}\ns_cselect_b32 s62, {4 << 20:#x}, s62')
            a(f'v_lshl_add_u32 v{V_ON[0]}, v{V_LANE}, 4, s62')
            if U > 4: a(f'v_add_u32 v{V_ON[1]}, 0x1000, v{V_ON[0]}')
            a(f's_cmp_lt_u32 s{S_IT}, {last_it}')
        a(f's_cbranch_scc1 L_A_loop{tag}')
    if L2 != L1 and N1 < NIT:
        body(L1, 'a', N1)
        for m in range(L1, L2): slot_load(m)
        body(L2, 'b', NIT)
    else:
        body(L1, 'a', NIT)
    if dyn:
        a(f's_cmp_gt_u32 s{S_IT}, s{S_WOIT}\ns_cbranch_scc1 L_A_wo_ok')
        slice_loads(a, SRD_W, V_WOFF, V_W, cfg.wopol, 'wo')
        a.label('L_A_wo_ok')
    a('s_waitcnt vmcnt(0)')
    stamp(a, cfg, 2)
    role_A_tail(a, cfg, locals())

def role_A3(a, cfg):
    L_QP, L_QB, L_OB, L_SB, L_YB = 0, 8192, 8704, 12800, 16384
    SRD_K, SRD_V, SRD_W, SRD_X = 40, 44, 48, 52
    S_B, S_W4, S_N, S_SIG, S_IT = 35, 36, 37, 38, 39
    S_WOIT, S_RHO = 56, 57
    S_BIAS = 66
    U = cfg.U
    V_WOFF, V_Q = 9, 10
    V_OC, V_ON = [8, 14], [15, 250 - 1]
    V_K = 16
    V_V = V_K + 4 * U
    V_W = V_V + 4 * U
    V_X = V_W + 64
    V_T = V_X + 8
    V_P = V_T + U
    V_A = V_P + max(U, 4)
    V_ACC = V_A + 4 * max(U, 4)
    V_M, V_L, V_AL, V_MN, V_SC, V_XX, V_CLR, V_ZERO = [V_ACC + 4 + k for k in range(8)]
    V_Y = V_ACC + 12
    V_TMP = V_Y + 16
    V_CADDR, V_GRAB, V_ONE = V_TMP + 12, V_TMP + 13, V_TMP + 14
    V_ST = V_TMP + 12
    assert not (cfg.step and (cfg.dyn or cfg.ilv))
    S_UN = 59
    NOCLR = True
    S_CU = 58
    NU, NWV = 2048 // U, 4 * NA
    dyn = True
    assert V_TMP + 15 <= 249 and V_M % 2 == 0
    V_S = V_K
    starts = [2048 * j // NA for j in range(NA + 1)]
    NIT = -(-max(starts[j+1] - starts[j] for j in range(NA)) // (4 * U))
    STEP = 4 * U * 1024
    L1, L2, N1 = cfg.L1, cfg.L2 or cfg.L1, min(cfg.N1, NIT)
    assert 1 <= L1 <= L2 <= 2 * U
    a.label('L_roleA')
    stamp(a, cfg, 0)
    a(f's_lshr_b32 s{S_B}, s{S_W}, 2')
    a(f's_and_b32 s{S_W4}, s{S_W}, 3')
    L_XA = 49152
    S_BASE = S_RHO
    srd(a, SRD_X, P_AX, nrec=2048)
    a(f's_cmp_ge_u32 s{S_W}, 2\ns_cbranch_scc1 L_A_nox')
    a(f'v_lshlrev_b32 v{V_TMP+2}, 4, v0')
    a(f'buffer_load_dwordx4 {vr(V_X,4)}, v{V_TMP+2}, s[{SRD_X}:{SRD_X+3}], 0 offen')
    a.label('L_A_nox')
    a(f's_lshl_b32 s62, s{S_H}, 8')
    a(f's_sub_u32 s63, {512*8192:#x}, s62')
    srd(a, SRD_W, P_AWQ, off_s=62, nrec_s=63)
    a(f's_mul_i32 s60, s{S_R}, {171 if cfg.rot else 0}\ns_lshr_b32 s60, s60, 3')
    a(f's_lshl_b32 s61, s{S_B}, 6\ns_add_u32 s60, s60, s61\ns_add_u32 s60, s60, s{S_W4}')
    a(f's_and_b32 s{S_BASE}, s60, 127')
    a(f'v_lshlrev_b32 v{V_TMP+1}, 13, v{V_G}')
    a(f'v_lshl_add_u32 v{V_TMP+1}, v{V_C}, 4, v{V_TMP+1}')
    for s in range(16):
        a(f's_add_u32 s62, s{S_BASE}, {4*s}\ns_and_b32 s62, s62, 127\ns_lshl_b32 s62, s62, 15')
        a(f'buffer_load_dwordx4 {vr(V_W+4*s,4)}, v{V_TMP+1}, s[{SRD_W}:{SRD_W+3}], s62 offen {cfg.wqpol}')
    a(f's_cmp_ge_u32 s{S_W}, 2\ns_cbranch_scc1 L_A_nox2')
    a(f'v_lshlrev_b32 v{V_TMP+2}, 4, v{V_LANE}')
    a(f's_lshl_b32 s62, s{S_W}, 11')
    a(f'v_add_u32 v{V_TMP+2}, s62, v{V_TMP+2}')
    a('s_waitcnt vmcnt(16)')
    a(f'ds_write_b128 v{V_TMP+2}, {vr(V_X,4)} offset:{L_XA}')
    a(f'ds_write_b128 v{V_TMP+2}, {vr(V_X,4)} offset:{L_XA + 1024}')
    a('s_waitcnt lgkmcnt(0)')
    a.label('L_A_nox2')
    NS = cfg.NS
    assert U == 8 and not cfg.step and L1 <= U and L2 <= U and cfg.wo_iter + cfg.wo_stag * (NA - 1) < NS - 1
    a(f's_lshl_b32 s62, s{S_B}, 5\ns_add_u32 s62, s62, s{S_H}')
    a(f's_lshl_b32 s61, s62, 7\ns_add_u32 s61, s61, {WS_CTR:#x}')
    a(f'v_mov_b32 v{V_CADDR}, s61')
    a(f'v_mov_b32 v{V_ONE}, 1')
    a(f's_lshl_b32 s62, s62, 21')
    a(f's_mov_b32 s63, {2 << 20:#x}')
    srd(a, SRD_K, P_AK, off_s=62, nrec_s=63)
    srd(a, SRD_V, P_AV, off_s=62, nrec_s=63)
    S_U, S_WOF = 76, 77
    a(f's_mul_i32 s{S_WOF}, s{S_W4}, {U*1024}')
    a(f's_mul_i32 s61, s{S_R}, {NS*STEP}\ns_add_u32 s{S_WOF}, s{S_WOF}, s61')
    a(f's_mul_i32 s62, s{S_B}, {cfg.brot}')
    a(f's_mul_i32 s61, s{S_R}, {cfg.jrot}\ns_add_u32 s62, s62, s61')
    a(f's_mul_hi_u32 s61, s62, {-(-(1 << 32) // NS):#x}\ns_mul_i32 s61, s61, {NS}\ns_sub_u32 s{S_U}, s62, s61')
    def wrap_u():
        a(f's_sub_u32 s61, s{S_U}, {NS}\ns_cmp_ge_u32 s{S_U}, {NS}\ns_cselect_b32 s{S_U}, s61, s{S_U}')
    def unit_off(dst):
        a(f's_mul_i32 s62, s{S_U}, {STEP}\ns_add_u32 s62, s62, s{S_WOF}')
        a(f'v_lshl_add_u32 v{dst[0]}, v{V_LANE}, 4, s62')
        a(f'v_add_u32 v{dst[1]}, 0x1000, v{dst[0]}')
    unit_off(V_OC)
    a(f's_add_u32 s{S_U}, s{S_U}, 1')
    wrap_u(); unit_off(V_ON)
    tog = [0]
    def slot_load(m):
        offs = V_OC if m < 2 * U else V_ON
        m %= 2 * U
        isv, i = m >= U, m % U
        dst = (V_V if isv else V_K) + 4 * i
        srd_ = SRD_V if isv else SRD_K
        pol = cfg.vpol if isv else cfg.kpol
        if cfg.step:
            if i == 0:
                a(f'buffer_load_dwordx4 {vr(dst,4)}, v{offs[0]}, s[{srd_}:{srd_+3}], 0 offen {pol}')
            else:
                t = V_ST + tog[0]; tog[0] ^= 1
                a(f'v_add_u32 v{t}, {4096*i}, v{offs[0]}')
                a(f'buffer_load_dwordx4 {vr(dst,4)}, v{t}, s[{srd_}:{srd_+3}], 0 offen {pol}')
        else:
            a(f'buffer_load_dwordx4 {vr(dst,4)}, v{offs[i // 4]}, s[{srd_}:{srd_+3}], 0 offen offset:{1024*(i%4)} {pol}')
    a(f'v_mov_b32 v{V_M}, 0xff800000')
    a(f'v_mov_b32 v{V_L}, 0')
    for k in range(4): a(f'v_mov_b32 v{V_ACC+k}, 0')
    a(f'v_mov_b32 v{V_SC}, {f2u(SCALE):#x}')
    a(f'v_mov_b32 v{V_ZERO}, 0')
    a(f'ds_write_b32 v{V_ZERO}, v{V_ZERO} offset:12928')
    if cfg.ctl: a(f'ds_write_b32 v{V_ZERO}, v{V_ZERO} offset:12932')
    a('s_waitcnt lgkmcnt(0)')
    if cfg.fine: stamp(a, cfg, 4)
    a('s_barrier')
    if cfg.fine: stamp(a, cfg, 5)
    ne = min(cfg.early, L1)
    XV = V_V
    a(f'v_lshrrev_b32 v{V_TMP}, 3, v{V_C}')
    a(f'v_lshlrev_b32 v{V_TMP}, 11, v{V_TMP}')
    a(f'v_lshl_add_u32 v{V_TMP}, v{V_G}, 1, v{V_TMP}')
    a(f's_lshl_b32 s62, s{S_BASE}, 3')
    a(f'v_add_u32 v{V_TMP}, s62, v{V_TMP}')
    for s in range(16):
        a(f'ds_read_u16 v{XV+s}, v{V_TMP} offset:{L_XA + 32*s}')
    nkv = 0
    nz = 0
    if cfg.q2:
        AO = [V_A + 4 * s for s in range(8)] + [V_V + 16 + 4 * s for s in range(4)] + [V_T + 4 * s for s in range(4)]
        assert V_P == V_T + 8
        for s in range(16):
            t = V_TMP + 2 + (s & 1)
            a(f's_waitcnt lgkmcnt({15 - s})')
            a(f'v_lshl_or_b32 v{t}, v{XV+s}, 16, v{XV+s}')
            for i in range(4): a(f'v_and_b32 v{AO[s]+i}, v{t}, v{V_MASK+i}')
        a('s_nop 0')
        for s in range(16):
            a(f's_waitcnt vmcnt({15 - s + nkv + nz})')
            acc = V_Y + 4 * (s & 1)
            c = '0' if s < 2 else vr(acc, 4)
            a(f'v_mfma_f32_16x16x32_bf16 {vr(acc,4)}, {vr(AO[s],4)}, {vr(V_W+4*s,4)}, {c}')
            if s >= 16 - ne: slot_load(nkv); nkv += 1
        a.nop(8)
        for k in range(4): a(f'v_add_f32 v{V_Y+k}, v{V_Y+k}, v{V_Y+4+k}')
    else:
      for s in range(16):
        t = V_TMP + 2 + (s & 1); A = V_A + 4 * (s & 1)
        a(f's_waitcnt lgkmcnt({15 - s})')
        a(f'v_lshl_or_b32 v{t}, v{XV+s}, 16, v{XV+s}')
        for i in range(4): a(f'v_and_b32 v{A+i}, v{t}, v{V_MASK+i}')
        a(f's_waitcnt vmcnt({15 - s + nkv + nz})')
        a('s_nop 0')
        c = '0' if s == 0 else vr(V_Y, 4)
        a(f'v_mfma_f32_16x16x32_bf16 {vr(V_Y,4)}, {vr(A,4)}, {vr(V_W+4*s,4)}, {c}')
        if s >= 16 - ne: slot_load(nkv); nkv += 1
    assert ne <= U
    if cfg.fine: stamp(a, cfg, 6)
    q_reduce(a, V_Y, V_TMP, L_QP, L_QB, 'A')
    for m in range(nkv, L1): slot_load(m)
    a(f'v_lshlrev_b32 v{V_TMP+2}, 4, v{V_C}')
    a(f's_lshl_b32 s62, s{S_B}, 8')
    a(f'v_add_u32 v{V_TMP+2}, s62, v{V_TMP+2}')
    a(f'ds_read_b128 {vr(V_Q,4)}, v{V_TMP+2} offset:{L_QB}')
    a(f's_lshl_b32 s62, s{S_H}, 17')
    a(f's_mov_b32 s63, {128*1024:#x}')
    srd(a, SRD_W, P_AWO, off_s=62, nrec_s=63)
    wo_voff(a, V_WOFF)
    a(f's_mul_i32 s{S_SIG}, s{S_W4}, {1 if cfg.step else U}')
    a(f's_mov_b32 s{S_IT}, 0')
    a(f's_mul_i32 s{S_WOIT}, s{S_R}, {cfg.wo_stag}\ns_add_u32 s{S_WOIT}, s{S_WOIT}, {cfg.wo_iter}')
    a('s_waitcnt lgkmcnt(0)')
    stamp(a, cfg, 1)
    L_FLAG = 12928
    L_MODE = 12932
    V_PADR, V_MADR, V_MODE, V_PRG = V_TMP + 15, V_TMP + 16, V_TMP + 17, V_TMP + 18
    S_SLOW, S_FLG = 79, 80
    if cfg.ctl:
        assert V_PRG < 249 and cfg.xthr < 0
        a(f's_lshl_b32 s62, s{S_H}, 3\ns_add_u32 s62, s62, s{S_R}\ns_lshl_b32 s62, s62, 7\ns_add_u32 s62, s62, {WS_PROG:#x}')
        a(f'v_mov_b32 v{V_PADR}, s62')
        a(f's_lshl_b32 s62, s{S_H}, 7\ns_add_u32 s62, s62, {WS_MEAN:#x}')
        a(f'v_mov_b32 v{V_MADR}, s62')
        a(f'v_mov_b32 v{V_MODE}, 0')
        a(f's_mov_b32 s{S_SLOW}, 0\ns_mov_b32 s{S_FLG}, 0')
    assert cfg.chk_it + 1 < NS - 1
    S_BHC, S_BHN = 81, 82
    def softmax(U, hb=False):
        a.nop(2)
        for st in (8, 4, 2, 1):
            for i in range(U):
                a(f'v_add_f32_dpp v{V_T+i}, v{V_T+i}, v{V_T+i} row_ror:{st} row_mask:0xf bank_mask:0xf')
        for i in range(U):
            if hb and i >= 4: a(f'v_fma_f32 v{V_T+i}, v{V_T+i}, v{V_SC}, s{S_BHC}')
            else: a(f'v_mul_f32 v{V_T+i}, v{V_T+i}, v{V_SC}')
        a(f'v_max3_f32 v{V_XX}, v{V_T}, v{V_T+1}, v{V_T+2}')
        i = 3
        while i < U:
            if i + 1 < U: a(f'v_max3_f32 v{V_XX}, v{V_XX}, v{V_T+i}, v{V_T+i+1}'); i += 2
            else: a(f'v_max_f32 v{V_XX}, v{V_XX}, v{V_T+i}'); i += 1
        a.nop(2)
        a(f'v_max_f32_dpp v{V_XX}, v{V_XX}, v{V_XX} row_bcast:15 row_mask:0xa bank_mask:0xf')
        a.nop(2)
        a(f'v_max_f32_dpp v{V_XX}, v{V_XX}, v{V_XX} row_bcast:31 row_mask:0xc bank_mask:0xf')
        a.nop(1)
        a(f'v_readlane_b32 s62, v{V_XX}, 63')
        a.nop(2)
        a(f'v_max_f32 v{V_MN}, s62, v{V_M}')
        a(f'v_sub_f32 v{V_AL}, v{V_M}, v{V_MN}')
        for i in range(U):
            a(f'v_sub_f32 v{V_T+i}, v{V_T+i}, v{V_MN}')
        a(f'v_exp_f32 v{V_AL}, v{V_AL}')
        for i in range(U):
            a(f'v_exp_f32 v{V_T+i}, v{V_T+i}')
        a(f'v_mov_b32 v{V_M}, v{V_MN}')
        for k in range(4):
            a(f'v_mul_f32 v{V_ACC+k}, v{V_ACC+k}, v{V_AL}')
        for i in range(U):
            a(f'v_cvt_pk_bf16_f32 v{V_P+i}, v{V_T+i}, v{V_T+i}')
        a(f'v_mul_f32 v{V_L}, v{V_L}, v{V_AL}')
        for i in range(0, U, 2):
            a(f'v_add_f32 v{V_T+i}, v{V_T+i}, v{V_T+i+1}')
        for i in range(U):
            for k in range(4):
                a(f'v_and_b32 v{V_A+4*i+k}, v{V_P+i}, v{V_MASK+k}')
        for i in range(0, U, 2):
            a(f'v_add_f32 v{V_L}, v{V_L}, v{V_T+i}')
    HF = 2 if cfg.d4 else 1
    def flag_wait():
        a('s_mov_b32 s64, 0')
        a.label('L_A_flag')
        a(f'ds_read_b32 v{V_CLR}, v{V_ZERO} offset:{L_FLAG}')
        a('s_waitcnt lgkmcnt(0)')
        a(f'v_readfirstlane_b32 s62, v{V_CLR}')
        a('s_add_u32 s64, s64, 1')
        a('s_nop 2')
        a('s_cmp_lg_u32 s62, 0\ns_cbranch_scc1 L_A_flag_ok')
        a('s_sleep 8')
        a(f's_cmp_lt_u32 s64, {1 << 20}\ns_cbranch_scc1 L_A_flag')
        a.label('L_A_flag_ok')
    def body(L, tag, mode, last=None, slow=False):
        grab = mode != 'S'
        LK = [L] * (2 * U)
        if slow: LK = [L - cfg.slowd] * (2 * U - 1) + [L]
        def issue(n):
            prev = (n - 1 + LK[n - 1]) if n > 0 else (L - 1)
            for m in range(prev + 1, n + LK[n] + 1): slot_load(m)
        def waitn(n):
            v = (LK[n - 1] if n > 0 else L) - 1
            if grab and n < L: v += 1
            if mode == 'S' and n < L and cfg.wox:
                a(f's_cmp_eq_u32 s{S_IT}, s{S_WOIT}\ns_cbranch_scc1 L_A_wx{tag}{n}')
                a(f's_waitcnt vmcnt({v})')
                a.label(f'L_A_wx{tag}{n}')
                a(f's_waitcnt vmcnt({v + 16})')
                return
            a(f's_waitcnt vmcnt({v})')
        N0 = 2 * U - L
        def next_unit():
            a(f'v_readfirstlane_b32 s{S_UN}, v{V_GRAB}')
            a('s_nop 3')
            if cfg.half:
                NF = cfg.NF
                POOL0 = NS * NWV * 2
                a(f's_lshl_b32 s62, s{S_UN}, 1')
                a(f's_add_u32 s63, s{S_UN}, {NF}')
                a(f's_cmp_lt_u32 s{S_UN}, {NF}')
                a(f's_cselect_b32 s{S_UN}, s62, s63')
                a(f's_cselect_b32 s{S_BHN}, 0, 0xff800000')
                a(f's_mov_b32 s63, {4 << 20:#x}\ns_cselect_b32 s63, 0x1000, s63')
                a(f's_add_u32 s{S_UN}, s{S_UN}, {POOL0}')
                a(f's_lshl_b32 s62, s{S_UN}, 12')
                a(f'v_lshl_add_u32 v{V_ON[0]}, v{V_LANE}, 4, s62')
                a(f'v_add_u32 v{V_ON[1]}, s63, v{V_ON[0]}')
            else:
                a(f's_add_u32 s{S_UN}, s{S_UN}, {NS*NWV*HF}')
                a(f's_mul_i32 s62, s{S_UN}, {U*1024//HF}')
                a(f'v_lshl_add_u32 v{V_ON[0]}, v{V_LANE}, 4, s62')
                a(f'v_add_u32 v{V_ON[1]}, 0x1000, v{V_ON[0]}')
            if cfg.d4:
                a('s_mov_b64 exec, 1')
                a(f'global_atomic_add v{V_GRAB}, v{V_CADDR}, v{V_ONE}, s[{P_WS}:{P_WS+1}] sc0 {cfg.gsc}')
                a('s_mov_b64 exec, -1')
        if mode != 'T': a('.p2align 6')
        a.label(f'L_A_loop{tag}')
        if mode == 'S':
            a(f's_cmp_lg_u32 s{S_IT}, s{S_WOIT}\ns_cbranch_scc1 L_A_nowo{tag}')
            slice_loads(a, SRD_W, V_WOFF, V_W, cfg.wopol, 'wo')
            a.label(f'L_A_nowo{tag}')
            if not cfg.ctl:
                a(f's_cmp_lg_u32 s{S_W}, 0\ns_cbranch_scc1 L_A_nochk{tag}')
                a(f's_cmp_lg_u32 s{S_IT}, {cfg.chk_it}\ns_cbranch_scc1 L_A_nold{tag}')
                a(f'global_load_dword v{V_CLR}, v{V_ZERO}, s[{P_DBG}:{P_DBG+1}] offset:{CNT_Q} sc1')
                a.label(f'L_A_nold{tag}')
                a(f's_cmp_lg_u32 s{S_IT}, {cfg.chk_it + 1}\ns_cbranch_scc1 L_A_nochk{tag}')
                a(f'v_readfirstlane_b32 s62, v{V_CLR}')
                a('s_nop 3')
                a(f's_cmp_ge_u32 s62, 32\ns_cbranch_scc1 L_A_q_ok{tag}')
                poll(a, CNT_Q, 32, V_CLR, V_ZERO, f'A_q{tag}')
                a.label(f'L_A_q_ok{tag}')
                a(f'v_mov_b32 v{V_CLR}, 1')
                a(f'ds_write_b32 v{V_ZERO}, v{V_CLR} offset:{L_FLAG}')
                a.label(f'L_A_nochk{tag}')
            else:
                a(f's_cmp_lg_u32 s{S_W}, 0\ns_cbranch_scc1 L_A_nochk{tag}')
                a(f's_cmp_lt_u32 s{S_IT}, 2\ns_cbranch_scc1 L_A_c0{tag}')
                a(f's_cmp_lg_u32 s{S_FLG}, 0\ns_cbranch_scc1 L_A_c1{tag}')
                a(f's_cmp_lt_u32 s{S_IT}, 3\ns_cbranch_scc1 L_A_c2{tag}')
                a(f'v_readfirstlane_b32 s62, v{V_CLR}')
                a('s_nop 3')
                a(f's_cmp_ge_u32 s62, 32\ns_cbranch_scc1 L_A_c3{tag}')
                a(f's_cmp_lt_u32 s{S_IT}, {NS - 2}\ns_cbranch_scc1 L_A_c2{tag}')
                poll(a, CNT_Q, 32, V_CLR, V_ZERO, f'A_q{tag}')
                a.label(f'L_A_c3{tag}')
                a(f's_mov_b32 s{S_FLG}, 1')
                a(f'v_mov_b32 v{V_CLR}, 1')
                a(f'ds_write_b32 v{V_ZERO}, v{V_CLR} offset:{L_FLAG}')
                a(f'global_load_dword v{V_GRAB}, v{V_MADR}, s[{P_WS}:{P_WS+1}] sc1')
                a(f's_branch L_A_c0{tag}')
                a.label(f'L_A_c2{tag}')
                a(f'global_load_dword v{V_CLR}, v{V_ZERO}, s[{P_DBG}:{P_DBG+1}] offset:{CNT_Q} sc1')
                a(f's_branch L_A_c0{tag}')
                a.label(f'L_A_c1{tag}')
                a(f'v_readfirstlane_b32 s62, v{V_GRAB}')
                a(f's_sub_u32 s63, s{S_IT}, 1\ns_mul_i32 s63, s63, 192')
                a('s_nop 1')
                a(f's_add_u32 s62, s62, {cfg.theta}')
                a('s_cmp_gt_u32 s63, s62\ns_cselect_b32 s63, 1, 0')
                a(f's_cmp_eq_u32 s62, {cfg.theta}\ns_cselect_b32 s63, 0, s63')
                a(f'v_mov_b32 v{V_PRG}, s63')
                a(f'ds_write_b32 v{V_ZERO}, v{V_PRG} offset:{L_MODE}')
                a(f'global_load_dword v{V_GRAB}, v{V_MADR}, s[{P_WS}:{P_WS+1}] sc1')
                a.label(f'L_A_c0{tag}')
                a(f'v_mov_b32 v{V_PRG}, s{S_IT}')
                a('s_mov_b64 exec, 1')
                a(f'global_store_dword v{V_PADR}, v{V_PRG}, s[{P_WS}:{P_WS+1}] sc1')
                a('s_mov_b64 exec, -1')
                a.label(f'L_A_nochk{tag}')
        if mode == 'T': flag_wait()
        if grab:
            a('s_mov_b64 exec, 1')
            a(f'global_atomic_add v{V_GRAB}, v{V_CADDR}, v{V_ONE}, s[{P_WS}:{P_WS+1}] sc0 {cfg.gsc}')
            a('s_mov_b64 exec, -1')
        for i in range(U):
            waitn(i)
            a(f'v_dot2_f32_bf16 v{V_T+i}, v{V_K+4*i}, v{V_Q}, 0')
            for k in range(1, 4):
                a(f'v_dot2_f32_bf16 v{V_T+i}, v{V_K+4*i+k}, v{V_Q+k}, v{V_T+i}')
            if grab and i == N0: next_unit()
            issue(i)
        softmax(U, hb=(cfg.half and mode == 'D'))
        for i in range(U):
            waitn(U + i)
            a(f'v_mfma_f32_16x16x32_bf16 {vr(V_ACC,4)}, {vr(V_A+4*i,4)}, {vr(V_V+4*i,4)}, {vr(V_ACC,4)}')
            if grab and U + i == N0: next_unit()
            issue(U + i)
        for k in range(2):
            a(f'v_mov_b32 v{V_OC[k]}, v{V_ON[k]}')
        a(f's_add_u32 s{S_IT}, s{S_IT}, 1')
        if mode == 'S':
            if cfg.ctl: a(f'ds_read_b32 v{V_MODE}, v{V_ZERO} offset:{L_MODE}')
            a(f's_add_u32 s{S_U}, s{S_U}, 1')
            wrap_u(); unit_off(V_ON)
            a(f's_cmp_lt_u32 s{S_IT}, {last}')
            if cfg.xthr >= 0 or cfg.ctl:
                a(f's_cbranch_scc1 L_A_sel')
                if not slow: a('s_branch L_A_sdone')
            else:
                a(f's_cbranch_scc1 L_A_loop{tag}')
        elif mode == 'T':
            a(f's_cmp_ge_u32 s{S_UN}, {NU*HF}\ns_cbranch_scc1 L_A_done')
        else:
            if cfg.half: a(f's_mov_b32 s{S_BHC}, s{S_BHN}')
            a(f's_cmp_lt_u32 s{S_UN}, {NU * (2 if cfg.half else 1)}')
            a(f's_cbranch_scc1 L_A_loop{tag}')
    NH1 = min(cfg.N1, NS - 1)
    if cfg.ctl:
        a.label('L_A_sel')
        a('s_waitcnt lgkmcnt(0)')
        a(f'v_readfirstlane_b32 s{S_SLOW}, v{V_MODE}')
        a('s_nop 3')
        a(f's_cmp_eq_u32 s{S_SLOW}, 0\ns_cbranch_scc0 L_A_loopw')
        body(L1, 'a', 'S', NH1)
        body(L1, 'w', 'S', NH1, slow=True)
        a.label('L_A_sdone')
    elif cfg.xthr >= 0:
        S_SLOW = 79
        a(f's_and_b32 s62, s2, 7\ns_lshr_b32 s{S_SLOW}, {cfg.xthr}, s62\ns_and_b32 s{S_SLOW}, s{S_SLOW}, 1')
        a.label('L_A_sel')
        a(f's_cmp_eq_u32 s{S_SLOW}, 0\ns_cbranch_scc1 L_A_loopa')
        a(f's_cmp_lt_u32 s{S_IT}, {cfg.xa}\ns_cbranch_scc1 L_A_loopa')
        a(f's_cmp_lt_u32 s{S_IT}, {cfg.xb}\ns_cbranch_scc1 L_A_loopw')
        a('s_branch L_A_loopa')
        body(L1, 'a', 'S', NH1)
        body(L1, 'w', 'S', NH1, slow=True)
        a.label('L_A_sdone')
    else:
        body(L1, 'a', 'S', NH1)
    if cfg.d4:
        assert NH1 == NS - 1 and L1 == 4
        body(L1, 't', 'T')
        for i in range(4): slot_load(U + i)
        a('.p2align 6')
        a.label('L_A_loopd')
        a('s_waitcnt vmcnt(6)')
        a(f'v_readfirstlane_b32 s{S_UN}, v{V_GRAB}')
        a('s_nop 3')
        a(f's_add_u32 s{S_UN}, s{S_UN}, {NS*NWV*HF}')
        a(f's_mul_i32 s62, s{S_UN}, {U*1024//HF}')
        a(f'v_lshl_add_u32 v{V_ON[0]}, v{V_LANE}, 4, s62')
        for n in range(4):
            a(f's_waitcnt vmcnt({7 if n <= 2 else 8})')
            a(f'v_dot2_f32_bf16 v{V_T+n}, v{V_K+4*n}, v{V_Q}, 0')
            for k in range(1, 4):
                a(f'v_dot2_f32_bf16 v{V_T+n}, v{V_K+4*n+k}, v{V_Q+k}, v{V_T+n}')
            if n == 2:
                a('s_mov_b64 exec, 1')
                a(f'global_atomic_add v{V_GRAB}, v{V_CADDR}, v{V_ONE}, s[{P_WS}:{P_WS+1}] sc0 {cfg.gsc}')
                a('s_mov_b64 exec, -1')
            slot_load(2 * U + n)
        softmax(4)
        for n in range(4):
            a('s_waitcnt vmcnt(8)')
            a(f'v_mfma_f32_16x16x32_bf16 {vr(V_ACC,4)}, {vr(V_A+4*n,4)}, {vr(V_V+4*n,4)}, {vr(V_ACC,4)}')
            slot_load(2 * U + U + n)
        a(f's_cmp_lt_u32 s{S_UN}, {NU*HF}')
        a('s_cbranch_scc1 L_A_loopd')
    elif cfg.noT:
        assert NH1 == NS - 1
        for m in range(L1, L2): slot_load(m)
        flag_wait()
        if cfg.half: a(f's_mov_b32 s{S_BHC}, 0')
        body(L2, 'b', 'D')
    else:
        if NH1 < NS - 1:
            for m in range(L1, L2): slot_load(m)
            body(L2, 's', 'S', NS - 1)
            body(L2, 't', 'T')
        else:
            body(L1, 't', 'T')
            for m in range(L1, L2): slot_load(m)
        body(L2, 'b', 'D')
    a.label('L_A_done')
    stamp(a, cfg, 2)
    TAIL_ST, TAIL_OV = V_T, V_A + 16
    role_A_tail(a, cfg, locals())

def role_A_tail(a, cfg, R):
    g = lambda n: R[n]
    V_CLR, V_ZERO, V_L, V_M, V_TMP, V_ACC, V_MN, V_XX = [g(n) for n in ('V_CLR', 'V_ZERO', 'V_L', 'V_M', 'V_TMP', 'V_ACC', 'V_MN', 'V_XX')]
    V_S, V_P, V_A, V_Y, V_W = [g(n) for n in ('V_S', 'V_P', 'V_A', 'V_Y', 'V_W')]
    S_B, S_W4 = g('S_B'), g('S_W4')
    L_OB, L_SB, L_YB = g('L_OB'), g('L_SB'), g('L_YB')
    if 'W' in cfg.roles and 'NOCLR' not in R:
        a(f'v_readfirstlane_b32 s62, v{V_CLR}')
        a('s_nop 3')
        a('s_cmp_ge_u32 s62, 32\ns_cbranch_scc1 L_A_clr_ok')
        poll(a, CNT_Q, 32, V_CLR, V_ZERO, 'A_clr')
        a.label('L_A_clr_ok')
    a(f'v_add_f32_dpp v{V_L}, v{V_L}, v{V_L} row_bcast:15 row_mask:0xa bank_mask:0xf')
    a.nop(2)
    a(f'v_add_f32_dpp v{V_L}, v{V_L}, v{V_L} row_bcast:31 row_mask:0xc bank_mask:0xf')
    a.nop(1)
    a(f'v_readlane_b32 s62, v{V_L}, 63')
    a(f'v_lshlrev_b32 v{V_TMP}, 5, v{V_C}')
    a(f'v_lshl_add_u32 v{V_TMP}, v{V_G}, 4, v{V_TMP}')
    a(f's_lshl_b32 s60, s{S_B}, 2\ns_add_u32 s60, s60, s{S_W4}')
    a(f's_lshl_b32 s63, s60, 9')
    a(f'v_add_u32 v{V_TMP}, s63, v{V_TMP}')
    a(f'v_mov_b32 v{V_M+1}, s62')
    a(f's_lshl_b32 s63, s60, 3')
    a(f'v_mov_b32 v{V_TMP+1}, s63')
    a('s_mov_b32 exec_hi, 0')
    a(f'ds_write_b128 v{V_TMP}, {vr(V_ACC,4)} offset:{L_OB}')
    a('s_mov_b64 exec, 1')
    a(f'ds_write_b64 v{V_TMP+1}, {vr(V_M,2)} offset:{L_SB}')
    a('s_mov_b64 exec, -1')
    a('s_waitcnt lgkmcnt(0)\ns_barrier')
    a(f'v_lshrrev_b32 v{V_TMP}, 3, v{V_C}')
    a(f'v_lshlrev_b32 v{V_TMP+1}, 5, v{V_TMP}')
    ST = R.get('TAIL_ST', V_S)
    OV = R.get('TAIL_OV', V_S + 8)
    a(f'ds_read_b128 {vr(ST,4)}, v{V_TMP+1} offset:{L_SB}')
    a(f'ds_read_b128 {vr(ST+4,4)}, v{V_TMP+1} offset:{L_SB+16}')
    a(f'v_lshlrev_b32 v{V_TMP+1}, 11, v{V_TMP}')
    a(f'v_lshl_add_u32 v{V_TMP+1}, v{V_G}, 4, v{V_TMP+1}')
    a(f's_lshl_b32 s63, s{S_W}, 6')
    a(f'v_add_u32 v{V_TMP+1}, s63, v{V_TMP+1}')
    for k in range(4):
        a(f'ds_read_b128 {vr(OV+4*k,4)}, v{V_TMP+1} offset:{L_OB + 512*k}')
    a('s_waitcnt lgkmcnt(4)')
    m0, l0, m1, l1, m2, l2, m3, l3 = [ST + i for i in range(8)]
    a(f'v_max3_f32 v{V_MN}, v{m0}, v{m1}, v{m2}')
    a(f'v_max_f32 v{V_MN}, v{V_MN}, v{m3}')
    for m in (m0, m1, m2, m3): a(f'v_sub_f32 v{m}, v{m}, v{V_MN}')
    for m in (m0, m1, m2, m3): a(f'v_exp_f32 v{m}, v{m}')
    a('s_nop 0')
    a(f'v_mul_f32 v{V_XX}, v{m0}, v{l0}')
    a(f'v_fma_f32 v{V_XX}, v{m1}, v{l1}, v{V_XX}')
    a(f'v_fma_f32 v{V_XX}, v{m2}, v{l2}, v{V_XX}')
    a(f'v_fma_f32 v{V_XX}, v{m3}, v{l3}, v{V_XX}')
    a('s_waitcnt lgkmcnt(0)')
    for s in range(4):
        a(f'v_mul_f32 v{OV+s}, v{OV+s}, v{m0}')
    for k, m in ((1, m1), (2, m2), (3, m3)):
        for s in range(4):
            a(f'v_fma_f32 v{OV+s}, v{OV+4*k+s}, v{m}, v{OV+s}')
    for s in range(4):
        a(f'v_cvt_pk_bf16_f32 v{V_P+s}, v{OV+s}, v{OV+s}')
    for s in range(4):
        for k in range(4):
            a(f'v_and_b32 v{V_A+4*s+k}, v{V_P+s}, v{V_MASK+k}')
    a('s_nop 1')
    for s in range(4):
        for cb in range(4):
            c = '0' if s == 0 else vr(V_Y+4*cb, 4)
            a(f'v_mfma_f32_16x16x32_bf16 {vr(V_Y+4*cb,4)}, {vr(V_A+4*s,4)}, {vr(V_W+16*s+4*cb,4)}, {c}')
    dtile_to_lds(a, V_Y, V_TMP, L_YB, 12, 11, 4)
    a(f's_lshl_b32 s62, s{S_H}, 3\ns_add_u32 s62, s62, s{S_R}')
    a('s_waitcnt lgkmcnt(0)\ns_barrier')
    a(f's_cmp_ge_u32 s{S_W}, 4\ns_cbranch_scc1 L_A_stats')
    a(f'v_lshlrev_b32 v{V_TMP}, 4, v0')
    for w in range(8):
        a(f'ds_read_b128 {vr(V_W+4*w,4)}, v{V_TMP} offset:{L_YB + 4096*w}')
    a(f'v_lshrrev_b32 v{V_TMP+1}, 7, v0')
    a(f'v_lshlrev_b32 v{V_TMP+1}, 18, v{V_TMP+1}')
    a(f'v_and_b32 v{V_TMP+2}, 127, v0')
    a(f'v_lshl_add_u32 v{V_TMP+1}, v{V_TMP+2}, 3, v{V_TMP+1}')
    a(f's_lshl_b32 s63, s62, 10\ns_add_u32 s63, s63, {WS_YA:#x}')
    a(f'v_add_u32 v{V_TMP+1}, s63, v{V_TMP+1}')
    for w in range(1, 8):
        a(f's_waitcnt lgkmcnt({7-w})')
        for k in range(4):
            a(f'v_add_f32 v{V_W+k}, v{V_W+k}, v{V_W+4*w+k}')
    a(f'v_cvt_pk_bf16_f32 v{V_W}, v{V_W}, v{V_W+1}')
    a(f'v_cvt_pk_bf16_f32 v{V_W+1}, v{V_W+2}, v{V_W+3}')
    for k in range(2):
        a(f'v_min_u32 v{V_W+k}, 0xfffffffe, v{V_W+k}')
    a(f'global_store_dwordx2 v{V_TMP+1}, {vr(V_W,2)}, s[{P_WS}:{P_WS+1}] sc1')
    a('s_branch L_A_end')
    a.label('L_A_stats')
    a(f's_cmp_lg_u32 s{S_W}, 4\ns_cbranch_scc1 L_A_end')
    a(f'v_lshrrev_b32 v{V_TMP}, 3, v{V_LANE}')
    a(f'v_lshlrev_b32 v{V_TMP}, 11, v{V_TMP}')
    a(f's_lshl_b32 s63, s62, 3\ns_add_u32 s63, s63, {WS_YSTAT:#x}')
    a(f'v_add_u32 v{V_TMP}, s63, v{V_TMP}')
    a(f'v_min_u32 v{V_TMP+2}, 0xfffffffe, v{V_MN}')
    a(f'v_min_u32 v{V_TMP+3}, 0xfffffffe, v{V_XX}')
    a('s_mov_b64 exec, 0x101')
    a(f'global_store_dwordx2 v{V_TMP}, {vr(V_TMP+2,2)}, s[{P_WS}:{P_WS+1}] sc1')
    a.label('L_A_end')
    stamp(a, cfg, 3)
    if cfg.aend: span_mark(a, cfg, True)
    a('s_endpgm')

def role_A(a, cfg):
    L_QP, L_QB, L_OB, L_SB, L_YB = 0, 8192, 8704, 12800, 16384
    SRD_K, SRD_V, SRD_W, SRD_X = 40, 44, 48, 52
    S_B, S_W4, S_N, S_SIG, S_IT = 35, 36, 37, 38, 39
    S_WOIT, S_RHO = 56, 57
    S_BIAS = 66
    U = cfg.U
    V_OFF, V_WOFF, V_Q, V_OFF2 = 8, 9, 10, 14
    V_K = 16
    V_V = V_K + 4 * U
    V_W = V_V + 4 * U
    V_X = V_W + 64
    V_T = V_X + 8
    V_P = V_T + U
    V_A = V_P + max(U, 4)
    V_ACC = V_A + 4 * max(U, 4)
    V_M, V_L, V_AL, V_MN, V_SC, V_XX, V_CLR, V_ZERO = [V_ACC + 4 + k for k in range(8)]
    V_Y = V_ACC + 12
    V_TMP = V_Y + 16
    assert V_TMP + 15 <= 250 and V_M % 2 == 0
    V_S = V_K
    a.label('L_roleA')
    stamp(a, cfg, 0)
    S_NONCE, S_BLK = 58, 59
    SRD_WS = SRD_X
    a(f's_lshr_b32 s{S_B}, s{S_W}, 2')
    if cfg.swapb: a(f's_xor_b32 s{S_B}, s{S_B}, 1')
    a(f's_and_b32 s{S_W4}, s{S_W}, 3')
    starts = [2048 * j // NA for j in range(NA + 1)]
    NU = 2048 // U
    NWV = 4 * NA
    S_UN, V_CADDR, V_GRAB, V_ONE = 59, V_TMP + 12, V_TMP + 13, V_TMP + 14
    if cfg.dyn:
        a(f's_lshl_b32 s62, s{S_B}, 5\ns_add_u32 s62, s62, s{S_H}')
        a(f's_lshl_b32 s61, s62, 7\ns_add_u32 s61, s61, {WS_CTR:#x}')
        a(f'v_mov_b32 v{V_CADDR}, s61')
        a(f'v_mov_b32 v{V_ONE}, 1')
        a(f's_lshl_b32 s62, s62, 21')
        a(f's_mov_b32 s63, {2 << 20:#x}')
        srd(a, SRD_K, P_AK, off_s=62, nrec_s=63)
        srd(a, SRD_V, P_AV, off_s=62, nrec_s=63)
        a(f's_lshl_b32 s{S_UN}, s{S_R}, 2\ns_add_u32 s{S_UN}, s{S_UN}, s{S_W4}')
        a(f's_mul_i32 s62, s{S_UN}, {U*1024}')
        a(f'v_lshl_add_u32 v{V_OFF}, v{V_LANE}, 4, s62')
        a(f'v_add_u32 v{V_OFF2}, 0x1000, v{V_OFF}')
    else:
        a(f's_mov_b32 s60, 0\ns_mov_b32 s61, {starts[1]}')
        for j in range(1, NA):
            a(f's_cmp_eq_u32 s{S_R}, {j}')
            a(f's_cselect_b32 s60, {starts[j]}, s60')
            a(f's_cselect_b32 s61, {starts[j+1]}, s61')
        a(f's_sub_u32 s{S_N}, s61, s60')
        a(f's_lshl_b32 s62, s{S_B}, 5\ns_add_u32 s62, s62, s{S_H}')
        a(f's_lshl_b32 s62, s62, 21')
        a(f's_lshl_b32 s63, s60, 10\ns_add_u32 s62, s62, s63')
        a(f's_lshl_b32 s63, s{S_N}, 10')
        srd(a, SRD_K, P_AK, off_s=62, nrec_s=63)
        srd(a, SRD_V, P_AV, off_s=62, nrec_s=63)
        a(f'v_lshlrev_b32 v{V_OFF}, 4, v{V_LANE}')
        a(f's_mul_i32 s62, s{S_W4}, {U*1024}')
        a(f'v_add_u32 v{V_OFF}, s62, v{V_OFF}')
        a(f'v_add_u32 v{V_OFF2}, 0x1000, v{V_OFF}')
    def kv_load(dst, srd_, i, pol):
        vo = V_OFF if i < 4 else V_OFF2
        a(f'buffer_load_dwordx4 {vr(dst+4*i,4)}, v{vo}, s[{srd_}:{srd_+3}], 0 offen offset:{1024*(i%4)} {pol}')
    STEP = (NWV if cfg.dyn else 4) * U * 1024
    a(f'v_mov_b32 v{V_M}, 0xff800000')
    a(f'v_mov_b32 v{V_L}, 0')
    for k in range(4): a(f'v_mov_b32 v{V_ACC+k}, 0')
    a(f'v_mov_b32 v{V_SC}, {f2u(SCALE):#x}')
    a(f'v_mov_b32 v{V_ZERO}, 0')
    if cfg.qmode == 'red':
        srd(a, SRD_X, P_AX, nrec=2048)
        a(f's_lshl_b32 s62, s{S_H}, 8')
        a(f's_sub_u32 s63, {512*8192:#x}, s62')
        srd(a, SRD_W, P_AWQ, off_s=62, nrec_s=63)
        a(f's_and_b32 s60, s{S_R}, 1\ns_lshl_b32 s60, s60, 2\ns_add_u32 s60, s60, s{S_W}\ns_and_b32 s60, s60, 7')
        a(f's_bfe_u32 s{S_RHO}, s{S_R}, 0x10001')
        if not cfg.rot:
            a(f's_mov_b32 s60, s{S_W}\ns_mov_b32 s{S_RHO}, 0')
        a(f'v_lshrrev_b32 v{V_TMP}, 3, v{V_C}')
        a(f'v_lshlrev_b32 v{V_TMP}, 10, v{V_TMP}')
        a(f'v_lshl_add_u32 v{V_TMP}, v{V_G}, 5, v{V_TMP}')
        a(f's_lshl_b32 s62, s60, 7')
        a(f'v_add_u32 v{V_TMP}, s62, v{V_TMP}')
        a(f's_lshl_b32 s62, s{S_RHO}, 4\ns_xor_b32 s63, s62, 16')
        a(f'buffer_load_dwordx4 {vr(V_X,4)}, v{V_TMP}, s[{SRD_X}:{SRD_X+3}], s62 offen')
        a(f'buffer_load_dwordx4 {vr(V_X+4,4)}, v{V_TMP}, s[{SRD_X}:{SRD_X+3}], s63 offen')
        a(f'v_lshlrev_b32 v{V_TMP+1}, 17, v{V_G}')
        a(f'v_lshl_add_u32 v{V_TMP+1}, v{V_C}, 4, v{V_TMP+1}')
        a(f's_lshl_b32 s62, s60, 19')
        a(f'v_add_u32 v{V_TMP+1}, s62, v{V_TMP+1}')
        a(f's_lshl_b32 s61, s{S_RHO}, 16')
        for s in range(16):
            a(f's_xor_b32 s62, s61, {(s // 8) * 65536}\ns_add_u32 s62, s62, {(s % 8) * 8192}')
            a(f'buffer_load_dwordx4 {vr(V_W+4*s,4)}, v{V_TMP+1}, s[{SRD_W}:{SRD_W+3}], s62 offen {cfg.wqpol}')
        a('s_barrier')
        kvl = [(V_K, SRD_K, i, cfg.kpol) for i in range(U)] + [(V_V, SRD_V, i, cfg.vpol) for i in range(U)]
        ne = cfg.early
        a(f's_waitcnt vmcnt(16)')
        if cfg.dyn: a(f'global_load_dword v{V_GRAB}, v{V_ZERO}, s[{P_DBG}:{P_DBG+1}] offset:{CNT_Z} sc1')
        done = [1 if cfg.dyn else 0]
        first = done[0]
        def early(s):
            if s >= 16 - ne: kv_load(*kvl[done[0] - first]); done[0] += 1
        for s in range(16):
            sel = '0x01000100' if s % 2 == 0 else '0x03020302'
            t = V_TMP + (s & 1); A = V_A + 4 * (s & 1)
            a(f's_mov_b32 s60, {sel}')
            a(f'v_perm_b32 v{t}, v{V_X + s//2}, v{V_X + s//2}, s60')
            for i in range(4): a(f'v_and_b32 v{A+i}, v{t}, v{V_MASK+i}')
            a(f's_waitcnt vmcnt({15 - s + done[0]})')
            a('s_nop 0')
            c = '0' if s == 0 else vr(V_Y, 4)
            a(f'v_mfma_f32_16x16x32_bf16 {vr(V_Y,4)}, {vr(A,4)}, {vr(V_W+4*s,4)}, {c}')
            early(s)
        q_reduce(a, V_Y, V_TMP, L_QP, L_QB, 'A')
        for x in kvl[done[0] - first:]: kv_load(*x)
        a(f'v_add_u32 v{V_OFF}, {STEP:#x}, v{V_OFF}')
        a(f'v_add_u32 v{V_OFF2}, {STEP:#x}, v{V_OFF2}')
    else:
        a(f's_mov_b32 s{S_BLK}, s{S_R}')
        a(f's_cmp_eq_u32 s{S_W}, 0\ns_cbranch_scc1 L_A_task')
        a(f's_add_u32 s{S_BLK}, s{S_R}, 6')
        a(f's_cmp_lg_u32 s{S_W}, 1\ns_cbranch_scc1 L_A_notask')
        a(f's_cmp_ge_u32 s{S_R}, 2\ns_cbranch_scc1 L_A_notask')
        a.label('L_A_task')
        a('s_setprio 3')
        a(f'v_mov_b32 v{V_TMP+2}, {WS_NONCE:#x}')
        a(f'global_load_dword v{V_CLR}, v{V_TMP+2}, s[{P_WS}:{P_WS+1}]')
        srd(a, SRD_X, P_AX, nrec=2048)
        a(f's_lshl_b32 s62, s{S_H}, 8')
        a(f's_sub_u32 s63, {512*8192:#x}, s62')
        srd(a, SRD_W, P_AWQ, off_s=62, nrec_s=63)
        a(f'v_lshrrev_b32 v{V_TMP}, 3, v{V_C}')
        a(f'v_lshlrev_b32 v{V_TMP}, 10, v{V_TMP}')
        a(f'v_lshl_add_u32 v{V_TMP}, v{V_G}, 5, v{V_TMP}')
        a(f's_lshl_b32 s62, s{S_BLK}, 7')
        a(f'v_add_u32 v{V_TMP}, s62, v{V_TMP}')
        a(f'buffer_load_dwordx4 {vr(V_X,4)}, v{V_TMP}, s[{SRD_X}:{SRD_X+3}], 0 offen')
        a(f'buffer_load_dwordx4 {vr(V_X+4,4)}, v{V_TMP}, s[{SRD_X}:{SRD_X+3}], 0 offen offset:16')
        a(f'v_lshlrev_b32 v{V_TMP+1}, 17, v{V_G}')
        a(f'v_lshl_add_u32 v{V_TMP+1}, v{V_C}, 4, v{V_TMP+1}')
        a(f's_lshl_b32 s62, s{S_BLK}, 19')
        a(f'v_add_u32 v{V_TMP+1}, s62, v{V_TMP+1}')
        for s in range(16):
            a(f's_mov_b32 s62, {s*8192}')
            a(f'buffer_load_dwordx4 {vr(V_W+4*s,4)}, v{V_TMP+1}, s[{SRD_W}:{SRD_W+3}], s62 offen {cfg.wqpol}')
        a('s_barrier')
        srd(a, SRD_WS, P_WS, nrec=0x1000000)
        a(f's_waitcnt vmcnt(16)')
        a(f'v_readfirstlane_b32 s{S_NONCE}, v{V_CLR}')
        rowcomb(a, cfg, V_X, V_W, V_Y, V_A, V_TMP, 0)
        a(f's_add_u32 s{S_NONCE}, s{S_NONCE}, {GOLDEN:#x}')
        a(f's_lshl_b32 s62, s{S_H}, 3\ns_add_u32 s62, s62, s{S_BLK}\ns_lshl_b32 s62, s62, 11\ns_add_u32 s62, s62, {WS_QA:#x}')
        a(f'v_lshl_add_u32 v{V_TMP}, v{V_LANE}, 5, s62')
        G0 = V_A
        for k in (1, 3, 5, 7): a(f'v_mov_b32 v{G0+k}, s{S_NONCE}')
        a.nop(3)
        for k in range(4): a(f'v_mov_b32 v{G0+2*k}, v{V_Y+k}')
        a(f'buffer_store_dwordx4 {vr(G0,4)}, v{V_TMP}, s[{SRD_WS}:{SRD_WS+3}], 0 offen sc1')
        a(f'buffer_store_dwordx4 {vr(G0+4,4)}, v{V_TMP}, s[{SRD_WS}:{SRD_WS+3}], 0 offen offset:16 sc1')
        if cfg.fine: stamp(a, cfg, 4)
        a(f's_cmp_lg_u32 s{S_W}, 0\ns_cbranch_scc1 L_A_kv0p')
        a(f's_lshl_b32 s62, s{S_H}, 14\ns_add_u32 s62, s62, {WS_QA:#x}')
        a(f'v_lshl_add_u32 v{V_TMP}, v{V_LANE}, 5, s62')
        a(f'v_mov_b32 v{V_TMP+1}, s{S_NONCE}')
        R = V_W
        a('s_mov_b32 s64, 0xff\ns_mov_b32 s65, 0')
        a.label('L_A_qpoll')
        for r in range(8):
            a(f's_bitcmp1_b32 s64, {r}\ns_cbranch_scc0 L_A_qp{r}')
            a(f's_mov_b32 s62, {r*2048}')
            a(f'buffer_load_dwordx4 {vr(R+8*r,4)}, v{V_TMP}, s[{SRD_WS}:{SRD_WS+3}], s62 offen sc1')
            a(f'buffer_load_dwordx4 {vr(R+8*r+4,4)}, v{V_TMP}, s[{SRD_WS}:{SRD_WS+3}], s62 offen offset:16 sc1')
            a.label(f'L_A_qp{r}')
        a('s_waitcnt vmcnt(0)')
        for r in range(8):
            t = V_TMP + 2 + (r % 4)
            a(f'v_xor_b32 v{t}, v{R+8*r+1}, v{V_TMP+1}')
            a(f'v_xor_b32 v{V_TMP+6}, v{R+8*r+3}, v{V_TMP+1}')
            a(f'v_xor_b32 v{V_TMP+7}, v{R+8*r+5}, v{V_TMP+1}')
            a(f'v_or3_b32 v{t}, v{t}, v{V_TMP+6}, v{V_TMP+7}')
            a(f'v_xor_b32 v{V_TMP+6}, v{R+8*r+7}, v{V_TMP+1}')
            a(f'v_or_b32 v{t}, v{t}, v{V_TMP+6}')
            a(f'v_cmp_ne_u32 vcc, 0, v{t}')
            a('s_nop 0')
            a(f's_cmp_eq_u64 vcc, 0')
            a(f's_cselect_b32 s62, {(~(1 << r)) & 0xffffffff:#x}, -1')
            a('s_and_b32 s64, s64, s62')
        a('s_cmp_eq_u32 s64, 0\ns_cbranch_scc1 L_A_qdone')
        a('s_add_u32 s65, s65, 1')
        a(f's_cmp_lt_u32 s65, {SPIN_LIMIT}\ns_cbranch_scc1 L_A_qpoll')
        a.label('L_A_qdone')
        for k in range(4):
            a(f'v_add_f32 v{V_Y+k}, v{R+2*k}, v{R+8+2*k}')
        for r in range(2, 8):
            for k in range(4):
                a(f'v_add_f32 v{V_Y+k}, v{V_Y+k}, v{R+8*r+2*k}')
        a(f'v_cvt_pk_bf16_f32 v{V_TMP+2}, v{V_Y}, v{V_Y+1}')
        a(f'v_cvt_pk_bf16_f32 v{V_TMP+3}, v{V_Y+2}, v{V_Y+3}')
        a(f'v_lshrrev_b32 v{V_TMP}, 1, v{V_G}')
        a(f'v_lshlrev_b32 v{V_TMP}, 8, v{V_TMP}')
        a(f'v_lshl_add_u32 v{V_TMP}, v{V_C}, 4, v{V_TMP}')
        a(f'v_and_b32 v{V_TMP+1}, 1, v{V_G}')
        a(f'v_lshl_add_u32 v{V_TMP}, v{V_TMP+1}, 3, v{V_TMP}')
        a(f'ds_write_b64 v{V_TMP}, {vr(V_TMP+2,2)} offset:{L_QB}')
        if cfg.fine: stamp(a, cfg, 5)
        a.label('L_A_kv0p')
        a('s_setprio 0')
        a('s_branch L_A_kv0')
        a.label('L_A_notask')
        a('s_barrier')
        a.label('L_A_kv0')
        n = 0
        for dst, srd_, pol in ((V_K, SRD_K, cfg.kpol), (V_V, SRD_V, cfg.vpol)):
            for i in range(U):
                if n >= cfg.thr: a(f's_waitcnt vmcnt({cfg.thr - 1})')
                kv_load(dst, srd_, i, pol); n += 1
        a(f'v_add_u32 v{V_OFF}, {STEP:#x}, v{V_OFF}')
        a(f'v_add_u32 v{V_OFF2}, {STEP:#x}, v{V_OFF2}')
        if cfg.fine: stamp(a, cfg, 6)
        a('s_waitcnt lgkmcnt(0)\ns_barrier')
    a(f'v_lshlrev_b32 v{V_TMP+2}, 4, v{V_C}')
    a(f's_lshl_b32 s62, s{S_B}, 8')
    a(f'v_add_u32 v{V_TMP+2}, s62, v{V_TMP+2}')
    a(f'ds_read_b128 {vr(V_Q,4)}, v{V_TMP+2} offset:{L_QB}')
    a(f's_lshl_b32 s62, s{S_H}, 17')
    a(f's_mov_b32 s63, {128*1024:#x}')
    srd(a, SRD_W, P_AWO, off_s=62, nrec_s=63)
    wo_voff(a, V_WOFF)
    a(f's_mul_i32 s{S_SIG}, s{S_W4}, {U}')
    a(f's_mov_b32 s{S_IT}, 0')
    a(f's_mul_i32 s{S_WOIT}, s{S_R}, {cfg.wo_stag}\ns_add_u32 s{S_WOIT}, s{S_WOIT}, {cfg.wo_iter}')
    a('s_waitcnt lgkmcnt(0)')
    stamp(a, cfg, 1)
    NIT = -(-max(starts[j+1] - starts[j] for j in range(NA)) // (4 * U))
    NV = 2 * U - 1
    if cfg.dyn:
        NV = 2 * U
        assert cfg.qmode == 'red'
        a(f's_waitcnt vmcnt({2*U})')
        a(f'v_readfirstlane_b32 s62, v{V_GRAB}')
        a('s_nop 3')
        a('s_cmp_ge_u32 s62, 32\ns_cbranch_scc1 L_A_z_ok')
        poll(a, CNT_Z, 32, V_GRAB, V_ZERO, 'A_z')
        a.label('L_A_z_ok')
        a(f's_sub_u32 s62, s{S_UN}, {NWV}')
        a(f'v_mov_b32 v{V_GRAB}, s62')
    else:
        assert cfg.wo_iter + cfg.wo_stag * (NA - 1) < NIT - 1
    a('.p2align 6')
    a.label('L_A_loop')
    if cfg.dyn:
        a(f's_waitcnt vmcnt({2*U - 1})')
        a(f'v_readfirstlane_b32 s{S_UN}, v{V_GRAB}')
        a('s_mov_b64 exec, 1')
        a(f'global_atomic_add v{V_GRAB}, v{V_CADDR}, v{V_ONE}, s[{P_WS}:{P_WS+1}] sc0 sc1')
        a('s_mov_b64 exec, -1')
        a(f's_add_u32 s{S_UN}, s{S_UN}, {2*NWV}')
        a(f's_mul_i32 s62, s{S_UN}, {U*1024}')
        a(f'v_lshl_add_u32 v{V_OFF}, v{V_LANE}, 4, s62')
        a(f'v_add_u32 v{V_OFF2}, 0x1000, v{V_OFF}')
        a(f's_cmp_lt_u32 s{S_UN}, {NU}\ns_cbranch_scc1 L_A_more')
        a(f'global_load_dword v{V_CLR}, v{V_ZERO}, s[{P_DBG}:{P_DBG+1}] offset:{CNT_Q} sc1')
        a.label('L_A_more')
        a(f's_cmp_lg_u32 s{S_IT}, 1\ns_cbranch_scc1 L_A_nowo')
        slice_loads(a, SRD_W, V_WOFF, V_W, cfg.wopol, 'wo')
        a.label('L_A_nowo')
    else:
        a(f's_cmp_lg_u32 s{S_IT}, s{S_WOIT}\ns_cbranch_scc1 L_A_nowo')
        slice_loads(a, SRD_W, V_WOFF, V_W, cfg.wopol, 'wo')
        a(f'global_load_dword v{V_CLR}, v{V_ZERO}, s[{P_DBG}:{P_DBG+1}] offset:{CNT_Q} sc1')
        a.label('L_A_nowo')
    if cfg.loopst:
        for n, it in enumerate((2, 5, 8)):
            a(f's_cmp_lg_u32 s{S_IT}, {it}\ns_cbranch_scc1 L_A_ls{n}')
            stamp(a, cfg, 4 + n)
            a.label(f'L_A_ls{n}')
    if not cfg.dyn:
        for i in range(U):
            a(f's_add_u32 s62, s{S_SIG}, {i}')
            a(f's_cmp_lt_u32 s62, s{S_N}')
            a(f's_cselect_b32 s{S_BIAS+i}, 0, 0xff800000')
    for i in range(U):
        a(f's_waitcnt vmcnt({NV})')
        a(f'v_dot2_f32_bf16 v{V_T+i}, v{V_K+4*i}, v{V_Q}, 0')
        for k in range(1, 4):
            a(f'v_dot2_f32_bf16 v{V_T+i}, v{V_K+4*i+k}, v{V_Q+k}, v{V_T+i}')
        kv_load(V_K, SRD_K, i, cfg.kpol)
    a.nop(2)
    for st in (8, 4, 2, 1):
        for i in range(U):
            a(f'v_add_f32_dpp v{V_T+i}, v{V_T+i}, v{V_T+i} row_ror:{st} row_mask:0xf bank_mask:0xf')
    for i in range(U):
        if cfg.dyn: a(f'v_mul_f32 v{V_T+i}, v{V_T+i}, v{V_SC}')
        else: a(f'v_fma_f32 v{V_T+i}, v{V_T+i}, v{V_SC}, s{S_BIAS+i}')
    a(f'v_max3_f32 v{V_XX}, v{V_T}, v{V_T+1}, v{V_T+2}')
    i = 3
    while i < U:
        if i + 1 < U: a(f'v_max3_f32 v{V_XX}, v{V_XX}, v{V_T+i}, v{V_T+i+1}'); i += 2
        else: a(f'v_max_f32 v{V_XX}, v{V_XX}, v{V_T+i}'); i += 1
    a.nop(2)
    a(f'v_max_f32_dpp v{V_XX}, v{V_XX}, v{V_XX} row_bcast:15 row_mask:0xa bank_mask:0xf')
    a.nop(2)
    a(f'v_max_f32_dpp v{V_XX}, v{V_XX}, v{V_XX} row_bcast:31 row_mask:0xc bank_mask:0xf')
    a.nop(1)
    a(f'v_readlane_b32 s62, v{V_XX}, 63')
    a.nop(2)
    a(f'v_max_f32 v{V_MN}, s62, v{V_M}')
    a(f'v_sub_f32 v{V_AL}, v{V_M}, v{V_MN}')
    for i in range(U):
        a(f'v_sub_f32 v{V_T+i}, v{V_T+i}, v{V_MN}')
    a(f'v_exp_f32 v{V_AL}, v{V_AL}')
    for i in range(U):
        a(f'v_exp_f32 v{V_T+i}, v{V_T+i}')
    a(f'v_mov_b32 v{V_M}, v{V_MN}')
    for k in range(4):
        a(f'v_mul_f32 v{V_ACC+k}, v{V_ACC+k}, v{V_AL}')
    for i in range(U):
        a(f'v_cvt_pk_bf16_f32 v{V_P+i}, v{V_T+i}, v{V_T+i}')
    a(f'v_mul_f32 v{V_L}, v{V_L}, v{V_AL}')
    for i in range(0, U, 2):
        a(f'v_add_f32 v{V_T+i}, v{V_T+i}, v{V_T+i+1}')
    for i in range(U):
        for k in range(4):
            a(f'v_and_b32 v{V_A+4*i+k}, v{V_P+i}, v{V_MASK+k}')
    for i in range(0, U, 2):
        a(f'v_add_f32 v{V_L}, v{V_L}, v{V_T+i}')
    for i in range(U):
        a(f's_waitcnt vmcnt({NV})')
        a(f'v_mfma_f32_16x16x32_bf16 {vr(V_ACC,4)}, {vr(V_A+4*i,4)}, {vr(V_V+4*i,4)}, {vr(V_ACC,4)}')
        kv_load(V_V, SRD_V, i, cfg.vpol)
    a(f's_add_u32 s{S_IT}, s{S_IT}, 1')
    if cfg.dyn:
        a(f's_cmp_lt_u32 s{S_UN}, {NU}')
    else:
        a(f'v_add_u32 v{V_OFF}, {STEP:#x}, v{V_OFF}')
        a(f'v_add_u32 v{V_OFF2}, {STEP:#x}, v{V_OFF2}')
        a(f's_add_u32 s{S_SIG}, s{S_SIG}, {4*U}')
        a(f's_cmp_lt_u32 s{S_IT}, {NIT}')
    a('s_cbranch_scc1 L_A_loop')
    a('s_waitcnt vmcnt(0)')
    stamp(a, cfg, 2)
    role_A_tail(a, cfg, locals())

def build(cfg):
    global CFG
    CFG = cfg
    a = Asm()
    hdr = open(__import__('os').path.join(__import__('os').path.dirname(__import__('os').path.abspath(__file__)), 'header.txt')).read().rstrip('\n')
    a(hdr)
    a(f'; @launch grid=(256,1,1) block=(512,1,1) lds={LDS_BYTES}')
    for l in DESCRIPTION.strip().split('\n'): a('; ' + l)
    a('.amdgcn_target "amdgcn-amd-amdhsa--gfx950"')
    a('.text')
    a(f'.globl {NAME}_kernel')
    a('.p2align 8')
    a(f'.type {NAME}_kernel,@function')
    a.label(f'{NAME}_kernel')
    ist(a, cfg, 0)
    a('s_lshr_b32 s60, s2, 8\ns_cbranch_scc1 L_exit')
    if cfg.idrot: a(f's_lshl_b32 s60, s2, {cfg.idrot}\ns_lshr_b32 s2, s2, {8 - cfg.idrot}\ns_or_b32 s2, s2, s60\ns_and_b32 s2, s2, 255')
    if cfg.idxor: a(f's_mul_i32 s2, s2, {cfg.idxor}\ns_and_b32 s2, s2, 255')
    a('s_load_dwordx16 s[4:19], s[0:1], 0')
    a('s_load_dwordx8 s[20:27], s[0:1], 64')
    a('s_load_dwordx4 s[28:31], s[0:1], 96')
    if cfg.fs > 3:
        assert cfg.hmap == '01234' and cfg.two and cfg.roles == 'AWC'
        a(f'v_readfirstlane_b32 s{S_W}, v0')
        a(f's_and_b32 s60, s2, 7\ns_lshr_b32 s61, s2, 6\ns_lshl3_add_u32 s{S_H}, s61, s60')
        a(f's_lshr_b32 s{S_R}, s2, 3\ns_and_b32 s{S_R}, s{S_R}, 7')
        a(f's_lshr_b32 s{S_W}, s{S_W}, 6')
        a(f's_cmp_eq_u32 s{S_R}, {NA}\ns_cbranch_scc1 L_roleW')
        a(f's_cmp_eq_u32 s{S_R}, {NA+1}\ns_cbranch_scc1 L_roleC')
        import role_a4, roles_wc
        role_a4.role_A4(a, cfg)
        roles_wc.role_W(a, cfg)
        roles_wc.role_C(a, cfg)
        return finish(a)
    a(f'v_lshrrev_b32 v8, 6, v0')
    if cfg.hrot: a(f's_add_u32 s60, s2, {cfg.hrot}\ns_and_b32 s60, s60, 7')
    else: a('s_and_b32 s60, s2, 7')
    a(f's_lshr_b32 s61, s2, 3')
    a(f'v_readfirstlane_b32 s{S_W}, v8')
    if cfg.afirst:
        a('s_mul_i32 s62, s61, 43\ns_lshr_b32 s62, s62, 8')
        a('s_mul_i32 s63, s62, 6\ns_sub_u32 s63, s61, s63')
        a('s_sub_u32 s64, s61, 24\ns_and_b32 s65, s64, 3\ns_lshr_b32 s64, s64, 2\ns_add_u32 s64, s64, 6')
        a('s_cmp_lt_u32 s61, 24')
        a(f's_cselect_b32 s{S_R}, s63, s64')
        a('s_cselect_b32 s61, s62, s65')
        a('s_lshl_b32 s61, s61, 3')
    elif cfg.xmix:
        a(f's_add_u32 s{S_R}, s60, s61\ns_and_b32 s{S_R}, s{S_R}, 7')
        a('s_mov_b32 s60, 0')
    elif cfg.smix:
        order = cfg.smix_order
        a('s_lshr_b32 s62, s61, 2\ns_lshl_b32 s62, s62, 2')
        a(f's_lshr_b32 s{S_R}, {order:#x}, s62\ns_and_b32 s{S_R}, s{S_R}, 15')
        a('s_and_b32 s61, s61, 3\ns_lshl_b32 s61, s61, 3')
    else:
        a(f's_and_b32 s{S_R}, s61, 7')
        if cfg.rmap != 0x76543210:
            a(f's_lshl_b32 s{S_R}, s{S_R}, 2\ns_lshr_b32 s{S_R}, {cfg.rmap:#x}, s{S_R}\ns_and_b32 s{S_R}, s{S_R}, 7')
        a(f's_and_b32 s61, s61, 24')
    a(f's_add_u32 s{S_H}, s60, s61')
    if cfg.hmap == '01234': a(f's_mov_b32 s{S_HP}, s{S_H}')
    elif cfg.hmap == '23401': a(f's_lshr_b32 s61, s61, 3\ns_lshl2_add_u32 s{S_HP}, s60, s61')
    else:
        a(f's_mov_b32 s{S_HP}, 0')
        for i, d in enumerate(cfg.hmap[:5]):
            a(f's_bfe_u32 s62, s{S_H}, {0x10000 + i:#x}\ns_lshl_b32 s62, s62, {d}\ns_or_b32 s{S_HP}, s{S_HP}, s62')
    common_lane_setup(a, not cfg.fs)
    if not cfg.fs:
        a('s_waitcnt lgkmcnt(0)')
        ist(a, cfg, 1)
        span_mark(a, cfg, False)
    if not cfg.two: cfg.tag = False
    a(f's_cmp_eq_u32 s{S_R}, {NA}\ns_cbranch_scc1 L_roleW')
    a(f's_cmp_eq_u32 s{S_R}, {NA+1}\ns_cbranch_scc1 L_roleC')
    import role_a4
    if 'A' in cfg.roles: (role_a4.role_A4 if cfg.two else role_A3 if cfg.hyb else role_A2 if cfg.ring else role_A)(a, cfg)
    else: a('s_endpgm')
    import roles_wc
    if 'W' in cfg.roles: roles_wc.role_W(a, cfg)
    else: a.label('L_roleW'); a('s_endpgm')
    if 'C' in cfg.roles: roles_wc.role_C(a, cfg)
    else: a.label('L_roleC'); a('s_endpgm')
    return finish(a)

def finish(a):
    a.label('L_exit')
    a('s_endpgm')
    a(f'''.section .rodata,"a"
.p2align 6
.amdhsa_kernel {NAME}_kernel
  .amdhsa_next_free_vgpr 256
  .amdhsa_next_free_sgpr 102
  .amdhsa_accum_offset 256
  .amdhsa_group_segment_fixed_size 0
  .amdhsa_kernarg_size 112
  .amdhsa_user_sgpr_count 2
  .amdhsa_user_sgpr_kernarg_segment_ptr 1
  .amdhsa_system_sgpr_workgroup_id_x 1
.end_amdhsa_kernel''')
    return a.text()

if __name__ == '__main__':
    sys.modules['gen'] = sys.modules['__main__']
    cfg = Cfg()
    out = None
    for arg in sys.argv[1:]:
        if '=' in arg:
            k, v = arg.split('=', 1)
            cur = getattr(cfg, k)
            setattr(cfg, k, v == '1' if isinstance(cur, bool) else int(v, 0) if isinstance(cur, int) else v)
        else: out = arg
    t = build(cfg)
    for p in lint(t):
        print('HAZARD line %d -> %d need %d have %d\n   %s\n   %s' % p, file=sys.stderr)
    if out: open(out, 'w').write(t)
    else: print(t)
```

```python
import re
from asmlib import vr, sr
import gen as G
from gen import *

def bitrev4(c): return int(f'{c:04b}'[::-1], 2)

L_FLAGQ, L_FLAGS, L_CTL, L_STAT, L_PROG, L_QP, L_OB = 0, 4, 8, 64, 256, 1024, 8192
OB_RS = 272
SP_RS = 144
STEP = 24 * 4096
REM = 21 * STEP
NREG, NLD = 168, 172
POS = {168: 8, 169: 9, 170: 12, 171: 13}
def pos(n): return POS.get(n, n % 16)
def batch(n): return (pos(n) >> 2) & 1

def pattern(cfg):
    M = 1 << 20
    return {0: (1, [0, 1024, 2048, 3072]), 1: (2, [0, 1024, 2048, 3072]), 2: (2, [0, 1024, M, M + 1024]),
            3: (4, [0, M // 2, M, 3 * M // 2]), 4: (4, [0, 1024, 2048, 3072]), 5: (2, [0, 1024, 2048, 3072]),
            6: (1, [0, 4096, 8192, 12288]), 7: (1, [0, 24576, 49152, 73728]), 8: (1, [0, 1024, 2048, 3072]),
            9: (1, [0, 1024, 49152, 50176])}[cfg.pat]

def pat_base(a, cfg, d, j, w):
    if cfg.pat == 1:
        a(f's_cmp_ge_u32 s{j}, 3\ns_cselect_b32 s62, {(1 << 20) - 3*16384:#x}, 0')
        a(f's_lshl_b32 s{d}, s{j}, 2\ns_add_u32 s{d}, s{d}, s{w}\ns_lshl_b32 s{d}, s{d}, 12\ns_add_u32 s{d}, s{d}, s62')
    if cfg.pat in (2, 3, 7, 9):
        a(f's_lshl_b32 s{d}, s{j}, 2\ns_add_u32 s{d}, s{d}, s{w}\ns_lshl_b32 s{d}, s{d}, {11 if cfg.pat in (2, 9) else 10}')
    if cfg.pat == 4:
        a(f's_lshl_b32 s{d}, s{w}, 19\ns_lshl_b32 s62, s{j}, 12\ns_add_u32 s{d}, s{d}, s62')
    if cfg.pat == 5:
        a(f's_lshr_b32 s{d}, s{w}, 1\ns_lshl_b32 s{d}, s{d}, 20\ns_lshl_b32 s62, s{j}, 13\ns_add_u32 s{d}, s{d}, s62')
        a(f's_and_b32 s62, s{w}, 1\ns_lshl_b32 s62, s62, 12\ns_add_u32 s{d}, s{d}, s62')
    if cfg.pat == 6:
        a(f's_lshl_b32 s{d}, s{j}, 14\ns_lshl_b32 s62, s{w}, 10\ns_add_u32 s{d}, s{d}, s62')
    if cfg.pat == 8:
        a(f's_mul_i32 s{d}, s{w}, 6\ns_add_u32 s{d}, s{d}, s{j}\ns_lshl_b32 s{d}, s{d}, 12')

def xor_masks(a, cfg, d):
    a(f's_mov_b32 s{d}, 0')
    for t in cfg.hx.split(','):
        if not t: continue
        bit, m = t.split(':')
        a(f's_bitcmp1_b32 s{S_HP}, {bit}\ns_cselect_b32 s62, {int(m) << 15:#x}, 0\ns_xor_b32 s{d}, s{d}, s62')
    a(f's_xor_b32 s{d+1}, s{d}, {cfg.bx << 15:#x}')

def lds_spin(a, tag, vt, vz, off, target, sleep):
    a('s_mov_b32 s64, 0')
    a.label(f'L_{tag}')
    a(f'ds_read_b32 v{vt}, v{vz} offset:{off}')
    a('s_waitcnt lgkmcnt(0)')
    a(f'v_readfirstlane_b32 s65, v{vt}')
    a('s_add_u32 s64, s64, 1')
    a('s_nop 2')
    a(f's_cmp_ge_u32 s65, {target}\ns_cbranch_scc1 L_{tag}_ok')
    if sleep: a(f's_sleep {sleep}')
    a(f's_cmp_lt_u32 s64, {1 << 20}\ns_cbranch_scc1 L_{tag}')
    a.label(f'L_{tag}_ok')

def role_A4(a, cfg):
    a.label('L_roleA')
    if not cfg.fs: stamp(a, cfg, 0)
    if cfg.jp:
        for k in range(4): a(f's_cmp_eq_u32 s{S_W}, {4 + k}\ns_cbranch_scc1 L_A_jp{k}')
    else: a(f's_cmp_ge_u32 s{S_W}, 4\ns_cbranch_scc1 L_A_helper')
    n0 = len(a.lines)
    streamer(a, cfg)
    for k, t in reversed(list(enumerate(int(x) for x in cfg.jp.split(',') if x))):
        i = n0 + t
        while a.lines[i].startswith(('s_addc', 's_cselect', 's_cbranch', 'buffer_', 's_waitcnt', 's_nop')) or a.lines[i+1].startswith('s_cselect') and not a.lines[i].startswith(('s_cmp', 's_sub')): i += 1
        a.lines[i:i] = [f's_branch L_A_jq{k}', f'L_A_jp{k}:', 's_branch L_A_helper', f'L_A_jq{k}:']
    a.label('L_A_helper')
    helper(a, cfg)

def streamer(a, cfg):
    SRD_K, SRD_V = 40, 44
    S_OFF, S_A, S_REM, S_IT = 35, 36, 37, 38
    S_M3, S_M4, S_VAL = 48, 50, 52
    R = cfg.R
    V_OFF = [8, 9]; V_SP = [10, 11]
    V_MK = [V_MASK, 12]
    V_Q = [16, 20]
    V_T, V_M1, V_M2, V_M3, V_TA, V_TB = 24, 28, 30, 32, 34, 35
    V_S = 36
    V_ZERO = 47
    V_ACC, V_A = 48, 52
    V_X, V_Y, V_Z, V_F = 60, 61, 62, 63
    V_R = 64
    V_TMP = V_R + 4 * max(R, 32)
    assert R % 16 == 0 and V_R + 4 * R <= 249
    if cfg.sprio: a(f's_setprio {cfg.sprio}')
    if not cfg.fs:
        a(f's_lshl_b32 s62, s{S_HP}, 21')
        a(f's_sub_u32 s63, {128 << 20:#x}, s62')
        srd(a, SRD_K, P_AK, off_s=62, nrec_s=63)
    def stream_offsets():
        a(f's_lshl_b32 s{S_OFF}, s{S_R}, 2\ns_add_u32 s{S_OFF}, s{S_OFF}, s{S_W}\ns_lshl_b32 s{S_OFF}, s{S_OFF}, 12')
        a(f's_mov_b32 s{S_A}, s{S_OFF}')
        a(f'v_lshlrev_b32 v{V_OFF[0]}, 4, v{V_LANE}')
        a(f'v_add_u32 v{V_OFF[1]}, {64 << 20:#x}, v{V_OFF[0]}')
    if cfg.fs > 2: assert not (cfg.seq or cfg.pat)
    else: stream_offsets()
    S_SW, V_O2 = 84, V_TMP + 3
    if cfg.seq:
        a(f's_lshl_b32 s{S_SW}, s{S_OFF}, 1\ns_add_u32 s{S_SW}, s{S_SW}, {18*STEP:#x}')
        a(f's_mov_b32 s{S_SW+1}, {(64 << 20) - 18*STEP:#x}\ns_mov_b32 s{S_SW+2}, {2*STEP:#x}')
        a(f'v_add_u32 v{V_O2}, 4096, v{V_OFF[0]}')
    if cfg.bx or cfg.hx:
        xor_masks(a, cfg, S_SW + 1)
    V_PO = V_TMP + 4
    NQ, KO = pattern(cfg)
    if cfg.pat:
        pat_base(a, cfg, S_SW, S_R, S_W)
        for b in range(2):
            for k in range(4): a(f'v_add_u32 v{V_PO + 4*b + k}, {KO[k]:#x}, v{V_OFF[b]}')
    def rem_off(d, r):
        sh = 5 - (NQ.bit_length() - 1)
        a(f's_lshr_b32 s63, s{r}, {sh}\ns_mul_i32 s63, s63, {(2 << 20) // NQ - (1024 << sh):#x}')
        a(f's_lshl_b32 s{d}, s{r}, 10\ns_add_u32 s{d}, s{d}, s63\ns_add_u32 s{d}, s{d}, {REM // NQ:#x}')
    def slotK(n): return n if n < R else n % 16
    def slotV(n): return (n + NLD) % 16
    V_PA, V_ONE, V_CTL = V_TMP, V_TMP + 1, V_TMP + 2
    nlab = [0]
    def wait2(lo, hi=None):
        if cfg.mon and hi and hi > lo:
            nlab[0] += 1
            a(f's_cbranch_vccnz L_A_w{nlab[0]}')
            a(f's_waitcnt vmcnt({lo-1})')
            a.label(f'L_A_w{nlab[0]}')
            a(f's_waitcnt vmcnt({hi-1})')
        else: a(f's_waitcnt vmcnt({lo-1})')
    def ctl(i):
        if not cfg.mon: return
        if i % 8 == 0: a(f'ds_read_b32 v{V_CTL}, v{V_ZERO} offset:{L_CTL}')
        if i % 8 == 1:
            a('s_waitcnt lgkmcnt(1)')
            a(f'v_cmp_ne_u32 vcc, 0, v{V_CTL}')
    def issue(isv, n):
        issue0(isv, n)
        if cfg.mon and n % 2 and (isv or n >= 8): a(f'ds_add_u32 v{V_PA}, v{V_ONE} offset:{L_PROG}')
    def issue0(isv, n):
        srd_ = SRD_V if isv else SRD_K
        pol = cfg.vpol if isv else cfg.kpol
        dst = V_R + 4 * (slotV(n) if isv else slotK(n))
        if cfg.seq and n < NREG:
            if n % 8 == 0:
                if n == 0: a(f's_lshl_b32 s{S_A}, s{S_OFF}, 1')
                elif n == 160: a(f's_add_u32 s{S_A}, s{S_OFF}, {20*STEP:#x}')
                else:
                    a(f's_cmp_eq_u32 s{S_A}, s{S_SW}')
                    a(f's_cselect_b32 s60, s{S_SW+1}, s{S_SW+2}')
                    a(f's_add_u32 s{S_A}, s{S_A}, s60')
            v = V_OFF[batch(n)] if n >= 160 or not batch(n) else V_O2
            a(f'buffer_load_dwordx4 {vr(dst,4)}, v{v}, s[{srd_}:{srd_+3}], s{S_A} offen offset:{1024*(n%4)} {pol}')
        elif cfg.pat and n < NREG:
            if n % 8 == 0:
                if n > 0: a(f's_add_u32 s{S_A}, s{S_A}, {STEP // NQ:#x}')
                else: a(f's_mov_b32 s{S_A}, s{S_SW}')
            a(f'buffer_load_dwordx4 {vr(dst,4)}, v{V_PO + n % 8}, s[{srd_}:{srd_+3}], s{S_A} offen {pol}')
        elif n < NREG:
            if n % 8 == 0:
                if n > 0: a(f's_add_u32 s{S_A}, s{S_A}, {STEP:#x}')
                elif isv: a(f's_mov_b32 s{S_A}, s{S_OFF}')
            so = S_A
            if cfg.bx or cfg.hx:
                so = S_SW
                if n % 4 == 0: a(f's_xor_b32 s{so}, s{S_A}, s{S_SW + 1 + batch(n)}')
            a(f'buffer_load_dwordx4 {vr(dst,4)}, v{V_OFF[batch(n)]}, s[{srd_}:{srd_+3}], s{so} offen offset:{1024*(n%4)} {pol}')
        else:
            v = (V_SP if n % 2 else V_OFF)[batch(n)]
            so = S_REM
            if cfg.bx or cfg.hx:
                so = S_SW
                a(f's_xor_b32 s{so}, s{S_REM}, s{S_SW + 1 + batch(n)}')
            a(f'buffer_load_dwordx4 {vr(dst,4)}, v{v}, s[{srd_}:{srd_+3}], s{so} offen {pol}')
    L0, L1, L2, L3 = cfg.L0, cfg.La, cfg.Lb, cfg.Lc
    seq = []
    S_I = 54
    rot = [0]
    def job(kind, sb):
        def setup():
            if kind[0] == 'c':
                t0, t1 = int(kind[1]), int(kind[2]) if len(kind) > 2 else 8
                a(f's_lshl_b32 s60, s{S_H}, 19\ns_add_u32 s60, s60, {t0 << 16:#x}\ns_mov_b32 s61, {(t1 - t0) << 16:#x}')
                srd(a, sb, P_BC, off_s=60, nrec_s=61)
            elif kind in 'ow':
                a(f's_lshl_b32 s60, s{S_HP}, 17\ns_mov_b32 s61, {128*1024:#x}')
                srd(a, sb, P_BWO if kind == 'o' else P_AWO, off_s=60, nrec_s=61)
            else:
                a(f's_lshl_b32 s60, s{S_HP}, 8\ns_sub_u32 s61, {512*8192:#x}, s60')
                srd(a, sb, {'v': P_BWUV, 'k': P_BWUK, 'q': P_BWQ, 'a': P_AWQ}[kind], off_s=60, nrec_s=61)
        rows = kind in 'vkqa'
        sh = (15 if rows else 10) + cfg.spw
        nl = (128 if kind[0] != 'c' else 64 * ((int(kind[2]) if len(kind) > 2 else 8) - int(kind[1]))) >> cfg.spw
        r = rot[0]; rot[0] = (r + (nl % 24) // 8) % 3
        base, ex = nl // 24, (nl % 24) // 4
        for m in range((nl + 23) // 24):
            def ld(m=m, slot=len(seq) % 8):
                if m == 0: setup()
                if rows and cfg.fs > 2:
                    a(f'v_readlane_b32 s39, v{V_Z}, {8 * r + m}')
                elif cfg.spm:
                    if m == 0:
                        a(f's_lshr_b32 s58, s{S_I + r}, 2\ns_min_u32 s60, s58, {ex}\ns_mul_i32 s59, s58, {base}\ns_add_u32 s59, s59, s60')
                        a(f's_lshl_b32 s59, s59, 2\ns_add_u32 s59, s59, s{S_W}')
                    else: a('s_add_u32 s59, s59, 4')
                    if m == base: a(f's_cmp_lt_u32 s58, {ex}\ns_cselect_b32 s59, s59, {nl}')
                    if rows:
                        b = 4 - cfg.spw
                        a(f's_lshr_b32 s60, s59, 1\ns_xor_b32 s60, s60, s59\ns_and_b32 s60, s60, {1 << b}\ns_mul_i32 s60, s60, 3')
                        a(f's_xor_b32 s60, s60, s59\ns_lshl_b32 s39, s60, {sh}')
                    else: a(f's_lshl_b32 s39, s59, {sh}')
                elif m == 0: a(f's_lshl_b32 s39, s{S_I + r}, {sh}')
                else: a(f's_add_u32 s39, s39, {24 << sh:#x}')
                if cfg.spw: a(f'buffer_load_dword v{V_R + 4*(16 + slot)}, v{V_Y if rows else V_X}, s[{sb}:{sb+3}], s39 offen {cfg.spol.replace("+", " ")}')
                else: a(f'buffer_load_dwordx4 {vr(V_R + 4*(16 + slot),4)}, v{V_Y if rows else V_OFF[0]}, s[{sb}:{sb+3}], s39 offen {cfg.spol.replace("+", " ")}')
            seq.append(ld)
    def rotations():
        a(f's_lshr_b32 s{S_I}, s{S_OFF}, 12\ns_mov_b32 s57, 0xff')
        for r in (1, 2):
            a(f's_sub_u32 s{S_I+r}, s{S_I+r-1}, 8')
            a(f's_cselect_b32 s60, 24, 0')
            a(f's_add_u32 s{S_I+r}, s{S_I+r}, s60')
    def first_loads():
        k0, k1 = cfg.spf.split(',')[:2]
        ptr = {'v': P_BWUV, 'k': P_BWUK, 'q': P_BWQ, 'a': P_AWQ}
        pol = cfg.spol.replace("+", " ")
        def ld(sb, slot): a(f'buffer_load_dwordx4 {vr(V_R + 4*(16 + slot % 8),4)}, v{V_Y}, s[{sb}:{sb+3}], s39 offen {pol}')
        def base(sb, k):
            a(f's_add_u32 s{sb}, s{ptr[k]}, s60\ns_addc_u32 s{sb+1}, s{ptr[k]+1}, 0\ns_pack_ll_b32_b16 s{sb+1}, s{sb+1}, 0')
        a(f'v_and_b32 v{V_C}, 15, v0')
        a(f'v_lshrrev_b32 v{V_T}, 4, v0')
        a(f'v_lshlrev_b32 v{V_Y}, 4, v{V_C}')
        a(f'v_lshl_add_u32 v{V_Y}, v{V_T}, 13, v{V_Y}')
        a(f's_lshl_b32 s60, s{S_H}, 8\ns_sub_u32 s70, {512*8192:#x}, s60\ns_mov_b32 s71, 0x20000\ns_mov_b64 s[74:75], s[70:71]')
        a(f's_lshl_b32 s39, s{S_R}, 19')
        a('s_waitcnt lgkmcnt(0)')
        ist(a, cfg, 1)
        stamp(a, cfg, 0)
        span_mark(a, cfg, False)
        base(68, k0)
        for m in range(4):
            if m: a('s_add_u32 s39, s39, s71')
            ld(68, m)
        ist(a, cfg, 2)
        base(72, k1)
        a('s_xor_b32 s39, s39, 0x100000')
        for m in range(4):
            if m: a('s_sub_u32 s39, s39, s71')
            ld(72, 4 + m)
        ist(a, cfg, 3)
        a(f's_mov_b32 s{S_HP}, s{S_H}')
        common_lane_setup(a, False)
        seq.extend([None] * 8)
        def rest(sb, x0, n):
            def f():
                a(f's_add_u32 s39, s{S_R}, {x0}')
                if x0 == 20: a(f's_sub_u32 s60, s{S_R}, 2\ns_cmp_lt_u32 s60, 2\ns_cselect_b32 s39, s39, 32')
                a('s_lshl_b32 s39, s39, 17')
                ld(sb, n)
            seq.append(f)
        for n, (sb, x0) in enumerate(((68, 24), (68, 30), (72, 16), (72, 20))): rest(sb, x0, n)
        rot[0] = 2
    marks = []
    def mark(): marks.append(len(a.lines))
    if cfg.fs > 3:
        assert L0 == 8
        first_loads()
        mark()
    if cfg.spf:
        if cfg.fs > 2:
            assert cfg.spm and not cfg.spw and cfg.spf[0] in 'vkqa' and cfg.spf[2] in 'vkqa'
            t, u = V_T, V_T + 1
            a(f'v_bfe_u32 v{t}, v0, 3, 2')
            a(f'v_mad_i32_i24 v{t}, v{t}, -2, s{S_R}')
            a(f'v_add_u32 v{u}, 6, v{t}')
            a(f'v_min_u32 v{t}, v{t}, v{u}')
            a(f'v_min_u32 v{u}, 2, v{t}')
            a(f'v_mad_u32_u24 v{t}, v{t}, 5, v{u}')
            a(f'v_and_b32 v{V_F}, 7, v0')
            a(f'v_add_u32 v{t}, v{t}, v{V_F}')
            a(f'v_lshrrev_b32 v{V_Z}, 1, v{t}')
            a(f'v_add_u32 v{u}, v{u}, v{V_F}')
            a(f'v_xor_b32 v{V_Z}, v{V_Z}, v{t}')
            a(f'v_cmp_gt_u32 vcc, 7, v{u}')
            a(f'v_and_b32 v{V_Z}, 4, v{V_Z}')
            a(f'v_mul_u32_u24 v{V_Z}, 3, v{V_Z}')
            a(f'v_xor_b32 v{V_Z}, v{V_Z}, v{t}')
            a(f'v_cndmask_b32 v{V_Z}, 32, v{V_Z}, vcc')
            a(f'v_lshlrev_b32 v{V_Z}, 17, v{V_Z}')
            if cfg.fs == 3:
                a(f'v_lshrrev_b32 v{t}, 4, v0')
                a(f'v_lshlrev_b32 v{V_Y}, 4, v{V_C}')
                a(f'v_lshl_add_u32 v{V_Y}, v{t}, 13, v{V_Y}')
        else: rotations()
        if cfg.fs > 2: pass
        elif cfg.spw:
            a(f'v_lshlrev_b32 v{V_X}, {4 + cfg.spw}, v{V_LANE}')
            a(f'v_lshrrev_b32 v{V_Y}, 8, v{V_X}')
            a(f'v_lshlrev_b32 v{V_Y}, 13, v{V_Y}')
            a(f'v_bfi_b32 v{V_Y}, s57, v{V_X}, v{V_Y}')
        else:
            a(f'v_lshlrev_b32 v{V_Y}, 4, v{V_C}')
            a(f'v_lshl_add_u32 v{V_Y}, v{V_G}, 13, v{V_Y}')
        for i, k in enumerate(cfg.spf.split(',')):
            if cfg.fs < 4 or i > 1: job(k, 68 + 4 * (i % 4))
    npre = len(seq)
    for n in range(R): seq.append(lambda n=n: issue(False, n))
    if cfg.fs > 3:
        assert not cfg.fb
        mark()
        stream_offsets()
        rotations()
        mark()
        mask_setup(a, V_T)
        mark()
    elif cfg.fs:
        assert npre >= L0 and L0 <= 8
        post = []
        for i, f in enumerate(seq[:L0]):
            n0 = len(a.lines); f()
            new = a.lines[n0:]; del a.lines[n0:]
            for l in new:
                l = re.sub(r'\bs39\b', f's{44+i}', l)
                m = re.match(r's_add_u32 (s\d+), s(\d+), s60$', l)
                if m and P_AX <= int(m.group(2)) <= P_WS:
                    a(f's_mov_b32 {m.group(1)}, s60')
                    post.append(f's_add_u32 {m.group(1)}, s{m.group(2)}, {m.group(1)}')
                elif l.startswith(('s_addc_u32', 'buffer_load')) or l.endswith(', 0xffff'): post.append(l)
                else: a(l)
        late_entry(a, cfg, False)
        stamp(a, cfg, 0)
        span_mark(a, cfg, False)
        first = True
        for l in post:
            a(l)
            if first and l.startswith('buffer'): ist(a, cfg, 2); first = False
        ist(a, cfg, 3)
        if cfg.fb: a('s_barrier')
        if cfg.fs > 2:
            stream_offsets()
            rotations()
        mask_setup(a, V_T)
    else:
        for i, f in enumerate(seq[:L0]):
            f()
            if i == 0: ist(a, cfg, 2)
        ist(a, cfg, 3)
    a(f's_lshl_b32 s62, s{S_HP}, 21')
    a(f's_sub_u32 s63, {128 << 20:#x}, s62')
    if cfg.fs: srd(a, SRD_K, P_AK, off_s=62, nrec_s=63)
    srd(a, SRD_V, P_AV, off_s=62, nrec_s=63)
    mark()
    a(f's_mul_i32 s60, s{S_W}, 6\ns_add_u32 s60, s60, s{S_R}')
    if cfg.pat:
        rem_off(S_REM, 60)
        a('s_and_b32 s61, s60, 7\ns_add_u32 s61, s61, 24')
        rem_off(S_SW + 1, 61)
        a(f's_sub_u32 s{S_SW+1}, s{S_SW+1}, s{S_REM}')
    else: a(f's_lshl_b32 s{S_REM}, s60, 10\ns_add_u32 s{S_REM}, s{S_REM}, {REM:#x}')
    base_valid = sum(1 << bitrev4(c) for c in list(range(9)) + [12])
    a(f's_mov_b32 s{S_VAL}, {base_valid:#x}')
    a(f's_cmp_lt_u32 s60, 8')
    a(f's_cselect_b32 s61, {24*1024}, 0x80000000' if False else f's_cselect_b32 s61, 0, 1')
    a(f's_cselect_b32 s62, {1 << bitrev4(9):#x}, 0')
    a(f's_or_b32 s{S_VAL}, s{S_VAL}, s62')
    a(f's_lshl_b32 s61, s61, 31\ns_add_u32 s61, s61, {f"s{S_SW+1}" if cfg.pat else 24*1024}')
    a(f'v_add_u32 v{V_SP[0]}, s61, v{V_OFF[0]}')
    a(f's_sub_u32 s60, s60, 8\ns_cmp_lt_u32 s60, 8')
    a(f's_cselect_b32 s61, 0, 1')
    a(f's_cselect_b32 s62, {1 << bitrev4(13):#x}, 0')
    a(f's_or_b32 s{S_VAL}, s{S_VAL}, s62')
    a(f's_lshl_b32 s61, s61, 31\ns_add_u32 s61, s61, {f"s{S_SW+1}" if cfg.pat else 16*1024}')
    a(f'v_add_u32 v{V_SP[1]}, s61, v{V_OFF[1]}')
    a(f's_mul_i32 s{S_VAL}, s{S_VAL}, 0x10001\ns_mov_b32 s{S_VAL+1}, s{S_VAL}')
    mark()
    a(f's_mov_b32 s{S_M3}, 0xcccccccc\ns_mov_b32 s{S_M3+1}, 0xcccccccc')
    a(f's_mov_b32 s{S_M4}, 0xaaaaaaaa\ns_mov_b32 s{S_M4+1}, 0xaaaaaaaa')
    a(f'v_cmp_gt_u32 vcc, 8, v{V_C}')
    a(f'v_mov_b32 v{V_ZERO}, 0')
    for k in range(4): a(f'v_mov_b32 v{V_ACC+k}, 0')
    for k in range(4): a(f'v_cndmask_b32 v{V_MK[1]+k}, v{V_MASK+k}, v{V_ZERO}, vcc')
    for k in range(4): a(f'v_cndmask_b32 v{V_MK[0]+k}, v{V_ZERO}, v{V_MASK+k}, vcc')
    if cfg.mon:
        a(f'v_lshlrev_b32 v{V_PA}, 2, v{V_LANE}')
        a(f'v_mov_b32 v{V_ONE}, 1')
        a('s_mov_b64 vcc, 0')
    nbar = max(L0, min(npre + 8, cfg.wlate or cfg.nb))
    late = {}
    if cfg.dfr:
        mark()
        at = [int(x) for x in cfg.dfr.split(',')]
        assert cfg.fs > 3 and len(at) == 6 and at[0] <= 12 and at[0] <= at[2] <= at[5] <= npre + 8 and at[1] <= 24 and at[1] <= at[4] < len(seq) and at[3] <= npre
        for k in range(6): late.setdefault(at[k], []).extend(a.lines[marks[k]:marks[k+1]])
        del a.lines[marks[0]:]
    for i in range(L0, len(seq)):
        a.lines.extend(late.get(i, []))
        if i == nbar and not cfg.fb: a('s_barrier')
        if i == nbar: ist(a, cfg, 4)
        if i == cfg.ist: ist(a, cfg, 5)
        if cfg.st0 and i in (L0 + 1, 18, npre): stamp(a, cfg, {L0 + 1: 7, 18: 3, npre: 5}[i])
        n0 = len(a.lines); seq[i]()
        k = next(k for k in range(n0, len(a.lines)) if a.lines[k].startswith('buffer_load')) if cfg.fs else n0
        w = [f's_waitcnt vmcnt({(L0 if i < npre or not cfg.L0k else cfg.L0k) - 1})']
        if a.lines[k-1].startswith('v_readlane'): w.insert(0, 's_nop 3')
        a.lines[k:k] = w
    L0 = cfg.L0k or L0
    if cfg.fine: stamp(a, cfg, 4)
    qc = cfg.tag and cfg.qc
    a(f'v_lshlrev_b32 v{V_Y}, 4, v{V_C}')
    lds_spin(a, 'A_qw', V_X, V_ZERO, L_FLAGQ, 1 if qc else 4, 1)
    a(f'v_lshlrev_b32 v{V_X}, 5, v{V_C}')
    QT = [24, 28, 36, 40]
    if qc:
        for b in range(2): a(f'ds_read_b128 {vr(V_Q[b],4)}, v{V_Y} offset:{L_QP + 256*b}')
        a('s_waitcnt lgkmcnt(0)')
    for b in range(0 if qc else 2):
        for hf in range(2):
            for k in range(4):
                a(f'ds_read_b128 {vr(QT[k],4)}, v{V_X} offset:{L_QP + 1024*k + 512*b + 16*hf}')
            a('s_waitcnt lgkmcnt(2)')
            for e in range(4): a(f'v_add_f32 v{QT[0]+e}, v{QT[0]+e}, v{QT[1]+e}')
            a('s_waitcnt lgkmcnt(0)')
            for e in range(4): a(f'v_add_f32 v{QT[2]+e}, v{QT[2]+e}, v{QT[3]+e}')
            for e in range(4): a(f'v_add_f32 v{QT[0]+e}, v{QT[0]+e}, v{QT[2]+e}')
            for e in range(2): a(f'v_cvt_pk_bf16_f32 v{V_Q[b]+2*hf+e}, v{QT[0]+2*e}, v{QT[0]+2*e+1}')
    stamp(a, cfg, 1)

    class Merge:
        def __init__(s, carry): s.q = [('l1', 7, V_T + 2, V_T + 3, False)] if carry else []
        def pre(s):
            for t in s.q:
                if t[0] == 'l1': a(f'v_add_f32_dpp v{V_M1 + (t[1] & 1)}, v{t[2]}, v{t[2]} row_ror:8 row_mask:0xf bank_mask:0x3')
                if t[0] == 'l2' and not t[2]: a(f'v_add_f32_dpp v{V_M2 + (t[1] & 1)}, v{V_M1}, v{V_M1} row_shl:4 row_mask:0xf bank_mask:0x5')
                if t[0] == 'l3': a(f'v_add_f32_dpp v{V_TA}, v{V_M2}, v{V_M2} quad_perm:[2,3,0,1] row_mask:0xf bank_mask:0xf')
                if t[0] == 'l4':
                    a(f'v_add_f32_dpp v{V_TA}, v{V_M3}, v{V_M3} quad_perm:[1,0,3,2] row_mask:0xf bank_mask:0xf')
                    for k in range(10): a(f'v_mov_b32 v{V_S+k}, v{V_S+k+1}')
        def post(s, n):
            nxt = []
            for t in s.q:
                if t[0] == 'l1':
                    a(f'v_add_f32_dpp v{V_M1 + (t[1] & 1)}, v{t[3]}, v{t[3]} row_ror:8 row_mask:0xf bank_mask:0xc')
                    if t[1] & 1 or t[4]: nxt.append(('l2', t[1] >> 1, t[4]))
                if t[0] == 'l2':
                    if t[2]: a(f'v_add_f32_dpp v{V_M2 + (t[1] & 1)}, v{V_M1}, v{V_M1} row_shl:4 row_mask:0xf bank_mask:0x5')
                    else: a(f'v_add_f32_dpp v{V_M2 + (t[1] & 1)}, v{V_M1+1}, v{V_M1+1} row_shr:4 row_mask:0xf bank_mask:0xa')
                    if t[1] & 1: nxt.append(('l3', t[1] >> 1))
                if t[0] == 'l3':
                    a(f'v_add_f32_dpp v{V_TB}, v{V_M2+1}, v{V_M2+1} quad_perm:[2,3,0,1] row_mask:0xf bank_mask:0xf')
                    a(f'v_cndmask_b32 v{V_M3 + t[1]}, v{V_TA}, v{V_TB}, s[{S_M3}:{S_M3+1}]')
                    if t[1]: nxt.append(('l4',))
                if t[0] == 'l4':
                    a(f'v_add_f32_dpp v{V_TB}, v{V_M3+1}, v{V_M3+1} quad_perm:[1,0,3,2] row_mask:0xf bank_mask:0xf')
                    a(f'v_cndmask_b32 v{V_S+10}, v{V_TA}, v{V_TB}, s[{S_M4}:{S_M4+1}]')
            if n is not None and n % 2: nxt.append(('l1', pos(n) >> 1, V_T + (n - 1) % 4, V_T + n % 4, n >= NREG))
            s.q = nxt
    def consumeK(mg, n):
        src = V_R + 4 * slotK(n); t = V_T + n % 4; q = V_Q[batch(n)]
        mg.pre()
        a(f'v_dot2_f32_bf16 v{t}, v{src}, v{q}, 0')
        for k in range(1, 4): a(f'v_dot2_f32_bf16 v{t}, v{src+k}, v{q+k}, v{t}')
        mg.post(n)
    D = 8
    mg = Merge(False)
    G0 = R // 16 + 1
    issued, landed, n = R, R - L0, 0
    def occupant(m): return m % 16 if m < R + 16 else m - 16
    since = 0; nissue = 0
    while n < 16 * G0:
        free = occupant(issued) < n
        want = issued - n <= D or nissue < L1 or since >= cfg.catch
        if free and want and issued < 16 * G0 + D and (issued - n < D + 1 or True):
            if issued - n <= D or issued - n > D:
                a(f's_waitcnt vmcnt({L1-1})'); landed = max(landed, issued - (L1 - 1))
                issue(False, issued); issued += 1; since = 0; nissue += 1
        if n >= landed:
            a(f's_waitcnt vmcnt({issued - 1 - n})'); landed = n + 1
        consumeK(mg, n); n += 1; since += 1
    while issued < 16 * G0 + D:
        a(f's_waitcnt vmcnt({L1-1})'); issue(False, issued); issued += 1
    def kloop(tag, L, count, G0=G0):
        if count <= 0: return
        a(f's_mov_b32 s{S_IT}, {count}')
        a('.p2align 6')
        a.label(f'L_A_k{tag}')
        m = Merge(True)
        for i in range(16):
            nn = 16 * G0 + i
            wait2(L, cfg.HK)
            issue(False, nn + D)
            ctl(i)
            consumeK(m, nn)
        a(f's_sub_u32 s{S_IT}, s{S_IT}, 1\ns_cmp_lg_u32 s{S_IT}, 0\ns_cbranch_scc1 L_A_k{tag}')
    na = min(cfg.NKa, 10 - G0)
    if cfg.seq:
        kloop('a', L1, 9 - G0)
        kloop('b', L1 if na == 10 - G0 else L2, 1, 9)
    else: kloop('a', L1, na)
    if cfg.fine and not cfg.st0: stamp(a, cfg, 5)
    if not cfg.seq: kloop('b', L2, 10 - G0 - na)
    mg = Merge(True)
    for nn in range(160, NLD):
        wait2(cfg.Lk or L2, cfg.HK)
        m = nn + D
        if m < NLD: issue(False, m)
        else: issue(True, m - NLD)
        consumeK(mg, nn)
    DV = cfg.DV
    extra = list(range(D, DV))
    more = [DV - 12]
    def vissue(opt=False):
        if opt:
            if not more[0]: return
            more[0] -= 1
        if extra:
            a(f's_waitcnt vmcnt({(cfg.Lt or L2) - 1})')
            issue(True, extra.pop(0))
    vissue(True)
    while mg.q:
        a.nop(3); mg.pre(); a.nop(2); mg.post(None)
    if cfg.fine: stamp(a, cfg, 6)
    a(f'v_mov_b32 v{V_X}, 0xff800000')
    a(f'v_cndmask_b32 v{V_S+10}, v{V_X}, v{V_S+10}, s[{S_VAL}:{S_VAL+1}]')
    a(f'v_max3_f32 v{V_X}, v{V_S}, v{V_S+1}, v{V_S+2}')
    for k in range(3, 11, 2): a(f'v_max3_f32 v{V_X}, v{V_X}, v{V_S+k}, v{V_S+k+1}')
    def batch_allreduce(op, x):
        for ctl in ('quad_perm:[1,0,3,2]', 'row_ror:4', 'row_ror:8'):
            a.nop(2)
            a(f'{op}_dpp v{x}, v{x}, v{x} {ctl} row_mask:0xf bank_mask:0xf')
        vissue(True)
        xrow_allreduce(a, op, x, V_TA)
    vissue()
    batch_allreduce('v_max_f32', V_X)
    a(f's_mov_b32 s62, {f2u(SCALE):#x}')
    a(f'v_mul_f32 v{V_X}, s62, v{V_X}')
    vissue()
    for k in range(11): a(f'v_fma_f32 v{V_S+k}, v{V_S+k}, s62, -v{V_X}')
    for k in range(11): a(f'v_exp_f32 v{V_S+k}, v{V_S+k}')
    vissue()
    a(f'v_add_f32 v{V_Y}, v{V_S}, v{V_S+1}')
    for k in range(2, 11): a(f'v_add_f32 v{V_Y}, v{V_Y}, v{V_S+k}')
    for k in range(11): a(f'v_cvt_pk_bf16_f32 v{V_S+k}, v{V_S+k}, v{V_S+k}')
    vissue()
    batch_allreduce('v_add_f32', V_Y)
    a(f's_lshl_b32 s62, s{S_W}, 2')
    a(f'v_lshl_add_u32 v{V_Z}, v{V_LANE}, 3, s62')
    a(f'v_mov_b32 v{V_F}, 1')
    a('s_mov_b64 exec, 5')
    a(f'ds_write_b32 v{V_Z}, v{V_X} offset:{L_STAT}')
    a(f'ds_write_b32 v{V_Z}, v{V_Y} offset:{L_STAT + 32}')
    a('s_mov_b64 exec, 1')
    a(f'ds_add_u32 v{V_ZERO}, v{V_F} offset:{L_FLAGS}')
    a('s_mov_b64 exec, -1')
    assert not extra
    if cfg.fine and not cfg.st7 and not cfg.st0: stamp(a, cfg, 7)
    def prepA(n):
        if n % 16 == 0 and n > 0:
            for k in range(10): a(f'v_mov_b32 v{V_S+k}, v{V_S+k+1}')
        for k in range(4):
            a(f'v_and_b32_dpp v{V_A + 4*(n&1) + k}, v{V_S}, v{V_MK[batch(n)]+k} row_newbcast:{bitrev4(pos(n))} row_mask:0xf bank_mask:0xf')
    def mfma(n):
        a(f'v_mfma_f32_16x16x32_bf16 {vr(V_ACC,4)}, {vr(V_A + 4*(n&1),4)}, {vr(V_R + 4*slotV(n),4)}, {vr(V_ACC,4)}')
    prepA(0)
    def vloop(tag, L, count):
        if count <= 0: return
        a(f's_mov_b32 s{S_IT}, {count}')
        a('.p2align 6')
        a.label(f'L_A_v{tag}')
        for i in range(16):
            wait2(L, cfg.HV)
            issue(True, 16 + i + DV)
            mfma(16 + i); ctl(i); prepA(16 + i + 1)
        a(f's_sub_u32 s{S_IT}, s{S_IT}, 1\ns_cmp_lg_u32 s{S_IT}, 0\ns_cbranch_scc1 L_A_v{tag}')
    nva = min(cfg.NVa, 9)
    if cfg.Lj:
        a(f's_cmp_lg_u32 s{S_R}, 0\ns_cbranch_scc1 L_A_vn')
        vloop('j', cfg.Lj, 9)
        a('s_branch L_A_vx')
        a.label('L_A_vn')
    vloop('a', L2, nva)
    vloop('b', L3, 9 - nva)
    if cfg.Lj: a.label('L_A_vx')
    ST = V_T
    if cfg.fine and not cfg.st0: stamp(a, cfg, 3)
    L3 = cfg.Ld or L3
    for nn in range(144, NLD):
        m = nn + DV
        if m < NLD:
            if cfg.tctl: wait2(cfg.tctl, L3)
            else: a(f's_waitcnt vmcnt({L3-1})')
            issue(True, m)
            if cfg.tctl and nn in (148, 149): ctl(nn - 148)
        else:
            a(f's_waitcnt vmcnt({min(L3 - 1, NLD - 1 - nn)})' if NLD - 1 - nn < L3 else 's_nop 0')
            a('s_nop 0')
        mfma(nn)
        if nn + 1 < NLD: prepA(nn + 1)
        if nn == 144:
            lds_spin(a, 'A_sw', V_X, V_ZERO, L_FLAGS, 4, 1)
            a(f'v_lshrrev_b32 v{V_X}, 1, v{V_G}')
            a(f'v_lshlrev_b32 v{V_X}, 4, v{V_X}')
            a(f's_lshl_b32 s62, s{S_W}, 2')
            a(f'v_add_u32 v{V_Y}, s62, v{V_X}')
            a(f'ds_read_b128 {vr(ST,4)}, v{V_X} offset:{L_STAT}')
            a(f'ds_read_b32 v{V_F}, v{V_Y} offset:{L_STAT}')
        if nn == 146:
            a('s_waitcnt lgkmcnt(0)')
            a(f'v_max3_f32 v{V_X}, v{ST}, v{ST+1}, v{ST+2}')
            a(f'v_max_f32 v{V_X}, v{V_X}, v{ST+3}')
            a(f'v_sub_f32 v{V_F}, v{V_F}, v{V_X}')
            a(f'v_exp_f32 v{V_F}, v{V_F}')
            rs = 2 * SP_RS if cfg.smf else OB_RS
            a(f'v_lshrrev_b32 v{V_Z}, 1, v{V_G}')
            a(f'v_mul_u32_u24 v{V_Z}, {4*rs}, v{V_Z}')
            a(f'v_lshl_add_u32 v{V_Z}, v{V_C}, {3 if cfg.smf else 4}, v{V_Z}')
            a(f'v_and_b32 v{V_Y}, 1, v{V_G}')
            a(f'v_lshl_add_u32 v{V_Z}, v{V_Y}, {2 if cfg.smf else 3}, v{V_Z}')
            a(f's_mul_i32 s62, s{S_W}, {rs}')
            if cfg.smf: a(f's_add_u32 s62, s62, {L_OB}')
            a(f'v_add_u32 v{V_Z}, s62, v{V_Z}')
    if cfg.fine and cfg.st7: stamp(a, cfg, 7)
    a.nop(8)
    for k in (0, 2): a(f'v_pk_mul_f32 {vr(V_ACC+k,2)}, {vr(V_ACC+k,2)}, {vr(V_F-1,2)} op_sel:[0,1] op_sel_hi:[1,1]')
    a(f'v_cvt_pk_bf16_f32 v{V_ACC}, v{V_ACC}, v{V_ACC+1}')
    a(f'v_cvt_pk_bf16_f32 v{V_ACC+1}, v{V_ACC+2}, v{V_ACC+3}')
    if cfg.smf: a(f'ds_write2_b32 v{V_Z}, v{V_ACC}, v{V_ACC+1} offset1:{SP_RS // 4}')
    else: a(f'ds_write_b64 v{V_Z}, {vr(V_ACC,2)} offset:{L_OB}')
    a('s_waitcnt lgkmcnt(0)\ns_barrier')
    stamp(a, cfg, 2)
    ist(a, cfg, -1)
    a('s_endpgm')

def group_base(a, S_BASE):
    a(f's_and_b32 s63, s{S_H}, 7\ns_mul_i32 s63, s63, {G.CFG.gstr:#x}\ns_add_u32 s63, s63, {WS_PROG:#x}')
    a(f's_add_u32 s{S_BASE}, s{P_WS}, s63\ns_addc_u32 s{S_BASE+1}, s{P_WS+1}, 0')

def group_sum(a, S_BASE, va, v, s_sum, s_g, own=None, six=None):
    a('s_mov_b64 exec, 0x1ffffff')
    if six: a('s_mov_b32 exec_hi, 0x3f')
    a(f'global_load_dword v{v}, v{va}, s[{S_BASE}:{S_BASE+1}] {G.CFG.gpol.replace("+", " ")}')
    a('s_waitcnt vmcnt(0)')
    a(f'v_subrev_u32 v{v}, s{S_TAG}, v{v}')
    a('s_mov_b64 exec, 0xffffff')
    a(f'v_cmp_le_u32 vcc, 0x400, v{v}')
    a(f'v_readlane_b32 s{s_g}, v{v}, 24')
    if own: a(f'v_readlane_b32 s{own[0]}, v{v}, s{own[1]}')
    for st in (1, 2, 4, 8):
        if st > 1: a.nop(2)
        a(f'v_add_u32_dpp v{v}, v{v}, v{v} row_shr:{st} row_mask:0xf bank_mask:0xf bound_ctrl:0')
    a.nop(1)
    a(f'v_readlane_b32 s{s_sum}, v{v}, 15')
    a(f'v_readlane_b32 s63, v{v}, 23')
    a(f's_add_u32 s{s_sum}, s{s_sum}, s63')

def monitor(a, cfg, S_K, V_ZERO, V_TMP):
    S_BASE, S_NOW, S_PREV, S_SUM, S_G, S_N = 56, 58, 59, 61, 62, 64
    U = 20 * 24
    if cfg.post: a(f's_sub_u32 s63, s{S_K}, 1\ns_cmp_gt_u32 s63, 1\ns_cbranch_scc1 L_A_monx')
    else: a(f's_cmp_lg_u32 s{S_K}, 1\ns_cbranch_scc1 L_A_monx')
    group_base(a, S_BASE)
    a(f's_mov_b32 s{S_N}, 0\ns_mov_b32 s{S_PREV}, 0')
    a(f's_lshr_b32 s62, s{S_H}, 3\ns_mul_i32 s62, s62, 6\ns_add_u32 s62, s62, s{S_R}\ns_lshl_b32 s62, s62, 2')
    a(f'v_mov_b32 v{V_TMP}, s62')
    a(f'v_lshlrev_b32 v{V_TMP+4}, 2, v{V_LANE}')
    if cfg.post:
        a('s_lshr_b32 s65, s62, 2')
        a(f's_cmp_eq_u32 s{S_K}, 1\ns_cbranch_scc1 L_A_mon')
        a('s_mov_b64 exec, 1')
        a(f's_mov_b32 s{S_PREV}, {-cfg.post}')
        a.label('L_A_post')
        a(f'ds_read_b32 v{V_TMP+1}, v{V_ZERO} offset:{L_PROG}')
        a('s_waitcnt lgkmcnt(0)')
        a(f'v_readfirstlane_b32 s{S_NOW}, v{V_TMP+1}')
        a(f'v_add_u32 v{V_TMP+2}, s{S_TAG}, v{V_TMP+1}')
        a(f's_sub_u32 s63, s{S_NOW}, s{S_PREV}\ns_cmp_lt_u32 s63, {cfg.post}\ns_cbranch_scc1 L_A_postn')
        a(f'global_store_dword v{V_TMP}, v{V_TMP+2}, s[{S_BASE}:{S_BASE+1}]')
        a(f's_mov_b32 s{S_PREV}, s{S_NOW}')
        a(f's_cmp_ge_u32 s{S_NOW}, {cfg.pend}\ns_cbranch_scc1 L_A_monx')
        a.label('L_A_postn')
        a(f's_sleep {cfg.psl}')
        a(f's_add_u32 s{S_N}, s{S_N}, 1\ns_cmp_lt_u32 s{S_N}, {1 << 16}\ns_cbranch_scc1 L_A_post')
        a('s_branch L_A_monx')
    a.label('L_A_mon')
    a('s_mov_b64 exec, 1')
    a(f'ds_read_b32 v{V_TMP+1}, v{V_ZERO} offset:{L_PROG}')
    a('s_waitcnt lgkmcnt(0)')
    a(f'v_add_u32 v{V_TMP+2}, s{S_TAG}, v{V_TMP+1}')
    a(f'v_readfirstlane_b32 s{S_NOW}, v{V_TMP+1}')
    if not cfg.post: a(f'global_store_dword v{V_TMP}, v{V_TMP+2}, s[{S_BASE}:{S_BASE+1}]')
    group_sum(a, S_BASE, V_TMP + 4, V_TMP + 5, S_SUM, S_G, own=(S_PREV, 65) if cfg.post else None)
    if cfg.post: a(f's_mul_i32 s63, s{S_PREV}, 24\ns_sub_u32 s{S_SUM}, s{S_SUM}, s63')
    else: a(f's_add_u32 s63, s{S_NOW}, s{S_PREV}\ns_mul_i32 s63, s63, 12\ns_sub_u32 s{S_SUM}, s{S_SUM}, s63')
    if cfg.mon > 1:
        a(f's_cmp_lt_u32 s{S_G}, 0x8000\ns_cselect_b32 s{S_G}, s{S_G}, 0x4000')
        a(f's_add_u32 s{S_SUM}, s{S_SUM}, s{S_G}\ns_sub_u32 s{S_SUM}, s{S_SUM}, 0x4000')
    a(f's_mov_b32 s63, {cfg.tha * U // 100}')
    a(f's_cmp_lt_u32 s{S_NOW}, {cfg.mp1}\ns_cselect_b32 s63, s63, {cfg.thb * U // 100}')
    a(f's_cmp_gt_i32 s{S_SUM}, s63\ns_cselect_b32 s63, 1, 0')
    a(f's_cmp_eq_u64 vcc, 0\ns_cselect_b32 s63, s63, {cfg.mdef}')
    if not cfg.tctl: a(f's_cmp_lt_u32 s{S_NOW}, {cfg.mend}\ns_cselect_b32 s63, s63, 1')
    a(f'v_mov_b32 v{V_TMP+3}, s63')
    a(f'ds_write_b32 v{V_ZERO}, v{V_TMP+3} offset:{L_CTL}')
    if cfg.lite: a(f's_add_u32 s98, s98, s63\ns_add_u32 s99, s99, 1')
    a(f's_mov_b32 s{S_PREV}, s{S_NOW}')
    a(f's_cmp_ge_u32 s{S_NOW}, {cfg.mend}\ns_cbranch_scc1 L_A_monx')
    if cfg.msl: a(f's_sleep {cfg.msl}')
    a(f's_add_u32 s{S_N}, s{S_N}, 1\ns_cmp_lt_u32 s{S_N}, 4096\ns_cbranch_scc1 L_A_mon')
    a.label('L_A_monx')
    a('s_mov_b64 exec, -1')

def exchange(a, cfg, tag, V, V_ZERO, L_STOP):
    if cfg.grot: return exchange_rot(a, cfg, tag, V, V_ZERO, L_STOP)
    S_BASE, S_PREV, S_SUM, S_G, S_N = 56, 59, 61, 62, 64
    group_base(a, S_BASE)
    a(f's_mov_b32 s{S_N}, 0\ns_mov_b32 s{S_PREV}, 0')
    a(f's_lshl_b32 s62, s{S_H}, 8\ns_add_u32 s62, s62, {WS_PROG + 0x1000:#x}')
    a(f'v_lshl_add_u32 v{V+4}, v{V_LANE}, 4, s62')
    a(f's_mov_b32 s62, {WS_PROG + 0x1000:#x}')
    a(f'v_lshl_add_u32 v{V+5}, v{V_LANE}, 8, s62')
    a(f'v_lshlrev_b32 v{V+6}, 2, v{V_LANE}')
    a(f'v_mov_b32 v{V+7}, 96')
    a.label(f'L_gm_{tag}')
    if cfg.gpar:
        a('s_mov_b64 exec, 0xff')
        a(f'global_load_dword v{V+9}, v{V+5}, s[{P_WS}:{P_WS+1}] sc1')
    group_sum(a, S_BASE, V + 6, V + 8, S_SUM, S_G)
    a('s_mov_b64 exec, 0xff')
    a(f's_cbranch_vccnz L_gm_{tag}_{"next" if L_STOP is not None else "x"}')
    a(f's_add_u32 s63, s{S_SUM}, s{S_TAG}')
    for k in range(4): a(f'v_mov_b32 v{V+k}, s63')
    a(f'global_store_dwordx4 v{V+4}, {vr(V,4)}, s[{P_WS}:{P_WS+1}] sc1')
    if not cfg.gpar: a(f'global_load_dword v{V+9}, v{V+5}, s[{P_WS}:{P_WS+1}] sc1')
    a(f's_mul_i32 s63, s{S_SUM}, {cfg.gmix}\ns_mul_i32 s65, s{S_PREV}, {8 - cfg.gmix}\ns_add_u32 s65, s65, s63')
    a(f's_cmp_eq_u32 s{S_PREV}, 0\ns_mov_b32 s{S_PREV}, s{S_SUM}')
    if not cfg.gpar: a('s_waitcnt vmcnt(0)')
    a(f's_cbranch_scc1 L_gm_{tag}_next')
    a(f'v_subrev_u32 v{V+9}, s{S_TAG}, v{V+9}')
    a(f'v_cmp_le_u32 vcc, 0x8000, v{V+9}')
    a('s_nop 0')
    for st in (1, 2, 4):
        if st > 1: a.nop(2)
        a(f'v_add_u32_dpp v{V+9}, v{V+9}, v{V+9} row_shr:{st} row_mask:0xf bank_mask:0xf bound_ctrl:0')
    a(f's_cbranch_vccnz L_gm_{tag}_next')
    a('s_nop 0')
    a(f'v_readlane_b32 s63, v{V+9}, 7')
    a(f's_sub_u32 s63, s63, s65\ns_ashr_i32 s63, s63, 3')
    if cfg.ggain != 100: a(f's_mul_i32 s63, s63, {cfg.ggain * 64 // 100}\ns_ashr_i32 s63, s63, 6')
    a(f's_add_u32 s63, s63, 0x4000\ns_add_u32 s63, s63, s{S_TAG}')
    a(f'v_mov_b32 v{V+10}, s63')
    a(f'global_store_dword v{V+7}, v{V+10}, s[{S_BASE}:{S_BASE+1}]')
    a.label(f'L_gm_{tag}_next')
    if L_STOP is not None:
        a(f'ds_read_b32 v{V+11}, v{V_ZERO} offset:{L_STOP}')
        a('s_waitcnt lgkmcnt(0)')
        a(f'v_readfirstlane_b32 s63, v{V+11}')
        a(f's_cmp_eq_u32 s63, s{S_TAG}\ns_cbranch_scc1 L_gm_{tag}_x')
    else: a(f's_cmp_ge_u32 s{S_SUM}, {24 * (cfg.mend - 20)}\ns_cbranch_scc1 L_gm_{tag}_x')
    if cfg.gsl: a(f's_sleep {cfg.gsl}')
    a(f's_add_u32 s{S_N}, s{S_N}, 1\ns_cmp_lt_u32 s{S_N}, {128 if cfg.gpar else 64}\ns_cbranch_scc1 L_gm_{tag}')
    a.label(f'L_gm_{tag}_x')
    a('s_mov_b64 exec, -1')

def exchange_rot(a, cfg, tag, V, V_ZERO, L_STOP):
    S_BASE, S_K, S_PREV, S_SUM, S_G, S_N = 56, 58, 59, 61, 62, 64
    VO, VX, VS, VA, VW, VP, VY, VM, VT = V + 4, V + 5, V + 6, V + 7, V + 8, V + 9, V + 10, V + 11, V + 12
    group_base(a, S_BASE)
    a(f's_mov_b32 s{S_N}, 0\ns_mov_b32 s{S_PREV}, 0\ns_mov_b32 s{S_K}, 0')
    a(f's_lshl_b32 s62, s{S_H}, 12\ns_add_u32 s62, s62, {WS_GLOB:#x}')
    spread(a, 'g', 62, S_H, 63)
    a(f'v_lshl_add_u32 v{VO}, v{V_LANE}, 4, s62')
    a(f'v_lshrrev_b32 v{VX}, 2, v{V_LANE}')
    a(f's_mov_b32 s62, {WS_GLOB:#x}')
    if 'g' in cfg.csp:
        a(f'v_and_b32 v{VS}, 7, v{VX}')
        a(f'v_lshl_add_u32 v{VS}, v{VS}, 23, s62')
        a(f'v_lshl_add_u32 v{VX}, v{VX}, 12, v{VS}')
    else: a(f'v_lshl_add_u32 v{VX}, v{VX}, 12, s62')
    a(f'v_and_b32 v{VS}, 3, v{V_LANE}')
    a(f'v_lshlrev_b32 v{VW}, 2, v{V_LANE}')
    a(f'v_mov_b32 v{VM}, 0')
    a.label(f'L_gm_{tag}')
    a('s_mov_b32 exec_lo, -1\ns_mov_b32 exec_hi, 0')
    a(f'v_add_u32 v{VA}, s{S_K}, v{VS}')
    a(f'v_and_b32 v{VA}, 15, v{VA}')
    a(f'v_lshl_add_u32 v{VA}, v{VA}, 8, v{VX}')
    a(f'global_load_dword v{VY}, v{VA}, s[{P_WS}:{P_WS+1}] sc1')
    group_sum(a, S_BASE, VW, VP, S_SUM, S_G)
    a('s_mov_b64 exec, 0xff')
    a(f's_cbranch_vccnz L_gm_{tag}_{"next" if L_STOP is not None else "x"}')
    a(f's_add_u32 s63, s{S_SUM}, s{S_TAG}')
    for k in range(4): a(f'v_mov_b32 v{V+k}, s63')
    a(f's_lshr_b32 s{S_K}, s{S_SUM}, {cfg.grot}\ns_and_b32 s63, s{S_K}, 15\ns_lshl_b32 s63, s63, 8')
    a(f'v_add_u32 v{VA}, s63, v{VO}')
    a(f's_sub_u32 s{S_K}, s{S_K}, {cfg.gback}')
    a(f'global_store_dwordx4 v{VA}, {vr(V,4)}, s[{P_WS}:{P_WS+1}] sc1' + snt('g'))
    a(f's_mul_i32 s63, s{S_SUM}, {cfg.gmix}\ns_mul_i32 s65, s{S_PREV}, {8 - cfg.gmix}\ns_add_u32 s65, s65, s63')
    a(f's_cmp_eq_u32 s{S_PREV}, 0\ns_mov_b32 s{S_PREV}, s{S_SUM}')
    a(f's_cbranch_scc1 L_gm_{tag}_next')
    a('s_mov_b32 exec_lo, -1')
    a(f'v_subrev_u32 v{VY}, s{S_TAG}, v{VY}')
    a(f'v_cmp_gt_u32 vcc, 0x8000, v{VY}')
    a.nop(2)
    a(f'v_cndmask_b32 v{VY}, 0, v{VY}, vcc')
    a(f'v_max_u32 v{VM}, v{VM}, v{VY}')
    for qp in ('[1,0,3,2]', '[2,3,0,1]'):
        a.nop(2)
        a(f'v_max_u32_dpp v{VM}, v{VM}, v{VM} quad_perm:{qp} row_mask:0xf bank_mask:0xf')
    a(f'v_cmp_eq_u32 vcc, 0, v{VM}')
    a.nop(1)
    a(f'v_add_u32_dpp v{VY}, v{VM}, v{VM} row_shr:4 row_mask:0xf bank_mask:0xf bound_ctrl:0')
    a.nop(2)
    a(f'v_add_u32_dpp v{VY}, v{VY}, v{VY} row_shr:8 row_mask:0xf bank_mask:0xf bound_ctrl:0')
    a(f's_cbranch_vccnz L_gm_{tag}_next')
    a('s_nop 0')
    a(f'v_readlane_b32 s63, v{VY}, 15')
    a(f'v_readlane_b32 s62, v{VY}, 31')
    a('s_add_u32 s63, s63, s62')
    a(f's_sub_u32 s63, s63, s65\ns_ashr_i32 s63, s63, 3')
    if cfg.ggain != 100: a(f's_mul_i32 s63, s63, {cfg.ggain * 64 // 100}\ns_ashr_i32 s63, s63, 6')
    a(f's_add_u32 s63, s63, 0x4000\ns_add_u32 s63, s63, s{S_TAG}')
    a('s_mov_b64 exec, 0x1000000')
    a(f'v_mov_b32 v{VT}, s63')
    a(f'global_store_dword v{VW}, v{VT}, s[{S_BASE}:{S_BASE+1}]')
    a.label(f'L_gm_{tag}_next')
    if L_STOP is not None:
        a(f'ds_read_b32 v{VP}, v{V_ZERO} offset:{L_STOP}')
        a('s_waitcnt lgkmcnt(0)')
        a(f'v_readfirstlane_b32 s63, v{VP}')
        a(f's_cmp_eq_u32 s63, s{S_TAG}\ns_cbranch_scc1 L_gm_{tag}_x')
    else: a(f's_cmp_ge_u32 s{S_SUM}, {24 * (cfg.mend - 20)}\ns_cbranch_scc1 L_gm_{tag}_x')
    if cfg.gsl: a(f's_sleep {cfg.gsl}')
    a(f's_add_u32 s{S_N}, s{S_N}, 1\ns_cmp_lt_u32 s{S_N}, 128\ns_cbranch_scc1 L_gm_{tag}')
    a.label(f'L_gm_{tag}_x')
    a('s_mov_b64 exec, -1')

def assist(a, cfg, tag, V, V_ZERO, L_STOP):
    S_BASE, S_SUM, S_G, S_N, SRD = 56, 61, 62, 64, 68
    VA, VP, VU, VK, VL, V0, V1, VD, VT = range(V, V + 9)
    U = 20 * 24
    group_base(a, S_BASE)
    a(f's_lshl_b32 s62, s{S_HP}, 21')
    a(f's_sub_u32 s63, {128 << 20:#x}, s62')
    srd(a, SRD, P_AK, off_s=62, nrec_s=63)
    srd(a, SRD + 4, P_AV, off_s=62, nrec_s=63)
    a(f's_mov_b64 s[{SRD+8}:{SRD+9}], s[{SRD}:{SRD+1}]\ns_mov_b64 s[{SRD+10}:{SRD+11}], s[{SRD+2}:{SRD+3}]')
    a(f's_lshr_b32 s62, s{S_H}, 3\ns_mul_i32 s62, s62, 6\ns_sub_u32 s62, s62, 32')
    a(f'v_add_u32 v{VT}, s62, v{V_LANE}')
    a(f'v_cmp_gt_u32 vcc, 32, v{V_LANE}')
    a(f'v_lshlrev_b32 v{V0}, 7, v{V_LANE}')
    a(f'v_add_u32 v{V1}, {64 << 20:#x}, v{V0}')
    a(f'v_cndmask_b32 v{VA}, v{VT}, v{V_LANE}, vcc')
    a(f'v_lshlrev_b32 v{VA}, 2, v{VA}')
    if cfg.lite: a('s_mov_b32 s98, 0')
    a(f'v_mov_b32 v{VL}, 0')
    a(f's_mov_b32 s{S_N}, 0')
    a.label(f'L_as_{tag}')
    group_sum(a, S_BASE, VA, VP, S_SUM, S_G, six=True)
    a(f's_cbranch_vccnz L_as_{tag}_{"idle" if L_STOP is not None else "x"}')
    if L_STOP is None: a(f's_cmp_ge_u32 s{S_SUM}, {24 * (cfg.pend - 8)}\ns_cbranch_scc1 L_as_{tag}_x')
    if cfg.ag:
        a(f's_cmp_lt_u32 s{S_G}, 0x8000\ns_cselect_b32 s{S_G}, s{S_G}, 0x4000')
        a(f's_add_u32 s{S_SUM}, s{S_SUM}, s{S_G}\ns_sub_u32 s{S_SUM}, s{S_SUM}, {0x4000 + cfg.ath * U // 100}')
    else: a(f's_sub_u32 s{S_SUM}, s{S_SUM}, {cfg.ath * U // 100}')
    a('s_mov_b32 exec_lo, 0\ns_mov_b32 exec_hi, 0x3f')
    a(f'v_cmp_gt_u32 vcc, {328 - cfg.lead}, v{VP}')
    a(f'v_add_u32 v{VU}, {cfg.lead + 8}, v{VP}')
    a('s_nop 0')
    a(f'v_cndmask_b32 v{VT}, 0, 8, vcc')
    a(f'v_add_u32 v{VU}, v{VU}, v{VT}')
    a(f'v_lshrrev_b32 v{VU}, 4, v{VU}')
    a(f'v_sub_u32 v{VT}, v{VU}, v{VL}')
    a(f'v_cmp_gt_i32 vcc, {cfg.acs}, v{VT}')
    a(f'v_cmp_le_i32 s[66:67], {cfg.agap}, v{VT}')
    a('s_nop 0')
    a(f'v_cndmask_b32 v{VK}, 0, {cfg.acr}, vcc')
    a(f'v_cmp_ge_u32 vcc, 41, v{VU}')
    a(f'v_add_u32 v{VK}, v{VK}, v{VP}')
    a(f'v_lshl_add_u32 v{VK}, v{VK}, 6, v{V_LANE}')
    a('s_and_b64 vcc, vcc, s[66:67]')
    a(f'v_cndmask_b32 v{VK}, -1, v{VK}, vcc')
    for st in (1, 2, 4):
        a.nop(2)
        a(f'v_min_u32_dpp v{VK}, v{VK}, v{VK} row_shr:{st} row_mask:0xf bank_mask:0xf')
    a.nop(1)
    a(f'v_readlane_b32 s63, v{VK}, 37')
    a('s_lshr_b32 s65, s63, 6\ns_and_b32 s63, s63, 63\ns_mul_i32 s65, s65, 24')
    a(f's_cmp_ge_i32 s65, s{S_SUM}\ns_cbranch_scc1 L_as_{tag}_idle')
    a(f'v_readlane_b32 s65, v{VU}, s63')
    a(f's_mov_b32 m0, s63')
    a('s_mov_b64 exec, -1')
    a('s_cmp_lt_u32 s65, 21')
    a(f's_cselect_b64 s[{SRD+8}:{SRD+9}], s[{SRD}:{SRD+1}], s[{SRD+4}:{SRD+5}]')
    a(f'v_writelane_b32 v{VL}, s65, m0')
    a('s_cselect_b32 s66, 0, 21\ns_sub_u32 s65, s65, s66')
    a(f's_mul_i32 s65, s65, {STEP:#x}\ns_and_b32 s63, s63, 7\ns_lshl_b32 s63, s63, 14\ns_add_u32 s65, s65, s63')
    a('s_add_u32 s66, s65, 0x2000')
    for v in (V0, V1):
        for so in (65, 66): a(f'buffer_load_dword v{VD}, v{v}, s[{SRD+8}:{SRD+11}], s{so} offen {cfg.apol.replace("+", " ")}')
    if cfg.lite: a('s_add_u32 s98, s98, 1')
    if cfg.await_: a(f's_waitcnt vmcnt({4 - cfg.await_})')
    a(f's_branch L_as_{tag}_next')
    a.label(f'L_as_{tag}_idle')
    if cfg.asl: a(f's_sleep {cfg.asl}')
    a.label(f'L_as_{tag}_next')
    if L_STOP is not None:
        a('s_mov_b64 exec, 1')
        a(f'ds_read_b32 v{VT}, v{V_ZERO} offset:{L_STOP}')
        a('s_waitcnt lgkmcnt(0)')
        a(f'v_readfirstlane_b32 s63, v{VT}')
        a(f's_cmp_eq_u32 s63, s{S_TAG}\ns_cbranch_scc1 L_as_{tag}_x')
    a(f's_add_u32 s{S_N}, s{S_N}, 1\ns_cmp_lt_u32 s{S_N}, 96\ns_cbranch_scc1 L_as_{tag}')
    a.label(f'L_as_{tag}_x')
    if cfg.lite:
        a(f's_lshl_b32 s92, s2, 9\ns_add_u32 s92, s92, {WS_STAMP + 6*64:#x}')
        a('s_mov_b64 exec, 1')
        a(f'v_mov_b32 v250, s92\nv_mov_b32 v252, s98\nv_mov_b32 v253, s{S_N}')
        a(f'global_store_dwordx2 v250, v[252:253], s[{P_WS}:{P_WS+1}] nt')
    a('s_mov_b64 exec, -1')
    a('s_waitcnt vmcnt(0)')

def helper(a, cfg):
    SRD_W, SRD_X = 40, 44
    S_K, S_ROT, S_P = 35, 36, 37
    V_ZERO, V_OFF, V_T0, V_T1 = 8, 9, 10, 11
    V_X = 12
    V_A = 28
    V_Y = 36
    V_TMP = 44
    V_W = 56
    V_B = V_W + 128
    assert V_B + 64 <= 249
    def zero_flags():
        a(f'v_mov_b32 v{V_ZERO}, 0')
        a(f'v_mov_b32 v{V_T1}, 0')
        a(f'ds_write_b32 v{V_ZERO}, v{V_ZERO} offset:{L_FLAGQ}')
        a(f'ds_write_b32 v{V_ZERO}, v{V_ZERO} offset:{L_FLAGS}')
        if cfg.mon:
            a(f'ds_write_b32 v{V_ZERO}, v{V_ZERO} offset:{L_CTL}')
            a(f'ds_write_b32 v{V_ZERO}, v{V_ZERO} offset:{L_PROG}')
        a('s_waitcnt lgkmcnt(0)\ns_barrier')
    qc = cfg.tag and cfg.qc
    if cfg.fb:
        assert qc
        zero_flags()
    late_entry(a, cfg, not qc)
    if cfg.fs: stamp(a, cfg, 0)
    a(f's_sub_u32 s{S_K}, s{S_W}, 4')
    if cfg.lite and cfg.mon: a('s_mov_b32 s98, 0\ns_mov_b32 s99, 0')
    a(f's_lshl_b32 s{S_P}, s{S_H}, 3\ns_add_u32 s{S_P}, s{S_P}, s{S_R}')
    def clear_rows():
        a(f's_cmp_lg_u32 s{S_K}, 0\ns_cbranch_scc1 L_A_noclr')
        a(f's_lshl_b32 s63, s{S_P}, 10\ns_add_u32 s63, s63, {WS_YA:#x}')
        spread(a, 'y', 63, S_H, 62)
        a(f'v_lshl_add_u32 v{V_T0}, v{V_LANE}, 4, s63')
        a(f'v_add_u32 v{V_T1}, {1 << 18:#x}, v{V_T0}')
        for k in range(4): a(f'v_mov_b32 v{V_TMP+k}, -1')
        a(f'global_store_dwordx4 v{V_T0}, {vr(V_TMP,4)}, s[{P_WS}:{P_WS+1}] {cfg.zpol.replace("+", " ")}')
        a(f'global_store_dwordx4 v{V_T1}, {vr(V_TMP,4)}, s[{P_WS}:{P_WS+1}] {cfg.zpol.replace("+", " ")}')
        a.label('L_A_noclr')
    def wo_setup():
        a(f's_lshl_b32 s62, s{S_HP}, 17')
        a(f's_mov_b32 s63, {128*1024:#x}')
        srd(a, SRD_W, P_AWO, off_s=62, nrec_s=63)
        a(f'v_lshlrev_b32 v{V_OFF}, 13, v{V_G}')
        a(f'v_lshl_add_u32 v{V_OFF}, v{V_C}, 4, v{V_OFF}')
        a(f's_lshl_b32 s62, s{S_K}, 8')
        a(f'v_add_u32 v{V_OFF}, s62, v{V_OFF}')
    Lo = cfg.Lo
    assert Lo <= 8
    def wo_load(n):
        s, e = n // 8, n % 8
        if e % 4 == 0: a(f's_mov_b32 s61, {s*32768 + e*1024}')
        if not cfg.nowo: a(f'buffer_load_dwordx4 {vr(V_B + 32*(s&1) + 4*e,4)}, v{V_OFF}, s[{SRD_W}:{SRD_W+3}], s61 offen offset:{(e%4)*1024} {cfg.wopol}')
    def touch(ptr, dst):
        lab = f'L_A_tch{dst}'
        a(f's_cmp_lg_u32 s{S_K}, 3\ns_cbranch_scc1 {lab}')
        a(f's_lshl_b32 s62, s{S_HP}, 21')
        a(f's_sub_u32 s63, {128 << 20:#x}, s62')
        srd(a, 68, ptr, off_s=62, nrec_s=63)
        n = cfg.tn
        a(f'v_and_b32 v{V_T0}, {n - 1}, v{V_LANE}')
        a(f'v_mul_u32_u24 v{V_T0}, {((2 << 20) - 128) // (n - 1) // 128 * 128:#x}, v{V_T0}')
        a(f'v_bfe_u32 v{V_T1}, v{V_LANE}, {n.bit_length() - 1}, 1')
        a(f'v_lshl_add_u32 v{V_T0}, v{V_T1}, 26, v{V_T0}')
        a(f's_mov_b64 exec, {hex((1 << (2 * n)) - 1) if n < 16 else -1}')
        if n == 16: a('s_mov_b32 exec_hi, 0')
        a(f'buffer_load_dword v{dst}, v{V_T0}, s[68:71], 0 offen {cfg.tpol}')
        a('s_mov_b64 exec, -1')
        a.label(lab)
    if 'k' in cfg.tlb: touch(P_AK, V_Y)
    if 'v' in cfg.tlb: touch(P_AV, V_Y + 1)
    if cfg.tag and cfg.clr0 and not cfg.noclr: clear_rows()
    if qc:
        wo_setup()
        if not cfg.wlate:
            for n in range(Lo): wo_load(n)
    else:
        srd(a, SRD_X, P_AX, nrec=2048)
        a(f's_lshl_b32 s62, s{S_HP}, 8')
        a(f's_sub_u32 s63, {512*8192:#x}, s62')
        srd(a, SRD_W, P_AWQ, off_s=62, nrec_s=63)
        if cfg.rot: a(f's_and_b32 s{S_ROT}, s{S_R}, 3')
        else: a(f's_mov_b32 s{S_ROT}, 0')
        a(f'v_lshrrev_b32 v{V_T0}, 3, v{V_C}')
        a(f'v_lshlrev_b32 v{V_T0}, 10, v{V_T0}')
        a(f'v_lshl_add_u32 v{V_T0}, v{V_G}, 6, v{V_T0}')
        a(f's_lshl_b32 s62, s{S_K}, 8')
        a(f'v_add_u32 v{V_T0}, s62, v{V_T0}')
        a(f'v_lshlrev_b32 v{V_OFF}, 18, v{V_G}')
        a(f'v_lshl_add_u32 v{V_OFF}, v{V_C}, 4, v{V_OFF}')
        a(f's_lshl_b32 s62, s{S_K}, 20')
        a(f'v_add_u32 v{V_OFF}, s62, v{V_OFF}')
        for i in range(4):
            a(f's_add_u32 s62, s{S_ROT}, {i}\ns_and_b32 s62, s62, 3\ns_lshl_b32 s62, s62, 4')
            a(f'v_add_u32 v{V_T1}, s62, v{V_T0}')
            a(f'buffer_load_dwordx4 {vr(V_X+4*i,4)}, v{V_T1}, s[{SRD_X}:{SRD_X+3}], 0 offen')
        def wq_load(s):
            if s % 8 == 0: a(f's_add_u32 s61, s{S_ROT}, {s//8}\ns_and_b32 s61, s61, 3\ns_lshl_b32 s61, s61, 16')
            else: a(f's_add_u32 s61, s61, 0x2000')
            if not cfg.nowq: a(f'buffer_load_dwordx4 {vr(V_W+4*s,4)}, v{V_OFF}, s[{SRD_W}:{SRD_W+3}], s61 offen {cfg.wqpol}')
        Lq = cfg.Lq
        for s in range(Lq): wq_load(s)
    if not cfg.fb: zero_flags()
    if cfg.tag: load_tag(a)
    if qc and cfg.wlate:
        for n in range(Lo): wo_load(n)
    if not qc:
        a('s_mov_b32 s66, 0x01000100\ns_mov_b32 s67, 0x03020302')
        for s in range(32):
            A = V_A + 4 * (s & 1)
            a(f's_waitcnt vmcnt({min(Lq - 1, 31 - s)})')
            if s + Lq < 32: wq_load(s + Lq)
            a(f'v_perm_b32 v{V_T0}, v{V_X + s//2}, v{V_X + s//2}, s{66 + (s & 1)}')
            for i in range(4): a(f'v_and_b32 v{A+i}, v{V_T0}, v{V_MASK+i}')
            a('s_nop 1')
            acc = V_Y + 4 * (s & 1)
            c = '0' if s < 2 else vr(acc, 4)
            a(f'v_mfma_f32_16x16x32_bf16 {vr(acc,4)}, {vr(A,4)}, {vr(V_W+4*s,4)}, {c}')
        wo_setup()
        a(f'v_lshrrev_b32 v{V_T0}, 1, v{V_G}')
        a(f'v_lshlrev_b32 v{V_T0}, 9, v{V_T0}')
        a(f'v_lshl_add_u32 v{V_T0}, v{V_C}, 5, v{V_T0}')
        a(f'v_and_b32 v{V_T1}, 1, v{V_G}')
        a(f'v_lshl_add_u32 v{V_T0}, v{V_T1}, 4, v{V_T0}')
        a(f's_lshl_b32 s63, s{S_K}, 10')
        a(f'v_add_u32 v{V_T0}, s63, v{V_T0}')
        a(f'v_mov_b32 v{V_T1}, 1')
        for k in range(4): a(f'v_add_f32 v{V_Y+k}, v{V_Y+k}, v{V_Y+4+k}')
        a(f'ds_write_b128 v{V_T0}, {vr(V_Y,4)} offset:{L_QP}')
        a('s_mov_b64 exec, 1')
        a(f'ds_add_u32 v{V_ZERO}, v{V_T1} offset:{L_FLAGQ}')
        a('s_mov_b64 exec, -1')
        stamp(a, cfg, 1)
        for n in range(Lo): wo_load(n)
    a('s_mov_b32 s66, 0x05040100\ns_mov_b32 s67, 0x07060302')
    S_QOK = 38
    tries = [int(t) for t in cfg.qtry.split(',') if t] if qc else []
    def q_to_lds():
        a(f'v_mov_b32 v{V_TMP+1}, v{V_TMP+2}')
        a(f'v_mov_b32 v{V_TMP+2}, 1')
        a(f'ds_write_b64 v{V_T1}, {vr(V_TMP,2)} offset:{L_QP}')
        a(f'ds_write_b32 v{V_ZERO}, v{V_TMP+2} offset:{L_FLAGQ}')
        stamp(a, cfg, 1)
    if qc:
        srd(a, SRD_X, P_WS, nrec=0x1000000)
        a(f's_lshl_b32 s63, s{S_H}, 10\ns_add_u32 s63, s63, {WS_QA:#x}')
        a(f'v_lshl_add_u32 v{V_T0}, v{V_LANE}, 4, s63')
        a(f'v_lshlrev_b32 v{V_T1}, 3, v{V_LANE}')
        a(f's_mov_b32 s{S_QOK}, s{S_K}')
    if cfg.tag: get_tag(a)
    for n in range(32):
        a(f's_waitcnt vmcnt({min(Lo - 1, 31 - n)})')
        if n - Lo in tries:
            a(f's_cmp_lg_u32 s{S_QOK}, 0\ns_cbranch_scc1 L_A_qc{n}')
            a(f'v_cmp_ne_u32 s[62:63], s{S_TAG}, v{V_TMP+1}')
            a(f'v_cmp_ne_u32 vcc, s{S_TAG}, v{V_TMP+3}')
            a('s_nop 1')
            a(f's_or_b64 vcc, vcc, s[62:63]\ns_cbranch_scc1 L_A_qc{n}')
            a(f's_mov_b32 s{S_QOK}, 1')
            q_to_lds()
            a.label(f'L_A_qc{n}')
        if n in tries:
            assert n + 2 * Lo <= 32 and all(abs(n - t) >= Lo for t in tries if t != n)
            a(f's_cmp_lg_u32 s{S_QOK}, 0\ns_cbranch_scc1 L_A_qt{n}')
            a(f'buffer_load_dwordx4 {vr(V_TMP,4)}, v{V_T0}, s[{SRD_X}:{SRD_X+3}], 0 offen sc1')
            a.label(f'L_A_qt{n}')
        if n + Lo < 32: wo_load(n + Lo)
        if n % 2:
            s, e = n // 8, n % 8
            lo, hi = V_B + 32*(s&1) + 4*(e-1), V_B + 32*(s&1) + 4*e
            for cb in range(8):
                w = V_W + 64*(s >> 1) + 8*cb + 4*(s & 1) if cfg.smf else V_W + 32*s + 4*cb
                a(f'v_perm_b32 v{w + e//2}, v{hi + cb//2}, v{lo + cb//2}, s{66 + (cb & 1)}')
    if cfg.smf:
        for k in range(32): a(f'v_mov_b32 v{V_B + k}, 0')
    if cfg.apf:
        a(f's_lshl_b32 s62, s{S_H}, 19\ns_add_u32 s62, s62, {(8 - cfg.apf) << 16:#x}')
        a(f's_mov_b32 s63, {cfg.apf << 16:#x}')
        srd(a, SRD_W, P_BC, off_s=62, nrec_s=63)
        a(f's_lshl_b32 s62, s{S_R}, 2\ns_add_u32 s62, s62, s{S_K}\ns_lshl_b32 s62, s62, 10')
        a(f'v_lshl_add_u32 v{V_OFF}, v{V_LANE}, 4, s62')
        for i in range((cfg.apf * 64 + 23) // 24):
            a(f's_waitcnt vmcnt({cfg.Lp - 1})')
            a(f's_mov_b32 s61, {i * 24 * 1024}')
            a(f'buffer_load_dwordx4 {vr(V_B + 4*(i%8),4)}, v{V_OFF}, s[{SRD_W}:{SRD_W+3}], s61 offen')
        a('s_waitcnt vmcnt(0)')
    if 'V' in cfg.tlb: touch(P_AV, V_Y + 2)
    if 'L' in cfg.tlb:
        a(f's_cmp_lg_u32 s{S_K}, 3\ns_cbranch_scc1 L_A_tl')
        lds_spin(a, 'A_tw', V_T0, V_ZERO, L_PROG, cfg.tat, 32)
        a.label('L_A_tl')
        touch(P_AV, V_Y + 3)
    if cfg.tlb: a('s_waitcnt vmcnt(0)')
    if cfg.fine: stamp(a, cfg, 4)
    a(f's_mov_b32 s60, s{S_P}')
    a(f's_cmp_lg_u32 s{S_K}, 0\ns_cbranch_scc1 L_A_nostat')
    if qc:
        a(f's_cmp_lg_u32 s{S_QOK}, 0\ns_cbranch_scc1 L_A_qdone')
        if 'C' in cfg.roles: tag_poll(a, 'Aq', V_TMP, V_T0, SRD_X, cfg.qsleep)
        q_to_lds()
        a.label('L_A_qdone')
    if cfg.tag and not cfg.clr0:
        clear_rows()
    lds_spin(a, 'A_hs', V_T0, V_ZERO, L_FLAGS, 4, 16)
    if cfg.tag: a('s_waitcnt vmcnt(0)')
    elif 'W' in cfg.roles: poll(a, CNT_Q, 32, V_T0, V_ZERO, 'A_q')
    a(f'v_and_b32 v{V_T0}, 1, v{V_LANE}')
    a(f'v_lshlrev_b32 v{V_T1}, 4, v{V_T0}')
    m, l = V_TMP, V_TMP + 4
    a(f'ds_read_b128 {vr(m,4)}, v{V_T1} offset:{L_STAT}')
    a(f'ds_read_b128 {vr(l,4)}, v{V_T1} offset:{L_STAT + 32}')
    a(f'v_lshlrev_b32 v{V_T0}, {12 if cfg.tag else 11}, v{V_T0}')
    a(f's_lshl_b32 s63, s60, {4 if cfg.tag else 3}\ns_add_u32 s63, s63, {WS_YSTAT:#x}')
    a(f'v_add_u32 v{V_T0}, s63, v{V_T0}')
    if 'y' in cfg.fl:
        a(f's_lshl_b32 s63, s60, 7\ns_add_u32 s63, s63, {WS_YST2:#x}')
        spread(a, 's', 63, S_H, 62)
        a(f'v_lshl_add_u32 v{V_T0}, v{V_LANE}, 4, s63')
    a('s_waitcnt lgkmcnt(0)')
    M, L = V_TMP + 8, V_TMP + (10 if cfg.tag else 9)
    a(f'v_max3_f32 v{M}, v{m}, v{m+1}, v{m+2}')
    a(f'v_max_f32 v{M}, v{M}, v{m+3}')
    for k in range(4): a(f'v_sub_f32 v{m+k}, v{m+k}, v{M}')
    for k in range(4): a(f'v_exp_f32 v{m+k}, v{m+k}')
    a('s_nop 0')
    a(f'v_mul_f32 v{L}, v{m}, v{l}')
    for k in range(1, 4): a(f'v_fma_f32 v{L}, v{m+k}, v{l+k}, v{L}')
    if cfg.tag:
        a(f'v_mov_b32 v{M+1}, s{S_TAG}\nv_mov_b32 v{M+3}, s{S_TAG}')
        a(f's_mov_b64 exec, {0xff if "y" in cfg.fl else 3}')
        a(f'global_store_dwordx4 v{V_T0}, {vr(M,4)}, s[{P_WS}:{P_WS+1}] sc1' + snt('a'))
    else:
        a(f'v_min_u32 v{M}, 0xfffffffe, v{M}')
        a(f'v_min_u32 v{L}, 0xfffffffe, v{L}')
        a('s_mov_b64 exec, 3')
        a(f'global_store_dwordx2 v{V_T0}, {vr(M,2)}, s[{P_WS}:{P_WS+1}] sc1')
    a('s_mov_b64 exec, -1')
    a.label('L_A_nostat')
    if cfg.mon: monitor(a, cfg, S_K, V_ZERO, V_TMP)
    if cfg.smf: return tail_sparse(a, cfg, locals())
    a(f'v_and_b32 v{V_T0}, 7, v{V_C}')
    a(f'v_mul_u32_u24 v{V_T0}, {OB_RS}, v{V_T0}')
    a(f'v_lshl_add_u32 v{V_T0}, v{V_G}, 4, v{V_T0}')
    a(f'v_lshlrev_b32 v{V_T1}, 18, v{V_G}')
    a(f'v_lshl_add_u32 v{V_T1}, v{V_C}, 4, v{V_T1}')
    a(f's_lshl_b32 s63, s60, 10\ns_lshl_b32 s62, s{S_K}, 8\ns_add_u32 s63, s63, s62\ns_add_u32 s63, s63, {WS_YA:#x}')
    spread(a, 'y', 63, S_H, 62)
    a(f'v_add_u32 v{V_T1}, s63, v{V_T1}')
    if cfg.fine: stamp(a, cfg, 5)
    a('s_barrier')
    for s in range(4): a(f'ds_read_b128 {vr(V_X+4*s,4)}, v{V_T0} offset:{L_OB + 64*s}')
    def red(cb):
        d = V_B + 4 * cb
        a(f'v_add_f32 v{d}, v{d}, v{d+1}')
        a(f'v_add_f32 v{d+2}, v{d+2}, v{d+3}')
        a(f'v_add_f32 v{d}, v{d}, v{d+2}')
    def pack(cp):
        a(f'v_cvt_pk_bf16_f32 v{V_Y+cp}, v{V_B + 8*cp}, v{V_B + 8*cp + 4}')
        a(f'v_min_u32 v{V_Y+cp}, 0xfffffffe, v{V_Y+cp}')
    for cp in range(4):
        for s in range(4):
            if cp == 0: a(f's_waitcnt lgkmcnt({3-s})')
            for cb in (2*cp, 2*cp + 1):
                d = V_B + 4 * cb
                c = '0' if s == 0 else vr(d, 4)
                a(f'v_mfma_f32_16x16x32_bf16 {vr(d,4)}, {vr(V_X+4*s,4)}, {vr(V_W + 32*s + 4*cb,4)}, {c}')
        if cp > 0: red(2*cp - 2); red(2*cp - 1); pack(cp - 1)
    a.nop(1)
    red(6); red(7); pack(3)
    a('s_mov_b32 exec_hi, 0')
    a(f'global_store_dwordx4 v{V_T1}, {vr(V_Y,4)}, s[{P_WS}:{P_WS+1}] {cfg.ypol.replace("+", " ")}')
    helper_end(a, cfg)

def tail_sparse(a, cfg, R):
    V_T0, V_T1, V_X, V_W, V_B, V_Y, V_A, S_K = [R[n] for n in ('V_T0', 'V_T1', 'V_X', 'V_W', 'V_B', 'V_Y', 'V_A', 'S_K')]
    a(f'v_mul_u32_u24 v{V_T0}, {SP_RS}, v{V_C}')
    a(f'v_lshl_add_u32 v{V_T0}, v{V_G}, 4, v{V_T0}')
    a(f'v_and_b32 v{V_A}, 1, v{V_C}')
    a(f'v_mul_u32_u24 v{V_A}, 0xaaaa, v{V_A}')
    a(f'v_add_u32 v{V_A}, 0x4444, v{V_A}')
    a(f'v_lshrrev_b32 v{V_T1}, 1, v{V_G}')
    a(f'v_lshlrev_b32 v{V_T1}, 18, v{V_T1}')
    a(f'v_and_b32 v{V_A+1}, 31, v{V_LANE}')
    a(f'v_lshl_add_u32 v{V_T1}, v{V_A+1}, 3, v{V_T1}')
    a(f's_lshl_b32 s63, s60, 10\ns_lshl_b32 s62, s{S_K}, 8\ns_add_u32 s63, s63, s62\ns_add_u32 s63, s63, {WS_YA:#x}')
    spread(a, 'y', 63, S_H, 62)
    a(f'v_add_u32 v{V_T1}, s63, v{V_T1}')
    if cfg.fine: stamp(a, cfg, 5)
    a('s_barrier')
    for s in range(2): a(f'ds_read_b128 {vr(V_X+4*s,4)}, v{V_T0} offset:{L_OB + 64*s}')
    D = lambda cb: V_B + 4 * cb
    def smf(cb, s): a(f'v_smfmac_f32_16x16x64_bf16 {vr(D(cb),4)}, {vr(V_X+4*s,4)}, {vr(V_W + 64*s + 8*cb,8)}, v{V_A}')
    def pk(cb): a(f'v_pk_add_f32 {vr(D(cb),2)}, {vr(D(cb),2)}, {vr(D(cb)+2,2)}')
    def ad(cb): a(f'v_add_f32 v{D(cb)}, v{D(cb)}, v{D(cb)+1}')
    def sw(i): a(f'v_permlane16_swap_b32 v{D(i)}, v{D(i+4)}')
    def rs(i): a(f'v_add_f32 v{D(i)}, v{D(i)}, v{D(i+4)}')
    def cv(j): a(f'v_cvt_pk_bf16_f32 v{V_Y+j}, v{D(2*j)}, v{D(2*j+1)}')
    def mn(j): a(f'v_min_u32 v{V_Y+j}, 0xfffffffe, v{V_Y+j}')
    a('s_waitcnt lgkmcnt(1)')
    smf(0, 0); smf(4, 0)
    a('s_waitcnt lgkmcnt(0)')
    smf(0, 1); smf(4, 1)
    for i in (1, 2, 3):
        for s in range(2): smf(i, s); smf(i + 4, s)
    pk(0); pk(4); ad(0); ad(4); pk(1); pk(5); sw(0); ad(1); ad(5); pk(2); pk(6); rs(0); sw(1)
    ad(2); ad(6); rs(1); pk(3); pk(7); sw(2); ad(3); ad(7); cv(0); rs(2); sw(3); mn(0); rs(3); cv(1); mn(1)
    a(f'global_store_dwordx2 v{V_T1}, {vr(V_Y,2)}, s[{P_WS}:{P_WS+1}] {cfg.ypol.replace("+", " ")}')
    helper_end(a, cfg)

def helper_end(a, cfg):
    stamp(a, cfg, 3)
    if cfg.aend: span_mark(a, cfg, True, 4)
    lite_end(a, cfg, 4, 3)
    if cfg.lite and cfg.mon:
        a(f's_cmp_lg_u32 s{S_W}, 5\ns_cbranch_scc1 L_A_nomst')
        a(f's_lshl_b32 s92, s2, 9\ns_add_u32 s92, s92, {WS_STAMP + 6*64:#x}')
        a('v_mov_b32 v250, s92\nv_mov_b32 v252, s98\nv_mov_b32 v253, s99')
        a('s_mov_b64 exec, 1')
        a(f'global_store_dwordx2 v250, v[252:253], s[{P_WS}:{P_WS+1}] nt')
        a.label('L_A_nomst')
    a('s_endpgm')
```

```python
from asmlib import vr, sr
import gen as G
from gen import *
import role_a4

def col_finish(a, ACC, tmp, L_RED, nw, out_col, tag, perm=False):
    for k in range(4):
        pass
    a.nop(2)
    for k in range(4):
        a(f'v_add_f32_dpp v{ACC+k}, v{ACC+k}, v{ACC+k} row_ror:8 row_mask:0xf bank_mask:0xf')
    for st in (16, 32):
        for k in range(4):
            a(f'v_mov_b32 v{tmp+k}, v{ACC+k}')
        a.nop(2)
        for k in range(4):
            a(f'v_permlane{st}_swap_b32 v{ACC+k}, v{tmp+k}')
        a.nop(1)
        for k in range(4):
            a(f'v_add_f32 v{ACC+k}, v{ACC+k}, v{tmp+k}')
    a(f'v_lshlrev_b32 v{tmp}, 4, v{V_LANE}')
    a(f's_lshl_b32 s63, s{S_W}, 7')
    a(f'v_add_u32 v{tmp}, s63, v{tmp}')
    a('s_mov_b64 exec, 0xff')
    a(f'ds_write_b128 v{tmp}, {vr(ACC,4)} offset:{L_RED}')
    a('s_mov_b64 exec, -1')
    a('s_waitcnt lgkmcnt(0)\ns_barrier')
    a(f's_cmp_lg_u32 s{S_W}, 0\ns_cbranch_scc1 L_{tag}_fin')
    a(f'v_lshlrev_b32 v{tmp}, 2, v{V_LANE}')
    a('s_mov_b32 exec_hi, 0')
    for w in range(nw):
        a(f'ds_read_b32 v{tmp+1+w}, v{tmp} offset:{L_RED + 128*w}')
    a('s_waitcnt lgkmcnt(0)')
    for w in range(1, nw):
        a(f'v_add_f32 v{tmp+1}, v{tmp+1}, v{tmp+1+w}')
    a(f'v_cvt_pk_bf16_f32 v{tmp+1}, v{tmp+1}, v{tmp+1}')
    a(f's_lshr_b32 s62, s{S_H}, 4\ns_lshl_b32 s62, s62, 11')
    a(f's_and_b32 s63, s{S_H}, 15\ns_lshl_b32 s63, s63, 6')
    a(f's_add_u32 s62, s62, s63\ns_add_u32 s62, s62, {out_col*2}')
    if perm:
        a(f's_lshr_b32 s62, s{S_H}, 4\ns_lshl_b32 s62, s62, 11')
        a(f's_bfe_u32 s63, s{S_H}, 0x20002\ns_lshl_b32 s63, s63, 8\ns_add_u32 s62, s62, s63')
        a(f's_and_b32 s63, s{S_H}, 1\ns_lshl_b32 s63, s63, 7\ns_add_u32 s62, s62, s63')
        a(f's_and_b32 s63, s{S_H}, 2\ns_lshl_b32 s63, s63, 2\ns_add_u32 s62, s62, s63')
        a(f'v_and_b32 v{tmp}, 28, v{V_LANE}')
        a(f'v_add_u32 v{tmp}, v{tmp}, v{V_LANE}')
        a(f'v_lshl_add_u32 v{tmp}, v{tmp}, 1, s62')
    else: a(f'v_lshl_add_u32 v{tmp}, v{V_LANE}, 1, s62')
    a(f'global_store_short v{tmp}, v{tmp+1}, s[{P_OUT}:{P_OUT+1}] {G.CFG.opol.replace("+", " ")}')
    a('s_mov_b64 exec, -1')
    a.label(f'L_{tag}_fin')

CF_RS = 48
def col_fast_prep(a, cfg, VL, VO, tmp, vz):
    a(f'v_and_b32 v{tmp}, 7, v{V_LANE}')
    a(f'v_lshl_add_u32 v{VL}, v{V_G}, 3, v{tmp}')
    a(f'v_mul_u32_u24 v{VL}, {CF_RS}, v{VL}')
    a(f'ds_write_b32 v{VL}, v{vz} offset:32')
    a(f's_lshr_b32 s62, s{S_H}, 4\ns_lshl_b32 s62, s62, 11')
    if cfg.smf:
        a(f's_bfe_u32 s63, s{S_H}, 0x20002\ns_lshl_b32 s63, s63, 8\ns_add_u32 s62, s62, s63')
        a(f's_and_b32 s63, s{S_H}, 1\ns_lshl_b32 s63, s63, 7\ns_add_u32 s62, s62, s63')
        a(f's_and_b32 s63, s{S_H}, 2\ns_lshl_b32 s63, s63, 2\ns_add_u32 s62, s62, s63')
    else: a(f's_and_b32 s63, s{S_H}, 15\ns_lshl_b32 s63, s63, 6\ns_add_u32 s62, s62, s63')
    a(f'v_lshl_add_u32 v{VO}, v{tmp}, {3 if cfg.smf else 2}, v{V_G}')
    a(f'v_lshl_add_u32 v{VO}, v{VO}, 1, s62')
    a(f's_lshl_b32 s63, s{S_W}, 2')
    a(f'v_add_u32 v{VL+1}, s63, v{VL}')
    a(f'v_mov_b32 v{VL+2}, 1')

def col_fast(a, cfg, ACC, VL, VO, tmp):
    a.nop(2)
    a(f'v_permlane16_swap_b32 v{ACC}, v{ACC+1}')
    a(f'v_permlane16_swap_b32 v{ACC+2}, v{ACC+3}')
    a(f'v_add_f32 v{ACC}, v{ACC}, v{ACC+1}')
    a(f'v_add_f32 v{ACC+2}, v{ACC+2}, v{ACC+3}')
    a.nop(2)
    a(f'v_permlane32_swap_b32 v{ACC}, v{ACC+2}')
    a.nop(1)
    a(f'v_add_f32 v{ACC}, v{ACC}, v{ACC+2}')
    a.nop(2)
    a(f'v_add_f32_dpp v{ACC}, v{ACC}, v{ACC} row_ror:8 row_mask:0xf bank_mask:0xf')
    a('s_mov_b32 exec_lo, 0x00ff00ff\ns_mov_b32 exec_hi, 0x00ff00ff')
    a(f'ds_write_b32 v{VL+1}, v{ACC}')
    a(f'ds_add_rtn_u32 v{tmp+8}, v{VL}, v{VL+2} offset:32')
    a(f'ds_read_b128 {vr(tmp,4)}, v{VL}')
    a(f'ds_read_b128 {vr(tmp+4,4)}, v{VL} offset:16')
    a('s_waitcnt lgkmcnt(2)')
    a(f'v_cmp_eq_u32 vcc, 7, v{tmp+8}')
    a('s_waitcnt lgkmcnt(0)')
    a(f'v_pk_add_f32 {vr(tmp,2)}, {vr(tmp,2)}, {vr(tmp+2,2)}')
    a(f'v_pk_add_f32 {vr(tmp+4,2)}, {vr(tmp+4,2)}, {vr(tmp+6,2)}')
    a('s_and_b64 exec, exec, vcc')
    a('s_cbranch_scc1 L_W_last')
    a('s_endpgm')
    a.label('L_W_last')
    a(f'v_pk_add_f32 {vr(tmp,2)}, {vr(tmp,2)}, {vr(tmp+4,2)}')
    a(f'v_add_f32 v{tmp}, v{tmp}, v{tmp+1}')
    a(f'v_cvt_pk_bf16_f32 v{tmp}, v{tmp}, v{tmp}')
    a(f'global_store_short v{VO}, v{tmp}, s[{P_OUT}:{P_OUT+1}] {cfg.opol.replace("+", " ")}')
    a(f's_andn2_b32 s{S_W}, 1, vcc_lo')
    a('s_mov_b64 exec, -1')

def role_W(a, cfg):
    L_QP, L_QB, L_CT, L_RED, L_YB = 0, 8192, 9216, 17408, 18432
    L_CC = L_YB
    SRD_0, SRD_1, SRD_X, SRD_WS = 40, 44, 48, 52
    V_ZERO, V_OFF0, V_OFF1 = 8, 9, 10
    V_X, V_Q, V_A, V_Y, V_T = 12, 20, 28, 44, 60
    V_W0, V_W1, V_TMP = 64, 128, 192
    a.label('L_roleW')
    late_entry(a, cfg)
    stamp(a, cfg, 0)
    if cfg.tag: load_tag(a)
    a(f'v_mov_b32 v{V_ZERO}, 0')
    srd(a, SRD_WS, P_WS, nrec=0x4000000)
    V_NONCE = 11
    use_nonce = cfg.qmode == 'dist'
    if use_nonce:
        a(f'v_mov_b32 v{V_TMP}, {WS_NONCE:#x}')
        a(f'buffer_load_dword v{V_NONCE}, v{V_TMP}, s[{SRD_WS}:{SRD_WS+3}], 0 offen')
    a(f's_lshl_b32 s60, s{S_HP}, 8')
    a(f's_sub_u32 s61, {512*8192:#x}, s60')
    srd(a, SRD_0, P_BWQ, off_s=60, nrec_s=61)
    srd(a, SRD_1, P_BWUK, off_s=60, nrec_s=61)
    srd(a, SRD_X, P_BX, nrec=2048)
    a(f'v_lshrrev_b32 v{V_TMP}, 3, v{V_C}')
    a(f'v_lshlrev_b32 v{V_TMP}, 10, v{V_TMP}')
    a(f'v_lshl_add_u32 v{V_TMP}, v{V_G}, 5, v{V_TMP}')
    a(f's_lshl_b32 s62, s{S_W}, 7')
    a(f'v_add_u32 v{V_TMP}, s62, v{V_TMP}')
    a(f'buffer_load_dwordx4 {vr(V_X,4)}, v{V_TMP}, s[{SRD_X}:{SRD_X+3}], 0 offen')
    a(f'buffer_load_dwordx4 {vr(V_X+4,4)}, v{V_TMP}, s[{SRD_X}:{SRD_X+3}], 0 offen offset:16')
    rows_voff(a, V_OFF0)
    slice_loads(a, SRD_0, V_OFF0, V_W0, cfg.bpol, 'rows', cfg.wthr0)
    if cfg.ctl:
        a(f'ds_write_b32 v{V_ZERO}, v{V_ZERO} offset:9000')
        a('s_waitcnt lgkmcnt(0)')
    a('s_barrier')
    a('s_waitcnt vmcnt(16)')
    def wuk_load(s_):
        if cfg.wthr1: a(f's_waitcnt vmcnt({cfg.wthr1 - 1})')
        a(f's_mov_b32 s62, {s_*(256 if cfg.fake else 8192)}')
        a(f'buffer_load_dwordx4 {vr(V_W1+4*s_,4)}, v{V_OFF0}, s[{SRD_1}:{SRD_1+3}], s62 offen {cfg.bpol}')
    rowcomb(a, cfg, V_X, V_W0, V_Y, V_A, V_TMP, 0, after=wuk_load)
    if not cfg.tag:
        for k in range(4): a(f'v_mov_b32 v{V_TMP+4+k}, -1')
        a(f's_cmp_ge_u32 s{S_W}, {0 if cfg.noclr else 6}\ns_cbranch_scc1 L_W_noclr')
        a(f's_lshl_b32 s62, s{S_H}, 13\ns_add_u32 s62, s62, {WS_YA:#x}')
        a(f'v_lshl_add_u32 v{V_TMP}, v0, 4, s62')
        a(f's_mov_b32 s62, {1 << 18:#x}')
        a(f'buffer_store_dwordx4 {vr(V_TMP+4,4)}, v{V_TMP}, s[{SRD_WS}:{SRD_WS+3}], 0 offen sc1')
        a(f'buffer_store_dwordx4 {vr(V_TMP+4,4)}, v{V_TMP}, s[{SRD_WS}:{SRD_WS+3}], s62 offen sc1')
        a.label('L_W_noclr')
        if cfg.ybs:
            a(f's_cmp_lt_u32 s{S_W}, 4\ns_cbranch_scc1 L_W_noybc')
            a(f'v_bfe_u32 v{V_TMP}, v0, 7, 1')
            a(f'v_lshlrev_b32 v{V_TMP}, 16, v{V_TMP}')
            a(f'v_and_b32 v{V_TMP+1}, 127, v0')
            a(f'v_lshl_add_u32 v{V_TMP}, v{V_TMP+1}, 4, v{V_TMP}')
            a(f's_lshl_b32 s62, s{S_H}, 11\ns_add_u32 s62, s62, {WS_YB:#x}')
            a(f'v_add_u32 v{V_TMP}, s62, v{V_TMP}')
            a(f'buffer_store_dwordx4 {vr(V_TMP+4,4)}, v{V_TMP}, s[{SRD_WS}:{SRD_WS+3}], 0 offen sc1')
            a.label('L_W_noybc')
        a(f's_cmp_lg_u32 s{S_W}, 0\ns_cbranch_scc1 L_W_nostat')
        a(f'v_lshrrev_b32 v{V_TMP}, 2, v{V_LANE}')
        a(f'v_lshlrev_b32 v{V_TMP}, 11, v{V_TMP}')
        a(f'v_and_b32 v{V_TMP+1}, 3, v{V_LANE}')
        a(f'v_lshl_add_u32 v{V_TMP}, v{V_TMP+1}, 4, v{V_TMP}')
        a(f's_lshl_b32 s62, s{S_H}, 6\ns_add_u32 s62, s62, {WS_YSTAT:#x}')
        a(f'v_add_u32 v{V_TMP}, s62, v{V_TMP}')
        a('s_mov_b64 exec, 0xff')
        a(f'buffer_store_dwordx4 {vr(V_TMP+4,4)}, v{V_TMP}, s[{SRD_WS}:{SRD_WS+3}], 0 offen sc1')
        a('s_mov_b64 exec, -1')
        a.label('L_W_nostat')
        if cfg.ctl:
            a(f's_cmp_lg_u32 s{S_W}, 2\ns_cbranch_scc1 L_W_noprg')
            a(f's_lshl_b32 s62, s{S_H}, 10\ns_add_u32 s62, s62, {WS_PROG:#x}')
            a(f'v_lshl_add_u32 v{V_TMP}, v{V_LANE}, 7, s62')
            a(f's_lshl_b32 s62, s{S_H}, 7\ns_add_u32 s62, s62, {WS_MEAN:#x}')
            a(f'v_mov_b32 v{V_TMP+1}, s62')
            a('s_mov_b64 exec, 0xff')
            a(f'buffer_store_dword v{V_ZERO}, v{V_TMP}, s[{SRD_WS}:{SRD_WS+3}], 0 offen sc1')
            a('s_mov_b64 exec, 1')
            a(f'buffer_store_dword v{V_ZERO}, v{V_TMP+1}, s[{SRD_WS}:{SRD_WS+3}], 0 offen sc1')
            a('s_mov_b64 exec, -1')
            a.label('L_W_noprg')
        if cfg.hyb:
            a(f's_cmp_lg_u32 s{S_W}, 1\ns_cbranch_scc1 L_W_noctr')
            a(f's_lshl_b32 s62, s{S_H}, 7\ns_add_u32 s62, s62, {WS_CTR:#x}')
            a(f'v_lshl_add_u32 v{V_TMP}, v{V_LANE}, 12, s62')
            a('s_mov_b64 exec, 3')
            a(f'buffer_store_dword v{V_ZERO}, v{V_TMP}, s[{SRD_WS}:{SRD_WS+3}], 0 offen sc1')
            a('s_mov_b64 exec, -1')
            a.label('L_W_noctr')
    a('s_nop 1')
    q_reduce(a, V_Y, V_TMP, L_QP, L_QB, 'W')
    if cfg.tag: get_tag(a)
    a(f'v_lshlrev_b32 v{V_TMP+2}, 4, v{V_C}')
    a(f'ds_read_b128 {vr(V_Q,4)}, v{V_TMP+2} offset:{L_QB}')
    a(f'ds_read_b128 {vr(V_Q+4,4)}, v{V_TMP+2} offset:{L_QB+256}')
    stamp(a, cfg, 1)
    R0, R1 = V_TMP + 8, V_TMP + 9
    a(f'v_mov_b32 v{R0}, 0\nv_mov_b32 v{R1}, 0')
    a('s_waitcnt lgkmcnt(0)')
    for i in range(0, 16, 2):
        a(f's_waitcnt vmcnt({14 - i})')
        T = [V_T + n for n in range(4)]
        for k in range(4):
            for n in range(4):
                wreg = V_W1 + 4*(i + n//2) + k
                q = V_Q + 4*(n % 2) + k
                c = '0' if k == 0 else f'v{T[n]}'
                a(f'v_dot2_f32_bf16 v{T[n]}, v{wreg}, v{q}, {c}')
        for st in (8, 4, 2, 1):
            for n in range(4):
                a(f'v_add_f32_dpp v{T[n]}, v{T[n]}, v{T[n]} row_ror:{st} row_mask:0xf bank_mask:0xf')
        for n in range(4):
            if n % 2 == 0:
                a(f'v_cmp_eq_u32 vcc, {i + n//2}, v{V_C}')
                a('s_nop 1')
            r = R0 if n % 2 == 0 else R1
            a(f'v_cndmask_b32 v{r}, v{r}, v{T[n]}, vcc')
    a(f'v_cvt_pk_bf16_f32 v{R0}, v{R0}, v{R0}')
    a(f'v_cvt_pk_bf16_f32 v{R1}, v{R1}, v{R1}')
    a(f's_lshl_b32 s62, s{S_H}, 10\ns_lshl_b32 s63, s{S_W}, 7\ns_add_u32 s62, s62, s63')
    a(f's_add_u32 s62, s62, {WS_QABS:#x}')
    a(f'v_lshl_add_u32 v{V_TMP}, v{V_LANE}, 1, s62')
    a(f'buffer_store_short v{R0}, v{V_TMP}, s[{SRD_WS}:{SRD_WS+3}], 0 offen sc1')
    a(f's_mov_b32 s62, {32*1024}')
    a(f'buffer_store_short v{R1}, v{V_TMP}, s[{SRD_WS}:{SRD_WS+3}], s62 offen sc1')
    if cfg.tag and 'q' in cfg.fl:
        a(f's_lshl_b32 s62, s{S_H}, 8\ns_add_u32 s62, s62, {WS_MBOX:#x}')
        a(f'v_lshl_add_u32 v{V_TMP}, v{V_LANE}, 2, s62')
        a(f'v_mov_b32 v{V_TMP+1}, s{S_TAG}')
        a('s_waitcnt vmcnt(0)\ns_barrier')
        a(f's_cmp_lg_u32 s{S_W}, 0\ns_cbranch_scc1 L_sig_Wq')
        a('s_mov_b32 exec_hi, 0')
        a(f'buffer_store_dword v{V_TMP+1}, v{V_TMP}, s[{SRD_WS}:{SRD_WS+3}], 0 offen sc1')
        a('s_mov_b64 exec, -1')
        a.label('L_sig_Wq')
    elif cfg.tag:
        a(f's_lshl_b32 s62, s{S_H}, 2\ns_add_u32 s62, s62, {WS_MBOX:#x}')
        a(f'v_lshl_add_u32 v{V_TMP}, v{V_LANE}, 8, s62')
        a(f'v_mov_b32 v{V_TMP+1}, s{S_TAG}')
        a('s_waitcnt vmcnt(0)\ns_barrier')
        a(f's_cmp_lg_u32 s{S_W}, 0\ns_cbranch_scc1 L_sig_Wq')
        a('s_mov_b32 exec_hi, 0')
        a(f'buffer_store_dword v{V_TMP+1}, v{V_TMP}, s[{SRD_WS}:{SRD_WS+3}], 0 offen sc1')
        a('s_mov_b64 exec, -1')
        a.label('L_sig_Wq')
    else: signal(a, CNT_Q, V_ZERO, V_TMP, 'Wq')
    stamp(a, cfg, 2)
    if cfg.wstop == 1: a('s_endpgm'); return
    a(f's_lshl_b32 s60, s{S_HP}, 8')
    a(f's_sub_u32 s61, {512*8192:#x}, s60')
    srd(a, SRD_0, P_BWUV, off_s=60, nrec_s=61)
    a(f's_lshl_b32 s60, s{S_HP}, 17\ns_mov_b32 s61, {128*1024:#x}')
    srd(a, SRD_1, P_BWO, off_s=60, nrec_s=61)
    wo_voff(a, V_OFF1)
    if cfg.ctl:
        L_WFLAG = 9000
        a(f's_cmp_lg_u32 s{S_W}, 1\ns_cbranch_scc1 L_W_nomon')
        a(f's_cmp_lg_u32 s{S_H}, 0\ns_cbranch_scc1 L_W_nomon')
        slice_loads(a, SRD_0, V_OFF0, V_W0, cfg.bpol, 'rows', 0)
        slice_loads(a, SRD_1, V_OFF1, V_W1, cfg.bpol, 'wo', 0)
        poll(a, CNT_Q, 32, V_TMP, V_ZERO, 'Wm')
        a(f'v_lshlrev_b32 v{V_TMP}, 7, v{V_LANE}')
        a(f'v_add_u32 v{V_TMP}, {WS_PROG:#x}, v{V_TMP}')
        a(f'v_lshlrev_b32 v{V_TMP+1}, 7, v{V_LANE}')
        a(f'v_add_u32 v{V_TMP+1}, {WS_MEAN:#x}, v{V_TMP+1}')
        a('s_mov_b32 s66, 0')
        a.label('L_W_mon')
        for k in range(4):
            a(f's_mov_b32 s62, {k*8192}')
            a(f'buffer_load_dword v{V_TMP+4+k}, v{V_TMP}, s[{SRD_WS}:{SRD_WS+3}], s62 offen sc1')
        a(f'ds_read_b32 v{V_TMP+2}, v{V_ZERO} offset:{L_WFLAG}')
        a('s_waitcnt vmcnt(0) lgkmcnt(0)')
        a(f'v_add3_u32 v{V_TMP+4}, v{V_TMP+4}, v{V_TMP+5}, v{V_TMP+6}')
        a(f'v_add_u32 v{V_TMP+4}, v{V_TMP+4}, v{V_TMP+7}')
        for st in (1, 2, 4, 8):
            a.nop(2)
            a(f'v_add_u32_dpp v{V_TMP+4}, v{V_TMP+4}, v{V_TMP+4} row_ror:{st} row_mask:0xf bank_mask:0xf')
        a.nop(2)
        a(f'v_add_u32_dpp v{V_TMP+4}, v{V_TMP+4}, v{V_TMP+4} row_bcast:15 row_mask:0xa bank_mask:0xf')
        a.nop(2)
        a(f'v_add_u32_dpp v{V_TMP+4}, v{V_TMP+4}, v{V_TMP+4} row_bcast:31 row_mask:0xc bank_mask:0xf')
        a.nop(1)
        a(f'v_readlane_b32 s62, v{V_TMP+4}, 63')
        a(f'v_readfirstlane_b32 s63, v{V_TMP+2}')
        a('s_nop 1')
        a(f'v_mov_b32 v{V_TMP+3}, s62')
        a('s_mov_b32 exec_hi, 0')
        a(f'buffer_store_dword v{V_TMP+3}, v{V_TMP+1}, s[{SRD_WS}:{SRD_WS+3}], 0 offen sc1')
        a('s_mov_b64 exec, -1')
        a('s_cmp_lg_u32 s63, 0\ns_cbranch_scc1 L_W_monx')
        a(f's_sleep {cfg.msleep}')
        a('s_add_u32 s66, s66, 1')
        a(f's_cmp_lt_u32 s66, {SPIN_LIMIT}\ns_cbranch_scc1 L_W_mon')
        a('s_branch L_W_monx')
        a.label('L_W_nomon')
    slice_loads(a, SRD_0, V_OFF0, V_W0, cfg.bpol, 'rows', cfg.wthr)
    slice_loads(a, SRD_1, V_OFF1, V_W1, cfg.bpol, 'wo', cfg.wthr)
    if cfg.ctl: a.label('L_W_monx')
    if cfg.cpf2:
        a(f's_cmp_lg_u32 s{S_W}, 7\ns_cbranch_scc1 L_W_nopf')
        code_prefetch(a, 'W', V_TMP, V_TMP + 4, 'L_A_loopb', cfg.cpf2_kb)
        a.label('L_W_nopf')
    if '1' in cfg.ct:
        code_touch(a, 'W1', 5, 244)
    if cfg.wstop == 2:
        a('s_waitcnt vmcnt(0)'); a('s_endpgm'); return
    if cfg.ctl:
        a(f's_cmp_lg_u32 s{S_W}, 0\ns_cbranch_scc1 L_wc_Wc')
        poll(a, CNT_C, 32, V_TMP, V_ZERO, 'Wc')
        a(f'v_mov_b32 v{V_TMP}, 1')
        a(f'ds_write_b32 v{V_ZERO}, v{V_TMP} offset:9000')
        a('s_waitcnt lgkmcnt(0)')
        a.label('L_wc_Wc')
        a('s_barrier')
    elif cfg.tag:
        if cfg.mon > 1 and 'W' in cfg.ghost:
            a(f's_cmp_lg_u32 s{S_W}, 7\ns_cbranch_scc1 L_W_nogm')
            a(f's_cmp_ge_u32 s{S_H}, 8\ns_cbranch_scc1 L_W_nogm')
            role_a4.exchange(a, cfg, 'W', V_TMP + 8, V_ZERO, L_QB + 512)
            a.label('L_W_nogm')
        if 'W' in cfg.asst:
            a(f's_cmp_lg_u32 s{S_W}, 6\ns_cbranch_scc1 L_W_noas')
            role_a4.assist(a, cfg, 'W', V_TMP + 8, V_ZERO, L_QB + 512)
            a.label('L_W_noas')
        a(f's_cmp_lg_u32 s{S_W}, 0\ns_cbranch_scc1 L_wc_Wc')
        c_ = 'c' in cfg.fl
        a(f's_lshl_b32 s62, s{S_H}, {4 if c_ else 9}\ns_add_u32 s62, s62, {WS_CSTAT:#x}')
        a(f'v_and_b32 v{V_TMP+1}, 31, v{V_LANE}')
        a(f'v_lshl_add_u32 v{V_TMP}, v{V_TMP+1}, {9 if c_ else 4}, s62')
        if c_:
            a(f's_lshl_b64 exec, 1, s{S_H}')
            tag_poll(a, 'Wc0', V_TMP + 4, V_TMP, SRD_WS, cfg.tsleep)
            a('s_mov_b32 exec_lo, -1\ns_mov_b32 exec_hi, 0')
            tag_poll(a, 'Wc', V_TMP + 4, V_TMP, SRD_WS, cfg.tsl2, shrink=True)
            a('s_mov_b32 exec_lo, -1\ns_mov_b32 exec_hi, 0')
        else:
            a('s_mov_b32 exec_hi, 0')
            tag_poll(a, 'Wc', V_TMP + 4, V_TMP, SRD_WS, cfg.tsleep)
        a(f'v_lshlrev_b32 v{V_TMP+1}, 3, v{V_TMP+1}')
        a(f'v_mov_b32 v{V_TMP+5}, v{V_TMP+6}')
        a(f'ds_write_b64 v{V_TMP+1}, {vr(V_TMP+4,2)} offset:{L_QB}')
        if cfg.mon > 1:
            a(f'v_mov_b32 v{V_TMP+7}, s{S_TAG}')
            a(f'ds_write_b32 v{V_ZERO}, v{V_TMP+7} offset:{L_QB + 512}')
        a('s_mov_b64 exec, -1')
        a('s_waitcnt lgkmcnt(0)')
        a.label('L_wc_Wc')
        a('s_barrier')
    else:
        wait_counter(a, CNT_C, 32, V_TMP, V_ZERO, 'Wc')
    stamp(a, cfg, 3)
    if cfg.wstop == 3: a('s_endpgm'); return
    for _ in range(cfg.xdel): a('s_sleep 32')
    S_B, S_Q4 = 35, 36
    a(f's_lshr_b32 s{S_B}, s{S_W}, 2')
    a(f's_and_b32 s{S_Q4}, s{S_W}, 3')
    a(f's_lshl_b32 s62, s{S_B}, 5\ns_add_u32 s62, s62, s{S_H}')
    a(f's_lshl_b32 s63, s62, 7\ns_add_u32 s63, s63, {WS_CSTAT:#x}')
    a(f'v_lshl_add_u32 v{V_TMP}, v{V_C}, 3, s63')
    if cfg.tag:
        a(f's_lshl_b32 s63, s{S_B}, 7')
        a(f'v_lshl_add_u32 v{V_TMP}, v{V_C}, 3, s63')
        a(f'ds_read_b64 {vr(V_TMP+2,2)}, v{V_TMP} offset:{L_QB}')
    else: a(f'buffer_load_dwordx2 {vr(V_TMP+2,2)}, v{V_TMP}, s[{SRD_WS}:{SRD_WS+3}], 0 offen sc1')
    a(f's_lshl_b32 s63, s62, 14\ns_add_u32 s63, s63, {WS_CPART:#x}')
    a(f's_lshl_b32 s64, s{S_Q4}, 12\ns_add_u32 s63, s63, s64')
    if 'c' in cfg.csp: a(f's_and_b32 s64, s{S_Q4}, 1\ns_lshl_b32 s64, s64, 25\ns_add_u32 s63, s63, s64')
    a(f'v_lshl_add_u32 v{V_TMP+1}, v{V_LANE}, 4, s63')
    PT = V_TMP + 8
    for kk in range(4):
        if 'l' in cfg.xs and kk: a('s_waitcnt vmcnt(0)')
        if cfg.emu:
            if kk == 0:
                a(f's_and_b32 s63, s{S_H}, 3\ns_mul_i32 s63, s63, {16384 - 1024}')
                a(f'v_subrev_u32 v{V_TMP+1}, s63, v{V_TMP+1}')
            else: continue
        a(f's_mov_b32 s64, {(kk << 23) if "c" in cfg.csp else 0:#x}')
        a(f'buffer_load_dwordx4 {vr(PT+4*kk,4)}, v{V_TMP+1}, s[{SRD_WS}:{SRD_WS+3}], s64 offen offset:{kk*1024} {cfg.rppol.replace("+", " ")}')
    a('s_waitcnt vmcnt(4) lgkmcnt(0)')
    m, l, M, e = V_TMP + 2, V_TMP + 3, V_TMP + 4, V_TMP + 5
    a(f'v_mov_b32 v{M}, v{m}')
    for st in (8, 4, 2, 1):
        a.nop(2)
        a(f'v_max_f32_dpp v{M}, v{M}, v{M} row_ror:{st} row_mask:0xf bank_mask:0xf')
    a(f'v_sub_f32 v{e}, v{m}, v{M}')
    a(f'v_exp_f32 v{e}, v{e}')
    a('s_nop 0')
    a(f'v_mul_f32 v{l}, v{l}, v{e}')
    for st in (8, 4, 2, 1):
        a.nop(2)
        a(f'v_add_f32_dpp v{l}, v{l}, v{l} row_ror:{st} row_mask:0xf bank_mask:0xf')
    a(f'v_rcp_f32 v{l}, v{l}')
    a('s_nop 0')
    a(f'v_mul_f32 v{e}, v{e}, v{l}')
    a(f's_lshl_b32 s64, s{S_Q4}, 2')
    for kk in range(4):
        a(f's_add_u32 s65, s64, {kk}')
        a(f'v_readlane_b32 s{66+kk}, v{e}, s65')
    ACC = V_TMP + 40
    UP = PT + 16
    for kk in range(4):
        a(f's_waitcnt vmcnt({3-kk})')
        for k in range(4):
            a(f'v_lshlrev_b32 v{UP+2*k}, 16, v{PT+4*kk+k}')
            a(f'v_and_b32 v{UP+2*k+1}, 0xffff0000, v{PT+4*kk+k}')
        for k in range(8):
            if kk == 0: a(f'v_mul_f32 v{ACC+k}, s{66+kk}, v{UP+k}')
            else: a(f'v_fma_f32 v{ACC+k}, v{UP+k}, s{66+kk}, v{ACC+k}')
    if cfg.wstop == 4: a('s_endpgm'); return
    a(f's_lshl_b32 s62, s{S_W}, 11')
    a(f'v_lshl_add_u32 v{V_TMP}, v{V_LANE}, 5, s62')
    a(f'ds_write_b128 v{V_TMP}, {vr(ACC,4)} offset:{L_CC}')
    a(f'ds_write_b128 v{V_TMP}, {vr(ACC+4,4)} offset:{L_CC+16}')
    a('s_waitcnt lgkmcnt(0)\ns_barrier')
    a(f'v_lshrrev_b32 v{V_TMP}, 3, v{V_C}')
    a(f'v_lshlrev_b32 v{V_TMP}, 13, v{V_TMP}')
    a(f'v_lshl_add_u32 v{V_TMP}, v{V_G}, 6, v{V_TMP}')
    a(f's_lshl_b32 s62, s{S_W}, 8')
    a(f'v_add_u32 v{V_TMP}, s62, v{V_TMP}')
    for hf in range(2):
        for q4 in range(4):
            a(f'ds_read_b128 {vr(PT+16*hf+4*q4,4)}, v{V_TMP} offset:{L_CC + 2048*hf + 16*q4}')
    a('s_waitcnt lgkmcnt(0)')
    for i in range(16):
        a(f'v_add_f32 v{PT+i}, v{PT+i}, v{PT+16+i}')
    for hf in range(2, 4):
        for q4 in range(4):
            a(f'ds_read_b128 {vr(PT+16+4*q4,4)}, v{V_TMP} offset:{L_CC + 2048*hf + 16*q4}')
        a('s_waitcnt lgkmcnt(0)')
        for i in range(16):
            a(f'v_add_f32 v{PT+i}, v{PT+i}, v{PT+16+i}')
    for i in range(8):
        a(f'v_cvt_pk_bf16_f32 v{V_X+i}, v{PT+2*i}, v{PT+2*i+1}')
    rowcomb(a, cfg, V_X, V_W0, V_Y, V_A, V_TMP, 63)
    dtile_to_lds(a, V_Y, V_TMP, L_CT, 10, 9, 1)
    a('s_waitcnt lgkmcnt(0)\ns_barrier')
    a(f'v_lshrrev_b32 v{V_TMP}, 3, v{V_C}')
    a(f'v_lshlrev_b32 v{V_TMP}, 9, v{V_TMP}')
    a(f'v_lshl_add_u32 v{V_TMP}, v{V_G}, 4, v{V_TMP}')
    a(f's_lshl_b32 s62, s{S_W}, 6')
    a(f'v_add_u32 v{V_TMP}, s62, v{V_TMP}')
    for w in range(8):
        a(f'ds_read_b128 {vr(PT+4*w,4)}, v{V_TMP} offset:{L_CT + 1024*w}')
    for w in range(1, 8):
        a(f's_waitcnt lgkmcnt({7-w})')
        for k in range(4):
            a(f'v_add_f32 v{PT+k}, v{PT+k}, v{PT+4*w+k}')
    for s_ in range(4):
        a(f'v_cvt_pk_bf16_f32 v{V_T+s_}, v{PT+s_}, v{PT+s_}')
    for s_ in range(4):
        for k in range(4):
            a(f'v_and_b32 v{V_A+4*s_+k}, v{V_T+s_}, v{V_MASK+k}')
    a('s_nop 1')
    for s_ in range(4):
        for cb in range(4):
            c = '0' if s_ == 0 else vr(V_Y+4*cb, 4)
            a(f'v_mfma_f32_16x16x32_bf16 {vr(V_Y+4*cb,4)}, {vr(V_A+4*s_,4)}, {vr(V_W1+16*s_+4*cb,4)}, {c}')
    dtile_to_lds(a, V_Y, V_TMP, L_YB, 12, 11, 4)
    a('s_waitcnt lgkmcnt(0)\ns_barrier')
    a(f's_cmp_ge_u32 s{S_W}, 4\ns_cbranch_scc1 L_W_yskip')
    a(f'v_lshlrev_b32 v{V_TMP}, 4, v0')
    for w in range(8):
        a(f'ds_read_b128 {vr(PT+4*w,4)}, v{V_TMP} offset:{L_YB + 4096*w}')
    a(f'v_lshrrev_b32 v{V_TMP+1}, 7, v0')
    a(f'v_lshlrev_b32 v{V_TMP+1}, 16, v{V_TMP+1}')
    a(f'v_and_b32 v{V_TMP+2}, 127, v0')
    a(f'v_lshl_add_u32 v{V_TMP+1}, v{V_TMP+2}, 4, v{V_TMP+1}')
    a(f's_lshl_b32 s63, s{S_H}, 11\ns_add_u32 s63, s63, {WS_YB:#x}')
    spread(a, 'b', 63, S_H, 62)
    a(f'v_add_u32 v{V_TMP+1}, s63, v{V_TMP+1}')
    for w in range(1, 8):
        a(f's_waitcnt lgkmcnt({7-w})')
        for k in range(4):
            a(f'v_add_f32 v{PT+k}, v{PT+k}, v{PT+4*w+k}')
    if cfg.tag:
        a(f'v_cvt_pk_bf16_f32 v{PT}, v{PT}, v{PT+1}')
        a(f'v_cvt_pk_bf16_f32 v{PT+2}, v{PT+2}, v{PT+3}')
        a(f'v_mov_b32 v{PT+1}, s{S_TAG}\nv_mov_b32 v{PT+3}, s{S_TAG}')
    elif cfg.ybs:
        for k in range(4): a(f'v_min_u32 v{PT+k}, 0xfffffffe, v{PT+k}')
    a(f'buffer_store_dwordx4 {vr(PT,4)}, v{V_TMP+1}, s[{SRD_WS}:{SRD_WS+3}], 0 offen {cfg.ybpol.replace("+", " ")}')
    a.label('L_W_yskip')
    if not cfg.ybs and not cfg.tag: signal(a, CNT_YB, V_ZERO, V_TMP, 'Wyb')
    stamp(a, cfg, 4)
    if cfg.wstop == 5: a('s_endpgm'); return
    if not cfg.ybs and not cfg.tag: wait_counter(a, CNT_YB, 32, V_TMP, V_ZERO, 'Wyb2')
    S_RB, S_SL = 35, 36
    a(f's_lshr_b32 s{S_RB}, s{S_H}, 4\ns_and_b32 s{S_SL}, s{S_H}, 15')
    for k in range(4): a(f'v_mov_b32 v{ACC+k}, 0')
    a(f's_cmp_ge_u32 s{S_W}, 4\ns_cbranch_scc1 L_W_bskip')
    a(f'v_lshrrev_b32 v{V_TMP}, 3, v0')
    a(f'v_lshlrev_b32 v{V_TMP}, 11, v{V_TMP}')
    a(f'v_and_b32 v{V_TMP+1}, 7, v0')
    a(f'v_lshl_add_u32 v{V_TMP}, v{V_TMP+1}, 4, v{V_TMP}')
    a(f's_lshl_b32 s62, s{S_RB}, 16\ns_lshl_b32 s63, s{S_SL}, 7\ns_add_u32 s62, s62, s63')
    a(f's_add_u32 s62, s62, {WS_YB:#x}')
    a(f'v_add_u32 v{V_TMP}, s62, v{V_TMP}')
    if 'b' in cfg.csp:
        a(f'v_bfe_u32 v{V_TMP+1}, v0, 3, 3')
        a(f'v_lshl_add_u32 v{V_TMP}, v{V_TMP+1}, 23, v{V_TMP}')
    if cfg.tag:
        tag_poll(a, 'Wyb', ACC, V_TMP, SRD_WS, cfg.ysleep, shrink='b' in cfg.fl)
        if 'b' in cfg.fl: a('s_mov_b64 exec, -1')
        a(f'v_and_b32 v{ACC+1}, 0xffff0000, v{ACC}')
        a(f'v_lshlrev_b32 v{ACC}, 16, v{ACC}')
        a(f'v_and_b32 v{ACC+3}, 0xffff0000, v{ACC+2}')
        a(f'v_lshlrev_b32 v{ACC+2}, 16, v{ACC+2}')
    if cfg.ybs:
        a('s_mov_b32 s64, 0')
        a.label('L_W_ybp')
    if not cfg.tag:
        a(f'buffer_load_dwordx4 {vr(ACC,4)}, v{V_TMP}, s[{SRD_WS}:{SRD_WS+3}], 0 offen sc1')
        a('s_waitcnt vmcnt(0)')
    if cfg.ybs:
        a(f'v_max3_u32 v{V_TMP+1}, v{ACC}, v{ACC+1}, v{ACC+2}')
        a(f'v_max_u32 v{V_TMP+1}, v{V_TMP+1}, v{ACC+3}')
        a(f'v_cmp_eq_u32 vcc, -1, v{V_TMP+1}')
        a('s_add_u32 s64, s64, 1')
        a('s_nop 0')
        a('s_cmp_eq_u64 vcc, 0\ns_cbranch_scc1 L_W_bskip')
        a(f's_cmp_lt_u32 s64, {SPIN_LIMIT}\ns_cbranch_scc1 L_W_ybp')
    a.label('L_W_bskip')
    V_CFL, V_CFO = 240, 243
    if cfg.cf: col_fast_prep(a, cfg, V_CFL, V_CFO, V_TMP, V_ZERO)
    col_finish(a, ACC, V_TMP, L_RED, 4, 512, 'Wb')
    stamp(a, cfg, 5)
    if cfg.wstop == 6: a('s_endpgm'); return
    if 'A' not in cfg.roles:
        a('s_endpgm'); return
    Y = V_W0
    ST = V_W0 + 16
    YF = V_W0 + 24
    a(f'v_lshrrev_b32 v{V_TMP}, 3, v{V_LANE}')
    a(f's_lshl_b32 s62, s{S_RB}, 8\ns_lshl_b32 s63, s{S_W}, 3\ns_add_u32 s62, s62, s63')
    a(f'v_add_u32 v{V_TMP}, s62, v{V_TMP}')
    a(f'v_lshlrev_b32 v{V_OFF0}, {4 if cfg.tag else 3}, v{V_TMP}')
    a(f'v_add_u32 v{V_OFF0}, {WS_YSTAT:#x}, v{V_OFF0}')
    if 'y' in cfg.fl:
        a(f'v_and_b32 v{V_OFF0}, 255, v{V_TMP}')
        a(f's_lshl_b32 s63, s{S_RB}, 4\ns_add_u32 s63, s63, {WS_YST2:#x}')
        spread(a, 's', 63, S_W, 62)
        a(f'v_lshl_add_u32 v{V_OFF0}, v{V_OFF0}, 7, s63')
    a(f'v_lshlrev_b32 v{V_OFF1}, 10, v{V_TMP}')
    a(f'v_and_b32 v{V_TMP+1}, 7, v{V_LANE}')
    a(f'v_lshl_add_u32 v{V_OFF1}, v{V_TMP+1}, 3, v{V_OFF1}')
    a(f's_lshl_b32 s63, s{S_SL}, 6\ns_add_u32 s63, s63, {WS_YA:#x}')
    spread(a, 'y', 63, S_W, 62)
    a(f'v_add_u32 v{V_OFF1}, s63, v{V_OFF1}')
    for k in range(4):
        a(f'v_mov_b32 v{ST+2*k}, 0xff800000\nv_mov_b32 v{ST+2*k+1}, 0')
        for i in range(2): a(f'v_mov_b32 v{Y+2*k+i}, 0')
    PEND = 66
    for k in range(4):
        a(f's_mov_b32 s{PEND+2*k}, -1\ns_mov_b32 s{PEND+2*k+1}, 0xffff')
    if cfg.two:
        final_two(a, cfg, locals())
        return
    a('s_mov_b32 s64, 0')
    a.label('L_W_gate')
    a(f's_mov_b64 exec, s[{PEND}:{PEND+1}]')
    a(f'buffer_load_dword v{V_TMP+2}, v{V_OFF0}, s[{SRD_WS}:{SRD_WS+3}], 0 offen sc1')
    a('s_mov_b64 exec, -1')
    a('s_waitcnt vmcnt(0)')
    a(f'v_cmp_ne_u32 vcc, -1, v{V_TMP+2}')
    a('s_add_u32 s64, s64, 1')
    a('s_nop 0')
    a(f's_and_b64 s[74:75], vcc, s[{PEND}:{PEND+1}]')
    a('s_cbranch_scc1 L_W_gate_done')
    a(f's_sleep {cfg.gsleep}')
    a(f's_cmp_lt_u32 s64, {SPIN_LIMIT}\ns_cbranch_scc1 L_W_gate')
    a.label('L_W_gate_done')
    stamp(a, cfg, 6)
    a('s_mov_b32 s64, 0')
    if cfg.inc:
        assert not cfg.smart
        a('s_mov_b32 s86, 0')
        for i in range(4): a(f'v_mov_b32 v{ACC+i}, 0')
    if cfg.smart:
        PENY = 78
        for k in range(4):
            a(f's_mov_b64 s[{PENY+2*k}:{PENY+2*k+1}], s[{PEND+2*k}:{PEND+2*k+1}]')
        a('s_mov_b32 s86, 0')
    def add_heads(tag):
        for k in range(4):
            a(f's_bitcmp1_b32 s86, {k}\ns_cbranch_scc1 L_W_inc{tag}{k}')
            a(f's_cmp_lg_u64 s[{PEND+2*k}:{PEND+2*k+1}], 0\ns_cbranch_scc1 L_W_inc{tag}{k}')
            a(f's_bitset1_b32 s86, {k}')
            MM, TT, LL = V_TMP + 4, V_TMP + 5, V_TMP + 6
            def allred(x, op):
                a.nop(2)
                a(f'{op}_dpp v{x}, v{x}, v{x} row_ror:8 row_mask:0xf bank_mask:0xf')
                for st in (16, 32):
                    a(f'v_mov_b32 v{TT}, v{x}')
                    a.nop(2)
                    a(f'v_permlane{st}_swap_b32 v{x}, v{TT}')
                    a.nop(1)
                    a(f'{op} v{x}, v{x}, v{TT}')
            a(f'v_mov_b32 v{MM}, v{ST+2*k}')
            for i in range(2):
                a(f'v_lshlrev_b32 v{YF+2*i}, 16, v{Y+2*k+i}')
                a(f'v_and_b32 v{YF+2*i+1}, 0xffff0000, v{Y+2*k+i}')
            allred(MM, 'v_max_f32')
            a(f'v_sub_f32 v{MM}, v{ST+2*k}, v{MM}')
            a(f'v_exp_f32 v{MM}, v{MM}')
            a('s_nop 0')
            a(f'v_mul_f32 v{LL}, v{ST+2*k+1}, v{MM}')
            allred(LL, 'v_add_f32')
            a(f'v_rcp_f32 v{LL}, v{LL}')
            a('s_nop 0')
            a(f'v_mul_f32 v{MM}, v{MM}, v{LL}')
            for i in range(4):
                a(f'v_fma_f32 v{ACC+i}, v{MM}, v{YF+i}, v{ACC+i}')
            a.label(f'L_W_inc{tag}{k}')
    if cfg.pipe:
        assert cfg.inc
        SA, SB = V_W0 + 40, V_W0 + 56
        def sweep(S):
            for k in range(4):
                a(f's_or_b32 s75, s{PEND+2*k+1}, 0x80000000')
                a(f's_mov_b32 s74, s{PEND+2*k}')
                a('s_mov_b64 exec, s[74:75]')
                a(f's_mov_b32 s63, {k*65536}')
                a(f'buffer_load_dwordx2 {vr(S+4*k,2)}, v{V_OFF0}, s[{SRD_WS}:{SRD_WS+3}], 0 offen offset:{k*512} sc1')
                a(f'buffer_load_dwordx2 {vr(S+4*k+2,2)}, v{V_OFF1}, s[{SRD_WS}:{SRD_WS+3}], s63 offen sc1')
            a('s_mov_b64 exec, -1')
        def check(S, tag):
            for k in range(4):
                t = V_TMP + k
                a(f'v_max3_u32 v{t}, v{S+4*k}, v{S+4*k+1}, v{S+4*k+2}')
                a(f'v_max_u32 v{t}, v{t}, v{S+4*k+3}')
            for k in range(4):
                a(f'v_cmp_ne_u32 vcc, -1, v{V_TMP+k}')
                a('s_nop 0')
                a(f's_and_b64 s[74:75], vcc, s[{PEND+2*k}:{PEND+2*k+1}]')
                a(f's_andn2_b64 s[{PEND+2*k}:{PEND+2*k+1}], s[{PEND+2*k}:{PEND+2*k+1}], s[74:75]')
                a('s_mov_b64 exec, s[74:75]')
                a(f'v_mov_b32 v{ST+2*k}, v{S+4*k}')
                a(f'v_mov_b32 v{ST+2*k+1}, v{S+4*k+1}')
                a(f'v_mov_b32 v{Y+2*k}, v{S+4*k+2}')
                a(f'v_mov_b32 v{Y+2*k+1}, v{S+4*k+3}')
                a('s_mov_b64 exec, -1')
            add_heads(tag)
            a(f's_or_b64 s[74:75], s[{PEND}:{PEND+1}], s[{PEND+2}:{PEND+3}]')
            a(f's_or_b64 s[76:77], s[{PEND+4}:{PEND+5}], s[{PEND+6}:{PEND+7}]')
            a('s_or_b64 s[74:75], s[74:75], s[76:77]')
            a('s_cbranch_scc0 L_W_sweep_done')
        sweep(SA)
        a.label('L_W_sweep')
        sweep(SB)
        a('s_waitcnt vmcnt(8)')
        check(SA, 'a')
        sweep(SA)
        a('s_waitcnt vmcnt(8)')
        check(SB, 'b')
        a('s_add_u32 s64, s64, 1')
        a(f's_cmp_lt_u32 s64, {SPIN_LIMIT}\ns_cbranch_scc1 L_W_sweep')
    else:
        a.label('L_W_sweep')
        for k in range(4):
            a(f's_mov_b64 exec, s[{PEND+2*k}:{PEND+2*k+1}]')
            a(f's_cbranch_execz L_W_sw{k}')
            a(f'buffer_load_dwordx2 {vr(ST+2*k,2)}, v{V_OFF0}, s[{SRD_WS}:{SRD_WS+3}], 0 offen offset:{k*512} sc1')
            if not cfg.smart:
                a(f's_mov_b32 s63, {k*65536}')
                a(f'buffer_load_dwordx2 {vr(Y+2*k,2)}, v{V_OFF1}, s[{SRD_WS}:{SRD_WS+3}], s63 offen sc1')
            a.label(f'L_W_sw{k}')
            if cfg.smart:
                a(f's_andn2_b64 s[74:75], s[{PENY+2*k}:{PENY+2*k+1}], s[{PEND+2*k}:{PEND+2*k+1}]')
                a('s_cmp_eq_u32 s86, 0')
                a(f's_cselect_b64 exec, s[74:75], s[{PENY+2*k}:{PENY+2*k+1}]')
                a(f's_cbranch_execz L_W_sy{k}')
                a(f's_mov_b32 s63, {k*65536}')
                a(f'buffer_load_dwordx2 {vr(Y+2*k,2)}, v{V_OFF1}, s[{SRD_WS}:{SRD_WS+3}], s63 offen sc1')
                a.label(f'L_W_sy{k}')
                a(f's_mov_b64 s[{88+2*k}:{89+2*k}], exec')
        a('s_mov_b64 exec, -1')
        a('s_waitcnt vmcnt(0)')
        if not cfg.smart:
            for k in range(4):
                t = V_TMP + k
                a(f'v_max3_u32 v{t}, v{ST+2*k}, v{ST+2*k+1}, v{Y+2*k}')
                a(f'v_max_u32 v{t}, v{t}, v{Y+2*k+1}')
            for k in range(4):
                a(f'v_cmp_eq_u32 vcc, -1, v{V_TMP+k}')
                a('s_nop 0')
                a(f's_and_b64 s[{PEND+2*k}:{PEND+2*k+1}], vcc, s[{PEND+2*k}:{PEND+2*k+1}]')
            if cfg.inc:
                add_heads('')
            a(f's_or_b64 s[74:75], s[{PEND}:{PEND+1}], s[{PEND+2}:{PEND+3}]')
            a(f's_or_b64 s[76:77], s[{PEND+4}:{PEND+5}], s[{PEND+6}:{PEND+7}]')
            a('s_or_b64 s[74:75], s[74:75], s[76:77]')
        else:
            for k in range(4):
                a(f'v_max_u32 v{V_TMP+k}, v{ST+2*k}, v{ST+2*k+1}')
                a(f'v_max_u32 v{V_TMP+4+k}, v{Y+2*k}, v{Y+2*k+1}')
            for k in range(4):
                a(f'v_cmp_eq_u32 vcc, -1, v{V_TMP+k}')
                a('s_nop 0')
                a(f's_and_b64 s[{PEND+2*k}:{PEND+2*k+1}], vcc, s[{PEND+2*k}:{PEND+2*k+1}]')
                a(f'v_cmp_ne_u32 vcc, -1, v{V_TMP+4+k}')
                a('s_nop 0')
                a(f's_and_b64 s[74:75], vcc, s[{88+2*k}:{89+2*k}]')
                a(f's_andn2_b64 s[{PENY+2*k}:{PENY+2*k+1}], s[{PENY+2*k}:{PENY+2*k+1}], s[74:75]')
            a('s_mov_b32 s87, 0')
            for k in range(4):
                a(f's_bcnt1_i32_b64 s62, s[{PEND+2*k}:{PEND+2*k+1}]')
                a('s_add_u32 s87, s87, s62')
            a(f's_cmp_le_u32 s87, {8*cfg.late}\ns_cselect_b32 s86, 1, 0')
            for k in range(4):
                a(f's_or_b64 s[{88+2*k}:{89+2*k}], s[{PEND+2*k}:{PEND+2*k+1}], s[{PENY+2*k}:{PENY+2*k+1}]')
            a('s_or_b64 s[74:75], s[88:89], s[90:91]')
            a('s_or_b64 s[76:77], s[92:93], s[94:95]')
            a('s_or_b64 s[74:75], s[74:75], s[76:77]')
        a('s_cbranch_scc0 L_W_sweep_done')
        a('s_add_u32 s64, s64, 1')
        a(f's_cmp_lt_u32 s64, {SPIN_LIMIT}\ns_cbranch_scc1 L_W_sweep')
    a.label('L_W_sweep_done')
    stamp(a, cfg, 7)
    if not cfg.inc:
        for k in range(4):
            for i in range(2):
                a(f'v_lshlrev_b32 v{YF+4*k+2*i}, 16, v{Y+2*k+i}')
                a(f'v_and_b32 v{YF+4*k+2*i+1}, 0xffff0000, v{Y+2*k+i}')
        Y = YF
        MM = V_TMP
        TT = V_TMP + 4
        for k in range(4): a(f'v_mov_b32 v{MM+k}, v{ST+2*k}')
        a.nop(2)
        for k in range(4):
            a(f'v_max_f32_dpp v{MM+k}, v{MM+k}, v{MM+k} row_ror:8 row_mask:0xf bank_mask:0xf')
        for st in (16, 32):
            for k in range(4): a(f'v_mov_b32 v{TT+k}, v{MM+k}')
            a.nop(2)
            for k in range(4): a(f'v_permlane{st}_swap_b32 v{MM+k}, v{TT+k}')
            a.nop(1)
            for k in range(4): a(f'v_max_f32 v{MM+k}, v{MM+k}, v{TT+k}')
        for k in range(4): a(f'v_sub_f32 v{MM+k}, v{ST+2*k}, v{MM+k}')
        for k in range(4): a(f'v_exp_f32 v{MM+k}, v{MM+k}')
        a('s_nop 0')
        for k in range(4): a(f'v_mul_f32 v{ST+2*k+1}, v{ST+2*k+1}, v{MM+k}')
        LL = V_TMP + 8
        for k in range(4): a(f'v_mov_b32 v{LL+k}, v{ST+2*k+1}')
        a.nop(2)
        for k in range(4):
            a(f'v_add_f32_dpp v{LL+k}, v{LL+k}, v{LL+k} row_ror:8 row_mask:0xf bank_mask:0xf')
        for st in (16, 32):
            for k in range(4): a(f'v_mov_b32 v{TT+k}, v{LL+k}')
            a.nop(2)
            for k in range(4): a(f'v_permlane{st}_swap_b32 v{LL+k}, v{TT+k}')
            a.nop(1)
            for k in range(4): a(f'v_add_f32 v{LL+k}, v{LL+k}, v{TT+k}')
        for k in range(4): a(f'v_rcp_f32 v{LL+k}, v{LL+k}')
        a('s_nop 0')
        for k in range(4): a(f'v_mul_f32 v{MM+k}, v{MM+k}, v{LL+k}')
        for i in range(4):
            a(f'v_mul_f32 v{ACC+i}, v{MM}, v{Y+i}')
        for k in range(1, 4):
            for i in range(4):
                a(f'v_fma_f32 v{ACC+i}, v{MM+k}, v{Y+4*k+i}, v{ACC+i}')
    col_finish(a, ACC, V_TMP + 12, 0, 8, 0, 'Wa')
    if use_nonce:
        a(f's_cmp_lg_u32 s{S_H}, 0\ns_cbranch_scc1 L_W_nonce')
        a(f's_cmp_lg_u32 s{S_W}, 0\ns_cbranch_scc1 L_W_nonce')
        a(f'v_add_u32 v{V_NONCE}, {GOLDEN:#x}, v{V_NONCE}')
        a(f'v_mov_b32 v{V_TMP}, {WS_NONCE:#x}')
        a('s_mov_b64 exec, 1')
        a(f'buffer_store_dword v{V_NONCE}, v{V_TMP}, s[{SRD_WS}:{SRD_WS+3}], 0 offen')
        a.label('L_W_nonce')
    if not cfg.aend: span_mark(a, cfg, True)
    a('s_endpgm')

def final_two(a, cfg, R):
    Y, ST, YF, PEND, ACC, V_TMP, V_OFF0, V_OFF1, SRD_WS = [R[n] for n in ('Y', 'ST', 'YF', 'PEND', 'ACC', 'V_TMP', 'V_OFF0', 'V_OFF1', 'SRD_WS')]
    if cfg.tag:
        TG = YF + 8
        a('s_mov_b32 s64, 0')
        a(f's_mov_b64 exec, s[{PEND}:{PEND+1}]')
        a.label('L_W_stt')
        for k in range(4):
            if 'y' in cfg.fl:
                a(f's_mov_b32 s63, {k*8192}')
                a(f'buffer_load_dwordx4 {vr(TG+4*k,4)}, v{V_OFF0}, s[{SRD_WS}:{SRD_WS+3}], s63 offen sc1')
            else: a(f'buffer_load_dwordx4 {vr(TG+4*k,4)}, v{V_OFF0}, s[{SRD_WS}:{SRD_WS+3}], 0 offen offset:{k*1024} sc1')
        a('s_waitcnt vmcnt(0)')
        for k in range(8): a(f'v_xor_b32 v{TG+2*k+1}, s{S_TAG}, v{TG+2*k+1}')
        a(f'v_or3_b32 v{V_TMP}, v{TG+1}, v{TG+3}, v{TG+5}')
        a(f'v_or3_b32 v{V_TMP}, v{V_TMP}, v{TG+7}, v{TG+9}')
        a(f'v_or3_b32 v{V_TMP}, v{V_TMP}, v{TG+11}, v{TG+13}')
        a(f'v_or_b32 v{V_TMP}, v{V_TMP}, v{TG+15}')
        a(f'v_cmp_ne_u32 vcc, 0, v{V_TMP}')
        a('s_add_u32 s64, s64, 1')
        a('s_nop 0')
        a('s_cmp_eq_u64 vcc, 0\ns_cbranch_scc1 L_W_stt_done')
        a('s_sleep 16')
        a(f's_cmp_lt_u32 s64, {SPIN_LIMIT}\ns_cbranch_scc1 L_W_stt')
        a.label('L_W_stt_done')
        for k in range(8): a(f'v_mov_b32 v{ST+k}, v{TG+2*k}')
        a('s_mov_b64 exec, -1')
    else:
        a('s_mov_b32 s64, 0')
        a.label('L_W_st')
        a(f's_mov_b64 exec, s[{PEND}:{PEND+1}]')
        for k in range(4):
            a(f'buffer_load_dwordx2 {vr(ST+2*k,2)}, v{V_OFF0}, s[{SRD_WS}:{SRD_WS+3}], 0 offen offset:{k*512} sc1')
        a('s_mov_b64 exec, -1')
        a('s_waitcnt vmcnt(0)')
        a(f'v_max3_u32 v{V_TMP}, v{ST}, v{ST+1}, v{ST+2}')
        a(f'v_max3_u32 v{V_TMP}, v{V_TMP}, v{ST+3}, v{ST+4}')
        a(f'v_max3_u32 v{V_TMP}, v{V_TMP}, v{ST+5}, v{ST+6}')
        a(f'v_max_u32 v{V_TMP}, v{V_TMP}, v{ST+7}')
        a(f'v_cmp_eq_u32 vcc, -1, v{V_TMP}')
        a('s_add_u32 s64, s64, 1')
        a('s_nop 0')
        a('s_cmp_eq_u64 vcc, 0\ns_cbranch_scc1 L_W_st_done')
        a('s_sleep 16')
        a(f's_cmp_lt_u32 s64, {SPIN_LIMIT}\ns_cbranch_scc1 L_W_st')
        a.label('L_W_st_done')
    MM, TT, LL = V_TMP, V_TMP + 4, V_TMP + 8
    def allred(x, op):
        a.nop(2)
        for k in range(4): a(f'{op}_dpp v{x+k}, v{x+k}, v{x+k} row_ror:8 row_mask:0xf bank_mask:0xf')
        for st in (16, 32):
            for k in range(4): a(f'v_mov_b32 v{TT+k}, v{x+k}')
            a.nop(2)
            for k in range(4): a(f'v_permlane{st}_swap_b32 v{x+k}, v{TT+k}')
            a.nop(1)
            for k in range(4): a(f'{op} v{x+k}, v{x+k}, v{TT+k}')
    for k in range(4): a(f'v_mov_b32 v{MM+k}, v{ST+2*k}')
    allred(MM, 'v_max_f32')
    for k in range(4): a(f'v_sub_f32 v{MM+k}, v{ST+2*k}, v{MM+k}')
    for k in range(4): a(f'v_exp_f32 v{MM+k}, v{MM+k}')
    a('s_nop 0')
    for k in range(4): a(f'v_mul_f32 v{LL+k}, v{ST+2*k+1}, v{MM+k}')
    allred(LL, 'v_add_f32')
    for k in range(4): a(f'v_rcp_f32 v{LL+k}, v{LL+k}')
    a('s_nop 0')
    F = ST
    for k in range(4): a(f'v_mul_f32 v{F+k}, v{MM+k}, v{LL+k}')
    for i in range(4): a(f'v_mov_b32 v{ACC+i}, 0')
    if cfg.wstop == 7: a('s_endpgm'); return
    if cfg.fp:
        a('s_mov_b32 s63, 0x40000000')
        a(f'v_writelane_b32 v{V_OFF1}, s63, 63')
    a('s_mov_b32 s64, 0')
    a(f's_mov_b32 s74, {0x01010101 if cfg.gate == 6 else 0x0101 if cfg.gate == 2 else 1:#x}\ns_mov_b32 s75, {0x0101 if cfg.gate == 6 else 0:#x}')
    a.label('L_W_gate')
    a('s_mov_b64 exec, s[74:75]')
    a(f'buffer_load_dword v{V_TMP}, v{V_OFF1}, s[{SRD_WS}:{SRD_WS+3}], 0 offen {cfg.lpol.replace("+", " ")}')
    a('s_waitcnt vmcnt(0)')
    a(f'v_cmp_ne_u32 vcc, -1, v{V_TMP}')
    a('s_mov_b64 exec, -1')
    a('s_add_u32 s64, s64, 1')
    a('s_cmp_lg_u64 vcc, 0\ns_cbranch_scc1 L_W_gate_done')
    L_GF = R['L_QB'] + 516
    if cfg.fg:
        for i in range(cfg.fg):
            a(f'ds_read_b32 v{V_TMP}, v{R["V_ZERO"]} offset:{L_GF}')
            a('s_waitcnt lgkmcnt(0)')
            a(f'v_readfirstlane_b32 s63, v{V_TMP}')
            a(f's_cmp_eq_u32 s63, s{S_TAG}\ns_cbranch_scc1 L_W_gate_done')
            a(f's_sleep {cfg.gsleep}')
    else: a(f's_sleep {cfg.gsleep}')
    a(f's_cmp_lt_u32 s64, {SPIN_LIMIT}\ns_cbranch_scc1 L_W_gate')
    a.label('L_W_gate_done')
    if cfg.fg:
        a(f'v_mov_b32 v{V_TMP}, s{S_TAG}')
        a(f'ds_write_b32 v{R["V_ZERO"]}, v{V_TMP} offset:{L_GF}')
    stamp(a, cfg, 6)
    if cfg.wstop == 8: a('s_endpgm'); return
    a('s_mov_b32 s64, 0')
    for k in range(1, 4): a(f's_mov_b32 s{76+k}, {k*65536}')
    if cfg.fp and cfg.fth >= 24: a('s_branch L_W_pipe')
    a.label('L_W_sweep')
    for k in range(4):
        a(f's_mov_b64 exec, s[{PEND+2*k}:{PEND+2*k+1}]')
        a(f's_cbranch_execz L_W_sw{k}')
        so = '0' if k == 0 else f's{76+k}'
        a(f'buffer_load_dwordx2 {vr(Y+2*k,2)}, v{V_OFF1}, s[{SRD_WS}:{SRD_WS+3}], {so} offen {cfg.lpol.replace("+", " ")}')
        a.label(f'L_W_sw{k}')
    a('s_waitcnt vmcnt(0)')
    for k in range(4):
        a(f's_mov_b64 exec, s[{PEND+2*k}:{PEND+2*k+1}]')
        a(f's_cbranch_execz L_W_sx{k}')
        a(f'v_max_u32 v{V_TMP}, v{Y+2*k}, v{Y+2*k+1}')
        a(f'v_cmp_ne_u32 vcc, -1, v{V_TMP}')
        for i in range(2):
            a(f'v_lshlrev_b32 v{YF+2*i}, 16, v{Y+2*k+i}')
            a(f'v_and_b32 v{YF+2*i+1}, 0xffff0000, v{Y+2*k+i}')
        a(f's_andn2_b64 s[{PEND+2*k}:{PEND+2*k+1}], exec, vcc')
        a('s_mov_b64 exec, vcc')
        for i in range(4): a(f'v_fma_f32 v{ACC+i}, v{F+k}, v{YF+i}, v{ACC+i}')
        a.label(f'L_W_sx{k}')
    a('s_mov_b64 exec, -1')
    a(f's_or_b64 s[74:75], s[{PEND}:{PEND+1}], s[{PEND+2}:{PEND+3}]')
    a(f's_or_b64 s[80:81], s[{PEND+4}:{PEND+5}], s[{PEND+6}:{PEND+7}]')
    a('s_or_b64 s[74:75], s[74:75], s[80:81]')
    a('s_cbranch_scc0 L_W_sweep_done')
    if cfg.fp:
        for k in range(4): a(f's_bcnt1_i32_b64 s{80+k}, s[{PEND+2*k}:{PEND+2*k+1}]')
        a('s_add_u32 s80, s80, s81\ns_add_u32 s82, s82, s83\ns_add_u32 s80, s80, s82')
        a(f's_cmp_le_u32 s80, {8*cfg.fth}\ns_cbranch_scc1 L_W_pipe')
    if cfg.sw1:
        for k in range(4): a(f's_bcnt1_i32_b64 s{80+k}, s[{PEND+2*k}:{PEND+2*k+1}]')
        a('s_add_u32 s80, s80, s81\ns_add_u32 s82, s82, s83\ns_add_u32 s80, s80, s82')
        a(f's_cmp_le_u32 s80, {8*cfg.sw1}\ns_cbranch_scc1 L_W_nosl')
        a(f's_sleep {cfg.sl1}')
        a(f's_cmp_le_u32 s80, {8*cfg.sw2}\ns_cbranch_scc1 L_W_nosl')
        a(f's_sleep {cfg.sl2}')
        a.label('L_W_nosl')
    a('s_add_u32 s64, s64, 1')
    a(f's_cmp_lt_u32 s64, {SPIN_LIMIT}\ns_cbranch_scc1 L_W_sweep')
    if cfg.fp:
        a('s_branch L_W_sweep_done')
        a.label('L_W_pipe')
        YS = [YF + 16 + 8 * i for i in range(cfg.fp)]
        def issue(y):
            for k in range(4):
                a(f's_mov_b32 exec_lo, s{PEND+2*k}')
                a(f's_or_b32 exec_hi, s{PEND+2*k+1}, 0x80000000')
                so = '0' if k == 0 else f's{76+k}'
                a(f'buffer_load_dwordx2 {vr(y+2*k,2)}, v{V_OFF1}, s[{SRD_WS}:{SRD_WS+3}], {so} offen {cfg.lpol.replace("+", " ")}')
        for i in range(cfg.fp - 1):
            issue(YS[i])
            a(f's_sleep {cfg.fsl}')
        a('.p2align 6')
        a.label('L_W_pipel')
        for i in range(cfg.fp):
            issue(YS[(i + cfg.fp - 1) % cfg.fp])
            a(f's_waitcnt vmcnt({4 * (cfg.fp - 1)})')
            y = YS[i]
            for k in range(4):
                a(f's_mov_b64 exec, s[{PEND+2*k}:{PEND+2*k+1}]')
                a(f's_cbranch_execz L_W_px{i}{k}')
                a(f'v_max_u32 v{V_TMP}, v{y+2*k}, v{y+2*k+1}')
                a(f'v_cmp_ne_u32 vcc, -1, v{V_TMP}')
                for e in range(2):
                    a(f'v_lshlrev_b32 v{YF+2*e}, 16, v{y+2*k+e}')
                    a(f'v_and_b32 v{YF+2*e+1}, 0xffff0000, v{y+2*k+e}')
                a(f's_andn2_b64 s[{PEND+2*k}:{PEND+2*k+1}], exec, vcc')
                a('s_mov_b64 exec, vcc')
                for e in range(4): a(f'v_fma_f32 v{ACC+e}, v{F+k}, v{YF+e}, v{ACC+e}')
                a.label(f'L_W_px{i}{k}')
            a(f's_or_b64 s[74:75], s[{PEND}:{PEND+1}], s[{PEND+2}:{PEND+3}]')
            a(f's_or_b64 s[80:81], s[{PEND+4}:{PEND+5}], s[{PEND+6}:{PEND+7}]')
            a('s_or_b64 s[74:75], s[74:75], s[80:81]')
            a('s_cbranch_scc0 L_W_sweep_done')
        a('s_add_u32 s64, s64, 1')
        a(f's_cmp_lt_u32 s64, {SPIN_LIMIT}\ns_cbranch_scc1 L_W_pipel')
    a.label('L_W_sweep_done')
    if cfg.fp: a('s_mov_b64 exec, -1')
    stamp(a, cfg, 7)
    if cfg.cf: col_fast(a, cfg, ACC, R['V_CFL'], R['V_CFO'], V_TMP + 12)
    else: col_finish(a, ACC, V_TMP + 12, 0, 8, 0, 'Wa', perm=cfg.smf)
    if cfg.tag:
        a(f's_or_b32 s62, s{S_H}, s{S_W}\ns_cbranch_scc1 L_W_nonext')
        a(f'v_mov_b32 v{V_TMP}, {WS_NONCE:#x}\nv_mov_b32 v{V_TMP+1}, s{S_TAG}')
        a('s_mov_b64 exec, 1')
        a(f'buffer_store_dword v{V_TMP+1}, v{V_TMP}, s[{SRD_WS}:{SRD_WS+3}], 0 offen {cfg.opol.replace("+", " ")}')
        a('s_mov_b64 exec, -1')
        a.label('L_W_nonext')
    if not cfg.aend: span_mark(a, cfg, True)
    lite_end(a, cfg, 0, 7)
    a('s_endpgm')

def q_for_A(a, cfg, SRD_WS, L_QP):
    SRD_0, SRD_X = 52, 56
    V_OFF, V_X, V_A, V_Y, V_W, V_TMP = 10, 12, 28, 44, 64, 192
    a(f's_lshl_b32 s60, s{S_HP}, 8')
    a(f's_sub_u32 s61, {512*8192:#x}, s60')
    srd(a, SRD_0, P_AWQ, off_s=60, nrec_s=61)
    srd(a, SRD_X, P_AX, nrec=2048)
    a(f'v_lshrrev_b32 v{V_TMP}, 3, v{V_C}')
    a(f'v_lshlrev_b32 v{V_TMP}, 10, v{V_TMP}')
    a(f'v_lshl_add_u32 v{V_TMP}, v{V_G}, 5, v{V_TMP}')
    a(f's_lshl_b32 s62, s{S_W}, 7')
    a(f'v_add_u32 v{V_TMP}, s62, v{V_TMP}')
    a(f'buffer_load_dwordx4 {vr(V_X,4)}, v{V_TMP}, s[{SRD_X}:{SRD_X+3}], 0 offen')
    a(f'buffer_load_dwordx4 {vr(V_X+4,4)}, v{V_TMP}, s[{SRD_X}:{SRD_X+3}], 0 offen offset:16')
    rows_voff(a, V_OFF)
    Lq = cfg.cq
    def load(s_):
        a(f's_mov_b32 s62, {s_*8192}')
        a(f'buffer_load_dwordx4 {vr(V_W+4*s_,4)}, v{V_OFF}, s[{SRD_0}:{SRD_0+3}], s62 offen {cfg.bpol}')
    for s_ in range(Lq): load(s_)
    a(f'v_lshrrev_b32 v{V_TMP}, 1, v{V_G}')
    a(f'v_lshlrev_b32 v{V_TMP}, 9, v{V_TMP}')
    a(f'v_lshl_add_u32 v{V_TMP}, v{V_C}, 5, v{V_TMP}')
    a(f'v_and_b32 v{V_TMP+1}, 1, v{V_G}')
    a(f'v_lshl_add_u32 v{V_TMP}, v{V_TMP+1}, 4, v{V_TMP}')
    a(f's_lshl_b32 s63, s{S_W}, 10\ns_add_u32 s63, s63, {L_QP}')
    a(f'v_add_u32 v{V_TMP}, s63, v{V_TMP}')
    a(f'v_lshlrev_b32 v{V_TMP+1}, 4, v{V_LANE}')
    a(f's_lshl_b32 s63, s{S_H}, 10\ns_add_u32 s63, s63, {WS_QA:#x}')
    a(f'v_add_u32 v{V_TMP+2}, s63, v{V_TMP+1}')
    a(f'v_add_u32 v{V_TMP+1}, {L_QP}, v{V_TMP+1}')
    a('s_mov_b32 s66, 0x01000100\ns_mov_b32 s67, 0x03020302')
    for s_ in range(16):
        A = V_A + 4 * (s_ & 1)
        a(f's_waitcnt vmcnt({min(Lq - 1, 15 - s_)})')
        if s_ + Lq < 16: load(s_ + Lq)
        a(f'v_perm_b32 v{V_TMP+3}, v{V_X + s_//2}, v{V_X + s_//2}, s{66 + (s_ & 1)}')
        for i in range(4): a(f'v_and_b32 v{A+i}, v{V_TMP+3}, v{V_MASK+i}')
        a('s_nop 1')
        c = '0' if s_ == 0 else vr(V_Y, 4)
        a(f'v_mfma_f32_16x16x32_bf16 {vr(V_Y,4)}, {vr(A,4)}, {vr(V_W+4*s_,4)}, {c}')
    a.nop(8)
    a(f'ds_write_b128 v{V_TMP}, {vr(V_Y,4)}')
    get_tag(a)
    a('s_barrier')
    a(f's_cmp_lg_u32 s{S_W}, 0\ns_cbranch_scc1 L_C_qdone')
    for w in range(8): a(f'ds_read_b128 {vr(V_W+4*w,4)}, v{V_TMP+1} offset:{1024*w}')
    for w in range(1, 8):
        a(f's_waitcnt lgkmcnt({7-w})')
        for k in range(4): a(f'v_add_f32 v{V_W+k}, v{V_W+k}, v{V_W+4*w+k}')
    a(f'v_cvt_pk_bf16_f32 v{V_W}, v{V_W}, v{V_W+1}')
    a(f'v_cvt_pk_bf16_f32 v{V_W+2}, v{V_W+2}, v{V_W+3}')
    a(f'v_mov_b32 v{V_W+1}, s{S_TAG}\nv_mov_b32 v{V_W+3}, s{S_TAG}')
    a(f'buffer_store_dwordx4 {vr(V_W,4)}, v{V_TMP+2}, s[{SRD_WS}:{SRD_WS+3}], 0 offen sc1')
    a.label('L_C_qdone')
    if cfg.cqbar: a('s_barrier')
    stamp(a, cfg, 4)

def role_C(a, cfg):
    TS = 1056
    BUF = 64 * TS
    L_TMAX, L_P = 0, 512
    PS = 144
    L_T0 = 5120
    L_T1 = L_T0 + BUF
    assert L_P + 32*PS <= L_T0 and L_T1 + BUF <= LDS_BYTES
    SRD_C, SRD_WS = 40, 44
    S_B, S_KB, S_HB, S_LB, S_IT, S_BUF = 35, 36, 37, 38, 39, 48
    V_ZERO, V_COFF, V_SA, V_TA, V_PW, V_PR, V_TW, V_TRS, V_TRP = 8, 9, 10, 11, 12, 13, 14, 15, 16
    V_SC, V_MS, V_MP, V_LS, V_AL = 17, 18, 19, 20, 21
    V_T = 24
    V_SD = 28
    V_Q = 32
    V_ACC = 96
    V_SF = 128
    V_PB = 192
    V_TF = 128
    V_STG = 208
    V_TMP = 240
    V_STA, V_STW = 22, 23
    a.label('L_roleC')
    late_entry(a, cfg)
    stamp(a, cfg, 0)
    if cfg.tag: load_tag(a)
    a(f'v_mov_b32 v{V_ZERO}, 0')
    a(f's_lshr_b32 s{S_B}, s{S_H}, 4')
    a(f's_lshr_b32 s{S_KB}, s{S_W}, 1\ns_and_b32 s{S_HB}, s{S_W}, 1')
    a(f's_lshl_b32 s60, s{S_H}, 19')
    a(f's_mov_b32 s61, {512*1024:#x}')
    srd(a, SRD_C, P_BC, off_s=60, nrec_s=61)
    srd(a, SRD_WS, P_WS, nrec=0x4000000)
    if cfg.dyn:
        a(f's_cmp_lg_u32 s{S_W}, 0\ns_cbranch_scc1 L_C_noz')
        a(f's_lshl_b32 s62, s{S_H}, 7\ns_add_u32 s62, s62, {WS_CTR:#x}')
        a(f'v_lshl_add_u32 v{V_TMP}, v{V_LANE}, 12, s62')
        a(f'v_mov_b32 v{V_TMP+1}, 1')
        a('s_mov_b64 exec, 3')
        a(f'buffer_store_dword v{V_ZERO}, v{V_TMP}, s[{SRD_WS}:{SRD_WS+3}], 0 offen sc1')
        a('s_waitcnt vmcnt(0)')
        a('s_mov_b64 exec, 1')
        a(f'global_atomic_add v{V_ZERO}, v{V_TMP+1}, s[{P_DBG}:{P_DBG+1}] offset:{CNT_Z} sc1')
        a('s_mov_b64 exec, -1')
        a.label('L_C_noz')
    if cfg.cpf:
        a(f's_cmp_lg_u32 s{S_W}, 7\ns_cbranch_scc1 L_C_nopf')
        code_prefetch(a, 'C', V_TMP, V_SF, f'{NAME}_kernel', cfg.cpf_kb)
        a.label('L_C_nopf')
    if '0' in cfg.ct: code_touch(a, 'C0', 7, 244)
    def q_part(n):
        if n != cfg.cfirst: return
        if cfg.tag and cfg.qc: q_for_A(a, cfg, SRD_WS, L_T1 + BUF)
        elif cfg.tag: get_tag(a)
    q_part(0)
    a(f'v_lshlrev_b32 v{V_COFF}, 4, v{V_LANE}')
    a(f's_lshl_b32 s62, s{S_W}, 13')
    a(f'v_add_u32 v{V_COFF}, s62, v{V_COFF}')
    S_RO, S_TB, S_TN = 68, 76, 77
    if cfg.cperm:
        a(f's_lshl_b32 s62, s{S_W}, 16')
        a(f'v_lshl_add_u32 v{V_COFF}, v{V_LANE}, 4, s62')
        a(f's_lshr_b32 s62, s{S_W}, 1' if cfg.cperm < 3 else 's_mov_b32 s62, 0')
        a(f's_and_b32 s{S_TB}, s{S_W}, {1 if cfg.cperm == 1 else 0}\ns_lshl_b32 s{S_TB}, s{S_TB}, 15')
        for i in range(8): a(f's_xor_b32 s{S_RO+i}, s62, {i}\ns_lshl_b32 s{S_RO+i}, s{S_RO+i}, 10')
        a(f'v_add_u32 v{V_COFF}, s{S_TB}, v{V_COFF}')
        a(f's_mov_b32 s{S_TN}, 0')
    def caddr(i):
        if cfg.cperm: return f's{S_RO+i} offen'
        return f'{"0" if i < 4 else "s51"} offen offset:{(i%4)*1024}'
    def next_tile():
        if not cfg.cperm:
            a(f'v_add_u32 v{V_COFF}, 0x10000, v{V_COFF}')
            return
        a(f's_add_u32 s62, s{S_TB}, 0x2000\ns_and_b32 s62, s62, 0xffff')
        a(f's_add_u32 s{S_TN}, s{S_TN}, 1\ns_cmp_eq_u32 s{S_TN}, 8\ns_cselect_b32 s62, 0x40000000, s62')
        a(f's_sub_u32 s63, s62, s{S_TB}\ns_mov_b32 s{S_TB}, s62')
        a(f'v_add_u32 v{V_COFF}, s63, v{V_COFF}')
    a(f's_mul_i32 s{S_LB}, s{S_W}, {8*TS}')
    def dma(bufreg_or_imm):
        for i in range(8):
            hi, lo = i // 4, i % 4
            if bufreg_or_imm == 'thr' and cfg.cthr: a(f's_waitcnt vmcnt({cfg.cthr-1})')
            a(f's_add_u32 m0, s50, {i*TS if cfg.cperm else hi*4*TS + lo*(TS-1024)}')
            a('s_nop 0')
            a(f'buffer_load_dwordx4 v{V_COFF}, s[{SRD_C}:{SRD_C+3}], {caddr(i)} {cfg.cpol} lds')
        next_tile()
    a('s_mov_b32 s51, 4096')
    if cfg.cfast:
        for t in range(cfg.cfast):
            for i in range(8):
                a(f's_waitcnt vmcnt({cfg.cthr - 1})')
                a(f'buffer_load_dwordx4 {vr(V_STG+4*i,4)}, v{V_COFF}, s[{SRD_C}:{SRD_C+3}], {caddr(i)} {cfg.cpol}')
            next_tile()
        a('s_waitcnt vmcnt(0)')
        stamp(a, cfg, 2)
        a('s_endpgm')
        return
    a(f's_add_u32 s50, s{S_LB}, {L_T0}'); dma('thr')
    q_part(1)
    a(f's_add_u32 s50, s{S_LB}, {L_T1}'); dma('thr')
    q_part(2)
    def stage_load(i):
        a(f'buffer_load_dwordx4 {vr(V_STG+4*i,4)}, v{V_COFF}, s[{SRD_C}:{SRD_C+3}], {caddr(i)} {cfg.cpol}')
    if not cfg.clate:
        for i in range(8):
            if cfg.cthr: a(f's_waitcnt vmcnt({cfg.cthr-1})')
            stage_load(i)
        next_tile()
    q_part(3)
    a(f's_add_u32 s62, s{S_LB}, {L_T0}')
    a(f'v_lshl_add_u32 v{V_STA}, v{V_LANE}, 4, s62')
    a(f's_lshl_b32 s62, s{S_KB}, 4')
    a(f'v_add_u32 v{V_TMP}, s62, v{V_C}')
    a(f'v_mul_u32_u24 v{V_SA}, {TS}, v{V_TMP}')
    a(f'v_lshl_add_u32 v{V_SA}, v{V_G}, 4, v{V_SA}')
    a(f'v_add_u32 v{V_SA}, {L_T0}, v{V_SA}')
    a(f'v_lshrrev_b32 v{V_TMP}, 1, v{V_G}')
    a(f'v_lshlrev_b32 v{V_TMP}, 3, v{V_TMP}')
    a(f'v_lshrrev_b32 v{V_TMP+1}, 2, v{V_C}')
    a(f'v_add_u32 v{V_TMP}, v{V_TMP}, v{V_TMP+1}')
    a(f'v_mul_u32_u24 v{V_TA}, {TS}, v{V_TMP}')
    a(f'v_and_b32 v{V_TMP}, 1, v{V_G}')
    a(f'v_lshl_add_u32 v{V_TA}, v{V_TMP}, 5, v{V_TA}')
    a(f'v_and_b32 v{V_TMP}, 3, v{V_C}')
    a(f'v_lshl_add_u32 v{V_TA}, v{V_TMP}, 3, v{V_TA}')
    a(f's_lshl_b32 s62, s{S_W}, 7\ns_add_u32 s62, s62, {L_T0}')
    a(f'v_add_u32 v{V_TA}, s62, v{V_TA}')
    a(f's_lshl_b32 s62, s{S_HB}, 4')
    a(f'v_add_u32 v{V_TMP}, s62, v{V_C}')
    a(f'v_mul_u32_u24 v{V_PW}, {PS}, v{V_TMP}')
    a(f'v_lshl_add_u32 v{V_PW}, v{V_G}, 3, v{V_PW}')
    a(f's_lshl_b32 s62, s{S_KB}, 5')
    a(f'v_add_u32 v{V_PW}, s62, v{V_PW}')
    a(f'v_lshlrev_b32 v{V_TRS}, 4, v{V_TMP}')
    a(f's_lshl_b32 s62, s{S_KB}, 2')
    a(f'v_add_u32 v{V_TW}, s62, v{V_TRS}')
    a(f'v_and_b32 v{V_TMP}, 31, v{V_LANE}')
    a(f'v_mul_u32_u24 v{V_PR}, {PS}, v{V_TMP}')
    a(f'v_lshrrev_b32 v{V_TMP+1}, 5, v{V_LANE}')
    a(f'v_lshl_add_u32 v{V_PR}, v{V_TMP+1}, 4, v{V_PR}')
    a(f'v_lshlrev_b32 v{V_TRP}, 4, v{V_TMP}')
    a(f'v_mov_b32 v{V_SC}, {f2u(SCALE):#x}')
    a(f'v_mov_b32 v{V_MS}, 0xff800000\nv_mov_b32 v{V_MP}, 0xff800000\nv_mov_b32 v{V_LS}, 0')
    for k in range(32): a(f'v_mov_b32 v{V_ACC+k}, 0')
    if cfg.tag:
        a(f's_cmp_lg_u32 s{S_W}, 0\ns_cbranch_scc1 L_wc_Cq')
        if 'q' in cfg.fl:
            a(f's_mov_b32 s62, {WS_MBOX:#x}')
            a(f'v_lshl_add_u32 v{V_TMP}, v{V_LANE}, 8, s62')
            a(f's_lshl_b64 exec, 1, s{S_H}')
            tag_poll(a, 'Cq0', V_TMP + 1, V_TMP, SRD_WS, cfg.tsleep, 1)
            a('s_mov_b32 exec_lo, -1\ns_mov_b32 exec_hi, 0')
            tag_poll(a, 'Cq', V_TMP + 1, V_TMP, SRD_WS, cfg.tsl2, 1, shrink=True)
        else:
            a(f's_lshl_b32 s62, s{S_H}, 8\ns_add_u32 s62, s62, {WS_MBOX:#x}')
            a(f'v_lshl_add_u32 v{V_TMP}, v{V_LANE}, 2, s62')
            a('s_mov_b32 exec_hi, 0')
            if not cfg.nowait: tag_poll(a, 'Cq', V_TMP + 1, V_TMP, SRD_WS, cfg.tsleep, 1)
        a('s_mov_b64 exec, -1')
        a.label('L_wc_Cq')
        a('s_barrier')
    else: wait_counter(a, CNT_Q, 0 if cfg.nowait else 32, V_TMP, V_ZERO, 'Cq', acquire=cfg.qacq)
    stamp(a, cfg, 1)
    if cfg.cstop == 2:
        a('s_waitcnt vmcnt(0)'); a('s_endpgm'); return
    a(f's_lshl_b32 s62, s{S_B}, 5\ns_lshl_b32 s63, s{S_HB}, 4\ns_add_u32 s62, s62, s63')
    a(f'v_add_u32 v{V_TMP}, s62, v{V_C}')
    a(f'v_lshlrev_b32 v{V_TMP}, 10, v{V_TMP}')
    a(f'v_lshl_add_u32 v{V_TMP}, v{V_G}, 4, v{V_TMP}')
    a(f'v_add_u32 v{V_TMP}, {WS_QABS:#x}, v{V_TMP}')
    for s_ in range(16):
        a(f'buffer_load_dwordx4 {vr(V_Q+4*s_,4)}, v{V_TMP}, s[{SRD_WS}:{SRD_WS+3}], 0 offen offset:{64*s_} {"" if cfg.qacq else "sc1"}')
    if cfg.cpre != '-':
        a(f's_lshl_b32 s62, s{S_B}, 5\ns_lshl_b32 s63, s{S_W}, 2\ns_add_u32 s62, s62, s63')
        a(f's_lshl_b32 s62, s62, 4\ns_and_b32 s63, s{S_H}, 15\ns_add_u32 s62, s62, s63')
        a(f's_lshl_b32 s62, s62, 10\ns_add_u32 s62, s62, {WS_CPART:#x}')
        a(f'v_lshl_add_u32 v{V_TMP+1}, v{V_G}, 14, s62')
        a(f'v_lshl_add_u32 v{V_TMP+1}, v{V_C}, 6, v{V_TMP+1}')
        a(f'buffer_load_dword v{V_TMP+9}, v{V_TMP+1}, s[{SRD_WS}:{SRD_WS+3}], 0 offen {cfg.cpre.replace("+", " ")}')
    if cfg.cstop == 3:
        a('s_waitcnt vmcnt(0)'); a('s_endpgm'); return
    if cfg.clate:
        for i in range(8): stage_load(i)
        a(f'v_add_u32 v{V_COFF}, 0x10000, v{V_COFF}')
    a(f's_mov_b32 s{S_IT}, 0\ns_mov_b32 s{S_BUF}, 0')
    a('.p2align 6')
    a.label('L_C_loop')
    a(f's_cmp_lg_u32 s{S_IT}, 0\ns_cbranch_scc1 L_C_top')
    a('s_waitcnt vmcnt(8)' if cfg.clate else 's_waitcnt vmcnt(0)')
    a.label('L_C_top')
    a('s_waitcnt lgkmcnt(0)\ns_barrier')
    S_STG = 52
    a(f's_mov_b32 s{S_STG}, 1')
    a(f's_cmp_eq_u32 s{S_IT}, 0\ns_cselect_b32 s{S_STG}, 0, s{S_STG}')
    a(f's_cmp_ge_u32 s{S_IT}, 7\ns_cselect_b32 s{S_STG}, 0, s{S_STG}')
    a(f's_sub_u32 s50, {BUF}, s{S_BUF}')
    a(f'v_add_u32 v{V_STW}, s50, v{V_STA}')
    nstage = [0]
    def stage(rows):
        lab = f'L_C_st{nstage[0]}'; nstage[0] += 1
        a(f's_cmp_eq_u32 s{S_STG}, 0\ns_cbranch_scc1 {lab}')
        for i in rows:
            a('s_waitcnt vmcnt(7)')
            a(f'ds_write_b128 v{V_STW}, {vr(V_STG+4*i,4)} offset:{i*TS}')
            stage_load(i)
        if rows[-1] == 7: next_tile()
        a.label(lab)
    groups = [[0, 1], [2, 3], [4, 5], [6, 7]] if cfg.cspread else [list(range(8)), [], [], []]
    stage(groups[0])
    a(f'v_add_u32 v{V_TMP}, s{S_BUF}, v{V_SA}')
    a(f'v_add_u32 v{V_TMP+1}, s{S_BUF}, v{V_TA}')
    for s_ in range(16):
        a(f'ds_read_b128 {vr(V_SF+4*s_,4)}, v{V_TMP} offset:{64*s_}')
    for s_ in range(16):
        a(f's_waitcnt lgkmcnt({15-s_})')
        c = '0' if s_ == 0 else vr(V_SD, 4)
        a(f'v_mfma_f32_16x16x32_bf16 {vr(V_SD,4)}, {vr(V_SF+4*s_,4)}, {vr(V_Q+4*s_,4)}, {c}')
    if groups[1]: stage(groups[1])
    a.nop(8)
    for i in range(4): a(f'v_mul_f32 v{V_T+i}, v{V_SD+i}, v{V_SC}')
    a(f'v_max3_f32 v{V_TMP+2}, v{V_T}, v{V_T+1}, v{V_T+2}')
    a(f'v_max_f32 v{V_TMP+2}, v{V_TMP+2}, v{V_T+3}')
    xrow_allreduce(a, 'v_max_f32', V_TMP+2, V_TMP+3)
    a('s_mov_b64 exec, 0xffff')
    a(f'ds_write_b32 v{V_TW}, v{V_TMP+2} offset:{L_TMAX}')
    a('s_mov_b64 exec, -1')
    a('s_waitcnt lgkmcnt(0)\ns_barrier')
    a(f'ds_read_b128 {vr(V_PB,4)}, v{V_TRS} offset:{L_TMAX}')
    a(f'ds_read_b128 {vr(V_PB+4,4)}, v{V_TRP} offset:{L_TMAX}')
    a('s_waitcnt lgkmcnt(1)')
    a(f'v_max3_f32 v{V_TMP+2}, v{V_PB}, v{V_PB+1}, v{V_PB+2}')
    a(f'v_max3_f32 v{V_TMP+2}, v{V_TMP+2}, v{V_PB+3}, v{V_MS}')
    a(f'v_sub_f32 v{V_AL}, v{V_MS}, v{V_TMP+2}')
    for i in range(4): a(f'v_sub_f32 v{V_T+i}, v{V_T+i}, v{V_TMP+2}')
    a(f'v_exp_f32 v{V_AL}, v{V_AL}')
    for i in range(4): a(f'v_exp_f32 v{V_T+i}, v{V_T+i}')
    a(f'v_mov_b32 v{V_MS}, v{V_TMP+2}')
    a(f'v_cvt_pk_bf16_f32 v{V_TMP+4}, v{V_T}, v{V_T+1}')
    a(f'v_cvt_pk_bf16_f32 v{V_TMP+5}, v{V_T+2}, v{V_T+3}')
    a(f'ds_write_b64 v{V_PW}, {vr(V_TMP+4,2)} offset:{L_P}')
    a(f'v_add_f32 v{V_T}, v{V_T}, v{V_T+1}')
    a(f'v_add_f32 v{V_T+2}, v{V_T+2}, v{V_T+3}')
    a(f'v_fma_f32 v{V_LS}, v{V_LS}, v{V_AL}, v{V_T}')
    a(f'v_add_f32 v{V_LS}, v{V_LS}, v{V_T+2}')
    a('s_waitcnt lgkmcnt(1)')
    a(f'v_max3_f32 v{V_TMP+2}, v{V_PB+4}, v{V_PB+5}, v{V_PB+6}')
    a(f'v_max3_f32 v{V_TMP+2}, v{V_TMP+2}, v{V_PB+7}, v{V_MP}')
    a(f'v_sub_f32 v{V_AL}, v{V_MP}, v{V_TMP+2}')
    a(f'v_exp_f32 v{V_AL}, v{V_AL}')
    a(f'v_mov_b32 v{V_MP}, v{V_TMP+2}')
    for k in range(32): a(f'v_mul_f32 v{V_ACC+k}, v{V_ACC+k}, v{V_AL}')
    if groups[2]: stage(groups[2])
    a('s_waitcnt lgkmcnt(0)\ns_barrier')
    for t in range(4):
        a(f'ds_read_b128 {vr(V_PB+4*t,4)}, v{V_PR} offset:{L_P + 32*t}')
    for t in range(4):
        for cb in range(2):
            f = V_TF + 8*t + 4*cb
            off = t*16*TS + cb*64
            a(f'ds_read_b64_tr_b16 {vr(f,2)}, v{V_TMP+1} offset:{off}')
            a(f'ds_read_b64_tr_b16 {vr(f+2,2)}, v{V_TMP+1} offset:{off + 4*TS}')
    for t in range(4):
        a(f's_waitcnt lgkmcnt({12 - 4*t})')
        for cb in range(2):
            f = V_TF + 8*t + 4*cb
            a(f'v_mfma_f32_32x32x16_bf16 {vr(V_ACC+16*cb,16)}, {vr(f,4)}, {vr(V_PB+4*t,4)}, {vr(V_ACC+16*cb,16)}')
    if groups[3]: stage(groups[3])
    a(f's_sub_u32 s{S_BUF}, {BUF}, s{S_BUF}')
    a(f's_add_u32 s{S_IT}, s{S_IT}, 1')
    a(f's_cmp_lt_u32 s{S_IT}, 8\ns_cbranch_scc1 L_C_loop')
    stamp(a, cfg, 2)
    if cfg.cstop == 1: a('s_endpgm'); return
    xrow_allreduce(a, 'v_add_f32', V_LS, V_TMP+3)
    a('s_barrier')
    a('s_mov_b64 exec, 0xffff')
    a(f'ds_write_b32 v{V_TW}, v{V_LS} offset:{L_TMAX}')
    a('s_mov_b64 exec, -1')
    RS = 2064
    a(f'v_and_b32 v{V_TMP}, 31, v{V_LANE}')
    a(f'v_mul_u32_u24 v{V_TMP}, {RS}, v{V_TMP}')
    a(f'v_lshrrev_b32 v{V_TMP+1}, 5, v{V_LANE}')
    a(f'v_lshl_add_u32 v{V_TMP}, v{V_TMP+1}, 4, v{V_TMP}')
    a(f's_lshl_b32 s62, s{S_W}, 8\ns_add_u32 s62, s62, {L_T0}')
    a(f'v_add_u32 v{V_TMP}, s62, v{V_TMP}')
    a.nop(6)
    for cb in range(2):
        for k in range(4):
            a(f'ds_write_b128 v{V_TMP}, {vr(V_ACC+16*cb+4*k,4)} offset:{128*cb + 32*k}')
    a('s_waitcnt lgkmcnt(0)\ns_barrier')
    a(f's_mul_i32 s62, s{S_W}, {4*RS}\ns_add_u32 s62, s62, {L_T0}')
    a(f'v_lshl_add_u32 v{V_TMP}, v{V_LANE}, 5, s62')
    for r_ in range(4):
        for hf in range(2):
            a(f'ds_read_b128 {vr(V_SF+8*r_+4*hf,4)}, v{V_TMP} offset:{r_*RS + hf*16}')
    if cfg.cswz:
        K0 = {1: 0x83, 2: 0x02, 3: 0x00}[cfg.cswz]; K1 = 0x04 if cfg.cswz < 3 else 0; K2 = 0x08 if cfg.cswz < 3 else 0
        a(f'v_and_b32 v{V_TMP+2}, 1, v{V_G}')
        a(f'v_mul_u32_u24 v{V_TMP+1}, {(K0 << 8) | 0x10000:#x}, v{V_TMP+2}')
        a(f'v_lshrrev_b32 v{V_TMP+2}, 1, v{V_G}')
        a(f'v_mul_u32_u24 v{V_TMP+2}, {(K1 << 8) | 0x20000:#x}, v{V_TMP+2}')
        a(f'v_xor_b32 v{V_TMP+1}, v{V_TMP+1}, v{V_TMP+2}')
        a(f'v_lshl_add_u32 v{V_TMP+1}, v{V_C}, 4, v{V_TMP+1}')
        a(f's_and_b32 s62, s{S_H}, 15\ns_lshl_b32 s62, s62, 12\ns_lshl_b32 s63, s{S_W}, 9\ns_add_u32 s62, s62, s63')
        a(f's_lshl_b32 s63, s{S_B}, 19\ns_add_u32 s62, s62, s63')
        a(f'v_xor_b32 v{V_TMP+1}, s62, v{V_TMP+1}')
    else:
        a(f's_lshl_b32 s62, s{S_B}, 5\ns_lshl_b32 s63, s{S_W}, 2\ns_add_u32 s62, s62, s63')
        a(f's_lshl_b32 s62, s62, 4\ns_and_b32 s63, s{S_H}, 15\ns_add_u32 s62, s62, s63')
        a(f's_lshl_b32 s62, s62, 10\ns_add_u32 s62, s62, {WS_CPART:#x}')
        spread(a, 'c', 62, S_H, 63)
        a(f'v_lshl_add_u32 v{V_TMP+1}, v{V_LANE}, 4, s62')
    for r_ in range(4):
        a(f's_waitcnt lgkmcnt({6 - 2*r_})')
        for k in range(4):
            a(f'v_cvt_pk_bf16_f32 v{V_SF+32+4*r_+k}, v{V_SF+8*r_+2*k}, v{V_SF+8*r_+2*k+1}')
        if cfg.cswz:
            a(f'v_xor_b32 v{V_TMP+2}, {((r_ & 1) * ((K2 << 8) | 0x40000)) ^ ((r_ >> 1) << 8):#x}, v{V_TMP+1}')
            a(f's_mov_b32 s63, {WS_CPART:#x}')
            a(f'buffer_store_dwordx4 {vr(V_SF+32+4*r_,4)}, v{V_TMP+2}, s[{SRD_WS}:{SRD_WS+3}], s63 offen {cfg.cppol.replace("+", " ")}')
            continue
        a(f's_mov_b32 s63, {r_*16384}')
        if 's' in cfg.xs and r_: a('s_waitcnt vmcnt(0)')
        if cfg.emu and r_:
            if cfg.emu >= 2: a(f'buffer_store_dwordx4 {vr(V_SF+32+4*r_,4)}, v{V_TMP+1}, s[{SRD_WS}:{SRD_WS+3}], s63 offen')
            if cfg.emu >= 3 and r_ == 3:
                a('s_waitcnt vmcnt(0)')
                a(f'v_xor_b32 v{V_TMP+2}, 0x2000, v{V_TMP+1}')
                for r2 in range(1, 4):
                    a(f's_mov_b32 s63, {r2*16384}')
                    a(f'buffer_load_dwordx4 {vr(V_SF+4*r2,4)}, v{V_TMP+2}, s[{SRD_WS}:{SRD_WS+3}], s63 offen {"nt" if cfg.emu == 3 else ""}')
            continue
        if cfg.cstop != 4: a(f'buffer_store_dwordx4 {vr(V_SF+32+4*r_,4)}, v{V_TMP+1}, s[{SRD_WS}:{SRD_WS+3}], s63 offen {cfg.cppol.replace("+", " ")}')
    if cfg.tag:
        a(f'ds_read_b128 {vr(V_PB,4)}, v{V_TRP} offset:{L_TMAX}')
        a(f'v_and_b32 v{V_TMP}, 31, v{V_LANE}')
        a(f's_lshl_b32 s63, s{S_H}, {9 if "c" in cfg.fl else 4}\ns_add_u32 s63, s63, {WS_CSTAT:#x}')
        a(f'v_lshl_add_u32 v{V_TMP}, v{V_TMP}, {4 if "c" in cfg.fl else 9}, s63')
        a('s_waitcnt lgkmcnt(0)')
        a(f'v_add_f32 v{V_PB}, v{V_PB}, v{V_PB+1}')
        a(f'v_add_f32 v{V_PB+2}, v{V_PB+2}, v{V_PB+3}')
        a(f'v_add_f32 v{V_PB+2}, v{V_PB}, v{V_PB+2}')
        a(f'v_mov_b32 v{V_PB}, v{V_MP}')
        a(f'v_mov_b32 v{V_PB+1}, s{S_TAG}\nv_mov_b32 v{V_PB+3}, s{S_TAG}')
        a('s_waitcnt vmcnt(0)\ns_barrier')
        if 'C' in cfg.asst:
            a(f's_cmp_lg_u32 s{S_W}, 1\ns_cbranch_scc1 L_C_noas')
            role_a4.assist(a, cfg, 'C', V_SF, V_ZERO, None)
            a.label('L_C_noas')
        a(f's_cmp_lg_u32 s{S_W}, 0\ns_cbranch_scc1 L_C_done')
        a('s_mov_b32 exec_hi, 0')
        a(f'buffer_store_dwordx4 {vr(V_PB,4)}, v{V_TMP}, s[{SRD_WS}:{SRD_WS+3}], 0 offen sc1')
        a('s_mov_b64 exec, -1')
        if cfg.mon > 1 and 'C' in cfg.ghost:
            a(f's_cmp_ge_u32 s{S_H}, 8\ns_cbranch_scc1 L_C_done')
            role_a4.exchange(a, cfg, 'C', V_SF, V_ZERO, None)
        a.label('L_C_done')
        if '2' in cfg.ct:
            code_touch(a, 'C2', 2, 244)
            a('s_waitcnt vmcnt(0)')
        stamp(a, cfg, 3)
        if cfg.pfx:
            a(f's_lshl_b32 s62, s{S_HP}, 21')
            a(f's_sub_u32 s63, {128 << 20:#x}, s62')
            srd(a, SRD_C, P_AV, off_s=62, nrec_s=63)
            a(f's_lshr_b32 s62, s{S_W}, 2\ns_lshl_b32 s62, s62, 26\ns_and_b32 s63, s{S_W}, 3\ns_lshl_b32 s63, s63, 12\ns_add_u32 s62, s62, s63')
            a(f'v_lshl_add_u32 v{V_TMP}, v{V_LANE}, 4, s62')
            rng = range(cfg.pf1, cfg.pf0 - 1, -1) if cfg.pfx == 1 else range(cfg.pf0, cfg.pf1 + 1)
            for t in rng:
                a(f's_mov_b32 s62, {t * 24 * 4096:#x}')
                for k in range(4):
                    a(f's_waitcnt vmcnt({cfg.pfl - 1})')
                    a(f'buffer_load_dwordx4 {vr(V_SF+4*k,4)}, v{V_TMP}, s[{SRD_C}:{SRD_C+3}], s62 offen offset:{1024*k} {cfg.pfpol}')
            a('s_waitcnt vmcnt(0)')
            stamp(a, cfg, 5)
        a('s_endpgm')
        return
    a(f's_cmp_lg_u32 s{S_W}, 0\ns_cbranch_scc1 L_C_nostat')
    a(f'ds_read_b128 {vr(V_PB,4)}, v{V_TRP} offset:{L_TMAX}')
    a(f's_lshl_b32 s62, s{S_B}, 5')
    a(f'v_and_b32 v{V_TMP}, 31, v{V_LANE}')
    a(f'v_add_u32 v{V_TMP}, s62, v{V_TMP}')
    a(f'v_lshlrev_b32 v{V_TMP}, 7, v{V_TMP}')
    a(f's_and_b32 s63, s{S_H}, 15\ns_lshl_b32 s63, s63, 3\ns_add_u32 s63, s63, {WS_CSTAT:#x}')
    a(f'v_add_u32 v{V_TMP}, s63, v{V_TMP}')
    a('s_waitcnt lgkmcnt(0)')
    a(f'v_add_f32 v{V_PB}, v{V_PB}, v{V_PB+1}')
    a(f'v_add_f32 v{V_PB+2}, v{V_PB+2}, v{V_PB+3}')
    a(f'v_add_f32 v{V_TMP+3}, v{V_PB}, v{V_PB+2}')
    a(f'v_mov_b32 v{V_TMP+2}, v{V_MP}')
    a('s_mov_b32 exec_hi, 0')
    a(f'buffer_store_dwordx2 {vr(V_TMP+2,2)}, v{V_TMP}, s[{SRD_WS}:{SRD_WS+3}], 0 offen sc1')
    a('s_mov_b64 exec, -1')
    a.label('L_C_nostat')
    signal(a, CNT_C, V_ZERO, V_TMP+4, 'Cc')
    stamp(a, cfg, 3)
    a('s_endpgm')
```

```python
import sys, math
from asmlib import Asm, vr, sr, lint

NAME = 'concat_heads__gqa_block_cached__compressed_kv_cla__decode'
NA = 6
LDS_BYTES = 150 * 1024
SCALE = (128 ** -0.5) * math.log2(math.e)
def f2u(x):
    import struct
    return struct.unpack('<I', struct.pack('<f', x))[0]
NEG_INF = 0xff800000
SENT = 0xffffffff

WS_QABS  = 0x000000
WS_CSTAT = 0x010000
WS_YSTAT = 0x014000
WS_YB    = 0x020000
WS_NONCE = 0x018000
WS_CTR   = 0x01A000
WS_PROG  = 0x0C0000
WS_GLOB  = 0x0D0000
WS_MEAN  = 0x01D000
WS_QA    = 0x040000
GOLDEN   = 0x9E3779B9
WS_YA    = 0x100000
WS_CPART = 0x200000
WS_STAMP = 0x800000

P_AX, P_AK, P_AV, P_AWQ, P_AWO, P_BX, P_BC, P_BWQ = 4, 6, 8, 10, 12, 14, 16, 18
P_BWUK, P_BWUV, P_BWO, P_OUT, P_DBG, P_WS = 20, 22, 24, 26, 28, 30
S_H, S_R, S_W = 32, 33, 34
S_HP = 89
S_TAG = 88
WS_YST2  = 0x050000
WS_MBOX  = 0x01A000

CNT_Q, CNT_C, CNT_YB, CNT_Z = 0, 64, 128, 192
SPIN_LIMIT = 1 << 16

DESCRIPTION = """
Generated by gen/gen.py (hand-written generator).  One launch, 256 workgroups of 8 waves, one per CU.
id -> xcd = id & 7 (expected placement, speed only), slot = id >> 3, head h = xcd + 8*(slot >> 3), role = slot & 7.
role 0..5 (A): K/V-cache attention of head h, both batches.  Waves 0-3 first read the weights and c_kv rows that
  roles 6 and 7 of the head need into the L2 (speed only).  Then they stream: first their whole share of K
  (scores by v_dot2 + DPP row sums, kept in registers), softmax numerators relative to the wave's true maximum, then
  the same rows of V (MFMA: A = p times a unit pattern, B = the V rows as loaded).  Waves 4-7 hold wo[h], fetch q,
  publish the workgroup's (max, sum) and finally y = o wo[h] (bf16).  Wave 6 posts the workgroup's progress, wave 5
  compares it with that of the others; a workgroup that has fallen behind keeps more loads in flight, and an idle wave
  of role 6 / 7 reads some of its next rows into the L2 (speed only).
role 6 (W): q_B = x w_q, q_abs = q_B w_uk^T (absorbed up-projection), later: merge of the C partials, w_uv, w_o,
  output columns of part B, and the softmax-weighted sum of the A partials for 32 output columns.
role 7 (C): q = x wq of head h for the A workgroups, then latent attention over 512 keys of c_kv for all 32 heads
  (MFMA, LDS tiles, online softmax).
Hand-offs: sc1 stores that carry a tag (a word of d_ws read on entry plus a constant; the last workgroup replaces the
  word, so no earlier launch's tag matches); the y rows are polled against a sentinel written earlier in the same
  launch.  Every spin is bounded.
"""

class Cfg:
    two = True
    R = 32
    L0 = 8
    La = 7
    Lb = 6
    Lc = 6
    NKa = 7
    NVa = 9
    Lq = 4
    Lo = 4
    catch = 3
    sprio = 0
    cperm = 0
    spf = 'q,k,a,v,o,c38'
    spol = ''
    L0k = 8
    ct = ''
    snt = ''
    ybpol = 'sc1'
    cpre = '-'
    csp = ''
    wsoff = 0
    DV = 12
    Lt = 0
    Lk = 0
    le = 1
    nb = 12
    dfr = '8,18,22,26,30,34'
    fb = 0
    jp = ''
    fs = 4
    ist = 0
    hmap = '01234'
    bx = 0
    hx = ''
    pat = 0
    seq = 0
    cf = 1
    smf = 1
    ypol = 'sc1'
    zpol = 'sc1'
    lpol = 'sc1'
    fp = 0
    fsl = 5
    fth = 24
    fg = 0
    emu = 0
    opol = ''
    tlb = ''
    tn = 4
    tat = 260
    tpol = ''
    grot = 9
    gstr = 0x100
    gback = 2
    gpol = 'nt'
    ag = 0
    xs = ''
    tctl = 0
    gpar = 1
    cfirst = 1
    spm = 1
    st0 = 0
    post = 4
    psl = 2
    pend = 640
    asst = 'WC'
    ath = 25
    lead = 48
    agap = 2
    acs = 4
    acr = 7
    apol = ''
    await_ = 3
    asl = 4
    spw = 0
    xdel = 0
    rppol = 'sc1'
    wlate = 0
    cfast = 0
    apf = 0
    Lp = 4
    fl = 'qcyb'
    tsl2 = 8
    idrot = 0
    st7 = False
    ghost = 'WC'
    gmix = 0
    ggain = 100
    gtest = 0
    mtest = 0
    mon = 2
    HK = 8
    HV = 8
    Ld = 9
    tha = -10
    thb = -10
    mp1 = 400
    mend = 620
    mdef = 0
    msl = 0
    gsl = 0
    pfx = 0
    pf0 = 13
    pf1 = 20
    pfl = 4
    pfpol = ''
    qtry = '20,24'
    rmap = 0x76543210
    hwid = False
    Lj = 0
    sw1 = 0
    sw2 = 16
    sl1 = 12
    sl2 = 20
    gate = 6
    clr0 = True
    tag = True
    qc = True
    cq = 6
    cqbar = True
    tsleep = 32
    ysleep = 8
    qsleep = 0
    lite = False
    cswz = 0
    cppol = 'sc1+nt'
    noclr = False
    nowq = False
    nowo = False
    stamps = False
    roles = 'AWC'
    kpol = 'nt'
    vpol = 'nt'
    wqpol = ''
    wopol = ''
    U = 8
    thr = 4
    half = False
    NF = 16
    xmix = False
    smix = False
    smix_order = 0x76543210
    noT = True
    cpf = False
    cpf2 = False
    cpf_kb = 17
    cpf2_kb = 12
    ybs = False
    ctl = False
    theta = 200
    msleep = 8
    xthr = -1
    xa = 1
    xb = 7
    slowd = 1
    wthr1 = 0
    clate = False
    wthr0 = 3
    pipe = False
    inc = True
    d4 = False
    idxor = 0
    wox = True
    q2 = True
    chk_it = 5
    fake = False
    gsc = 'sc1'
    hyb = True
    NS = 9
    twop = False
    afirst = False
    qacq = False
    smart = False
    late = 6
    step = False
    gsleep = 4
    brot = 5
    hrot2 = 0
    jrot = 2
    phi = 23
    ilv = False
    Lv = False
    Lpat = '+-'
    hrot = 0
    wthr = 3
    cthr = 4
    cspread = False
    aend = False
    ring = True
    L1 = 4
    L2 = 8
    N1 = 99
    dyn = False
    wstop = 0
    cstop = 0
    nowait = False
    psleep = 2
    spin = 16
    loopst = False
    qmode = 'red'
    early = 4
    rot = True
    qbar = True
    wo_stag = 1
    bpol = 'nt'
    cpol = 'nt'
    fine = False
    span = False
    swapb = False
    wo_iter = 0

def srd(a, d, ptr, off_s=None, off_hi=None, nrec=None, nrec_s=None):
    if off_s is None:
        a(f's_mov_b32 s{d}, s{ptr}')
        a(f's_and_b32 s{d+1}, s{ptr+1}, 0xffff')
    else:
        a(f's_add_u32 s{d}, s{ptr}, s{off_s}')
        a(f's_addc_u32 s{d+1}, s{ptr+1}, {("s%d" % off_hi) if off_hi is not None else 0}')
        a(f's_and_b32 s{d+1}, s{d+1}, 0xffff')
    if nrec_s is not None: a(f's_mov_b32 s{d+2}, s{nrec_s}')
    else: a(f's_mov_b32 s{d+2}, {nrec:#x}')
    a(f's_mov_b32 s{d+3}, 0x20000')

def stamp(a, cfg, idx, waited=False):
    if cfg.lite and idx == 0 and not cfg.le: a('s_memrealtime s[96:97]')
    if not cfg.stamps: return
    a('s_memrealtime s[90:91]')
    a(f's_lshl_b32 s92, s2, 3\ns_add_u32 s92, s92, s{S_W}\ns_lshl_b32 s92, s92, 6')
    a(f's_add_u32 s92, s92, {WS_STAMP + idx*8:#x}')
    a('s_waitcnt lgkmcnt(0)')
    a('v_mov_b32 v250, s92\nv_mov_b32 v252, s90\nv_mov_b32 v253, s91')
    a('s_mov_b64 s[94:95], exec\ns_mov_b64 exec, 1')
    a(f'global_store_dwordx2 v250, v[252:253], s[{P_WS}:{P_WS+1}] nt')
    a('s_mov_b64 exec, s[94:95]')
stamp.n = 0
def ist(a, cfg, i):
    if not cfg.ist: return
    if i >= 0:
        a(f's_memrealtime s[{90+2*i}:{91+2*i}]')
        return
    a(f's_lshl_b32 s62, s2, 3\ns_add_u32 s62, s62, s{S_W}\ns_lshl_b32 s62, s62, 6\ns_add_u32 s62, s62, {WS_STAMP:#x}')
    a('s_memrealtime s[64:65]\ns_waitcnt lgkmcnt(0)')
    a('v_mov_b32 v250, s62')
    for k in range(12): a(f'v_mov_b32 v{200+k}, s{90+k}')
    a('v_mov_b32 v212, s64\nv_mov_b32 v213, s65')
    a('s_mov_b64 exec, 1')
    for k in range(3): a(f'global_store_dwordx4 v250, v[{200+4*k}:{203+4*k}], s[{P_WS}:{P_WS+1}] offset:{16*k} nt')
    a(f'global_store_dwordx2 v250, v[212:213], s[{P_WS}:{P_WS+1}] offset:48 nt')
def lite_end(a, cfg, wave, idx):
    if not cfg.lite: return
    lab = f'L_lite_{stamp.n}'; stamp.n += 1
    a(f's_cmp_lg_u32 s{S_W}, {wave}\ns_cbranch_scc1 {lab}')
    a('s_memrealtime s[90:91]')
    a(f's_lshl_b32 s92, s2, 3\ns_add_u32 s92, s92, s{S_W}\ns_lshl_b32 s92, s92, 6')
    a(f's_add_u32 s92, s92, {WS_STAMP:#x}')
    a('s_waitcnt lgkmcnt(0)')
    a('v_mov_b32 v250, s92\nv_mov_b32 v252, s90\nv_mov_b32 v253, s91\nv_mov_b32 v254, s96\nv_mov_b32 v255, s97')
    a('s_mov_b64 exec, 1')
    a(f'global_store_dwordx2 v250, v[254:255], s[{P_WS}:{P_WS+1}] nt')
    a(f'global_store_dwordx2 v250, v[252:253], s[{P_WS}:{P_WS+1}] offset:{idx*8} nt')
    if cfg.hwid:
        a('s_getreg_b32 s90, hwreg(HW_REG_HW_ID)\ns_getreg_b32 s91, hwreg(HW_REG_XCC_ID)')
        a('v_mov_b32 v246, s90\nv_mov_b32 v247, s91')
        a(f'global_store_dwordx2 v250, v[246:247], s[{P_WS}:{P_WS+1}] offset:64 nt')
    a.label(lab)
def span_mark(a, cfg, end, wave=0):
    if not cfg.span: return
    lab = f'L_span_{stamp.n}'; stamp.n += 1
    a(f's_cmp_lg_u32 s{S_W}, {wave}\ns_cbranch_scc1 {lab}')
    if not end: a(f's_cmp_ge_u32 s2, 8\ns_cbranch_scc1 {lab}')
    a('s_memrealtime s[90:91]')
    a('s_waitcnt lgkmcnt(0)')
    if not end: a('s_not_b32 s90, s90')
    a('v_mov_b32 v252, s90\nv_mov_b32 v250, 0')
    a('s_mov_b64 s[94:95], exec\ns_mov_b64 exec, 1')
    a(f'global_atomic_umax v250, v252, s[{P_DBG}:{P_DBG+1}] offset:{36 if end else 32} sc1')
    a('s_mov_b64 exec, s[94:95]')
    a.label(lab)

V_LANE, V_C, V_G = 1, 2, 3
V_MASK = 4

def common_lane_setup(a, masks=True):
    a(f'v_and_b32 v{V_LANE}, 63, v0')
    a(f'v_and_b32 v{V_C}, 15, v0')
    a(f'v_bfe_u32 v{V_G}, v0, 4, 2')
    if masks: mask_setup(a)

def mask_setup(a, t=8):
    a(f'v_and_b32 v{t}, 1, v0')
    a(f'v_lshlrev_b32 v{t}, 4, v{t}')
    a(f'v_mov_b32 v{t+1}, 0xffff')
    a(f'v_lshlrev_b32 v{t}, v{t}, v{t+1}')
    a(f'v_bfe_u32 v{t+1}, v0, 1, 2')
    for i in range(4):
        a(f'v_cmp_eq_u32 vcc, {i}, v{t+1}')
        a('s_nop 1')
        a(f'v_cndmask_b32 v{V_MASK+i}, 0, v{t}, vcc')

def spread(a, key, d, src, t):
    if key in CFG.csp: a(f's_and_b32 s{t}, s{src}, 7\ns_lshl_b32 s{t}, s{t}, 23\ns_add_u32 s{d}, s{d}, s{t}')

def snt(key): return ' nt' if key in CFG.snt else ''

def late_entry(a, cfg, masks=True):
    if not cfg.fs: return
    if cfg.fs > 3:
        a(f's_mov_b32 s{S_HP}, s{S_H}')
        common_lane_setup(a, False)
    if masks: mask_setup(a)
    a('s_waitcnt lgkmcnt(0)')
    if cfg.wsoff: a(f's_add_u32 s{P_WS}, s{P_WS}, {cfg.wsoff << 20:#x}\ns_addc_u32 s{P_WS+1}, s{P_WS+1}, 0')
    ist(a, cfg, 1)

def rowcomb(a, cfg, X, Wr, ACC, AOP, TMP, wait_first, after=None):
    for s in range(16):
        sel = '0x01000100' if s % 2 == 0 else '0x03020302'
        t = TMP + (s & 1)
        A = AOP + 4 * (s & 1)
        a(f's_mov_b32 s60, {sel}')
        a(f'v_perm_b32 v{t}, v{X + s//2}, v{X + s//2}, s60')
        for i in range(4):
            a(f'v_and_b32 v{A+i}, v{t}, v{V_MASK+i}')
        n = 15 - s + wait_first + (s if after else 0)
        a(f's_waitcnt vmcnt({min(63, n)})')
        a('s_nop 0')
        c = '0' if s == 0 else vr(ACC, 4)
        a(f'v_mfma_f32_16x16x32_bf16 {vr(ACC,4)}, {vr(A,4)}, {vr(Wr+4*s,4)}, {c}')
        if after: after(s)

def poll(a, cnt_off, target, vt, vz, tag):
    a(f's_mov_b32 s64, 0')
    a.label(f'L_poll_{tag}')
    a(f'global_load_dword v{vt}, v{vz}, s[{P_DBG}:{P_DBG+1}] offset:{cnt_off} sc1')
    a('s_waitcnt vmcnt(0)')
    a(f'v_readfirstlane_b32 s65, v{vt}')
    a('s_add_u32 s64, s64, 1')
    a('s_nop 2')
    a(f's_cmp_ge_u32 s65, {target}\ns_cbranch_scc1 L_done_{tag}')
    a(f's_sleep {CFG.psleep}')
    a(f's_cmp_lt_u32 s64, {1 << CFG.spin}\ns_cbranch_scc1 L_poll_{tag}')
    a.label(f'L_done_{tag}')

def load_tag(a):
    a(f's_load_dword s{S_TAG}, s[{P_WS}:{P_WS+1}], {WS_NONCE:#x}')

def get_tag(a):
    a('s_waitcnt lgkmcnt(0)')
    a(f's_add_u32 s{S_TAG}, s{S_TAG}, {GOLDEN:#x}')

def tag_poll(a, tag, dst, vaddr, srd_, sleep, n=4, shrink=False):
    a('s_mov_b32 s64, 0')
    a.label(f'L_tp_{tag}')
    if n == 4: a(f'buffer_load_dwordx4 {vr(dst,4)}, v{vaddr}, s[{srd_}:{srd_+3}], 0 offen sc1')
    else: a(f'buffer_load_dword v{dst}, v{vaddr}, s[{srd_}:{srd_+3}], 0 offen sc1')
    a('s_waitcnt vmcnt(0)')
    if n == 4:
        a(f'v_cmp_ne_u32 s[62:63], s{S_TAG}, v{dst+1}')
        a(f'v_cmp_ne_u32 vcc, s{S_TAG}, v{dst+3}')
        a('s_add_u32 s64, s64, 1')
        a('s_nop 0')
        a('s_or_b64 vcc, vcc, s[62:63]')
    else:
        a(f'v_cmp_ne_u32 vcc, s{S_TAG}, v{dst}')
        a('s_add_u32 s64, s64, 1')
        a('s_nop 0')
        a('s_or_b64 vcc, vcc, vcc')
    a(f's_cbranch_scc0 L_tp_{tag}_ok')
    if shrink: a('s_mov_b64 exec, vcc')
    if sleep: a(f's_sleep {sleep}')
    a(f's_cmp_lt_u32 s64, {SPIN_LIMIT}\ns_cbranch_scc1 L_tp_{tag}')
    a.label(f'L_tp_{tag}_ok')

def signal(a, cnt_off, vz, vt, tag):
    a('s_waitcnt vmcnt(0)\ns_barrier')
    a(f's_cmp_lg_u32 s{S_W}, 0\ns_cbranch_scc1 L_sig_{tag}')
    a(f'v_mov_b32 v{vt}, 1')
    a('s_mov_b64 exec, 1')
    a(f'global_atomic_add v{vz}, v{vt}, s[{P_DBG}:{P_DBG+1}] offset:{cnt_off} sc1')
    a('s_mov_b64 exec, -1')
    a.label(f'L_sig_{tag}')

def wait_counter(a, cnt_off, target, vt, vz, tag, acquire=False):
    a(f's_cmp_lg_u32 s{S_W}, 0\ns_cbranch_scc1 L_wc_{tag}')
    poll(a, cnt_off, target, vt, vz, tag)
    if acquire:
        a('buffer_inv sc1')
        a('s_waitcnt vmcnt(0)')
    a.label(f'L_wc_{tag}')
    a('s_barrier')

def code_prefetch(a, tag, tmp, dst, first_label, kib):
    a('s_getpc_b64 s[62:63]')
    a.label(f'L_pc_{tag}')
    a(f's_sub_u32 s62, s62, L_pc_{tag}-{first_label}')
    a('s_subb_u32 s63, s63, 0')
    a(f'v_lshlrev_b32 v{tmp}, 4, v{V_LANE}')
    a(f'v_mov_b32 v{tmp+1}, s63')
    a(f'v_add_co_u32 v{tmp}, vcc, s62, v{tmp}')
    a('s_nop 1')
    a(f'v_addc_co_u32 v{tmp+1}, vcc, 0, v{tmp+1}, vcc')
    for k in range(kib):
        a(f'global_load_dwordx4 {vr(dst,4)}, {vr(tmp,2)}, off')
        if k + 1 < kib:
            a(f'v_add_co_u32 v{tmp}, vcc, 0x400, v{tmp}')
            a('s_nop 1')
            a(f'v_addc_co_u32 v{tmp+1}, vcc, 0, v{tmp+1}, vcc')

def code_touch(a, tag, wave, t):
    a(f's_cmp_lg_u32 s{S_W}, {wave}\ns_cbranch_scc1 L_ct_{tag}')
    a('s_getpc_b64 s[62:63]')
    a.label(f'L_pc_{tag}')
    a(f's_sub_u32 s62, s62, L_pc_{tag}-{NAME}_kernel')
    a('s_subb_u32 s63, s63, 0')
    a(f's_lshr_b32 s61, s{S_H}, 3\ns_lshl_b32 s61, s61, 13')
    a(f'v_lshl_add_u32 v{t}, v{V_LANE}, 7, s61')
    a(f'v_min_u32 v{t}, L_exit-{NAME}_kernel, v{t}')
    a(f'v_mov_b32 v{t+1}, s63')
    a(f'v_add_co_u32 v{t}, vcc, s62, v{t}')
    a('s_nop 1')
    a(f'v_addc_co_u32 v{t+1}, vcc, 0, v{t+1}, vcc')
    a(f'global_load_dword v{t+2}, {vr(t,2)}, off')
    a.label(f'L_ct_{tag}')

def xrow_allreduce(a, op, x, tmp, steps=(16, 32)):
    for st in steps:
        a(f'v_mov_b32 v{tmp}, v{x}')
        a.nop(2)
        a(f'v_permlane{st}_swap_b32 v{x}, v{tmp}')
        a.nop(1)
        a(f'{op} v{x}, v{x}, v{tmp}')

def slice_loads(a, srd_, voff, dst, pol, kind, thr=0):
    n = 0
    if kind == 'rows':
        for s_ in range(16):
            if thr: a(f's_waitcnt vmcnt({thr-1})')
            a(f's_mov_b32 s62, {s_*(256 if CFG.fake else 8192)}')
            a(f'buffer_load_dwordx4 {vr(dst+4*s_,4)}, v{voff}, s[{srd_}:{srd_+3}], s62 offen {pol}')
    else:
        for s_ in range(4):
            for cb in range(4):
                if thr: a(f's_waitcnt vmcnt({thr-1})')
                a(f'buffer_load_dwordx4 {vr(dst+16*s_+4*cb,4)}, v{voff}, s[{srd_}:{srd_+3}], 0 offen offset:{s_*1024+cb*256} {pol}')

def rows_voff(a, v):
    a(f'v_lshlrev_b32 v{v}, {12 if CFG.fake else 17}, v{V_G}')
    a(f'v_lshl_add_u32 v{v}, v{V_C}, 4, v{v}')
    a(f's_lshl_b32 s62, s{S_W}, {14 if CFG.fake else 19}')
    if CFG.fake: a(f's_mul_i32 s61, s{S_H}, {131072 - 256}\ns_add_u32 s62, s62, s61')
    a(f'v_add_u32 v{v}, s62, v{v}')
def wo_voff(a, v):
    a(f'v_lshlrev_b32 v{v}, 12, v{V_G}')
    a(f'v_lshl_add_u32 v{v}, v{V_C}, 4, v{v}')
    a(f's_lshl_b32 s62, s{S_W}, 14')
    a(f'v_add_u32 v{v}, s62, v{v}')

def dtile_to_lds(a, D, tmp, base, wstride_sh, bstride_sh, ncb):
    a(f'v_lshrrev_b32 v{tmp}, 1, v{V_G}')
    a(f'v_lshlrev_b32 v{tmp}, {bstride_sh}, v{tmp}')
    a(f'v_lshl_add_u32 v{tmp}, v{V_C}, 5, v{tmp}')
    a(f'v_and_b32 v{tmp+1}, 1, v{V_G}')
    a(f'v_lshl_add_u32 v{tmp}, v{tmp+1}, 4, v{tmp}')
    a(f's_lshl_b32 s63, s{S_W}, {wstride_sh}')
    a(f'v_add_u32 v{tmp}, s63, v{tmp}')
    a.nop(2)
    for cb in range(ncb):
        if cb == ncb - 1: a.nop(6)
        a(f'ds_write_b128 v{tmp}, {vr(D+4*cb,4)} offset:{base + 512*cb}')


def q_reduce(a, D, tmp, L_QP, L_QB, tag):
    dtile_to_lds(a, D, tmp, L_QP, 10, 9, 1)
    a('s_waitcnt lgkmcnt(0)\ns_barrier')
    a(f's_cmp_ge_u32 s{S_W}, 4\ns_cbranch_scc1 L_{tag}_qskip')
    a(f'v_lshlrev_b32 v{tmp+2}, 2, v0')
    for w in range(8):
        a(f'ds_read_b32 v{tmp+4+w}, v{tmp+2} offset:{L_QP + 1024*w}')
    a('s_waitcnt lgkmcnt(0)')
    for w in range(1, 8):
        a(f'v_add_f32 v{tmp+4}, v{tmp+4}, v{tmp+4+w}')
    a(f'v_cvt_pk_bf16_f32 v{tmp+4}, v{tmp+4}, v{tmp+4}')
    a(f'v_lshlrev_b32 v{tmp+2}, 1, v0')
    a(f'ds_write_b16 v{tmp+2}, v{tmp+4} offset:{L_QB}')
    a('s_waitcnt lgkmcnt(0)')
    a.label(f'L_{tag}_qskip')
    a('s_barrier')

def role_A2(a, cfg):
    L_QP, L_QB, L_OB, L_SB, L_YB = 0, 8192, 8704, 12800, 16384
    SRD_K, SRD_V, SRD_W, SRD_X = 40, 44, 48, 52
    S_B, S_W4, S_N, S_SIG, S_IT = 35, 36, 37, 38, 39
    S_WOIT, S_RHO = 56, 57
    S_BIAS = 66
    U = cfg.U
    V_WOFF, V_Q = 9, 10
    V_OC, V_ON = [8, 14], [15, 250 - 1]
    V_K = 16
    V_V = V_K + 4 * U
    V_W = V_V + 4 * U
    V_X = V_W + 64
    V_T = V_X + 8
    V_P = V_T + U
    V_A = V_P + max(U, 4)
    V_ACC = V_A + 4 * max(U, 4)
    V_M, V_L, V_AL, V_MN, V_SC, V_XX, V_CLR, V_ZERO = [V_ACC + 4 + k for k in range(8)]
    V_Y = V_ACC + 12
    V_TMP = V_Y + 16
    V_CADDR, V_GRAB, V_ONE = V_TMP + 12, V_TMP + 13, V_TMP + 14
    V_ST = V_TMP + 12
    assert not (cfg.step and (cfg.dyn or cfg.ilv))
    S_UN = 59
    S_CU = 58
    NU, NWV = 2048 // U, 4 * NA
    dyn = cfg.dyn
    assert V_TMP + 15 <= 249 and V_M % 2 == 0
    V_S = V_K
    starts = [2048 * j // NA for j in range(NA + 1)]
    NIT = -(-max(starts[j+1] - starts[j] for j in range(NA)) // (4 * U))
    STEP = 4 * U * 1024
    L1, L2, N1 = cfg.L1, cfg.L2 or cfg.L1, min(cfg.N1, NIT)
    assert 1 <= L1 <= L2 <= 2 * U
    a.label('L_roleA')
    stamp(a, cfg, 0)
    a(f's_lshr_b32 s{S_B}, s{S_W}, 2')
    a(f's_and_b32 s{S_W4}, s{S_W}, 3')
    L_XA = 49152
    S_BASE = S_RHO
    srd(a, SRD_X, P_AX, nrec=2048)
    a(f's_cmp_ge_u32 s{S_W}, 2\ns_cbranch_scc1 L_A_nox')
    a(f'v_lshlrev_b32 v{V_TMP+2}, 4, v0')
    a(f'buffer_load_dwordx4 {vr(V_X,4)}, v{V_TMP+2}, s[{SRD_X}:{SRD_X+3}], 0 offen')
    a.label('L_A_nox')
    a(f's_lshl_b32 s62, s{S_H}, 8')
    a(f's_sub_u32 s63, {512*8192:#x}, s62')
    srd(a, SRD_W, P_AWQ, off_s=62, nrec_s=63)
    a(f's_mul_i32 s60, s{S_R}, {171 if cfg.rot else 0}\ns_lshr_b32 s60, s60, 3')
    a(f's_lshl_b32 s61, s{S_B}, 6\ns_add_u32 s60, s60, s61\ns_add_u32 s60, s60, s{S_W4}')
    a(f's_and_b32 s{S_BASE}, s60, 127')
    a(f'v_lshlrev_b32 v{V_TMP+1}, 13, v{V_G}')
    a(f'v_lshl_add_u32 v{V_TMP+1}, v{V_C}, 4, v{V_TMP+1}')
    for s in range(16):
        a(f's_add_u32 s62, s{S_BASE}, {4*s}\ns_and_b32 s62, s62, 127\ns_lshl_b32 s62, s62, 15')
        a(f'buffer_load_dwordx4 {vr(V_W+4*s,4)}, v{V_TMP+1}, s[{SRD_W}:{SRD_W+3}], s62 offen {cfg.wqpol}')
    a(f's_cmp_ge_u32 s{S_W}, 2\ns_cbranch_scc1 L_A_nox2')
    a(f'v_lshlrev_b32 v{V_TMP+2}, 4, v{V_LANE}')
    a(f's_lshl_b32 s62, s{S_W}, 11')
    a(f'v_add_u32 v{V_TMP+2}, s62, v{V_TMP+2}')
    a('s_waitcnt vmcnt(16)')
    a(f'ds_write_b128 v{V_TMP+2}, {vr(V_X,4)} offset:{L_XA}')
    a(f'ds_write_b128 v{V_TMP+2}, {vr(V_X,4)} offset:{L_XA + 1024}')
    a('s_waitcnt lgkmcnt(0)')
    a.label('L_A_nox2')
    if dyn:
        a(f's_lshl_b32 s62, s{S_B}, 5\ns_add_u32 s62, s62, s{S_H}')
        a(f's_lshl_b32 s61, s62, 7\ns_add_u32 s61, s61, {WS_CTR:#x}')
        a(f'v_mov_b32 v{V_CADDR}, s61')
        a(f'v_mov_b32 v{V_ONE}, 1')
        a(f's_lshl_b32 s62, s62, 21')
        a(f's_mov_b32 s63, {2 << 20:#x}')
        srd(a, SRD_K, P_AK, off_s=62, nrec_s=63)
        srd(a, SRD_V, P_AV, off_s=62, nrec_s=63)
        a(f's_lshl_b32 s60, s{S_R}, 2\ns_add_u32 s60, s60, s{S_W4}')
        a(f's_mul_i32 s62, s60, {U*1024}')
        a(f'v_lshl_add_u32 v{V_OC[0]}, v{V_LANE}, 4, s62')
        if U > 4: a(f'v_add_u32 v{V_OC[1]}, 0x1000, v{V_OC[0]}')
    elif cfg.ilv:
        UB = 4 * U * 1024
        NFULL = (2048 // (4 * U)) // NA
        REM0 = NFULL * NA * 4 * U
        rst = [REM0 + (2048 - REM0) * j // NA for j in range(NA + 1)]
        assert max(rst[j+1] - rst[j] for j in range(NA)) <= 4 * U and NFULL + 1 == NIT
        a(f's_mov_b32 s60, {rst[0]}\ns_mov_b32 s61, {rst[1]}')
        for j in range(1, NA):
            a(f's_cmp_eq_u32 s{S_R}, {j}')
            a(f's_cselect_b32 s60, {rst[j]}, s60')
            a(f's_cselect_b32 s61, {rst[j+1]}, s61')
        S_LAST = 58
        a(f's_lshl_b32 s{S_LAST}, s60, 10')
        a(f's_sub_u32 s{S_N}, s61, s60')
        a(f's_lshl_b32 s63, s61, 10')
        a(f's_lshl_b32 s62, s{S_B}, 5\ns_add_u32 s62, s62, s{S_H}')
        a(f's_lshl_b32 s62, s62, 21')
        srd(a, SRD_K, P_AK, off_s=62, nrec_s=63)
        srd(a, SRD_V, P_AV, off_s=62, nrec_s=63)
        NR = NFULL * NA
        S_U, S_WOF = 64, 65
        a(f's_mul_i32 s{S_WOF}, s{S_W4}, {U*1024}')
        a(f's_add_u32 s{S_LAST}, s{S_LAST}, s{S_WOF}')
        a(f's_lshl_b32 s62, s{S_B}, 5\ns_add_u32 s62, s62, s{S_H}')
        a(f's_mul_i32 s62, s62, {cfg.phi}')
        a(f's_mul_hi_u32 s61, s62, {-(-(1 << 32) // NR):#x}\ns_mul_i32 s61, s61, {NR}\ns_sub_u32 s62, s62, s61')
        a(f's_add_u32 s{S_U}, s62, s{S_R}')
        def wrap_u():
            a(f's_sub_u32 s61, s{S_U}, {NR}\ns_cmp_ge_u32 s{S_U}, {NR}\ns_cselect_b32 s{S_U}, s61, s{S_U}')
        def unit_off(dst):
            a(f's_mul_i32 s62, s{S_U}, {UB}\ns_add_u32 s62, s62, s{S_WOF}')
            a(f'v_lshl_add_u32 v{dst[0]}, v{V_LANE}, 4, s62')
            if U > 4: a(f'v_add_u32 v{dst[1]}, 0x1000, v{dst[0]}')
        wrap_u(); unit_off(V_OC)
        a(f's_add_u32 s{S_U}, s{S_U}, {NA}')
        wrap_u(); unit_off(V_ON)
    else:
        S_BA, S_BB = 74, 75
        if cfg.twop:
            NH = 5 if U == 8 else 10
            LO = NA * NH * 4 * U
            sb = [LO + (2048 - LO) * j // NA for j in range(NA + 1)]
            a(f's_mov_b32 s60, {sb[0]}\ns_mov_b32 s61, {sb[1]}')
            for j in range(1, NA):
                a(f's_cmp_eq_u32 s{S_R}, {j}')
                a(f's_cselect_b32 s60, {sb[j]}, s60')
                a(f's_cselect_b32 s61, {sb[j+1]}, s61')
            a(f's_sub_u32 s{S_N}, s61, s60\ns_add_u32 s{S_N}, s{S_N}, {NH*4*U}')
            a(f's_mul_i32 s{S_BA}, s{S_R}, {NH*4*U*1024}')
            a(f's_sub_u32 s{S_BB}, s60, {NH*4*U}\ns_lshl_b32 s{S_BB}, s{S_BB}, 10')
            a(f's_lshl_b32 s63, s61, 10')
            a(f's_lshl_b32 s62, s{S_B}, 5\ns_add_u32 s62, s62, s{S_H}')
            a(f's_lshl_b32 s62, s62, 21')
        else:
            a(f's_mov_b32 s60, 0\ns_mov_b32 s61, {starts[1]}')
            for j in range(1, NA):
                a(f's_cmp_eq_u32 s{S_R}, {j}')
                a(f's_cselect_b32 s60, {starts[j]}, s60')
                a(f's_cselect_b32 s61, {starts[j+1]}, s61')
            a(f's_sub_u32 s{S_N}, s61, s60')
            a(f's_lshl_b32 s62, s{S_B}, 5\ns_add_u32 s62, s62, s{S_H}')
            a(f's_lshl_b32 s62, s62, 21')
            a(f's_lshl_b32 s63, s60, 10\ns_add_u32 s62, s62, s63')
            a(f's_lshl_b32 s63, s{S_N}, 10')
        srd(a, SRD_K, P_AK, off_s=62, nrec_s=63)
        srd(a, SRD_V, P_AV, off_s=62, nrec_s=63)
        def part_base():
            if cfg.twop:
                a(f's_cmp_lt_u32 s{S_U}, {NH}\ns_cselect_b32 s61, s{S_BA}, s{S_BB}\ns_add_u32 s62, s62, s61')
        S_U, S_WOF = 64, 65
        a(f's_mul_i32 s{S_WOF}, s{S_W4}, {1024 if cfg.step else U*1024}')
        a(f's_mul_i32 s62, s{S_B}, {cfg.brot}')
        a(f's_mul_i32 s61, s{S_H}, {cfg.hrot2}\ns_add_u32 s62, s62, s61')
        a(f's_mul_i32 s61, s{S_R}, {cfg.jrot}\ns_add_u32 s62, s62, s61')
        a(f's_mul_hi_u32 s61, s62, {-(-(1 << 32) // NIT):#x}\ns_mul_i32 s61, s61, {NIT}\ns_sub_u32 s{S_U}, s62, s61')
        def wrap_u():
            a(f's_sub_u32 s61, s{S_U}, {NIT}\ns_cmp_ge_u32 s{S_U}, {NIT}\ns_cselect_b32 s{S_U}, s61, s{S_U}')
        def unit_off(dst):
            a(f's_mul_i32 s62, s{S_U}, {STEP}\ns_add_u32 s62, s62, s{S_WOF}')
            part_base()
            a(f'v_lshl_add_u32 v{dst[0]}, v{V_LANE}, 4, s62')
            if U > 4: a(f'v_add_u32 v{dst[1]}, 0x1000, v{dst[0]}')
        unit_off(V_OC)
        a(f's_mul_i32 s{S_CU}, s{S_U}, {4*U}')
        a(f's_add_u32 s{S_U}, s{S_U}, 1')
        wrap_u(); unit_off(V_ON)
    tog = [0]
    def slot_load(m):
        offs = V_OC if m < 2 * U else V_ON
        m %= 2 * U
        isv, i = m >= U, m % U
        dst = (V_V if isv else V_K) + 4 * i
        srd_ = SRD_V if isv else SRD_K
        pol = cfg.vpol if isv else cfg.kpol
        if cfg.step:
            if i == 0:
                a(f'buffer_load_dwordx4 {vr(dst,4)}, v{offs[0]}, s[{srd_}:{srd_+3}], 0 offen {pol}')
            else:
                t = V_ST + tog[0]; tog[0] ^= 1
                a(f'v_add_u32 v{t}, {4096*i}, v{offs[0]}')
                a(f'buffer_load_dwordx4 {vr(dst,4)}, v{t}, s[{srd_}:{srd_+3}], 0 offen {pol}')
        else:
            a(f'buffer_load_dwordx4 {vr(dst,4)}, v{offs[i // 4]}, s[{srd_}:{srd_+3}], 0 offen offset:{1024*(i%4)} {pol}')
    a(f'v_mov_b32 v{V_M}, 0xf149f2ca')
    a(f'v_mov_b32 v{V_L}, 0')
    for k in range(4): a(f'v_mov_b32 v{V_ACC+k}, 0')
    a(f'v_mov_b32 v{V_SC}, {f2u(SCALE):#x}')
    a(f'v_mov_b32 v{V_ZERO}, 0')
    if cfg.fine: stamp(a, cfg, 4)
    a('s_barrier')
    if cfg.fine: stamp(a, cfg, 5)
    ne = min(cfg.early, L1)
    XV = V_V
    a(f'v_lshrrev_b32 v{V_TMP}, 3, v{V_C}')
    a(f'v_lshlrev_b32 v{V_TMP}, 11, v{V_TMP}')
    a(f'v_lshl_add_u32 v{V_TMP}, v{V_G}, 1, v{V_TMP}')
    a(f's_lshl_b32 s62, s{S_BASE}, 3')
    a(f'v_add_u32 v{V_TMP}, s62, v{V_TMP}')
    for s in range(16):
        a(f'ds_read_u16 v{XV+s}, v{V_TMP} offset:{L_XA + 32*s}')
    nkv = 0
    nz = 0
    if dyn:
        a(f'global_load_dword v{V_GRAB}, v{V_ZERO}, s[{P_DBG}:{P_DBG+1}] offset:{CNT_Z} sc1'); nz = 1
    for s in range(16):
        t = V_TMP + 2 + (s & 1); A = V_A + 4 * (s & 1)
        a(f's_waitcnt lgkmcnt({15 - s})')
        a(f'v_lshl_or_b32 v{t}, v{XV+s}, 16, v{XV+s}')
        for i in range(4): a(f'v_and_b32 v{A+i}, v{t}, v{V_MASK+i}')
        a(f's_waitcnt vmcnt({15 - s + nkv + nz})')
        a('s_nop 0')
        c = '0' if s == 0 else vr(V_Y, 4)
        a(f'v_mfma_f32_16x16x32_bf16 {vr(V_Y,4)}, {vr(A,4)}, {vr(V_W+4*s,4)}, {c}')
        if s >= 16 - ne: slot_load(nkv); nkv += 1
    assert ne <= U
    if cfg.fine: stamp(a, cfg, 6)
    q_reduce(a, V_Y, V_TMP, L_QP, L_QB, 'A')
    for m in range(nkv, L1): slot_load(m)
    a(f'v_lshlrev_b32 v{V_TMP+2}, 4, v{V_C}')
    a(f's_lshl_b32 s62, s{S_B}, 8')
    a(f'v_add_u32 v{V_TMP+2}, s62, v{V_TMP+2}')
    a(f'ds_read_b128 {vr(V_Q,4)}, v{V_TMP+2} offset:{L_QB}')
    a(f's_lshl_b32 s62, s{S_H}, 17')
    a(f's_mov_b32 s63, {128*1024:#x}')
    srd(a, SRD_W, P_AWO, off_s=62, nrec_s=63)
    wo_voff(a, V_WOFF)
    a(f's_mul_i32 s{S_SIG}, s{S_W4}, {1 if cfg.step else U}')
    a(f's_mov_b32 s{S_IT}, 0')
    a(f's_mul_i32 s{S_WOIT}, s{S_R}, {cfg.wo_stag}\ns_add_u32 s{S_WOIT}, s{S_WOIT}, {cfg.wo_iter}')
    a('s_waitcnt lgkmcnt(0)')
    stamp(a, cfg, 1)
    if dyn:
        assert L1 == L2 and L1 < U
        a(f's_waitcnt vmcnt({L1})')
        a(f'v_readfirstlane_b32 s62, v{V_GRAB}')
        a('s_nop 3')
        a('s_cmp_ge_u32 s62, 32\ns_cbranch_scc1 L_A_z_ok')
        poll(a, CNT_Z, 32, V_GRAB, V_ZERO, 'A_z')
        a.label('L_A_z_ok')
    else:
        assert cfg.wo_iter + cfg.wo_stag * (NA - 1) < NIT - 1
    def body(L, tag, last_it):
        LK = [L] * (2 * U)
        if cfg.Lv:
            for n in range(2 * U):
                if cfg.Lpat[n % len(cfg.Lpat)] == '-' and n != 2 * U - 1: LK[n] = L - 1
        def issue(n):
            prev = (n - 1 + LK[n - 1]) if n > 0 else (L - 1)
            for m in range(prev + 1, n + LK[n] + 1): slot_load(m)
        def waitn(n):
            v = (LK[n - 1] if n > 0 else L) - 1
            if dyn and n < L: v += 1
            a(f's_waitcnt vmcnt({v})')
        N0 = 2 * U - L
        def next_unit():
            a(f'v_readfirstlane_b32 s{S_UN}, v{V_GRAB}')
            a('s_nop 3')
            a(f's_add_u32 s{S_UN}, s{S_UN}, {NWV}')
            a(f's_mul_i32 s62, s{S_UN}, {U*1024}')
            a(f'v_lshl_add_u32 v{V_ON[0]}, v{V_LANE}, 4, s62')
            if U > 4: a(f'v_add_u32 v{V_ON[1]}, 0x1000, v{V_ON[0]}')
            a(f's_cmp_lt_u32 s{S_UN}, {NU}\ns_cbranch_scc1 L_A_more{tag}')
            a(f'global_load_dword v{V_CLR}, v{V_ZERO}, s[{P_DBG}:{P_DBG+1}] offset:{CNT_Q} sc1')
            a.label(f'L_A_more{tag}')
        a('.p2align 6')
        a.label(f'L_A_loop{tag}')
        a(f's_cmp_lg_u32 s{S_IT}, s{S_WOIT}\ns_cbranch_scc1 L_A_nowo{tag}')
        slice_loads(a, SRD_W, V_WOFF, V_W, cfg.wopol, 'wo')
        if not dyn: a(f'global_load_dword v{V_CLR}, v{V_ZERO}, s[{P_DBG}:{P_DBG+1}] offset:{CNT_Q} sc1')
        a.label(f'L_A_nowo{tag}')
        if dyn:
            a('s_mov_b64 exec, 1')
            a(f'global_atomic_add v{V_GRAB}, v{V_CADDR}, v{V_ONE}, s[{P_WS}:{P_WS+1}] sc0 sc1')
            a('s_mov_b64 exec, -1')
        if cfg.loopst:
            for n, it in enumerate((2, 4, 6, 8)):
                a(f's_cmp_lg_u32 s{S_IT}, {it}\ns_cbranch_scc1 L_A_ls{n}{tag}')
                stamp(a, cfg, 4 + n)
                a.label(f'L_A_ls{n}{tag}')
        if cfg.ilv and not dyn:
            a(f's_cmp_eq_u32 s{S_IT}, {NIT-1}')
            a(f's_cselect_b32 s63, s{S_N}, {4*U}')
            for i in range(U):
                a(f's_add_u32 s62, s{S_SIG}, {i}')
                a(f's_cmp_lt_u32 s62, s63')
                a(f's_cselect_b32 s{S_BIAS+i}, 0, 0xff800000')
        elif not dyn:
            a(f's_add_u32 s63, s{S_SIG}, s{S_CU}')
            for i in range(U):
                a(f's_add_u32 s62, s63, {4*i if cfg.step else i}')
                a(f's_cmp_lt_u32 s62, s{S_N}')
                a(f's_cselect_b32 s{S_BIAS+i}, 0, 0xff800000')
        for i in range(U):
            waitn(i)
            a(f'v_dot2_f32_bf16 v{V_T+i}, v{V_K+4*i}, v{V_Q}, 0')
            for k in range(1, 4):
                a(f'v_dot2_f32_bf16 v{V_T+i}, v{V_K+4*i+k}, v{V_Q+k}, v{V_T+i}')
            issue(i)
        a.nop(2)
        for st in (8, 4, 2, 1):
            for i in range(U):
                a(f'v_add_f32_dpp v{V_T+i}, v{V_T+i}, v{V_T+i} row_ror:{st} row_mask:0xf bank_mask:0xf')
        for i in range(U):
            if dyn: a(f'v_mul_f32 v{V_T+i}, v{V_T+i}, v{V_SC}')
            else: a(f'v_fma_f32 v{V_T+i}, v{V_T+i}, v{V_SC}, s{S_BIAS+i}')
        a(f'v_max3_f32 v{V_XX}, v{V_T}, v{V_T+1}, v{V_T+2}')
        i = 3
        while i < U:
            if i + 1 < U: a(f'v_max3_f32 v{V_XX}, v{V_XX}, v{V_T+i}, v{V_T+i+1}'); i += 2
            else: a(f'v_max_f32 v{V_XX}, v{V_XX}, v{V_T+i}'); i += 1
        a.nop(2)
        a(f'v_max_f32_dpp v{V_XX}, v{V_XX}, v{V_XX} row_bcast:15 row_mask:0xa bank_mask:0xf')
        a.nop(2)
        a(f'v_max_f32_dpp v{V_XX}, v{V_XX}, v{V_XX} row_bcast:31 row_mask:0xc bank_mask:0xf')
        a.nop(1)
        a(f'v_readlane_b32 s62, v{V_XX}, 63')
        a.nop(2)
        a(f'v_max_f32 v{V_MN}, s62, v{V_M}')
        a(f'v_sub_f32 v{V_AL}, v{V_M}, v{V_MN}')
        for i in range(U):
            a(f'v_sub_f32 v{V_T+i}, v{V_T+i}, v{V_MN}')
        a(f'v_exp_f32 v{V_AL}, v{V_AL}')
        for i in range(U):
            a(f'v_exp_f32 v{V_T+i}, v{V_T+i}')
        a(f'v_mov_b32 v{V_M}, v{V_MN}')
        for k in range(4):
            a(f'v_mul_f32 v{V_ACC+k}, v{V_ACC+k}, v{V_AL}')
        for i in range(U):
            a(f'v_cvt_pk_bf16_f32 v{V_P+i}, v{V_T+i}, v{V_T+i}')
        a(f'v_mul_f32 v{V_L}, v{V_L}, v{V_AL}')
        for i in range(0, U, 2):
            a(f'v_add_f32 v{V_T+i}, v{V_T+i}, v{V_T+i+1}')
        for i in range(U):
            for k in range(4):
                a(f'v_and_b32 v{V_A+4*i+k}, v{V_P+i}, v{V_MASK+k}')
        for i in range(0, U, 2):
            a(f'v_add_f32 v{V_L}, v{V_L}, v{V_T+i}')
        for i in range(U):
            waitn(U + i)
            a(f'v_mfma_f32_16x16x32_bf16 {vr(V_ACC,4)}, {vr(V_A+4*i,4)}, {vr(V_V+4*i,4)}, {vr(V_ACC,4)}')
            if dyn and U + i == N0: next_unit()
            issue(U + i)
        for k in range(2 if U > 4 else 1):
            a(f'v_mov_b32 v{V_OC[k]}, v{V_ON[k]}')
        a(f's_add_u32 s{S_IT}, s{S_IT}, 1')
        if cfg.ilv and not dyn:
            a(f's_add_u32 s{S_U}, s{S_U}, {NA}')
            wrap_u()
            a(f's_mul_i32 s62, s{S_U}, {UB}\ns_add_u32 s62, s62, s{S_WOF}')
            a(f's_cmp_eq_u32 s{S_IT}, {NIT-2}\ns_cselect_b32 s62, s58, s62')
            a(f's_cmp_eq_u32 s{S_IT}, {NIT-1}\ns_cselect_b32 s62, {4 << 20:#x}, s62')
            a(f'v_lshl_add_u32 v{V_ON[0]}, v{V_LANE}, 4, s62')
            if U > 4: a(f'v_add_u32 v{V_ON[1]}, 0x1000, v{V_ON[0]}')
            a(f's_cmp_lt_u32 s{S_IT}, {last_it}')
        elif dyn:
            a(f's_cmp_lt_u32 s{S_UN}, {NU}')
        else:
            a(f's_mul_i32 s{S_CU}, s{S_U}, {4*U}')
            a(f's_add_u32 s{S_U}, s{S_U}, 1')
            wrap_u()
            a(f's_mul_i32 s62, s{S_U}, {STEP}\ns_add_u32 s62, s62, s{S_WOF}')
            part_base()
            a(f's_cmp_eq_u32 s{S_IT}, {NIT-1}\ns_cselect_b32 s62, {4 << 20:#x}, s62')
            a(f'v_lshl_add_u32 v{V_ON[0]}, v{V_LANE}, 4, s62')
            if U > 4: a(f'v_add_u32 v{V_ON[1]}, 0x1000, v{V_ON[0]}')
            a(f's_cmp_lt_u32 s{S_IT}, {last_it}')
        a(f's_cbranch_scc1 L_A_loop{tag}')
    if L2 != L1 and N1 < NIT:
        body(L1, 'a', N1)
        for m in range(L1, L2): slot_load(m)
        body(L2, 'b', NIT)
    else:
        body(L1, 'a', NIT)
    if dyn:
        a(f's_cmp_gt_u32 s{S_IT}, s{S_WOIT}\ns_cbranch_scc1 L_A_wo_ok')
        slice_loads(a, SRD_W, V_WOFF, V_W, cfg.wopol, 'wo')
        a.label('L_A_wo_ok')
    a('s_waitcnt vmcnt(0)')
    stamp(a, cfg, 2)
    role_A_tail(a, cfg, locals())

def role_A3(a, cfg):
    L_QP, L_QB, L_OB, L_SB, L_YB = 0, 8192, 8704, 12800, 16384
    SRD_K, SRD_V, SRD_W, SRD_X = 40, 44, 48, 52
    S_B, S_W4, S_N, S_SIG, S_IT = 35, 36, 37, 38, 39
    S_WOIT, S_RHO = 56, 57
    S_BIAS = 66
    U = cfg.U
    V_WOFF, V_Q = 9, 10
    V_OC, V_ON = [8, 14], [15, 250 - 1]
    V_K = 16
    V_V = V_K + 4 * U
    V_W = V_V + 4 * U
    V_X = V_W + 64
    V_T = V_X + 8
    V_P = V_T + U
    V_A = V_P + max(U, 4)
    V_ACC = V_A + 4 * max(U, 4)
    V_M, V_L, V_AL, V_MN, V_SC, V_XX, V_CLR, V_ZERO = [V_ACC + 4 + k for k in range(8)]
    V_Y = V_ACC + 12
    V_TMP = V_Y + 16
    V_CADDR, V_GRAB, V_ONE = V_TMP + 12, V_TMP + 13, V_TMP + 14
    V_ST = V_TMP + 12
    assert not (cfg.step and (cfg.dyn or cfg.ilv))
    S_UN = 59
    NOCLR = True
    S_CU = 58
    NU, NWV = 2048 // U, 4 * NA
    dyn = True
    assert V_TMP + 15 <= 249 and V_M % 2 == 0
    V_S = V_K
    starts = [2048 * j // NA for j in range(NA + 1)]
    NIT = -(-max(starts[j+1] - starts[j] for j in range(NA)) // (4 * U))
    STEP = 4 * U * 1024
    L1, L2, N1 = cfg.L1, cfg.L2 or cfg.L1, min(cfg.N1, NIT)
    assert 1 <= L1 <= L2 <= 2 * U
    a.label('L_roleA')
    stamp(a, cfg, 0)
    a(f's_lshr_b32 s{S_B}, s{S_W}, 2')
    a(f's_and_b32 s{S_W4}, s{S_W}, 3')
    L_XA = 49152
    S_BASE = S_RHO
    srd(a, SRD_X, P_AX, nrec=2048)
    a(f's_cmp_ge_u32 s{S_W}, 2\ns_cbranch_scc1 L_A_nox')
    a(f'v_lshlrev_b32 v{V_TMP+2}, 4, v0')
    a(f'buffer_load_dwordx4 {vr(V_X,4)}, v{V_TMP+2}, s[{SRD_X}:{SRD_X+3}], 0 offen')
    a.label('L_A_nox')
    a(f's_lshl_b32 s62, s{S_H}, 8')
    a(f's_sub_u32 s63, {512*8192:#x}, s62')
    srd(a, SRD_W, P_AWQ, off_s=62, nrec_s=63)
    a(f's_mul_i32 s60, s{S_R}, {171 if cfg.rot else 0}\ns_lshr_b32 s60, s60, 3')
    a(f's_lshl_b32 s61, s{S_B}, 6\ns_add_u32 s60, s60, s61\ns_add_u32 s60, s60, s{S_W4}')
    a(f's_and_b32 s{S_BASE}, s60, 127')
    a(f'v_lshlrev_b32 v{V_TMP+1}, 13, v{V_G}')
    a(f'v_lshl_add_u32 v{V_TMP+1}, v{V_C}, 4, v{V_TMP+1}')
    for s in range(16):
        a(f's_add_u32 s62, s{S_BASE}, {4*s}\ns_and_b32 s62, s62, 127\ns_lshl_b32 s62, s62, 15')
        a(f'buffer_load_dwordx4 {vr(V_W+4*s,4)}, v{V_TMP+1}, s[{SRD_W}:{SRD_W+3}], s62 offen {cfg.wqpol}')
    a(f's_cmp_ge_u32 s{S_W}, 2\ns_cbranch_scc1 L_A_nox2')
    a(f'v_lshlrev_b32 v{V_TMP+2}, 4, v{V_LANE}')
    a(f's_lshl_b32 s62, s{S_W}, 11')
    a(f'v_add_u32 v{V_TMP+2}, s62, v{V_TMP+2}')
    a('s_waitcnt vmcnt(16)')
    a(f'ds_write_b128 v{V_TMP+2}, {vr(V_X,4)} offset:{L_XA}')
    a(f'ds_write_b128 v{V_TMP+2}, {vr(V_X,4)} offset:{L_XA + 1024}')
    a('s_waitcnt lgkmcnt(0)')
    a.label('L_A_nox2')
    NS = cfg.NS
    assert U == 8 and not cfg.step and L1 <= U and L2 <= U and cfg.wo_iter + cfg.wo_stag * (NA - 1) < NS - 1
    a(f's_lshl_b32 s62, s{S_B}, 5\ns_add_u32 s62, s62, s{S_H}')
    a(f's_lshl_b32 s61, s62, 7\ns_add_u32 s61, s61, {WS_CTR:#x}')
    a(f'v_mov_b32 v{V_CADDR}, s61')
    a(f'v_mov_b32 v{V_ONE}, 1')
    a(f's_lshl_b32 s62, s62, 21')
    a(f's_mov_b32 s63, {2 << 20:#x}')
    srd(a, SRD_K, P_AK, off_s=62, nrec_s=63)
    srd(a, SRD_V, P_AV, off_s=62, nrec_s=63)
    S_U, S_WOF = 76, 77
    a(f's_mul_i32 s{S_WOF}, s{S_W4}, {U*1024}')
    a(f's_mul_i32 s61, s{S_R}, {NS*STEP}\ns_add_u32 s{S_WOF}, s{S_WOF}, s61')
    a(f's_mul_i32 s62, s{S_B}, {cfg.brot}')
    a(f's_mul_i32 s61, s{S_R}, {cfg.jrot}\ns_add_u32 s62, s62, s61')
    a(f's_mul_hi_u32 s61, s62, {-(-(1 << 32) // NS):#x}\ns_mul_i32 s61, s61, {NS}\ns_sub_u32 s{S_U}, s62, s61')
    def wrap_u():
        a(f's_sub_u32 s61, s{S_U}, {NS}\ns_cmp_ge_u32 s{S_U}, {NS}\ns_cselect_b32 s{S_U}, s61, s{S_U}')
    def unit_off(dst):
        a(f's_mul_i32 s62, s{S_U}, {STEP}\ns_add_u32 s62, s62, s{S_WOF}')
        a(f'v_lshl_add_u32 v{dst[0]}, v{V_LANE}, 4, s62')
        a(f'v_add_u32 v{dst[1]}, 0x1000, v{dst[0]}')
    unit_off(V_OC)
    a(f's_add_u32 s{S_U}, s{S_U}, 1')
    wrap_u(); unit_off(V_ON)
    tog = [0]
    def slot_load(m):
        offs = V_OC if m < 2 * U else V_ON
        m %= 2 * U
        isv, i = m >= U, m % U
        dst = (V_V if isv else V_K) + 4 * i
        srd_ = SRD_V if isv else SRD_K
        pol = cfg.vpol if isv else cfg.kpol
        if cfg.step:
            if i == 0:
                a(f'buffer_load_dwordx4 {vr(dst,4)}, v{offs[0]}, s[{srd_}:{srd_+3}], 0 offen {pol}')
            else:
                t = V_ST + tog[0]; tog[0] ^= 1
                a(f'v_add_u32 v{t}, {4096*i}, v{offs[0]}')
                a(f'buffer_load_dwordx4 {vr(dst,4)}, v{t}, s[{srd_}:{srd_+3}], 0 offen {pol}')
        else:
            a(f'buffer_load_dwordx4 {vr(dst,4)}, v{offs[i // 4]}, s[{srd_}:{srd_+3}], 0 offen offset:{1024*(i%4)} {pol}')
    a(f'v_mov_b32 v{V_M}, 0xff800000')
    a(f'v_mov_b32 v{V_L}, 0')
    for k in range(4): a(f'v_mov_b32 v{V_ACC+k}, 0')
    a(f'v_mov_b32 v{V_SC}, {f2u(SCALE):#x}')
    a(f'v_mov_b32 v{V_ZERO}, 0')
    a(f'ds_write_b32 v{V_ZERO}, v{V_ZERO} offset:12928')
    if cfg.ctl: a(f'ds_write_b32 v{V_ZERO}, v{V_ZERO} offset:12932')
    a('s_waitcnt lgkmcnt(0)')
    if cfg.fine: stamp(a, cfg, 4)
    a('s_barrier')
    if cfg.fine: stamp(a, cfg, 5)
    ne = min(cfg.early, L1)
    XV = V_V
    a(f'v_lshrrev_b32 v{V_TMP}, 3, v{V_C}')
    a(f'v_lshlrev_b32 v{V_TMP}, 11, v{V_TMP}')
    a(f'v_lshl_add_u32 v{V_TMP}, v{V_G}, 1, v{V_TMP}')
    a(f's_lshl_b32 s62, s{S_BASE}, 3')
    a(f'v_add_u32 v{V_TMP}, s62, v{V_TMP}')
    for s in range(16):
        a(f'ds_read_u16 v{XV+s}, v{V_TMP} offset:{L_XA + 32*s}')
    nkv = 0
    nz = 0
    if cfg.q2:
        AO = [V_A + 4 * s for s in range(8)] + [V_V + 16 + 4 * s for s in range(4)] + [V_T + 4 * s for s in range(4)]
        assert V_P == V_T + 8
        for s in range(16):
            t = V_TMP + 2 + (s & 1)
            a(f's_waitcnt lgkmcnt({15 - s})')
            a(f'v_lshl_or_b32 v{t}, v{XV+s}, 16, v{XV+s}')
            for i in range(4): a(f'v_and_b32 v{AO[s]+i}, v{t}, v{V_MASK+i}')
        a('s_nop 0')
        for s in range(16):
            a(f's_waitcnt vmcnt({15 - s + nkv + nz})')
            acc = V_Y + 4 * (s & 1)
            c = '0' if s < 2 else vr(acc, 4)
            a(f'v_mfma_f32_16x16x32_bf16 {vr(acc,4)}, {vr(AO[s],4)}, {vr(V_W+4*s,4)}, {c}')
            if s >= 16 - ne: slot_load(nkv); nkv += 1
        a.nop(8)
        for k in range(4): a(f'v_add_f32 v{V_Y+k}, v{V_Y+k}, v{V_Y+4+k}')
    else:
      for s in range(16):
        t = V_TMP + 2 + (s & 1); A = V_A + 4 * (s & 1)
        a(f's_waitcnt lgkmcnt({15 - s})')
        a(f'v_lshl_or_b32 v{t}, v{XV+s}, 16, v{XV+s}')
        for i in range(4): a(f'v_and_b32 v{A+i}, v{t}, v{V_MASK+i}')
        a(f's_waitcnt vmcnt({15 - s + nkv + nz})')
        a('s_nop 0')
        c = '0' if s == 0 else vr(V_Y, 4)
        a(f'v_mfma_f32_16x16x32_bf16 {vr(V_Y,4)}, {vr(A,4)}, {vr(V_W+4*s,4)}, {c}')
        if s >= 16 - ne: slot_load(nkv); nkv += 1
    assert ne <= U
    if cfg.fine: stamp(a, cfg, 6)
    q_reduce(a, V_Y, V_TMP, L_QP, L_QB, 'A')
    for m in range(nkv, L1): slot_load(m)
    a(f'v_lshlrev_b32 v{V_TMP+2}, 4, v{V_C}')
    a(f's_lshl_b32 s62, s{S_B}, 8')
    a(f'v_add_u32 v{V_TMP+2}, s62, v{V_TMP+2}')
    a(f'ds_read_b128 {vr(V_Q,4)}, v{V_TMP+2} offset:{L_QB}')
    a(f's_lshl_b32 s62, s{S_H}, 17')
    a(f's_mov_b32 s63, {128*1024:#x}')
    srd(a, SRD_W, P_AWO, off_s=62, nrec_s=63)
    wo_voff(a, V_WOFF)
    a(f's_mul_i32 s{S_SIG}, s{S_W4}, {1 if cfg.step else U}')
    a(f's_mov_b32 s{S_IT}, 0')
    a(f's_mul_i32 s{S_WOIT}, s{S_R}, {cfg.wo_stag}\ns_add_u32 s{S_WOIT}, s{S_WOIT}, {cfg.wo_iter}')
    a('s_waitcnt lgkmcnt(0)')
    stamp(a, cfg, 1)
    L_FLAG = 12928
    L_MODE = 12932
    V_PADR, V_MADR, V_MODE, V_PRG = V_TMP + 15, V_TMP + 16, V_TMP + 17, V_TMP + 18
    S_SLOW, S_FLG = 79, 80
    if cfg.ctl:
        assert V_PRG < 249 and cfg.xthr < 0
        a(f's_lshl_b32 s62, s{S_H}, 3\ns_add_u32 s62, s62, s{S_R}\ns_lshl_b32 s62, s62, 7\ns_add_u32 s62, s62, {WS_PROG:#x}')
        a(f'v_mov_b32 v{V_PADR}, s62')
        a(f's_lshl_b32 s62, s{S_H}, 7\ns_add_u32 s62, s62, {WS_MEAN:#x}')
        a(f'v_mov_b32 v{V_MADR}, s62')
        a(f'v_mov_b32 v{V_MODE}, 0')
        a(f's_mov_b32 s{S_SLOW}, 0\ns_mov_b32 s{S_FLG}, 0')
    assert cfg.chk_it + 1 < NS - 1
    S_BHC, S_BHN = 81, 82
    def softmax(U, hb=False):
        a.nop(2)
        for st in (8, 4, 2, 1):
            for i in range(U):
                a(f'v_add_f32_dpp v{V_T+i}, v{V_T+i}, v{V_T+i} row_ror:{st} row_mask:0xf bank_mask:0xf')
        for i in range(U):
            if hb and i >= 4: a(f'v_fma_f32 v{V_T+i}, v{V_T+i}, v{V_SC}, s{S_BHC}')
            else: a(f'v_mul_f32 v{V_T+i}, v{V_T+i}, v{V_SC}')
        a(f'v_max3_f32 v{V_XX}, v{V_T}, v{V_T+1}, v{V_T+2}')
        i = 3
        while i < U:
            if i + 1 < U: a(f'v_max3_f32 v{V_XX}, v{V_XX}, v{V_T+i}, v{V_T+i+1}'); i += 2
            else: a(f'v_max_f32 v{V_XX}, v{V_XX}, v{V_T+i}'); i += 1
        a.nop(2)
        a(f'v_max_f32_dpp v{V_XX}, v{V_XX}, v{V_XX} row_bcast:15 row_mask:0xa bank_mask:0xf')
        a.nop(2)
        a(f'v_max_f32_dpp v{V_XX}, v{V_XX}, v{V_XX} row_bcast:31 row_mask:0xc bank_mask:0xf')
        a.nop(1)
        a(f'v_readlane_b32 s62, v{V_XX}, 63')
        a.nop(2)
        a(f'v_max_f32 v{V_MN}, s62, v{V_M}')
        a(f'v_sub_f32 v{V_AL}, v{V_M}, v{V_MN}')
        for i in range(U):
            a(f'v_sub_f32 v{V_T+i}, v{V_T+i}, v{V_MN}')
        a(f'v_exp_f32 v{V_AL}, v{V_AL}')
        for i in range(U):
            a(f'v_exp_f32 v{V_T+i}, v{V_T+i}')
        a(f'v_mov_b32 v{V_M}, v{V_MN}')
        for k in range(4):
            a(f'v_mul_f32 v{V_ACC+k}, v{V_ACC+k}, v{V_AL}')
        for i in range(U):
            a(f'v_cvt_pk_bf16_f32 v{V_P+i}, v{V_T+i}, v{V_T+i}')
        a(f'v_mul_f32 v{V_L}, v{V_L}, v{V_AL}')
        for i in range(0, U, 2):
            a(f'v_add_f32 v{V_T+i}, v{V_T+i}, v{V_T+i+1}')
        for i in range(U):
            for k in range(4):
                a(f'v_and_b32 v{V_A+4*i+k}, v{V_P+i}, v{V_MASK+k}')
        for i in range(0, U, 2):
            a(f'v_add_f32 v{V_L}, v{V_L}, v{V_T+i}')
    HF = 2 if cfg.d4 else 1
    def flag_wait():
        a('s_mov_b32 s64, 0')
        a.label('L_A_flag')
        a(f'ds_read_b32 v{V_CLR}, v{V_ZERO} offset:{L_FLAG}')
        a('s_waitcnt lgkmcnt(0)')
        a(f'v_readfirstlane_b32 s62, v{V_CLR}')
        a('s_add_u32 s64, s64, 1')
        a('s_nop 2')
        a('s_cmp_lg_u32 s62, 0\ns_cbranch_scc1 L_A_flag_ok')
        a('s_sleep 8')
        a(f's_cmp_lt_u32 s64, {1 << 20}\ns_cbranch_scc1 L_A_flag')
        a.label('L_A_flag_ok')
    def body(L, tag, mode, last=None, slow=False):
        grab = mode != 'S'
        LK = [L] * (2 * U)
        if slow: LK = [L - cfg.slowd] * (2 * U - 1) + [L]
        def issue(n):
            prev = (n - 1 + LK[n - 1]) if n > 0 else (L - 1)
            for m in range(prev + 1, n + LK[n] + 1): slot_load(m)
        def waitn(n):
            v = (LK[n - 1] if n > 0 else L) - 1
            if grab and n < L: v += 1
            if mode == 'S' and n < L and cfg.wox:
                a(f's_cmp_eq_u32 s{S_IT}, s{S_WOIT}\ns_cbranch_scc1 L_A_wx{tag}{n}')
                a(f's_waitcnt vmcnt({v})')
                a.label(f'L_A_wx{tag}{n}')
                a(f's_waitcnt vmcnt({v + 16})')
                return
            a(f's_waitcnt vmcnt({v})')
        N0 = 2 * U - L
        def next_unit():
            a(f'v_readfirstlane_b32 s{S_UN}, v{V_GRAB}')
            a('s_nop 3')
            if cfg.half:
                NF = cfg.NF
                POOL0 = NS * NWV * 2
                a(f's_lshl_b32 s62, s{S_UN}, 1')
                a(f's_add_u32 s63, s{S_UN}, {NF}')
                a(f's_cmp_lt_u32 s{S_UN}, {NF}')
                a(f's_cselect_b32 s{S_UN}, s62, s63')
                a(f's_cselect_b32 s{S_BHN}, 0, 0xff800000')
                a(f's_mov_b32 s63, {4 << 20:#x}\ns_cselect_b32 s63, 0x1000, s63')
                a(f's_add_u32 s{S_UN}, s{S_UN}, {POOL0}')
                a(f's_lshl_b32 s62, s{S_UN}, 12')
                a(f'v_lshl_add_u32 v{V_ON[0]}, v{V_LANE}, 4, s62')
                a(f'v_add_u32 v{V_ON[1]}, s63, v{V_ON[0]}')
            else:
                a(f's_add_u32 s{S_UN}, s{S_UN}, {NS*NWV*HF}')
                a(f's_mul_i32 s62, s{S_UN}, {U*1024//HF}')
                a(f'v_lshl_add_u32 v{V_ON[0]}, v{V_LANE}, 4, s62')
                a(f'v_add_u32 v{V_ON[1]}, 0x1000, v{V_ON[0]}')
            if cfg.d4:
                a('s_mov_b64 exec, 1')
                a(f'global_atomic_add v{V_GRAB}, v{V_CADDR}, v{V_ONE}, s[{P_WS}:{P_WS+1}] sc0 {cfg.gsc}')
                a('s_mov_b64 exec, -1')
        if mode != 'T': a('.p2align 6')
        a.label(f'L_A_loop{tag}')
        if mode == 'S':
            a(f's_cmp_lg_u32 s{S_IT}, s{S_WOIT}\ns_cbranch_scc1 L_A_nowo{tag}')
            slice_loads(a, SRD_W, V_WOFF, V_W, cfg.wopol, 'wo')
            a.label(f'L_A_nowo{tag}')
            if not cfg.ctl:
                a(f's_cmp_lg_u32 s{S_W}, 0\ns_cbranch_scc1 L_A_nochk{tag}')
                a(f's_cmp_lg_u32 s{S_IT}, {cfg.chk_it}\ns_cbranch_scc1 L_A_nold{tag}')
                a(f'global_load_dword v{V_CLR}, v{V_ZERO}, s[{P_DBG}:{P_DBG+1}] offset:{CNT_Q} sc1')
                a.label(f'L_A_nold{tag}')
                a(f's_cmp_lg_u32 s{S_IT}, {cfg.chk_it + 1}\ns_cbranch_scc1 L_A_nochk{tag}')
                a(f'v_readfirstlane_b32 s62, v{V_CLR}')
                a('s_nop 3')
                a(f's_cmp_ge_u32 s62, 32\ns_cbranch_scc1 L_A_q_ok{tag}')
                poll(a, CNT_Q, 32, V_CLR, V_ZERO, f'A_q{tag}')
                a.label(f'L_A_q_ok{tag}')
                a(f'v_mov_b32 v{V_CLR}, 1')
                a(f'ds_write_b32 v{V_ZERO}, v{V_CLR} offset:{L_FLAG}')
                a.label(f'L_A_nochk{tag}')
            else:
                a(f's_cmp_lg_u32 s{S_W}, 0\ns_cbranch_scc1 L_A_nochk{tag}')
                a(f's_cmp_lt_u32 s{S_IT}, 2\ns_cbranch_scc1 L_A_c0{tag}')
                a(f's_cmp_lg_u32 s{S_FLG}, 0\ns_cbranch_scc1 L_A_c1{tag}')
                a(f's_cmp_lt_u32 s{S_IT}, 3\ns_cbranch_scc1 L_A_c2{tag}')
                a(f'v_readfirstlane_b32 s62, v{V_CLR}')
                a('s_nop 3')
                a(f's_cmp_ge_u32 s62, 32\ns_cbranch_scc1 L_A_c3{tag}')
                a(f's_cmp_lt_u32 s{S_IT}, {NS - 2}\ns_cbranch_scc1 L_A_c2{tag}')
                poll(a, CNT_Q, 32, V_CLR, V_ZERO, f'A_q{tag}')
                a.label(f'L_A_c3{tag}')
                a(f's_mov_b32 s{S_FLG}, 1')
                a(f'v_mov_b32 v{V_CLR}, 1')
                a(f'ds_write_b32 v{V_ZERO}, v{V_CLR} offset:{L_FLAG}')
                a(f'global_load_dword v{V_GRAB}, v{V_MADR}, s[{P_WS}:{P_WS+1}] sc1')
                a(f's_branch L_A_c0{tag}')
                a.label(f'L_A_c2{tag}')
                a(f'global_load_dword v{V_CLR}, v{V_ZERO}, s[{P_DBG}:{P_DBG+1}] offset:{CNT_Q} sc1')
                a(f's_branch L_A_c0{tag}')
                a.label(f'L_A_c1{tag}')
                a(f'v_readfirstlane_b32 s62, v{V_GRAB}')
                a(f's_sub_u32 s63, s{S_IT}, 1\ns_mul_i32 s63, s63, 192')
                a('s_nop 1')
                a(f's_add_u32 s62, s62, {cfg.theta}')
                a('s_cmp_gt_u32 s63, s62\ns_cselect_b32 s63, 1, 0')
                a(f's_cmp_eq_u32 s62, {cfg.theta}\ns_cselect_b32 s63, 0, s63')
                a(f'v_mov_b32 v{V_PRG}, s63')
                a(f'ds_write_b32 v{V_ZERO}, v{V_PRG} offset:{L_MODE}')
                a(f'global_load_dword v{V_GRAB}, v{V_MADR}, s[{P_WS}:{P_WS+1}] sc1')
                a.label(f'L_A_c0{tag}')
                a(f'v_mov_b32 v{V_PRG}, s{S_IT}')
                a('s_mov_b64 exec, 1')
                a(f'global_store_dword v{V_PADR}, v{V_PRG}, s[{P_WS}:{P_WS+1}] sc1')
                a('s_mov_b64 exec, -1')
                a.label(f'L_A_nochk{tag}')
        if mode == 'T': flag_wait()
        if grab:
            a('s_mov_b64 exec, 1')
            a(f'global_atomic_add v{V_GRAB}, v{V_CADDR}, v{V_ONE}, s[{P_WS}:{P_WS+1}] sc0 {cfg.gsc}')
            a('s_mov_b64 exec, -1')
        for i in range(U):
            waitn(i)
            a(f'v_dot2_f32_bf16 v{V_T+i}, v{V_K+4*i}, v{V_Q}, 0')
            for k in range(1, 4):
                a(f'v_dot2_f32_bf16 v{V_T+i}, v{V_K+4*i+k}, v{V_Q+k}, v{V_T+i}')
            if grab and i == N0: next_unit()
            issue(i)
        softmax(U, hb=(cfg.half and mode == 'D'))
        for i in range(U):
            waitn(U + i)
            a(f'v_mfma_f32_16x16x32_bf16 {vr(V_ACC,4)}, {vr(V_A+4*i,4)}, {vr(V_V+4*i,4)}, {vr(V_ACC,4)}')
            if grab and U + i == N0: next_unit()
            issue(U + i)
        for k in range(2):
            a(f'v_mov_b32 v{V_OC[k]}, v{V_ON[k]}')
        a(f's_add_u32 s{S_IT}, s{S_IT}, 1')
        if mode == 'S':
            if cfg.ctl: a(f'ds_read_b32 v{V_MODE}, v{V_ZERO} offset:{L_MODE}')
            a(f's_add_u32 s{S_U}, s{S_U}, 1')
            wrap_u(); unit_off(V_ON)
            a(f's_cmp_lt_u32 s{S_IT}, {last}')
            if cfg.xthr >= 0 or cfg.ctl:
                a(f's_cbranch_scc1 L_A_sel')
                if not slow: a('s_branch L_A_sdone')
            else:
                a(f's_cbranch_scc1 L_A_loop{tag}')
        elif mode == 'T':
            a(f's_cmp_ge_u32 s{S_UN}, {NU*HF}\ns_cbranch_scc1 L_A_done')
        else:
            if cfg.half: a(f's_mov_b32 s{S_BHC}, s{S_BHN}')
            a(f's_cmp_lt_u32 s{S_UN}, {NU * (2 if cfg.half else 1)}')
            a(f's_cbranch_scc1 L_A_loop{tag}')
    NH1 = min(cfg.N1, NS - 1)
    if cfg.ctl:
        a.label('L_A_sel')
        a('s_waitcnt lgkmcnt(0)')
        a(f'v_readfirstlane_b32 s{S_SLOW}, v{V_MODE}')
        a('s_nop 3')
        a(f's_cmp_eq_u32 s{S_SLOW}, 0\ns_cbranch_scc0 L_A_loopw')
        body(L1, 'a', 'S', NH1)
        body(L1, 'w', 'S', NH1, slow=True)
        a.label('L_A_sdone')
    elif cfg.xthr >= 0:
        S_SLOW = 79
        a(f's_and_b32 s62, s2, 7\ns_lshr_b32 s{S_SLOW}, {cfg.xthr}, s62\ns_and_b32 s{S_SLOW}, s{S_SLOW}, 1')
        a.label('L_A_sel')
        a(f's_cmp_eq_u32 s{S_SLOW}, 0\ns_cbranch_scc1 L_A_loopa')
        a(f's_cmp_lt_u32 s{S_IT}, {cfg.xa}\ns_cbranch_scc1 L_A_loopa')
        a(f's_cmp_lt_u32 s{S_IT}, {cfg.xb}\ns_cbranch_scc1 L_A_loopw')
        a('s_branch L_A_loopa')
        body(L1, 'a', 'S', NH1)
        body(L1, 'w', 'S', NH1, slow=True)
        a.label('L_A_sdone')
    else:
        body(L1, 'a', 'S', NH1)
    if cfg.d4:
        assert NH1 == NS - 1 and L1 == 4
        body(L1, 't', 'T')
        for i in range(4): slot_load(U + i)
        a('.p2align 6')
        a.label('L_A_loopd')
        a('s_waitcnt vmcnt(6)')
        a(f'v_readfirstlane_b32 s{S_UN}, v{V_GRAB}')
        a('s_nop 3')
        a(f's_add_u32 s{S_UN}, s{S_UN}, {NS*NWV*HF}')
        a(f's_mul_i32 s62, s{S_UN}, {U*1024//HF}')
        a(f'v_lshl_add_u32 v{V_ON[0]}, v{V_LANE}, 4, s62')
        for n in range(4):
            a(f's_waitcnt vmcnt({7 if n <= 2 else 8})')
            a(f'v_dot2_f32_bf16 v{V_T+n}, v{V_K+4*n}, v{V_Q}, 0')
            for k in range(1, 4):
                a(f'v_dot2_f32_bf16 v{V_T+n}, v{V_K+4*n+k}, v{V_Q+k}, v{V_T+n}')
            if n == 2:
                a('s_mov_b64 exec, 1')
                a(f'global_atomic_add v{V_GRAB}, v{V_CADDR}, v{V_ONE}, s[{P_WS}:{P_WS+1}] sc0 {cfg.gsc}')
                a('s_mov_b64 exec, -1')
            slot_load(2 * U + n)
        softmax(4)
        for n in range(4):
            a('s_waitcnt vmcnt(8)')
            a(f'v_mfma_f32_16x16x32_bf16 {vr(V_ACC,4)}, {vr(V_A+4*n,4)}, {vr(V_V+4*n,4)}, {vr(V_ACC,4)}')
            slot_load(2 * U + U + n)
        a(f's_cmp_lt_u32 s{S_UN}, {NU*HF}')
        a('s_cbranch_scc1 L_A_loopd')
    elif cfg.noT:
        assert NH1 == NS - 1
        for m in range(L1, L2): slot_load(m)
        flag_wait()
        if cfg.half: a(f's_mov_b32 s{S_BHC}, 0')
        body(L2, 'b', 'D')
    else:
        if NH1 < NS - 1:
            for m in range(L1, L2): slot_load(m)
            body(L2, 's', 'S', NS - 1)
            body(L2, 't', 'T')
        else:
            body(L1, 't', 'T')
            for m in range(L1, L2): slot_load(m)
        body(L2, 'b', 'D')
    a.label('L_A_done')
    stamp(a, cfg, 2)
    TAIL_ST, TAIL_OV = V_T, V_A + 16
    role_A_tail(a, cfg, locals())

def role_A_tail(a, cfg, R):
    g = lambda n: R[n]
    V_CLR, V_ZERO, V_L, V_M, V_TMP, V_ACC, V_MN, V_XX = [g(n) for n in ('V_CLR', 'V_ZERO', 'V_L', 'V_M', 'V_TMP', 'V_ACC', 'V_MN', 'V_XX')]
    V_S, V_P, V_A, V_Y, V_W = [g(n) for n in ('V_S', 'V_P', 'V_A', 'V_Y', 'V_W')]
    S_B, S_W4 = g('S_B'), g('S_W4')
    L_OB, L_SB, L_YB = g('L_OB'), g('L_SB'), g('L_YB')
    if 'W' in cfg.roles and 'NOCLR' not in R:
        a(f'v_readfirstlane_b32 s62, v{V_CLR}')
        a('s_nop 3')
        a('s_cmp_ge_u32 s62, 32\ns_cbranch_scc1 L_A_clr_ok')
        poll(a, CNT_Q, 32, V_CLR, V_ZERO, 'A_clr')
        a.label('L_A_clr_ok')
    a(f'v_add_f32_dpp v{V_L}, v{V_L}, v{V_L} row_bcast:15 row_mask:0xa bank_mask:0xf')
    a.nop(2)
    a(f'v_add_f32_dpp v{V_L}, v{V_L}, v{V_L} row_bcast:31 row_mask:0xc bank_mask:0xf')
    a.nop(1)
    a(f'v_readlane_b32 s62, v{V_L}, 63')
    a(f'v_lshlrev_b32 v{V_TMP}, 5, v{V_C}')
    a(f'v_lshl_add_u32 v{V_TMP}, v{V_G}, 4, v{V_TMP}')
    a(f's_lshl_b32 s60, s{S_B}, 2\ns_add_u32 s60, s60, s{S_W4}')
    a(f's_lshl_b32 s63, s60, 9')
    a(f'v_add_u32 v{V_TMP}, s63, v{V_TMP}')
    a(f'v_mov_b32 v{V_M+1}, s62')
    a(f's_lshl_b32 s63, s60, 3')
    a(f'v_mov_b32 v{V_TMP+1}, s63')
    a('s_mov_b32 exec_hi, 0')
    a(f'ds_write_b128 v{V_TMP}, {vr(V_ACC,4)} offset:{L_OB}')
    a('s_mov_b64 exec, 1')
    a(f'ds_write_b64 v{V_TMP+1}, {vr(V_M,2)} offset:{L_SB}')
    a('s_mov_b64 exec, -1')
    a('s_waitcnt lgkmcnt(0)\ns_barrier')
    a(f'v_lshrrev_b32 v{V_TMP}, 3, v{V_C}')
    a(f'v_lshlrev_b32 v{V_TMP+1}, 5, v{V_TMP}')
    ST = R.get('TAIL_ST', V_S)
    OV = R.get('TAIL_OV', V_S + 8)
    a(f'ds_read_b128 {vr(ST,4)}, v{V_TMP+1} offset:{L_SB}')
    a(f'ds_read_b128 {vr(ST+4,4)}, v{V_TMP+1} offset:{L_SB+16}')
    a(f'v_lshlrev_b32 v{V_TMP+1}, 11, v{V_TMP}')
    a(f'v_lshl_add_u32 v{V_TMP+1}, v{V_G}, 4, v{V_TMP+1}')
    a(f's_lshl_b32 s63, s{S_W}, 6')
    a(f'v_add_u32 v{V_TMP+1}, s63, v{V_TMP+1}')
    for k in range(4):
        a(f'ds_read_b128 {vr(OV+4*k,4)}, v{V_TMP+1} offset:{L_OB + 512*k}')
    a('s_waitcnt lgkmcnt(4)')
    m0, l0, m1, l1, m2, l2, m3, l3 = [ST + i for i in range(8)]
    a(f'v_max3_f32 v{V_MN}, v{m0}, v{m1}, v{m2}')
    a(f'v_max_f32 v{V_MN}, v{V_MN}, v{m3}')
    for m in (m0, m1, m2, m3): a(f'v_sub_f32 v{m}, v{m}, v{V_MN}')
    for m in (m0, m1, m2, m3): a(f'v_exp_f32 v{m}, v{m}')
    a('s_nop 0')
    a(f'v_mul_f32 v{V_XX}, v{m0}, v{l0}')
    a(f'v_fma_f32 v{V_XX}, v{m1}, v{l1}, v{V_XX}')
    a(f'v_fma_f32 v{V_XX}, v{m2}, v{l2}, v{V_XX}')
    a(f'v_fma_f32 v{V_XX}, v{m3}, v{l3}, v{V_XX}')
    a('s_waitcnt lgkmcnt(0)')
    for s in range(4):
        a(f'v_mul_f32 v{OV+s}, v{OV+s}, v{m0}')
    for k, m in ((1, m1), (2, m2), (3, m3)):
        for s in range(4):
            a(f'v_fma_f32 v{OV+s}, v{OV+4*k+s}, v{m}, v{OV+s}')
    for s in range(4):
        a(f'v_cvt_pk_bf16_f32 v{V_P+s}, v{OV+s}, v{OV+s}')
    for s in range(4):
        for k in range(4):
            a(f'v_and_b32 v{V_A+4*s+k}, v{V_P+s}, v{V_MASK+k}')
    a('s_nop 1')
    for s in range(4):
        for cb in range(4):
            c = '0' if s == 0 else vr(V_Y+4*cb, 4)
            a(f'v_mfma_f32_16x16x32_bf16 {vr(V_Y+4*cb,4)}, {vr(V_A+4*s,4)}, {vr(V_W+16*s+4*cb,4)}, {c}')
    dtile_to_lds(a, V_Y, V_TMP, L_YB, 12, 11, 4)
    a(f's_lshl_b32 s62, s{S_H}, 3\ns_add_u32 s62, s62, s{S_R}')
    a('s_waitcnt lgkmcnt(0)\ns_barrier')
    a(f's_cmp_ge_u32 s{S_W}, 4\ns_cbranch_scc1 L_A_stats')
    a(f'v_lshlrev_b32 v{V_TMP}, 4, v0')
    for w in range(8):
        a(f'ds_read_b128 {vr(V_W+4*w,4)}, v{V_TMP} offset:{L_YB + 4096*w}')
    a(f'v_lshrrev_b32 v{V_TMP+1}, 7, v0')
    a(f'v_lshlrev_b32 v{V_TMP+1}, 18, v{V_TMP+1}')
    a(f'v_and_b32 v{V_TMP+2}, 127, v0')
    a(f'v_lshl_add_u32 v{V_TMP+1}, v{V_TMP+2}, 3, v{V_TMP+1}')
    a(f's_lshl_b32 s63, s62, 10\ns_add_u32 s63, s63, {WS_YA:#x}')
    a(f'v_add_u32 v{V_TMP+1}, s63, v{V_TMP+1}')
    for w in range(1, 8):
        a(f's_waitcnt lgkmcnt({7-w})')
        for k in range(4):
            a(f'v_add_f32 v{V_W+k}, v{V_W+k}, v{V_W+4*w+k}')
    a(f'v_cvt_pk_bf16_f32 v{V_W}, v{V_W}, v{V_W+1}')
    a(f'v_cvt_pk_bf16_f32 v{V_W+1}, v{V_W+2}, v{V_W+3}')
    for k in range(2):
        a(f'v_min_u32 v{V_W+k}, 0xfffffffe, v{V_W+k}')
    a(f'global_store_dwordx2 v{V_TMP+1}, {vr(V_W,2)}, s[{P_WS}:{P_WS+1}] sc1')
    a('s_branch L_A_end')
    a.label('L_A_stats')
    a(f's_cmp_lg_u32 s{S_W}, 4\ns_cbranch_scc1 L_A_end')
    a(f'v_lshrrev_b32 v{V_TMP}, 3, v{V_LANE}')
    a(f'v_lshlrev_b32 v{V_TMP}, 11, v{V_TMP}')
    a(f's_lshl_b32 s63, s62, 3\ns_add_u32 s63, s63, {WS_YSTAT:#x}')
    a(f'v_add_u32 v{V_TMP}, s63, v{V_TMP}')
    a(f'v_min_u32 v{V_TMP+2}, 0xfffffffe, v{V_MN}')
    a(f'v_min_u32 v{V_TMP+3}, 0xfffffffe, v{V_XX}')
    a('s_mov_b64 exec, 0x101')
    a(f'global_store_dwordx2 v{V_TMP}, {vr(V_TMP+2,2)}, s[{P_WS}:{P_WS+1}] sc1')
    a.label('L_A_end')
    stamp(a, cfg, 3)
    if cfg.aend: span_mark(a, cfg, True)
    a('s_endpgm')

def role_A(a, cfg):
    L_QP, L_QB, L_OB, L_SB, L_YB = 0, 8192, 8704, 12800, 16384
    SRD_K, SRD_V, SRD_W, SRD_X = 40, 44, 48, 52
    S_B, S_W4, S_N, S_SIG, S_IT = 35, 36, 37, 38, 39
    S_WOIT, S_RHO = 56, 57
    S_BIAS = 66
    U = cfg.U
    V_OFF, V_WOFF, V_Q, V_OFF2 = 8, 9, 10, 14
    V_K = 16
    V_V = V_K + 4 * U
    V_W = V_V + 4 * U
    V_X = V_W + 64
    V_T = V_X + 8
    V_P = V_T + U
    V_A = V_P + max(U, 4)
    V_ACC = V_A + 4 * max(U, 4)
    V_M, V_L, V_AL, V_MN, V_SC, V_XX, V_CLR, V_ZERO = [V_ACC + 4 + k for k in range(8)]
    V_Y = V_ACC + 12
    V_TMP = V_Y + 16
    assert V_TMP + 15 <= 250 and V_M % 2 == 0
    V_S = V_K
    a.label('L_roleA')
    stamp(a, cfg, 0)
    S_NONCE, S_BLK = 58, 59
    SRD_WS = SRD_X
    a(f's_lshr_b32 s{S_B}, s{S_W}, 2')
    if cfg.swapb: a(f's_xor_b32 s{S_B}, s{S_B}, 1')
    a(f's_and_b32 s{S_W4}, s{S_W}, 3')
    starts = [2048 * j // NA for j in range(NA + 1)]
    NU = 2048 // U
    NWV = 4 * NA
    S_UN, V_CADDR, V_GRAB, V_ONE = 59, V_TMP + 12, V_TMP + 13, V_TMP + 14
    if cfg.dyn:
        a(f's_lshl_b32 s62, s{S_B}, 5\ns_add_u32 s62, s62, s{S_H}')
        a(f's_lshl_b32 s61, s62, 7\ns_add_u32 s61, s61, {WS_CTR:#x}')
        a(f'v_mov_b32 v{V_CADDR}, s61')
        a(f'v_mov_b32 v{V_ONE}, 1')
        a(f's_lshl_b32 s62, s62, 21')
        a(f's_mov_b32 s63, {2 << 20:#x}')
        srd(a, SRD_K, P_AK, off_s=62, nrec_s=63)
        srd(a, SRD_V, P_AV, off_s=62, nrec_s=63)
        a(f's_lshl_b32 s{S_UN}, s{S_R}, 2\ns_add_u32 s{S_UN}, s{S_UN}, s{S_W4}')
        a(f's_mul_i32 s62, s{S_UN}, {U*1024}')
        a(f'v_lshl_add_u32 v{V_OFF}, v{V_LANE}, 4, s62')
        a(f'v_add_u32 v{V_OFF2}, 0x1000, v{V_OFF}')
    else:
        a(f's_mov_b32 s60, 0\ns_mov_b32 s61, {starts[1]}')
        for j in range(1, NA):
            a(f's_cmp_eq_u32 s{S_R}, {j}')
            a(f's_cselect_b32 s60, {starts[j]}, s60')
            a(f's_cselect_b32 s61, {starts[j+1]}, s61')
        a(f's_sub_u32 s{S_N}, s61, s60')
        a(f's_lshl_b32 s62, s{S_B}, 5\ns_add_u32 s62, s62, s{S_H}')
        a(f's_lshl_b32 s62, s62, 21')
        a(f's_lshl_b32 s63, s60, 10\ns_add_u32 s62, s62, s63')
        a(f's_lshl_b32 s63, s{S_N}, 10')
        srd(a, SRD_K, P_AK, off_s=62, nrec_s=63)
        srd(a, SRD_V, P_AV, off_s=62, nrec_s=63)
        a(f'v_lshlrev_b32 v{V_OFF}, 4, v{V_LANE}')
        a(f's_mul_i32 s62, s{S_W4}, {U*1024}')
        a(f'v_add_u32 v{V_OFF}, s62, v{V_OFF}')
        a(f'v_add_u32 v{V_OFF2}, 0x1000, v{V_OFF}')
    def kv_load(dst, srd_, i, pol):
        vo = V_OFF if i < 4 else V_OFF2
        a(f'buffer_load_dwordx4 {vr(dst+4*i,4)}, v{vo}, s[{srd_}:{srd_+3}], 0 offen offset:{1024*(i%4)} {pol}')
    STEP = (NWV if cfg.dyn else 4) * U * 1024
    a(f'v_mov_b32 v{V_M}, 0xff800000')
    a(f'v_mov_b32 v{V_L}, 0')
    for k in range(4): a(f'v_mov_b32 v{V_ACC+k}, 0')
    a(f'v_mov_b32 v{V_SC}, {f2u(SCALE):#x}')
    a(f'v_mov_b32 v{V_ZERO}, 0')
    if cfg.qmode == 'red':
        srd(a, SRD_X, P_AX, nrec=2048)
        a(f's_lshl_b32 s62, s{S_H}, 8')
        a(f's_sub_u32 s63, {512*8192:#x}, s62')
        srd(a, SRD_W, P_AWQ, off_s=62, nrec_s=63)
        a(f's_and_b32 s60, s{S_R}, 1\ns_lshl_b32 s60, s60, 2\ns_add_u32 s60, s60, s{S_W}\ns_and_b32 s60, s60, 7')
        a(f's_bfe_u32 s{S_RHO}, s{S_R}, 0x10001')
        if not cfg.rot:
            a(f's_mov_b32 s60, s{S_W}\ns_mov_b32 s{S_RHO}, 0')
        a(f'v_lshrrev_b32 v{V_TMP}, 3, v{V_C}')
        a(f'v_lshlrev_b32 v{V_TMP}, 10, v{V_TMP}')
        a(f'v_lshl_add_u32 v{V_TMP}, v{V_G}, 5, v{V_TMP}')
        a(f's_lshl_b32 s62, s60, 7')
        a(f'v_add_u32 v{V_TMP}, s62, v{V_TMP}')
        a(f's_lshl_b32 s62, s{S_RHO}, 4\ns_xor_b32 s63, s62, 16')
        a(f'buffer_load_dwordx4 {vr(V_X,4)}, v{V_TMP}, s[{SRD_X}:{SRD_X+3}], s62 offen')
        a(f'buffer_load_dwordx4 {vr(V_X+4,4)}, v{V_TMP}, s[{SRD_X}:{SRD_X+3}], s63 offen')
        a(f'v_lshlrev_b32 v{V_TMP+1}, 17, v{V_G}')
        a(f'v_lshl_add_u32 v{V_TMP+1}, v{V_C}, 4, v{V_TMP+1}')
        a(f's_lshl_b32 s62, s60, 19')
        a(f'v_add_u32 v{V_TMP+1}, s62, v{V_TMP+1}')
        a(f's_lshl_b32 s61, s{S_RHO}, 16')
        for s in range(16):
            a(f's_xor_b32 s62, s61, {(s // 8) * 65536}\ns_add_u32 s62, s62, {(s % 8) * 8192}')
            a(f'buffer_load_dwordx4 {vr(V_W+4*s,4)}, v{V_TMP+1}, s[{SRD_W}:{SRD_W+3}], s62 offen {cfg.wqpol}')
        a('s_barrier')
        kvl = [(V_K, SRD_K, i, cfg.kpol) for i in range(U)] + [(V_V, SRD_V, i, cfg.vpol) for i in range(U)]
        ne = cfg.early
        a(f's_waitcnt vmcnt(16)')
        if cfg.dyn: a(f'global_load_dword v{V_GRAB}, v{V_ZERO}, s[{P_DBG}:{P_DBG+1}] offset:{CNT_Z} sc1')
        done = [1 if cfg.dyn else 0]
        first = done[0]
        def early(s):
            if s >= 16 - ne: kv_load(*kvl[done[0] - first]); done[0] += 1
        for s in range(16):
            sel = '0x01000100' if s % 2 == 0 else '0x03020302'
            t = V_TMP + (s & 1); A = V_A + 4 * (s & 1)
            a(f's_mov_b32 s60, {sel}')
            a(f'v_perm_b32 v{t}, v{V_X + s//2}, v{V_X + s//2}, s60')
            for i in range(4): a(f'v_and_b32 v{A+i}, v{t}, v{V_MASK+i}')
            a(f's_waitcnt vmcnt({15 - s + done[0]})')
            a('s_nop 0')
            c = '0' if s == 0 else vr(V_Y, 4)
            a(f'v_mfma_f32_16x16x32_bf16 {vr(V_Y,4)}, {vr(A,4)}, {vr(V_W+4*s,4)}, {c}')
            early(s)
        q_reduce(a, V_Y, V_TMP, L_QP, L_QB, 'A')
        for x in kvl[done[0] - first:]: kv_load(*x)
        a(f'v_add_u32 v{V_OFF}, {STEP:#x}, v{V_OFF}')
        a(f'v_add_u32 v{V_OFF2}, {STEP:#x}, v{V_OFF2}')
    else:
        a(f's_mov_b32 s{S_BLK}, s{S_R}')
        a(f's_cmp_eq_u32 s{S_W}, 0\ns_cbranch_scc1 L_A_task')
        a(f's_add_u32 s{S_BLK}, s{S_R}, 6')
        a(f's_cmp_lg_u32 s{S_W}, 1\ns_cbranch_scc1 L_A_notask')
        a(f's_cmp_ge_u32 s{S_R}, 2\ns_cbranch_scc1 L_A_notask')
        a.label('L_A_task')
        a('s_setprio 3')
        a(f'v_mov_b32 v{V_TMP+2}, {WS_NONCE:#x}')
        a(f'global_load_dword v{V_CLR}, v{V_TMP+2}, s[{P_WS}:{P_WS+1}]')
        srd(a, SRD_X, P_AX, nrec=2048)
        a(f's_lshl_b32 s62, s{S_H}, 8')
        a(f's_sub_u32 s63, {512*8192:#x}, s62')
        srd(a, SRD_W, P_AWQ, off_s=62, nrec_s=63)
        a(f'v_lshrrev_b32 v{V_TMP}, 3, v{V_C}')
        a(f'v_lshlrev_b32 v{V_TMP}, 10, v{V_TMP}')
        a(f'v_lshl_add_u32 v{V_TMP}, v{V_G}, 5, v{V_TMP}')
        a(f's_lshl_b32 s62, s{S_BLK}, 7')
        a(f'v_add_u32 v{V_TMP}, s62, v{V_TMP}')
        a(f'buffer_load_dwordx4 {vr(V_X,4)}, v{V_TMP}, s[{SRD_X}:{SRD_X+3}], 0 offen')
        a(f'buffer_load_dwordx4 {vr(V_X+4,4)}, v{V_TMP}, s[{SRD_X}:{SRD_X+3}], 0 offen offset:16')
        a(f'v_lshlrev_b32 v{V_TMP+1}, 17, v{V_G}')
        a(f'v_lshl_add_u32 v{V_TMP+1}, v{V_C}, 4, v{V_TMP+1}')
        a(f's_lshl_b32 s62, s{S_BLK}, 19')
        a(f'v_add_u32 v{V_TMP+1}, s62, v{V_TMP+1}')
        for s in range(16):
            a(f's_mov_b32 s62, {s*8192}')
            a(f'buffer_load_dwordx4 {vr(V_W+4*s,4)}, v{V_TMP+1}, s[{SRD_W}:{SRD_W+3}], s62 offen {cfg.wqpol}')
        a('s_barrier')
        srd(a, SRD_WS, P_WS, nrec=0x1000000)
        a(f's_waitcnt vmcnt(16)')
        a(f'v_readfirstlane_b32 s{S_NONCE}, v{V_CLR}')
        rowcomb(a, cfg, V_X, V_W, V_Y, V_A, V_TMP, 0)
        a(f's_add_u32 s{S_NONCE}, s{S_NONCE}, {GOLDEN:#x}')
        a(f's_lshl_b32 s62, s{S_H}, 3\ns_add_u32 s62, s62, s{S_BLK}\ns_lshl_b32 s62, s62, 11\ns_add_u32 s62, s62, {WS_QA:#x}')
        a(f'v_lshl_add_u32 v{V_TMP}, v{V_LANE}, 5, s62')
        G0 = V_A
        for k in (1, 3, 5, 7): a(f'v_mov_b32 v{G0+k}, s{S_NONCE}')
        a.nop(3)
        for k in range(4): a(f'v_mov_b32 v{G0+2*k}, v{V_Y+k}')
        a(f'buffer_store_dwordx4 {vr(G0,4)}, v{V_TMP}, s[{SRD_WS}:{SRD_WS+3}], 0 offen sc1')
        a(f'buffer_store_dwordx4 {vr(G0+4,4)}, v{V_TMP}, s[{SRD_WS}:{SRD_WS+3}], 0 offen offset:16 sc1')
        if cfg.fine: stamp(a, cfg, 4)
        a(f's_cmp_lg_u32 s{S_W}, 0\ns_cbranch_scc1 L_A_kv0p')
        a(f's_lshl_b32 s62, s{S_H}, 14\ns_add_u32 s62, s62, {WS_QA:#x}')
        a(f'v_lshl_add_u32 v{V_TMP}, v{V_LANE}, 5, s62')
        a(f'v_mov_b32 v{V_TMP+1}, s{S_NONCE}')
        R = V_W
        a('s_mov_b32 s64, 0xff\ns_mov_b32 s65, 0')
        a.label('L_A_qpoll')
        for r in range(8):
            a(f's_bitcmp1_b32 s64, {r}\ns_cbranch_scc0 L_A_qp{r}')
            a(f's_mov_b32 s62, {r*2048}')
            a(f'buffer_load_dwordx4 {vr(R+8*r,4)}, v{V_TMP}, s[{SRD_WS}:{SRD_WS+3}], s62 offen sc1')
            a(f'buffer_load_dwordx4 {vr(R+8*r+4,4)}, v{V_TMP}, s[{SRD_WS}:{SRD_WS+3}], s62 offen offset:16 sc1')
            a.label(f'L_A_qp{r}')
        a('s_waitcnt vmcnt(0)')
        for r in range(8):
            t = V_TMP + 2 + (r % 4)
            a(f'v_xor_b32 v{t}, v{R+8*r+1}, v{V_TMP+1}')
            a(f'v_xor_b32 v{V_TMP+6}, v{R+8*r+3}, v{V_TMP+1}')
            a(f'v_xor_b32 v{V_TMP+7}, v{R+8*r+5}, v{V_TMP+1}')
            a(f'v_or3_b32 v{t}, v{t}, v{V_TMP+6}, v{V_TMP+7}')
            a(f'v_xor_b32 v{V_TMP+6}, v{R+8*r+7}, v{V_TMP+1}')
            a(f'v_or_b32 v{t}, v{t}, v{V_TMP+6}')
            a(f'v_cmp_ne_u32 vcc, 0, v{t}')
            a('s_nop 0')
            a(f's_cmp_eq_u64 vcc, 0')
            a(f's_cselect_b32 s62, {(~(1 << r)) & 0xffffffff:#x}, -1')
            a('s_and_b32 s64, s64, s62')
        a('s_cmp_eq_u32 s64, 0\ns_cbranch_scc1 L_A_qdone')
        a('s_add_u32 s65, s65, 1')
        a(f's_cmp_lt_u32 s65, {SPIN_LIMIT}\ns_cbranch_scc1 L_A_qpoll')
        a.label('L_A_qdone')
        for k in range(4):
            a(f'v_add_f32 v{V_Y+k}, v{R+2*k}, v{R+8+2*k}')
        for r in range(2, 8):
            for k in range(4):
                a(f'v_add_f32 v{V_Y+k}, v{V_Y+k}, v{R+8*r+2*k}')
        a(f'v_cvt_pk_bf16_f32 v{V_TMP+2}, v{V_Y}, v{V_Y+1}')
        a(f'v_cvt_pk_bf16_f32 v{V_TMP+3}, v{V_Y+2}, v{V_Y+3}')
        a(f'v_lshrrev_b32 v{V_TMP}, 1, v{V_G}')
        a(f'v_lshlrev_b32 v{V_TMP}, 8, v{V_TMP}')
        a(f'v_lshl_add_u32 v{V_TMP}, v{V_C}, 4, v{V_TMP}')
        a(f'v_and_b32 v{V_TMP+1}, 1, v{V_G}')
        a(f'v_lshl_add_u32 v{V_TMP}, v{V_TMP+1}, 3, v{V_TMP}')
        a(f'ds_write_b64 v{V_TMP}, {vr(V_TMP+2,2)} offset:{L_QB}')
        if cfg.fine: stamp(a, cfg, 5)
        a.label('L_A_kv0p')
        a('s_setprio 0')
        a('s_branch L_A_kv0')
        a.label('L_A_notask')
        a('s_barrier')
        a.label('L_A_kv0')
        n = 0
        for dst, srd_, pol in ((V_K, SRD_K, cfg.kpol), (V_V, SRD_V, cfg.vpol)):
            for i in range(U):
                if n >= cfg.thr: a(f's_waitcnt vmcnt({cfg.thr - 1})')
                kv_load(dst, srd_, i, pol); n += 1
        a(f'v_add_u32 v{V_OFF}, {STEP:#x}, v{V_OFF}')
        a(f'v_add_u32 v{V_OFF2}, {STEP:#x}, v{V_OFF2}')
        if cfg.fine: stamp(a, cfg, 6)
        a('s_waitcnt lgkmcnt(0)\ns_barrier')
    a(f'v_lshlrev_b32 v{V_TMP+2}, 4, v{V_C}')
    a(f's_lshl_b32 s62, s{S_B}, 8')
    a(f'v_add_u32 v{V_TMP+2}, s62, v{V_TMP+2}')
    a(f'ds_read_b128 {vr(V_Q,4)}, v{V_TMP+2} offset:{L_QB}')
    a(f's_lshl_b32 s62, s{S_H}, 17')
    a(f's_mov_b32 s63, {128*1024:#x}')
    srd(a, SRD_W, P_AWO, off_s=62, nrec_s=63)
    wo_voff(a, V_WOFF)
    a(f's_mul_i32 s{S_SIG}, s{S_W4}, {U}')
    a(f's_mov_b32 s{S_IT}, 0')
    a(f's_mul_i32 s{S_WOIT}, s{S_R}, {cfg.wo_stag}\ns_add_u32 s{S_WOIT}, s{S_WOIT}, {cfg.wo_iter}')
    a('s_waitcnt lgkmcnt(0)')
    stamp(a, cfg, 1)
    NIT = -(-max(starts[j+1] - starts[j] for j in range(NA)) // (4 * U))
    NV = 2 * U - 1
    if cfg.dyn:
        NV = 2 * U
        assert cfg.qmode == 'red'
        a(f's_waitcnt vmcnt({2*U})')
        a(f'v_readfirstlane_b32 s62, v{V_GRAB}')
        a('s_nop 3')
        a('s_cmp_ge_u32 s62, 32\ns_cbranch_scc1 L_A_z_ok')
        poll(a, CNT_Z, 32, V_GRAB, V_ZERO, 'A_z')
        a.label('L_A_z_ok')
        a(f's_sub_u32 s62, s{S_UN}, {NWV}')
        a(f'v_mov_b32 v{V_GRAB}, s62')
    else:
        assert cfg.wo_iter + cfg.wo_stag * (NA - 1) < NIT - 1
    a('.p2align 6')
    a.label('L_A_loop')
    if cfg.dyn:
        a(f's_waitcnt vmcnt({2*U - 1})')
        a(f'v_readfirstlane_b32 s{S_UN}, v{V_GRAB}')
        a('s_mov_b64 exec, 1')
        a(f'global_atomic_add v{V_GRAB}, v{V_CADDR}, v{V_ONE}, s[{P_WS}:{P_WS+1}] sc0 sc1')
        a('s_mov_b64 exec, -1')
        a(f's_add_u32 s{S_UN}, s{S_UN}, {2*NWV}')
        a(f's_mul_i32 s62, s{S_UN}, {U*1024}')
        a(f'v_lshl_add_u32 v{V_OFF}, v{V_LANE}, 4, s62')
        a(f'v_add_u32 v{V_OFF2}, 0x1000, v{V_OFF}')
        a(f's_cmp_lt_u32 s{S_UN}, {NU}\ns_cbranch_scc1 L_A_more')
        a(f'global_load_dword v{V_CLR}, v{V_ZERO}, s[{P_DBG}:{P_DBG+1}] offset:{CNT_Q} sc1')
        a.label('L_A_more')
        a(f's_cmp_lg_u32 s{S_IT}, 1\ns_cbranch_scc1 L_A_nowo')
        slice_loads(a, SRD_W, V_WOFF, V_W, cfg.wopol, 'wo')
        a.label('L_A_nowo')
    else:
        a(f's_cmp_lg_u32 s{S_IT}, s{S_WOIT}\ns_cbranch_scc1 L_A_nowo')
        slice_loads(a, SRD_W, V_WOFF, V_W, cfg.wopol, 'wo')
        a(f'global_load_dword v{V_CLR}, v{V_ZERO}, s[{P_DBG}:{P_DBG+1}] offset:{CNT_Q} sc1')
        a.label('L_A_nowo')
    if cfg.loopst:
        for n, it in enumerate((2, 5, 8)):
            a(f's_cmp_lg_u32 s{S_IT}, {it}\ns_cbranch_scc1 L_A_ls{n}')
            stamp(a, cfg, 4 + n)
            a.label(f'L_A_ls{n}')
    if not cfg.dyn:
        for i in range(U):
            a(f's_add_u32 s62, s{S_SIG}, {i}')
            a(f's_cmp_lt_u32 s62, s{S_N}')
            a(f's_cselect_b32 s{S_BIAS+i}, 0, 0xff800000')
    for i in range(U):
        a(f's_waitcnt vmcnt({NV})')
        a(f'v_dot2_f32_bf16 v{V_T+i}, v{V_K+4*i}, v{V_Q}, 0')
        for k in range(1, 4):
            a(f'v_dot2_f32_bf16 v{V_T+i}, v{V_K+4*i+k}, v{V_Q+k}, v{V_T+i}')
        kv_load(V_K, SRD_K, i, cfg.kpol)
    a.nop(2)
    for st in (8, 4, 2, 1):
        for i in range(U):
            a(f'v_add_f32_dpp v{V_T+i}, v{V_T+i}, v{V_T+i} row_ror:{st} row_mask:0xf bank_mask:0xf')
    for i in range(U):
        if cfg.dyn: a(f'v_mul_f32 v{V_T+i}, v{V_T+i}, v{V_SC}')
        else: a(f'v_fma_f32 v{V_T+i}, v{V_T+i}, v{V_SC}, s{S_BIAS+i}')
    a(f'v_max3_f32 v{V_XX}, v{V_T}, v{V_T+1}, v{V_T+2}')
    i = 3
    while i < U:
        if i + 1 < U: a(f'v_max3_f32 v{V_XX}, v{V_XX}, v{V_T+i}, v{V_T+i+1}'); i += 2
        else: a(f'v_max_f32 v{V_XX}, v{V_XX}, v{V_T+i}'); i += 1
    a.nop(2)
    a(f'v_max_f32_dpp v{V_XX}, v{V_XX}, v{V_XX} row_bcast:15 row_mask:0xa bank_mask:0xf')
    a.nop(2)
    a(f'v_max_f32_dpp v{V_XX}, v{V_XX}, v{V_XX} row_bcast:31 row_mask:0xc bank_mask:0xf')
    a.nop(1)
    a(f'v_readlane_b32 s62, v{V_XX}, 63')
    a.nop(2)
    a(f'v_max_f32 v{V_MN}, s62, v{V_M}')
    a(f'v_sub_f32 v{V_AL}, v{V_M}, v{V_MN}')
    for i in range(U):
        a(f'v_sub_f32 v{V_T+i}, v{V_T+i}, v{V_MN}')
    a(f'v_exp_f32 v{V_AL}, v{V_AL}')
    for i in range(U):
        a(f'v_exp_f32 v{V_T+i}, v{V_T+i}')
    a(f'v_mov_b32 v{V_M}, v{V_MN}')
    for k in range(4):
        a(f'v_mul_f32 v{V_ACC+k}, v{V_ACC+k}, v{V_AL}')
    for i in range(U):
        a(f'v_cvt_pk_bf16_f32 v{V_P+i}, v{V_T+i}, v{V_T+i}')
    a(f'v_mul_f32 v{V_L}, v{V_L}, v{V_AL}')
    for i in range(0, U, 2):
        a(f'v_add_f32 v{V_T+i}, v{V_T+i}, v{V_T+i+1}')
    for i in range(U):
        for k in range(4):
            a(f'v_and_b32 v{V_A+4*i+k}, v{V_P+i}, v{V_MASK+k}')
    for i in range(0, U, 2):
        a(f'v_add_f32 v{V_L}, v{V_L}, v{V_T+i}')
    for i in range(U):
        a(f's_waitcnt vmcnt({NV})')
        a(f'v_mfma_f32_16x16x32_bf16 {vr(V_ACC,4)}, {vr(V_A+4*i,4)}, {vr(V_V+4*i,4)}, {vr(V_ACC,4)}')
        kv_load(V_V, SRD_V, i, cfg.vpol)
    a(f's_add_u32 s{S_IT}, s{S_IT}, 1')
    if cfg.dyn:
        a(f's_cmp_lt_u32 s{S_UN}, {NU}')
    else:
        a(f'v_add_u32 v{V_OFF}, {STEP:#x}, v{V_OFF}')
        a(f'v_add_u32 v{V_OFF2}, {STEP:#x}, v{V_OFF2}')
        a(f's_add_u32 s{S_SIG}, s{S_SIG}, {4*U}')
        a(f's_cmp_lt_u32 s{S_IT}, {NIT}')
    a('s_cbranch_scc1 L_A_loop')
    a('s_waitcnt vmcnt(0)')
    stamp(a, cfg, 2)
    role_A_tail(a, cfg, locals())

def build(cfg):
    global CFG
    CFG = cfg
    a = Asm()
    hdr = open(__import__('os').path.join(__import__('os').path.dirname(__import__('os').path.abspath(__file__)), 'header.txt')).read().rstrip('\n')
    a(hdr)
    a(f'; @launch grid=(256,1,1) block=(512,1,1) lds={LDS_BYTES}')
    for l in DESCRIPTION.strip().split('\n'): a('; ' + l)
    a('.amdgcn_target "amdgcn-amd-amdhsa--gfx950"')
    a('.text')
    a(f'.globl {NAME}_kernel')
    a('.p2align 8')
    a(f'.type {NAME}_kernel,@function')
    a.label(f'{NAME}_kernel')
    ist(a, cfg, 0)
    if cfg.lite and cfg.le: a('s_memrealtime s[96:97]')
    a('s_lshr_b32 s60, s2, 8\ns_cbranch_scc1 L_exit')
    if cfg.idrot: a(f's_lshl_b32 s60, s2, {cfg.idrot}\ns_lshr_b32 s2, s2, {8 - cfg.idrot}\ns_or_b32 s2, s2, s60\ns_and_b32 s2, s2, 255')
    if cfg.idxor: a(f's_mul_i32 s2, s2, {cfg.idxor}\ns_and_b32 s2, s2, 255')
    a('s_load_dwordx16 s[4:19], s[0:1], 0')
    a('s_load_dwordx8 s[20:27], s[0:1], 64')
    a('s_load_dwordx4 s[28:31], s[0:1], 96')
    if cfg.fs > 3:
        assert cfg.hmap == '01234' and cfg.two and cfg.roles == 'AWC'
        a(f'v_readfirstlane_b32 s{S_W}, v0')
        a(f's_and_b32 s60, s2, 7\ns_lshr_b32 s61, s2, 6\ns_lshl3_add_u32 s{S_H}, s61, s60')
        a(f's_lshr_b32 s{S_R}, s2, 3\ns_and_b32 s{S_R}, s{S_R}, 7')
        a(f's_lshr_b32 s{S_W}, s{S_W}, 6')
        a(f's_cmp_eq_u32 s{S_R}, {NA}\ns_cbranch_scc1 L_roleW')
        a(f's_cmp_eq_u32 s{S_R}, {NA+1}\ns_cbranch_scc1 L_roleC')
        import role_a4, roles_wc
        role_a4.role_A4(a, cfg)
        roles_wc.role_W(a, cfg)
        roles_wc.role_C(a, cfg)
        return finish(a)
    a(f'v_lshrrev_b32 v8, 6, v0')
    if cfg.hrot: a(f's_add_u32 s60, s2, {cfg.hrot}\ns_and_b32 s60, s60, 7')
    else: a('s_and_b32 s60, s2, 7')
    a(f's_lshr_b32 s61, s2, 3')
    a(f'v_readfirstlane_b32 s{S_W}, v8')
    if cfg.afirst:
        a('s_mul_i32 s62, s61, 43\ns_lshr_b32 s62, s62, 8')
        a('s_mul_i32 s63, s62, 6\ns_sub_u32 s63, s61, s63')
        a('s_sub_u32 s64, s61, 24\ns_and_b32 s65, s64, 3\ns_lshr_b32 s64, s64, 2\ns_add_u32 s64, s64, 6')
        a('s_cmp_lt_u32 s61, 24')
        a(f's_cselect_b32 s{S_R}, s63, s64')
        a('s_cselect_b32 s61, s62, s65')
        a('s_lshl_b32 s61, s61, 3')
    elif cfg.xmix:
        a(f's_add_u32 s{S_R}, s60, s61\ns_and_b32 s{S_R}, s{S_R}, 7')
        a('s_mov_b32 s60, 0')
    elif cfg.smix:
        order = cfg.smix_order
        a('s_lshr_b32 s62, s61, 2\ns_lshl_b32 s62, s62, 2')
        a(f's_lshr_b32 s{S_R}, {order:#x}, s62\ns_and_b32 s{S_R}, s{S_R}, 15')
        a('s_and_b32 s61, s61, 3\ns_lshl_b32 s61, s61, 3')
    else:
        a(f's_and_b32 s{S_R}, s61, 7')
        if cfg.rmap != 0x76543210:
            a(f's_lshl_b32 s{S_R}, s{S_R}, 2\ns_lshr_b32 s{S_R}, {cfg.rmap:#x}, s{S_R}\ns_and_b32 s{S_R}, s{S_R}, 7')
        a(f's_and_b32 s61, s61, 24')
    a(f's_add_u32 s{S_H}, s60, s61')
    if cfg.hmap == '01234': a(f's_mov_b32 s{S_HP}, s{S_H}')
    elif cfg.hmap == '23401': a(f's_lshr_b32 s61, s61, 3\ns_lshl2_add_u32 s{S_HP}, s60, s61')
    else:
        a(f's_mov_b32 s{S_HP}, 0')
        for i, d in enumerate(cfg.hmap[:5]):
            a(f's_bfe_u32 s62, s{S_H}, {0x10000 + i:#x}\ns_lshl_b32 s62, s62, {d}\ns_or_b32 s{S_HP}, s{S_HP}, s62')
    common_lane_setup(a, not cfg.fs)
    if not cfg.fs:
        a('s_waitcnt lgkmcnt(0)')
        ist(a, cfg, 1)
        span_mark(a, cfg, False)
    if not cfg.two: cfg.tag = False
    a(f's_cmp_eq_u32 s{S_R}, {NA}\ns_cbranch_scc1 L_roleW')
    a(f's_cmp_eq_u32 s{S_R}, {NA+1}\ns_cbranch_scc1 L_roleC')
    import role_a4
    if 'A' in cfg.roles: (role_a4.role_A4 if cfg.two else role_A3 if cfg.hyb else role_A2 if cfg.ring else role_A)(a, cfg)
    else: a('s_endpgm')
    import roles_wc
    if 'W' in cfg.roles: roles_wc.role_W(a, cfg)
    else: a.label('L_roleW'); a('s_endpgm')
    if 'C' in cfg.roles: roles_wc.role_C(a, cfg)
    else: a.label('L_roleC'); a('s_endpgm')
    return finish(a)

def finish(a):
    a.label('L_exit')
    a('s_endpgm')
    a(f'''.section .rodata,"a"
.p2align 6
.amdhsa_kernel {NAME}_kernel
  .amdhsa_next_free_vgpr 256
  .amdhsa_next_free_sgpr 102
  .amdhsa_accum_offset 256
  .amdhsa_group_segment_fixed_size 0
  .amdhsa_kernarg_size 112
  .amdhsa_user_sgpr_count 2
  .amdhsa_user_sgpr_kernarg_segment_ptr 1
  .amdhsa_system_sgpr_workgroup_id_x 1
.end_amdhsa_kernel''')
    return a.text()

if __name__ == '__main__':
    sys.modules['gen'] = sys.modules['__main__']
    cfg = Cfg()
    out = None
    for arg in sys.argv[1:]:
        if '=' in arg:
            k, v = arg.split('=', 1)
            cur = getattr(cfg, k)
            setattr(cfg, k, v == '1' if isinstance(cur, bool) else int(v, 0) if isinstance(cur, int) else v)
        else: out = arg
    t = build(cfg)
    for p in lint(t):
        print('HAZARD line %d -> %d need %d have %d\n   %s\n   %s' % p, file=sys.stderr)
    if out: open(out, 'w').write(t)
    else: print(t)
```

```python
from asmlib import vr, sr
import gen as G
from gen import *
import role_a4

def col_finish(a, ACC, tmp, L_RED, nw, out_col, tag, perm=False):
    for k in range(4):
        pass
    a.nop(2)
    for k in range(4):
        a(f'v_add_f32_dpp v{ACC+k}, v{ACC+k}, v{ACC+k} row_ror:8 row_mask:0xf bank_mask:0xf')
    for st in (16, 32):
        for k in range(4):
            a(f'v_mov_b32 v{tmp+k}, v{ACC+k}')
        a.nop(2)
        for k in range(4):
            a(f'v_permlane{st}_swap_b32 v{ACC+k}, v{tmp+k}')
        a.nop(1)
        for k in range(4):
            a(f'v_add_f32 v{ACC+k}, v{ACC+k}, v{tmp+k}')
    a(f'v_lshlrev_b32 v{tmp}, 4, v{V_LANE}')
    a(f's_lshl_b32 s63, s{S_W}, 7')
    a(f'v_add_u32 v{tmp}, s63, v{tmp}')
    a('s_mov_b64 exec, 0xff')
    a(f'ds_write_b128 v{tmp}, {vr(ACC,4)} offset:{L_RED}')
    a('s_mov_b64 exec, -1')
    a('s_waitcnt lgkmcnt(0)\ns_barrier')
    a(f's_cmp_lg_u32 s{S_W}, 0\ns_cbranch_scc1 L_{tag}_fin')
    a(f'v_lshlrev_b32 v{tmp}, 2, v{V_LANE}')
    a('s_mov_b32 exec_hi, 0')
    for w in range(nw):
        a(f'ds_read_b32 v{tmp+1+w}, v{tmp} offset:{L_RED + 128*w}')
    a('s_waitcnt lgkmcnt(0)')
    for w in range(1, nw):
        a(f'v_add_f32 v{tmp+1}, v{tmp+1}, v{tmp+1+w}')
    a(f'v_cvt_pk_bf16_f32 v{tmp+1}, v{tmp+1}, v{tmp+1}')
    a(f's_lshr_b32 s62, s{S_H}, 4\ns_lshl_b32 s62, s62, 11')
    a(f's_and_b32 s63, s{S_H}, 15\ns_lshl_b32 s63, s63, 6')
    a(f's_add_u32 s62, s62, s63\ns_add_u32 s62, s62, {out_col*2}')
    if perm:
        a(f's_lshr_b32 s62, s{S_H}, 4\ns_lshl_b32 s62, s62, 11')
        a(f's_bfe_u32 s63, s{S_H}, 0x20002\ns_lshl_b32 s63, s63, 8\ns_add_u32 s62, s62, s63')
        a(f's_and_b32 s63, s{S_H}, 1\ns_lshl_b32 s63, s63, 7\ns_add_u32 s62, s62, s63')
        a(f's_and_b32 s63, s{S_H}, 2\ns_lshl_b32 s63, s63, 2\ns_add_u32 s62, s62, s63')
        a(f'v_and_b32 v{tmp}, 28, v{V_LANE}')
        a(f'v_add_u32 v{tmp}, v{tmp}, v{V_LANE}')
        a(f'v_lshl_add_u32 v{tmp}, v{tmp}, 1, s62')
    else: a(f'v_lshl_add_u32 v{tmp}, v{V_LANE}, 1, s62')
    a(f'global_store_short v{tmp}, v{tmp+1}, s[{P_OUT}:{P_OUT+1}] {G.CFG.opol.replace("+", " ")}')
    a('s_mov_b64 exec, -1')
    a.label(f'L_{tag}_fin')

CF_RS = 48
def col_fast_prep(a, cfg, VL, VO, tmp, vz):
    a(f'v_and_b32 v{tmp}, 7, v{V_LANE}')
    a(f'v_lshl_add_u32 v{VL}, v{V_G}, 3, v{tmp}')
    a(f'v_mul_u32_u24 v{VL}, {CF_RS}, v{VL}')
    a(f'ds_write_b32 v{VL}, v{vz} offset:32')
    a(f's_lshr_b32 s62, s{S_H}, 4\ns_lshl_b32 s62, s62, 11')
    if cfg.smf:
        a(f's_bfe_u32 s63, s{S_H}, 0x20002\ns_lshl_b32 s63, s63, 8\ns_add_u32 s62, s62, s63')
        a(f's_and_b32 s63, s{S_H}, 1\ns_lshl_b32 s63, s63, 7\ns_add_u32 s62, s62, s63')
        a(f's_and_b32 s63, s{S_H}, 2\ns_lshl_b32 s63, s63, 2\ns_add_u32 s62, s62, s63')
    else: a(f's_and_b32 s63, s{S_H}, 15\ns_lshl_b32 s63, s63, 6\ns_add_u32 s62, s62, s63')
    a(f'v_lshl_add_u32 v{VO}, v{tmp}, {3 if cfg.smf else 2}, v{V_G}')
    a(f'v_lshl_add_u32 v{VO}, v{VO}, 1, s62')
    a(f's_lshl_b32 s63, s{S_W}, 2')
    a(f'v_add_u32 v{VL+1}, s63, v{VL}')
    a(f'v_mov_b32 v{VL+2}, 1')

def col_fast(a, cfg, ACC, VL, VO, tmp):
    a.nop(2)
    a(f'v_permlane16_swap_b32 v{ACC}, v{ACC+1}')
    a(f'v_permlane16_swap_b32 v{ACC+2}, v{ACC+3}')
    a(f'v_add_f32 v{ACC}, v{ACC}, v{ACC+1}')
    a(f'v_add_f32 v{ACC+2}, v{ACC+2}, v{ACC+3}')
    a.nop(2)
    a(f'v_permlane32_swap_b32 v{ACC}, v{ACC+2}')
    a.nop(1)
    a(f'v_add_f32 v{ACC}, v{ACC}, v{ACC+2}')
    a.nop(2)
    a(f'v_add_f32_dpp v{ACC}, v{ACC}, v{ACC} row_ror:8 row_mask:0xf bank_mask:0xf')
    a('s_mov_b32 exec_lo, 0x00ff00ff\ns_mov_b32 exec_hi, 0x00ff00ff')
    a(f'ds_write_b32 v{VL+1}, v{ACC}')
    a(f'ds_add_rtn_u32 v{tmp+8}, v{VL}, v{VL+2} offset:32')
    a(f'ds_read_b128 {vr(tmp,4)}, v{VL}')
    a(f'ds_read_b128 {vr(tmp+4,4)}, v{VL} offset:16')
    a('s_waitcnt lgkmcnt(2)')
    a(f'v_cmp_eq_u32 vcc, 7, v{tmp+8}')
    a('s_waitcnt lgkmcnt(0)')
    a(f'v_pk_add_f32 {vr(tmp,2)}, {vr(tmp,2)}, {vr(tmp+2,2)}')
    a(f'v_pk_add_f32 {vr(tmp+4,2)}, {vr(tmp+4,2)}, {vr(tmp+6,2)}')
    a('s_and_b64 exec, exec, vcc')
    a('s_cbranch_scc1 L_W_last')
    a('s_endpgm')
    a.label('L_W_last')
    a(f'v_pk_add_f32 {vr(tmp,2)}, {vr(tmp,2)}, {vr(tmp+4,2)}')
    a(f'v_add_f32 v{tmp}, v{tmp}, v{tmp+1}')
    a(f'v_cvt_pk_bf16_f32 v{tmp}, v{tmp}, v{tmp}')
    a(f'global_store_short v{VO}, v{tmp}, s[{P_OUT}:{P_OUT+1}] {cfg.opol.replace("+", " ")}')
    a(f's_andn2_b32 s{S_W}, 1, vcc_lo')
    a('s_mov_b64 exec, -1')

def role_W(a, cfg):
    L_QP, L_QB, L_CT, L_RED, L_YB = 0, 8192, 9216, 17408, 18432
    L_CC = L_YB
    SRD_0, SRD_1, SRD_X, SRD_WS = 40, 44, 48, 52
    V_ZERO, V_OFF0, V_OFF1 = 8, 9, 10
    V_X, V_Q, V_A, V_Y, V_T = 12, 20, 28, 44, 60
    V_W0, V_W1, V_TMP = 64, 128, 192
    a.label('L_roleW')
    late_entry(a, cfg)
    stamp(a, cfg, 0)
    if cfg.tag: load_tag(a)
    a(f'v_mov_b32 v{V_ZERO}, 0')
    srd(a, SRD_WS, P_WS, nrec=0x4000000)
    V_NONCE = 11
    use_nonce = cfg.qmode == 'dist'
    if use_nonce:
        a(f'v_mov_b32 v{V_TMP}, {WS_NONCE:#x}')
        a(f'buffer_load_dword v{V_NONCE}, v{V_TMP}, s[{SRD_WS}:{SRD_WS+3}], 0 offen')
    a(f's_lshl_b32 s60, s{S_HP}, 8')
    a(f's_sub_u32 s61, {512*8192:#x}, s60')
    srd(a, SRD_0, P_BWQ, off_s=60, nrec_s=61)
    srd(a, SRD_1, P_BWUK, off_s=60, nrec_s=61)
    srd(a, SRD_X, P_BX, nrec=2048)
    a(f'v_lshrrev_b32 v{V_TMP}, 3, v{V_C}')
    a(f'v_lshlrev_b32 v{V_TMP}, 10, v{V_TMP}')
    a(f'v_lshl_add_u32 v{V_TMP}, v{V_G}, 5, v{V_TMP}')
    a(f's_lshl_b32 s62, s{S_W}, 7')
    a(f'v_add_u32 v{V_TMP}, s62, v{V_TMP}')
    a(f'buffer_load_dwordx4 {vr(V_X,4)}, v{V_TMP}, s[{SRD_X}:{SRD_X+3}], 0 offen')
    a(f'buffer_load_dwordx4 {vr(V_X+4,4)}, v{V_TMP}, s[{SRD_X}:{SRD_X+3}], 0 offen offset:16')
    rows_voff(a, V_OFF0)
    slice_loads(a, SRD_0, V_OFF0, V_W0, cfg.bpol, 'rows', cfg.wthr0)
    if cfg.ctl:
        a(f'ds_write_b32 v{V_ZERO}, v{V_ZERO} offset:9000')
        a('s_waitcnt lgkmcnt(0)')
    a('s_barrier')
    a('s_waitcnt vmcnt(16)')
    def wuk_load(s_):
        if cfg.wthr1: a(f's_waitcnt vmcnt({cfg.wthr1 - 1})')
        a(f's_mov_b32 s62, {s_*(256 if cfg.fake else 8192)}')
        a(f'buffer_load_dwordx4 {vr(V_W1+4*s_,4)}, v{V_OFF0}, s[{SRD_1}:{SRD_1+3}], s62 offen {cfg.bpol}')
    rowcomb(a, cfg, V_X, V_W0, V_Y, V_A, V_TMP, 0, after=wuk_load)
    if not cfg.tag:
        for k in range(4): a(f'v_mov_b32 v{V_TMP+4+k}, -1')
        a(f's_cmp_ge_u32 s{S_W}, {0 if cfg.noclr else 6}\ns_cbranch_scc1 L_W_noclr')
        a(f's_lshl_b32 s62, s{S_H}, 13\ns_add_u32 s62, s62, {WS_YA:#x}')
        a(f'v_lshl_add_u32 v{V_TMP}, v0, 4, s62')
        a(f's_mov_b32 s62, {1 << 18:#x}')
        a(f'buffer_store_dwordx4 {vr(V_TMP+4,4)}, v{V_TMP}, s[{SRD_WS}:{SRD_WS+3}], 0 offen sc1')
        a(f'buffer_store_dwordx4 {vr(V_TMP+4,4)}, v{V_TMP}, s[{SRD_WS}:{SRD_WS+3}], s62 offen sc1')
        a.label('L_W_noclr')
        if cfg.ybs:
            a(f's_cmp_lt_u32 s{S_W}, 4\ns_cbranch_scc1 L_W_noybc')
            a(f'v_bfe_u32 v{V_TMP}, v0, 7, 1')
            a(f'v_lshlrev_b32 v{V_TMP}, 16, v{V_TMP}')
            a(f'v_and_b32 v{V_TMP+1}, 127, v0')
            a(f'v_lshl_add_u32 v{V_TMP}, v{V_TMP+1}, 4, v{V_TMP}')
            a(f's_lshl_b32 s62, s{S_H}, 11\ns_add_u32 s62, s62, {WS_YB:#x}')
            a(f'v_add_u32 v{V_TMP}, s62, v{V_TMP}')
            a(f'buffer_store_dwordx4 {vr(V_TMP+4,4)}, v{V_TMP}, s[{SRD_WS}:{SRD_WS+3}], 0 offen sc1')
            a.label('L_W_noybc')
        a(f's_cmp_lg_u32 s{S_W}, 0\ns_cbranch_scc1 L_W_nostat')
        a(f'v_lshrrev_b32 v{V_TMP}, 2, v{V_LANE}')
        a(f'v_lshlrev_b32 v{V_TMP}, 11, v{V_TMP}')
        a(f'v_and_b32 v{V_TMP+1}, 3, v{V_LANE}')
        a(f'v_lshl_add_u32 v{V_TMP}, v{V_TMP+1}, 4, v{V_TMP}')
        a(f's_lshl_b32 s62, s{S_H}, 6\ns_add_u32 s62, s62, {WS_YSTAT:#x}')
        a(f'v_add_u32 v{V_TMP}, s62, v{V_TMP}')
        a('s_mov_b64 exec, 0xff')
        a(f'buffer_store_dwordx4 {vr(V_TMP+4,4)}, v{V_TMP}, s[{SRD_WS}:{SRD_WS+3}], 0 offen sc1')
        a('s_mov_b64 exec, -1')
        a.label('L_W_nostat')
        if cfg.ctl:
            a(f's_cmp_lg_u32 s{S_W}, 2\ns_cbranch_scc1 L_W_noprg')
            a(f's_lshl_b32 s62, s{S_H}, 10\ns_add_u32 s62, s62, {WS_PROG:#x}')
            a(f'v_lshl_add_u32 v{V_TMP}, v{V_LANE}, 7, s62')
            a(f's_lshl_b32 s62, s{S_H}, 7\ns_add_u32 s62, s62, {WS_MEAN:#x}')
            a(f'v_mov_b32 v{V_TMP+1}, s62')
            a('s_mov_b64 exec, 0xff')
            a(f'buffer_store_dword v{V_ZERO}, v{V_TMP}, s[{SRD_WS}:{SRD_WS+3}], 0 offen sc1')
            a('s_mov_b64 exec, 1')
            a(f'buffer_store_dword v{V_ZERO}, v{V_TMP+1}, s[{SRD_WS}:{SRD_WS+3}], 0 offen sc1')
            a('s_mov_b64 exec, -1')
            a.label('L_W_noprg')
        if cfg.hyb:
            a(f's_cmp_lg_u32 s{S_W}, 1\ns_cbranch_scc1 L_W_noctr')
            a(f's_lshl_b32 s62, s{S_H}, 7\ns_add_u32 s62, s62, {WS_CTR:#x}')
            a(f'v_lshl_add_u32 v{V_TMP}, v{V_LANE}, 12, s62')
            a('s_mov_b64 exec, 3')
            a(f'buffer_store_dword v{V_ZERO}, v{V_TMP}, s[{SRD_WS}:{SRD_WS+3}], 0 offen sc1')
            a('s_mov_b64 exec, -1')
            a.label('L_W_noctr')
    a('s_nop 1')
    q_reduce(a, V_Y, V_TMP, L_QP, L_QB, 'W')
    if cfg.tag: get_tag(a)
    a(f'v_lshlrev_b32 v{V_TMP+2}, 4, v{V_C}')
    a(f'ds_read_b128 {vr(V_Q,4)}, v{V_TMP+2} offset:{L_QB}')
    a(f'ds_read_b128 {vr(V_Q+4,4)}, v{V_TMP+2} offset:{L_QB+256}')
    stamp(a, cfg, 1)
    R0, R1 = V_TMP + 8, V_TMP + 9
    a(f'v_mov_b32 v{R0}, 0\nv_mov_b32 v{R1}, 0')
    a('s_waitcnt lgkmcnt(0)')
    for i in range(0, 16, 2):
        a(f's_waitcnt vmcnt({14 - i})')
        T = [V_T + n for n in range(4)]
        for k in range(4):
            for n in range(4):
                wreg = V_W1 + 4*(i + n//2) + k
                q = V_Q + 4*(n % 2) + k
                c = '0' if k == 0 else f'v{T[n]}'
                a(f'v_dot2_f32_bf16 v{T[n]}, v{wreg}, v{q}, {c}')
        for st in (8, 4, 2, 1):
            for n in range(4):
                a(f'v_add_f32_dpp v{T[n]}, v{T[n]}, v{T[n]} row_ror:{st} row_mask:0xf bank_mask:0xf')
        for n in range(4):
            if n % 2 == 0:
                a(f'v_cmp_eq_u32 vcc, {i + n//2}, v{V_C}')
                a('s_nop 1')
            r = R0 if n % 2 == 0 else R1
            a(f'v_cndmask_b32 v{r}, v{r}, v{T[n]}, vcc')
    a(f'v_cvt_pk_bf16_f32 v{R0}, v{R0}, v{R0}')
    a(f'v_cvt_pk_bf16_f32 v{R1}, v{R1}, v{R1}')
    a(f's_lshl_b32 s62, s{S_H}, 10\ns_lshl_b32 s63, s{S_W}, 7\ns_add_u32 s62, s62, s63')
    a(f's_add_u32 s62, s62, {WS_QABS:#x}')
    a(f'v_lshl_add_u32 v{V_TMP}, v{V_LANE}, 1, s62')
    a(f'buffer_store_short v{R0}, v{V_TMP}, s[{SRD_WS}:{SRD_WS+3}], 0 offen sc1' + snt('q'))
    a(f's_mov_b32 s62, {32*1024}')
    a(f'buffer_store_short v{R1}, v{V_TMP}, s[{SRD_WS}:{SRD_WS+3}], s62 offen sc1' + snt('q'))
    if cfg.tag and 'q' in cfg.fl:
        a(f's_lshl_b32 s62, s{S_H}, 8\ns_add_u32 s62, s62, {WS_MBOX:#x}')
        a(f'v_lshl_add_u32 v{V_TMP}, v{V_LANE}, 2, s62')
        a(f'v_mov_b32 v{V_TMP+1}, s{S_TAG}')
        a('s_waitcnt vmcnt(0)\ns_barrier')
        a(f's_cmp_lg_u32 s{S_W}, 0\ns_cbranch_scc1 L_sig_Wq')
        a('s_mov_b32 exec_hi, 0')
        a(f'buffer_store_dword v{V_TMP+1}, v{V_TMP}, s[{SRD_WS}:{SRD_WS+3}], 0 offen sc1')
        a('s_mov_b64 exec, -1')
        a.label('L_sig_Wq')
    elif cfg.tag:
        a(f's_lshl_b32 s62, s{S_H}, 2\ns_add_u32 s62, s62, {WS_MBOX:#x}')
        a(f'v_lshl_add_u32 v{V_TMP}, v{V_LANE}, 8, s62')
        a(f'v_mov_b32 v{V_TMP+1}, s{S_TAG}')
        a('s_waitcnt vmcnt(0)\ns_barrier')
        a(f's_cmp_lg_u32 s{S_W}, 0\ns_cbranch_scc1 L_sig_Wq')
        a('s_mov_b32 exec_hi, 0')
        a(f'buffer_store_dword v{V_TMP+1}, v{V_TMP}, s[{SRD_WS}:{SRD_WS+3}], 0 offen sc1')
        a('s_mov_b64 exec, -1')
        a.label('L_sig_Wq')
    else: signal(a, CNT_Q, V_ZERO, V_TMP, 'Wq')
    stamp(a, cfg, 2)
    if cfg.wstop == 1: a('s_endpgm'); return
    a(f's_lshl_b32 s60, s{S_HP}, 8')
    a(f's_sub_u32 s61, {512*8192:#x}, s60')
    srd(a, SRD_0, P_BWUV, off_s=60, nrec_s=61)
    a(f's_lshl_b32 s60, s{S_HP}, 17\ns_mov_b32 s61, {128*1024:#x}')
    srd(a, SRD_1, P_BWO, off_s=60, nrec_s=61)
    wo_voff(a, V_OFF1)
    if cfg.ctl:
        L_WFLAG = 9000
        a(f's_cmp_lg_u32 s{S_W}, 1\ns_cbranch_scc1 L_W_nomon')
        a(f's_cmp_lg_u32 s{S_H}, 0\ns_cbranch_scc1 L_W_nomon')
        slice_loads(a, SRD_0, V_OFF0, V_W0, cfg.bpol, 'rows', 0)
        slice_loads(a, SRD_1, V_OFF1, V_W1, cfg.bpol, 'wo', 0)
        poll(a, CNT_Q, 32, V_TMP, V_ZERO, 'Wm')
        a(f'v_lshlrev_b32 v{V_TMP}, 7, v{V_LANE}')
        a(f'v_add_u32 v{V_TMP}, {WS_PROG:#x}, v{V_TMP}')
        a(f'v_lshlrev_b32 v{V_TMP+1}, 7, v{V_LANE}')
        a(f'v_add_u32 v{V_TMP+1}, {WS_MEAN:#x}, v{V_TMP+1}')
        a('s_mov_b32 s66, 0')
        a.label('L_W_mon')
        for k in range(4):
            a(f's_mov_b32 s62, {k*8192}')
            a(f'buffer_load_dword v{V_TMP+4+k}, v{V_TMP}, s[{SRD_WS}:{SRD_WS+3}], s62 offen sc1')
        a(f'ds_read_b32 v{V_TMP+2}, v{V_ZERO} offset:{L_WFLAG}')
        a('s_waitcnt vmcnt(0) lgkmcnt(0)')
        a(f'v_add3_u32 v{V_TMP+4}, v{V_TMP+4}, v{V_TMP+5}, v{V_TMP+6}')
        a(f'v_add_u32 v{V_TMP+4}, v{V_TMP+4}, v{V_TMP+7}')
        for st in (1, 2, 4, 8):
            a.nop(2)
            a(f'v_add_u32_dpp v{V_TMP+4}, v{V_TMP+4}, v{V_TMP+4} row_ror:{st} row_mask:0xf bank_mask:0xf')
        a.nop(2)
        a(f'v_add_u32_dpp v{V_TMP+4}, v{V_TMP+4}, v{V_TMP+4} row_bcast:15 row_mask:0xa bank_mask:0xf')
        a.nop(2)
        a(f'v_add_u32_dpp v{V_TMP+4}, v{V_TMP+4}, v{V_TMP+4} row_bcast:31 row_mask:0xc bank_mask:0xf')
        a.nop(1)
        a(f'v_readlane_b32 s62, v{V_TMP+4}, 63')
        a(f'v_readfirstlane_b32 s63, v{V_TMP+2}')
        a('s_nop 1')
        a(f'v_mov_b32 v{V_TMP+3}, s62')
        a('s_mov_b32 exec_hi, 0')
        a(f'buffer_store_dword v{V_TMP+3}, v{V_TMP+1}, s[{SRD_WS}:{SRD_WS+3}], 0 offen sc1')
        a('s_mov_b64 exec, -1')
        a('s_cmp_lg_u32 s63, 0\ns_cbranch_scc1 L_W_monx')
        a(f's_sleep {cfg.msleep}')
        a('s_add_u32 s66, s66, 1')
        a(f's_cmp_lt_u32 s66, {SPIN_LIMIT}\ns_cbranch_scc1 L_W_mon')
        a('s_branch L_W_monx')
        a.label('L_W_nomon')
    slice_loads(a, SRD_0, V_OFF0, V_W0, cfg.bpol, 'rows', cfg.wthr)
    slice_loads(a, SRD_1, V_OFF1, V_W1, cfg.bpol, 'wo', cfg.wthr)
    if cfg.ctl: a.label('L_W_monx')
    if cfg.cpf2:
        a(f's_cmp_lg_u32 s{S_W}, 7\ns_cbranch_scc1 L_W_nopf')
        code_prefetch(a, 'W', V_TMP, V_TMP + 4, 'L_A_loopb', cfg.cpf2_kb)
        a.label('L_W_nopf')
    if '1' in cfg.ct:
        code_touch(a, 'W1', 5, 244)
    if cfg.wstop == 2:
        a('s_waitcnt vmcnt(0)'); a('s_endpgm'); return
    if cfg.ctl:
        a(f's_cmp_lg_u32 s{S_W}, 0\ns_cbranch_scc1 L_wc_Wc')
        poll(a, CNT_C, 32, V_TMP, V_ZERO, 'Wc')
        a(f'v_mov_b32 v{V_TMP}, 1')
        a(f'ds_write_b32 v{V_ZERO}, v{V_TMP} offset:9000')
        a('s_waitcnt lgkmcnt(0)')
        a.label('L_wc_Wc')
        a('s_barrier')
    elif cfg.tag:
        if cfg.mon > 1 and 'W' in cfg.ghost:
            a(f's_cmp_lg_u32 s{S_W}, 7\ns_cbranch_scc1 L_W_nogm')
            a(f's_cmp_ge_u32 s{S_H}, 8\ns_cbranch_scc1 L_W_nogm')
            role_a4.exchange(a, cfg, 'W', V_TMP + 8, V_ZERO, L_QB + 512)
            a.label('L_W_nogm')
        if 'W' in cfg.asst:
            a(f's_cmp_lg_u32 s{S_W}, 6\ns_cbranch_scc1 L_W_noas')
            role_a4.assist(a, cfg, 'W', V_TMP + 8, V_ZERO, L_QB + 512)
            a.label('L_W_noas')
        a(f's_cmp_lg_u32 s{S_W}, 0\ns_cbranch_scc1 L_wc_Wc')
        c_ = 'c' in cfg.fl
        a(f's_lshl_b32 s62, s{S_H}, {4 if c_ else 9}\ns_add_u32 s62, s62, {WS_CSTAT:#x}')
        a(f'v_and_b32 v{V_TMP+1}, 31, v{V_LANE}')
        a(f'v_lshl_add_u32 v{V_TMP}, v{V_TMP+1}, {9 if c_ else 4}, s62')
        if c_:
            a(f's_lshl_b64 exec, 1, s{S_H}')
            tag_poll(a, 'Wc0', V_TMP + 4, V_TMP, SRD_WS, cfg.tsleep)
            a('s_mov_b32 exec_lo, -1\ns_mov_b32 exec_hi, 0')
            tag_poll(a, 'Wc', V_TMP + 4, V_TMP, SRD_WS, cfg.tsl2, shrink=True)
            a('s_mov_b32 exec_lo, -1\ns_mov_b32 exec_hi, 0')
        else:
            a('s_mov_b32 exec_hi, 0')
            tag_poll(a, 'Wc', V_TMP + 4, V_TMP, SRD_WS, cfg.tsleep)
        a(f'v_lshlrev_b32 v{V_TMP+1}, 3, v{V_TMP+1}')
        a(f'v_mov_b32 v{V_TMP+5}, v{V_TMP+6}')
        a(f'ds_write_b64 v{V_TMP+1}, {vr(V_TMP+4,2)} offset:{L_QB}')
        if cfg.mon > 1:
            a(f'v_mov_b32 v{V_TMP+7}, s{S_TAG}')
            a(f'ds_write_b32 v{V_ZERO}, v{V_TMP+7} offset:{L_QB + 512}')
        a('s_mov_b64 exec, -1')
        a('s_waitcnt lgkmcnt(0)')
        a.label('L_wc_Wc')
        a('s_barrier')
    else:
        wait_counter(a, CNT_C, 32, V_TMP, V_ZERO, 'Wc')
    stamp(a, cfg, 3)
    if cfg.wstop == 3: a('s_endpgm'); return
    for _ in range(cfg.xdel): a('s_sleep 32')
    S_B, S_Q4 = 35, 36
    a(f's_lshr_b32 s{S_B}, s{S_W}, 2')
    a(f's_and_b32 s{S_Q4}, s{S_W}, 3')
    a(f's_lshl_b32 s62, s{S_B}, 5\ns_add_u32 s62, s62, s{S_H}')
    a(f's_lshl_b32 s63, s62, 7\ns_add_u32 s63, s63, {WS_CSTAT:#x}')
    a(f'v_lshl_add_u32 v{V_TMP}, v{V_C}, 3, s63')
    if cfg.tag:
        a(f's_lshl_b32 s63, s{S_B}, 7')
        a(f'v_lshl_add_u32 v{V_TMP}, v{V_C}, 3, s63')
        a(f'ds_read_b64 {vr(V_TMP+2,2)}, v{V_TMP} offset:{L_QB}')
    else: a(f'buffer_load_dwordx2 {vr(V_TMP+2,2)}, v{V_TMP}, s[{SRD_WS}:{SRD_WS+3}], 0 offen sc1')
    a(f's_lshl_b32 s63, s62, 14\ns_add_u32 s63, s63, {WS_CPART:#x}')
    a(f's_lshl_b32 s64, s{S_Q4}, 12\ns_add_u32 s63, s63, s64')
    if 'c' in cfg.csp: a(f's_and_b32 s64, s{S_Q4}, 1\ns_lshl_b32 s64, s64, 25\ns_add_u32 s63, s63, s64')
    a(f'v_lshl_add_u32 v{V_TMP+1}, v{V_LANE}, 4, s63')
    PT = V_TMP + 8
    for kk in range(4):
        if 'l' in cfg.xs and kk: a('s_waitcnt vmcnt(0)')
        if cfg.emu:
            if kk == 0:
                a(f's_and_b32 s63, s{S_H}, 3\ns_mul_i32 s63, s63, {16384 - 1024}')
                a(f'v_subrev_u32 v{V_TMP+1}, s63, v{V_TMP+1}')
            else: continue
        a(f's_mov_b32 s64, {(kk << 23) if "c" in cfg.csp else 0:#x}')
        a(f'buffer_load_dwordx4 {vr(PT+4*kk,4)}, v{V_TMP+1}, s[{SRD_WS}:{SRD_WS+3}], s64 offen offset:{kk*1024} {cfg.rppol.replace("+", " ")}')
    a('s_waitcnt vmcnt(4) lgkmcnt(0)')
    m, l, M, e = V_TMP + 2, V_TMP + 3, V_TMP + 4, V_TMP + 5
    a(f'v_mov_b32 v{M}, v{m}')
    for st in (8, 4, 2, 1):
        a.nop(2)
        a(f'v_max_f32_dpp v{M}, v{M}, v{M} row_ror:{st} row_mask:0xf bank_mask:0xf')
    a(f'v_sub_f32 v{e}, v{m}, v{M}')
    a(f'v_exp_f32 v{e}, v{e}')
    a('s_nop 0')
    a(f'v_mul_f32 v{l}, v{l}, v{e}')
    for st in (8, 4, 2, 1):
        a.nop(2)
        a(f'v_add_f32_dpp v{l}, v{l}, v{l} row_ror:{st} row_mask:0xf bank_mask:0xf')
    a(f'v_rcp_f32 v{l}, v{l}')
    a('s_nop 0')
    a(f'v_mul_f32 v{e}, v{e}, v{l}')
    a(f's_lshl_b32 s64, s{S_Q4}, 2')
    for kk in range(4):
        a(f's_add_u32 s65, s64, {kk}')
        a(f'v_readlane_b32 s{66+kk}, v{e}, s65')
    ACC = V_TMP + 40
    UP = PT + 16
    for kk in range(4):
        a(f's_waitcnt vmcnt({3-kk})')
        for k in range(4):
            a(f'v_lshlrev_b32 v{UP+2*k}, 16, v{PT+4*kk+k}')
            a(f'v_and_b32 v{UP+2*k+1}, 0xffff0000, v{PT+4*kk+k}')
        for k in range(8):
            if kk == 0: a(f'v_mul_f32 v{ACC+k}, s{66+kk}, v{UP+k}')
            else: a(f'v_fma_f32 v{ACC+k}, v{UP+k}, s{66+kk}, v{ACC+k}')
    if cfg.wstop == 4: a('s_endpgm'); return
    a(f's_lshl_b32 s62, s{S_W}, 11')
    a(f'v_lshl_add_u32 v{V_TMP}, v{V_LANE}, 5, s62')
    a(f'ds_write_b128 v{V_TMP}, {vr(ACC,4)} offset:{L_CC}')
    a(f'ds_write_b128 v{V_TMP}, {vr(ACC+4,4)} offset:{L_CC+16}')
    a('s_waitcnt lgkmcnt(0)\ns_barrier')
    a(f'v_lshrrev_b32 v{V_TMP}, 3, v{V_C}')
    a(f'v_lshlrev_b32 v{V_TMP}, 13, v{V_TMP}')
    a(f'v_lshl_add_u32 v{V_TMP}, v{V_G}, 6, v{V_TMP}')
    a(f's_lshl_b32 s62, s{S_W}, 8')
    a(f'v_add_u32 v{V_TMP}, s62, v{V_TMP}')
    for hf in range(2):
        for q4 in range(4):
            a(f'ds_read_b128 {vr(PT+16*hf+4*q4,4)}, v{V_TMP} offset:{L_CC + 2048*hf + 16*q4}')
    a('s_waitcnt lgkmcnt(0)')
    for i in range(16):
        a(f'v_add_f32 v{PT+i}, v{PT+i}, v{PT+16+i}')
    for hf in range(2, 4):
        for q4 in range(4):
            a(f'ds_read_b128 {vr(PT+16+4*q4,4)}, v{V_TMP} offset:{L_CC + 2048*hf + 16*q4}')
        a('s_waitcnt lgkmcnt(0)')
        for i in range(16):
            a(f'v_add_f32 v{PT+i}, v{PT+i}, v{PT+16+i}')
    for i in range(8):
        a(f'v_cvt_pk_bf16_f32 v{V_X+i}, v{PT+2*i}, v{PT+2*i+1}')
    rowcomb(a, cfg, V_X, V_W0, V_Y, V_A, V_TMP, 63)
    dtile_to_lds(a, V_Y, V_TMP, L_CT, 10, 9, 1)
    a('s_waitcnt lgkmcnt(0)\ns_barrier')
    a(f'v_lshrrev_b32 v{V_TMP}, 3, v{V_C}')
    a(f'v_lshlrev_b32 v{V_TMP}, 9, v{V_TMP}')
    a(f'v_lshl_add_u32 v{V_TMP}, v{V_G}, 4, v{V_TMP}')
    a(f's_lshl_b32 s62, s{S_W}, 6')
    a(f'v_add_u32 v{V_TMP}, s62, v{V_TMP}')
    for w in range(8):
        a(f'ds_read_b128 {vr(PT+4*w,4)}, v{V_TMP} offset:{L_CT + 1024*w}')
    for w in range(1, 8):
        a(f's_waitcnt lgkmcnt({7-w})')
        for k in range(4):
            a(f'v_add_f32 v{PT+k}, v{PT+k}, v{PT+4*w+k}')
    for s_ in range(4):
        a(f'v_cvt_pk_bf16_f32 v{V_T+s_}, v{PT+s_}, v{PT+s_}')
    for s_ in range(4):
        for k in range(4):
            a(f'v_and_b32 v{V_A+4*s_+k}, v{V_T+s_}, v{V_MASK+k}')
    a('s_nop 1')
    for s_ in range(4):
        for cb in range(4):
            c = '0' if s_ == 0 else vr(V_Y+4*cb, 4)
            a(f'v_mfma_f32_16x16x32_bf16 {vr(V_Y+4*cb,4)}, {vr(V_A+4*s_,4)}, {vr(V_W1+16*s_+4*cb,4)}, {c}')
    dtile_to_lds(a, V_Y, V_TMP, L_YB, 12, 11, 4)
    a('s_waitcnt lgkmcnt(0)\ns_barrier')
    a(f's_cmp_ge_u32 s{S_W}, 4\ns_cbranch_scc1 L_W_yskip')
    a(f'v_lshlrev_b32 v{V_TMP}, 4, v0')
    for w in range(8):
        a(f'ds_read_b128 {vr(PT+4*w,4)}, v{V_TMP} offset:{L_YB + 4096*w}')
    a(f'v_lshrrev_b32 v{V_TMP+1}, 7, v0')
    a(f'v_lshlrev_b32 v{V_TMP+1}, 16, v{V_TMP+1}')
    a(f'v_and_b32 v{V_TMP+2}, 127, v0')
    a(f'v_lshl_add_u32 v{V_TMP+1}, v{V_TMP+2}, 4, v{V_TMP+1}')
    a(f's_lshl_b32 s63, s{S_H}, 11\ns_add_u32 s63, s63, {WS_YB:#x}')
    spread(a, 'b', 63, S_H, 62)
    a(f'v_add_u32 v{V_TMP+1}, s63, v{V_TMP+1}')
    for w in range(1, 8):
        a(f's_waitcnt lgkmcnt({7-w})')
        for k in range(4):
            a(f'v_add_f32 v{PT+k}, v{PT+k}, v{PT+4*w+k}')
    if cfg.tag:
        a(f'v_cvt_pk_bf16_f32 v{PT}, v{PT}, v{PT+1}')
        a(f'v_cvt_pk_bf16_f32 v{PT+2}, v{PT+2}, v{PT+3}')
        a(f'v_mov_b32 v{PT+1}, s{S_TAG}\nv_mov_b32 v{PT+3}, s{S_TAG}')
    elif cfg.ybs:
        for k in range(4): a(f'v_min_u32 v{PT+k}, 0xfffffffe, v{PT+k}')
    a(f'buffer_store_dwordx4 {vr(PT,4)}, v{V_TMP+1}, s[{SRD_WS}:{SRD_WS+3}], 0 offen {cfg.ybpol.replace("+", " ")}')
    a.label('L_W_yskip')
    if not cfg.ybs and not cfg.tag: signal(a, CNT_YB, V_ZERO, V_TMP, 'Wyb')
    stamp(a, cfg, 4)
    if cfg.wstop == 5: a('s_endpgm'); return
    if not cfg.ybs and not cfg.tag: wait_counter(a, CNT_YB, 32, V_TMP, V_ZERO, 'Wyb2')
    S_RB, S_SL = 35, 36
    a(f's_lshr_b32 s{S_RB}, s{S_H}, 4\ns_and_b32 s{S_SL}, s{S_H}, 15')
    for k in range(4): a(f'v_mov_b32 v{ACC+k}, 0')
    a(f's_cmp_ge_u32 s{S_W}, 4\ns_cbranch_scc1 L_W_bskip')
    a(f'v_lshrrev_b32 v{V_TMP}, 3, v0')
    a(f'v_lshlrev_b32 v{V_TMP}, 11, v{V_TMP}')
    a(f'v_and_b32 v{V_TMP+1}, 7, v0')
    a(f'v_lshl_add_u32 v{V_TMP}, v{V_TMP+1}, 4, v{V_TMP}')
    a(f's_lshl_b32 s62, s{S_RB}, 16\ns_lshl_b32 s63, s{S_SL}, 7\ns_add_u32 s62, s62, s63')
    a(f's_add_u32 s62, s62, {WS_YB:#x}')
    a(f'v_add_u32 v{V_TMP}, s62, v{V_TMP}')
    if 'b' in cfg.csp:
        a(f'v_bfe_u32 v{V_TMP+1}, v0, 3, 3')
        a(f'v_lshl_add_u32 v{V_TMP}, v{V_TMP+1}, 23, v{V_TMP}')
    if cfg.tag:
        tag_poll(a, 'Wyb', ACC, V_TMP, SRD_WS, cfg.ysleep, shrink='b' in cfg.fl)
        if 'b' in cfg.fl: a('s_mov_b64 exec, -1')
        a(f'v_and_b32 v{ACC+1}, 0xffff0000, v{ACC}')
        a(f'v_lshlrev_b32 v{ACC}, 16, v{ACC}')
        a(f'v_and_b32 v{ACC+3}, 0xffff0000, v{ACC+2}')
        a(f'v_lshlrev_b32 v{ACC+2}, 16, v{ACC+2}')
    if cfg.ybs:
        a('s_mov_b32 s64, 0')
        a.label('L_W_ybp')
    if not cfg.tag:
        a(f'buffer_load_dwordx4 {vr(ACC,4)}, v{V_TMP}, s[{SRD_WS}:{SRD_WS+3}], 0 offen sc1')
        a('s_waitcnt vmcnt(0)')
    if cfg.ybs:
        a(f'v_max3_u32 v{V_TMP+1}, v{ACC}, v{ACC+1}, v{ACC+2}')
        a(f'v_max_u32 v{V_TMP+1}, v{V_TMP+1}, v{ACC+3}')
        a(f'v_cmp_eq_u32 vcc, -1, v{V_TMP+1}')
        a('s_add_u32 s64, s64, 1')
        a('s_nop 0')
        a('s_cmp_eq_u64 vcc, 0\ns_cbranch_scc1 L_W_bskip')
        a(f's_cmp_lt_u32 s64, {SPIN_LIMIT}\ns_cbranch_scc1 L_W_ybp')
    a.label('L_W_bskip')
    V_CFL, V_CFO = 240, 243
    if cfg.cf: col_fast_prep(a, cfg, V_CFL, V_CFO, V_TMP, V_ZERO)
    col_finish(a, ACC, V_TMP, L_RED, 4, 512, 'Wb')
    stamp(a, cfg, 5)
    if cfg.wstop == 6: a('s_endpgm'); return
    if 'A' not in cfg.roles:
        a('s_endpgm'); return
    Y = V_W0
    ST = V_W0 + 16
    YF = V_W0 + 24
    a(f'v_lshrrev_b32 v{V_TMP}, 3, v{V_LANE}')
    a(f's_lshl_b32 s62, s{S_RB}, 8\ns_lshl_b32 s63, s{S_W}, 3\ns_add_u32 s62, s62, s63')
    a(f'v_add_u32 v{V_TMP}, s62, v{V_TMP}')
    a(f'v_lshlrev_b32 v{V_OFF0}, {4 if cfg.tag else 3}, v{V_TMP}')
    a(f'v_add_u32 v{V_OFF0}, {WS_YSTAT:#x}, v{V_OFF0}')
    if 'y' in cfg.fl:
        a(f'v_and_b32 v{V_OFF0}, 255, v{V_TMP}')
        a(f's_lshl_b32 s63, s{S_RB}, 4\ns_add_u32 s63, s63, {WS_YST2:#x}')
        spread(a, 's', 63, S_W, 62)
        a(f'v_lshl_add_u32 v{V_OFF0}, v{V_OFF0}, 7, s63')
    a(f'v_lshlrev_b32 v{V_OFF1}, 10, v{V_TMP}')
    a(f'v_and_b32 v{V_TMP+1}, 7, v{V_LANE}')
    a(f'v_lshl_add_u32 v{V_OFF1}, v{V_TMP+1}, 3, v{V_OFF1}')
    a(f's_lshl_b32 s63, s{S_SL}, 6\ns_add_u32 s63, s63, {WS_YA:#x}')
    spread(a, 'y', 63, S_W, 62)
    a(f'v_add_u32 v{V_OFF1}, s63, v{V_OFF1}')
    for k in range(4):
        a(f'v_mov_b32 v{ST+2*k}, 0xff800000\nv_mov_b32 v{ST+2*k+1}, 0')
        for i in range(2): a(f'v_mov_b32 v{Y+2*k+i}, 0')
    PEND = 66
    for k in range(4):
        a(f's_mov_b32 s{PEND+2*k}, -1\ns_mov_b32 s{PEND+2*k+1}, 0xffff')
    if cfg.two:
        final_two(a, cfg, locals())
        return
    a('s_mov_b32 s64, 0')
    a.label('L_W_gate')
    a(f's_mov_b64 exec, s[{PEND}:{PEND+1}]')
    a(f'buffer_load_dword v{V_TMP+2}, v{V_OFF0}, s[{SRD_WS}:{SRD_WS+3}], 0 offen sc1')
    a('s_mov_b64 exec, -1')
    a('s_waitcnt vmcnt(0)')
    a(f'v_cmp_ne_u32 vcc, -1, v{V_TMP+2}')
    a('s_add_u32 s64, s64, 1')
    a('s_nop 0')
    a(f's_and_b64 s[74:75], vcc, s[{PEND}:{PEND+1}]')
    a('s_cbranch_scc1 L_W_gate_done')
    a(f's_sleep {cfg.gsleep}')
    a(f's_cmp_lt_u32 s64, {SPIN_LIMIT}\ns_cbranch_scc1 L_W_gate')
    a.label('L_W_gate_done')
    stamp(a, cfg, 6)
    a('s_mov_b32 s64, 0')
    if cfg.inc:
        assert not cfg.smart
        a('s_mov_b32 s86, 0')
        for i in range(4): a(f'v_mov_b32 v{ACC+i}, 0')
    if cfg.smart:
        PENY = 78
        for k in range(4):
            a(f's_mov_b64 s[{PENY+2*k}:{PENY+2*k+1}], s[{PEND+2*k}:{PEND+2*k+1}]')
        a('s_mov_b32 s86, 0')
    def add_heads(tag):
        for k in range(4):
            a(f's_bitcmp1_b32 s86, {k}\ns_cbranch_scc1 L_W_inc{tag}{k}')
            a(f's_cmp_lg_u64 s[{PEND+2*k}:{PEND+2*k+1}], 0\ns_cbranch_scc1 L_W_inc{tag}{k}')
            a(f's_bitset1_b32 s86, {k}')
            MM, TT, LL = V_TMP + 4, V_TMP + 5, V_TMP + 6
            def allred(x, op):
                a.nop(2)
                a(f'{op}_dpp v{x}, v{x}, v{x} row_ror:8 row_mask:0xf bank_mask:0xf')
                for st in (16, 32):
                    a(f'v_mov_b32 v{TT}, v{x}')
                    a.nop(2)
                    a(f'v_permlane{st}_swap_b32 v{x}, v{TT}')
                    a.nop(1)
                    a(f'{op} v{x}, v{x}, v{TT}')
            a(f'v_mov_b32 v{MM}, v{ST+2*k}')
            for i in range(2):
                a(f'v_lshlrev_b32 v{YF+2*i}, 16, v{Y+2*k+i}')
                a(f'v_and_b32 v{YF+2*i+1}, 0xffff0000, v{Y+2*k+i}')
            allred(MM, 'v_max_f32')
            a(f'v_sub_f32 v{MM}, v{ST+2*k}, v{MM}')
            a(f'v_exp_f32 v{MM}, v{MM}')
            a('s_nop 0')
            a(f'v_mul_f32 v{LL}, v{ST+2*k+1}, v{MM}')
            allred(LL, 'v_add_f32')
            a(f'v_rcp_f32 v{LL}, v{LL}')
            a('s_nop 0')
            a(f'v_mul_f32 v{MM}, v{MM}, v{LL}')
            for i in range(4):
                a(f'v_fma_f32 v{ACC+i}, v{MM}, v{YF+i}, v{ACC+i}')
            a.label(f'L_W_inc{tag}{k}')
    if cfg.pipe:
        assert cfg.inc
        SA, SB = V_W0 + 40, V_W0 + 56
        def sweep(S):
            for k in range(4):
                a(f's_or_b32 s75, s{PEND+2*k+1}, 0x80000000')
                a(f's_mov_b32 s74, s{PEND+2*k}')
                a('s_mov_b64 exec, s[74:75]')
                a(f's_mov_b32 s63, {k*65536}')
                a(f'buffer_load_dwordx2 {vr(S+4*k,2)}, v{V_OFF0}, s[{SRD_WS}:{SRD_WS+3}], 0 offen offset:{k*512} sc1')
                a(f'buffer_load_dwordx2 {vr(S+4*k+2,2)}, v{V_OFF1}, s[{SRD_WS}:{SRD_WS+3}], s63 offen sc1')
            a('s_mov_b64 exec, -1')
        def check(S, tag):
            for k in range(4):
                t = V_TMP + k
                a(f'v_max3_u32 v{t}, v{S+4*k}, v{S+4*k+1}, v{S+4*k+2}')
                a(f'v_max_u32 v{t}, v{t}, v{S+4*k+3}')
            for k in range(4):
                a(f'v_cmp_ne_u32 vcc, -1, v{V_TMP+k}')
                a('s_nop 0')
                a(f's_and_b64 s[74:75], vcc, s[{PEND+2*k}:{PEND+2*k+1}]')
                a(f's_andn2_b64 s[{PEND+2*k}:{PEND+2*k+1}], s[{PEND+2*k}:{PEND+2*k+1}], s[74:75]')
                a('s_mov_b64 exec, s[74:75]')
                a(f'v_mov_b32 v{ST+2*k}, v{S+4*k}')
                a(f'v_mov_b32 v{ST+2*k+1}, v{S+4*k+1}')
                a(f'v_mov_b32 v{Y+2*k}, v{S+4*k+2}')
                a(f'v_mov_b32 v{Y+2*k+1}, v{S+4*k+3}')
                a('s_mov_b64 exec, -1')
            add_heads(tag)
            a(f's_or_b64 s[74:75], s[{PEND}:{PEND+1}], s[{PEND+2}:{PEND+3}]')
            a(f's_or_b64 s[76:77], s[{PEND+4}:{PEND+5}], s[{PEND+6}:{PEND+7}]')
            a('s_or_b64 s[74:75], s[74:75], s[76:77]')
            a('s_cbranch_scc0 L_W_sweep_done')
        sweep(SA)
        a.label('L_W_sweep')
        sweep(SB)
        a('s_waitcnt vmcnt(8)')
        check(SA, 'a')
        sweep(SA)
        a('s_waitcnt vmcnt(8)')
        check(SB, 'b')
        a('s_add_u32 s64, s64, 1')
        a(f's_cmp_lt_u32 s64, {SPIN_LIMIT}\ns_cbranch_scc1 L_W_sweep')
    else:
        a.label('L_W_sweep')
        for k in range(4):
            a(f's_mov_b64 exec, s[{PEND+2*k}:{PEND+2*k+1}]')
            a(f's_cbranch_execz L_W_sw{k}')
            a(f'buffer_load_dwordx2 {vr(ST+2*k,2)}, v{V_OFF0}, s[{SRD_WS}:{SRD_WS+3}], 0 offen offset:{k*512} sc1')
            if not cfg.smart:
                a(f's_mov_b32 s63, {k*65536}')
                a(f'buffer_load_dwordx2 {vr(Y+2*k,2)}, v{V_OFF1}, s[{SRD_WS}:{SRD_WS+3}], s63 offen sc1')
            a.label(f'L_W_sw{k}')
            if cfg.smart:
                a(f's_andn2_b64 s[74:75], s[{PENY+2*k}:{PENY+2*k+1}], s[{PEND+2*k}:{PEND+2*k+1}]')
                a('s_cmp_eq_u32 s86, 0')
                a(f's_cselect_b64 exec, s[74:75], s[{PENY+2*k}:{PENY+2*k+1}]')
                a(f's_cbranch_execz L_W_sy{k}')
                a(f's_mov_b32 s63, {k*65536}')
                a(f'buffer_load_dwordx2 {vr(Y+2*k,2)}, v{V_OFF1}, s[{SRD_WS}:{SRD_WS+3}], s63 offen sc1')
                a.label(f'L_W_sy{k}')
                a(f's_mov_b64 s[{88+2*k}:{89+2*k}], exec')
        a('s_mov_b64 exec, -1')
        a('s_waitcnt vmcnt(0)')
        if not cfg.smart:
            for k in range(4):
                t = V_TMP + k
                a(f'v_max3_u32 v{t}, v{ST+2*k}, v{ST+2*k+1}, v{Y+2*k}')
                a(f'v_max_u32 v{t}, v{t}, v{Y+2*k+1}')
            for k in range(4):
                a(f'v_cmp_eq_u32 vcc, -1, v{V_TMP+k}')
                a('s_nop 0')
                a(f's_and_b64 s[{PEND+2*k}:{PEND+2*k+1}], vcc, s[{PEND+2*k}:{PEND+2*k+1}]')
            if cfg.inc:
                add_heads('')
            a(f's_or_b64 s[74:75], s[{PEND}:{PEND+1}], s[{PEND+2}:{PEND+3}]')
            a(f's_or_b64 s[76:77], s[{PEND+4}:{PEND+5}], s[{PEND+6}:{PEND+7}]')
            a('s_or_b64 s[74:75], s[74:75], s[76:77]')
        else:
            for k in range(4):
                a(f'v_max_u32 v{V_TMP+k}, v{ST+2*k}, v{ST+2*k+1}')
                a(f'v_max_u32 v{V_TMP+4+k}, v{Y+2*k}, v{Y+2*k+1}')
            for k in range(4):
                a(f'v_cmp_eq_u32 vcc, -1, v{V_TMP+k}')
                a('s_nop 0')
                a(f's_and_b64 s[{PEND+2*k}:{PEND+2*k+1}], vcc, s[{PEND+2*k}:{PEND+2*k+1}]')
                a(f'v_cmp_ne_u32 vcc, -1, v{V_TMP+4+k}')
                a('s_nop 0')
                a(f's_and_b64 s[74:75], vcc, s[{88+2*k}:{89+2*k}]')
                a(f's_andn2_b64 s[{PENY+2*k}:{PENY+2*k+1}], s[{PENY+2*k}:{PENY+2*k+1}], s[74:75]')
            a('s_mov_b32 s87, 0')
            for k in range(4):
                a(f's_bcnt1_i32_b64 s62, s[{PEND+2*k}:{PEND+2*k+1}]')
                a('s_add_u32 s87, s87, s62')
            a(f's_cmp_le_u32 s87, {8*cfg.late}\ns_cselect_b32 s86, 1, 0')
            for k in range(4):
                a(f's_or_b64 s[{88+2*k}:{89+2*k}], s[{PEND+2*k}:{PEND+2*k+1}], s[{PENY+2*k}:{PENY+2*k+1}]')
            a('s_or_b64 s[74:75], s[88:89], s[90:91]')
            a('s_or_b64 s[76:77], s[92:93], s[94:95]')
            a('s_or_b64 s[74:75], s[74:75], s[76:77]')
        a('s_cbranch_scc0 L_W_sweep_done')
        a('s_add_u32 s64, s64, 1')
        a(f's_cmp_lt_u32 s64, {SPIN_LIMIT}\ns_cbranch_scc1 L_W_sweep')
    a.label('L_W_sweep_done')
    stamp(a, cfg, 7)
    if not cfg.inc:
        for k in range(4):
            for i in range(2):
                a(f'v_lshlrev_b32 v{YF+4*k+2*i}, 16, v{Y+2*k+i}')
                a(f'v_and_b32 v{YF+4*k+2*i+1}, 0xffff0000, v{Y+2*k+i}')
        Y = YF
        MM = V_TMP
        TT = V_TMP + 4
        for k in range(4): a(f'v_mov_b32 v{MM+k}, v{ST+2*k}')
        a.nop(2)
        for k in range(4):
            a(f'v_max_f32_dpp v{MM+k}, v{MM+k}, v{MM+k} row_ror:8 row_mask:0xf bank_mask:0xf')
        for st in (16, 32):
            for k in range(4): a(f'v_mov_b32 v{TT+k}, v{MM+k}')
            a.nop(2)
            for k in range(4): a(f'v_permlane{st}_swap_b32 v{MM+k}, v{TT+k}')
            a.nop(1)
            for k in range(4): a(f'v_max_f32 v{MM+k}, v{MM+k}, v{TT+k}')
        for k in range(4): a(f'v_sub_f32 v{MM+k}, v{ST+2*k}, v{MM+k}')
        for k in range(4): a(f'v_exp_f32 v{MM+k}, v{MM+k}')
        a('s_nop 0')
        for k in range(4): a(f'v_mul_f32 v{ST+2*k+1}, v{ST+2*k+1}, v{MM+k}')
        LL = V_TMP + 8
        for k in range(4): a(f'v_mov_b32 v{LL+k}, v{ST+2*k+1}')
        a.nop(2)
        for k in range(4):
            a(f'v_add_f32_dpp v{LL+k}, v{LL+k}, v{LL+k} row_ror:8 row_mask:0xf bank_mask:0xf')
        for st in (16, 32):
            for k in range(4): a(f'v_mov_b32 v{TT+k}, v{LL+k}')
            a.nop(2)
            for k in range(4): a(f'v_permlane{st}_swap_b32 v{LL+k}, v{TT+k}')
            a.nop(1)
            for k in range(4): a(f'v_add_f32 v{LL+k}, v{LL+k}, v{TT+k}')
        for k in range(4): a(f'v_rcp_f32 v{LL+k}, v{LL+k}')
        a('s_nop 0')
        for k in range(4): a(f'v_mul_f32 v{MM+k}, v{MM+k}, v{LL+k}')
        for i in range(4):
            a(f'v_mul_f32 v{ACC+i}, v{MM}, v{Y+i}')
        for k in range(1, 4):
            for i in range(4):
                a(f'v_fma_f32 v{ACC+i}, v{MM+k}, v{Y+4*k+i}, v{ACC+i}')
    col_finish(a, ACC, V_TMP + 12, 0, 8, 0, 'Wa')
    if use_nonce:
        a(f's_cmp_lg_u32 s{S_H}, 0\ns_cbranch_scc1 L_W_nonce')
        a(f's_cmp_lg_u32 s{S_W}, 0\ns_cbranch_scc1 L_W_nonce')
        a(f'v_add_u32 v{V_NONCE}, {GOLDEN:#x}, v{V_NONCE}')
        a(f'v_mov_b32 v{V_TMP}, {WS_NONCE:#x}')
        a('s_mov_b64 exec, 1')
        a(f'buffer_store_dword v{V_NONCE}, v{V_TMP}, s[{SRD_WS}:{SRD_WS+3}], 0 offen')
        a.label('L_W_nonce')
    if not cfg.aend: span_mark(a, cfg, True)
    a('s_endpgm')

def final_two(a, cfg, R):
    Y, ST, YF, PEND, ACC, V_TMP, V_OFF0, V_OFF1, SRD_WS = [R[n] for n in ('Y', 'ST', 'YF', 'PEND', 'ACC', 'V_TMP', 'V_OFF0', 'V_OFF1', 'SRD_WS')]
    if cfg.tag:
        TG = YF + 8
        a('s_mov_b32 s64, 0')
        a(f's_mov_b64 exec, s[{PEND}:{PEND+1}]')
        a.label('L_W_stt')
        for k in range(4):
            if 'y' in cfg.fl:
                a(f's_mov_b32 s63, {k*8192}')
                a(f'buffer_load_dwordx4 {vr(TG+4*k,4)}, v{V_OFF0}, s[{SRD_WS}:{SRD_WS+3}], s63 offen sc1')
            else: a(f'buffer_load_dwordx4 {vr(TG+4*k,4)}, v{V_OFF0}, s[{SRD_WS}:{SRD_WS+3}], 0 offen offset:{k*1024} sc1')
        a('s_waitcnt vmcnt(0)')
        for k in range(8): a(f'v_xor_b32 v{TG+2*k+1}, s{S_TAG}, v{TG+2*k+1}')
        a(f'v_or3_b32 v{V_TMP}, v{TG+1}, v{TG+3}, v{TG+5}')
        a(f'v_or3_b32 v{V_TMP}, v{V_TMP}, v{TG+7}, v{TG+9}')
        a(f'v_or3_b32 v{V_TMP}, v{V_TMP}, v{TG+11}, v{TG+13}')
        a(f'v_or_b32 v{V_TMP}, v{V_TMP}, v{TG+15}')
        a(f'v_cmp_ne_u32 vcc, 0, v{V_TMP}')
        a('s_add_u32 s64, s64, 1')
        a('s_nop 0')
        a('s_cmp_eq_u64 vcc, 0\ns_cbranch_scc1 L_W_stt_done')
        a('s_sleep 16')
        a(f's_cmp_lt_u32 s64, {SPIN_LIMIT}\ns_cbranch_scc1 L_W_stt')
        a.label('L_W_stt_done')
        for k in range(8): a(f'v_mov_b32 v{ST+k}, v{TG+2*k}')
        a('s_mov_b64 exec, -1')
    else:
        a('s_mov_b32 s64, 0')
        a.label('L_W_st')
        a(f's_mov_b64 exec, s[{PEND}:{PEND+1}]')
        for k in range(4):
            a(f'buffer_load_dwordx2 {vr(ST+2*k,2)}, v{V_OFF0}, s[{SRD_WS}:{SRD_WS+3}], 0 offen offset:{k*512} sc1')
        a('s_mov_b64 exec, -1')
        a('s_waitcnt vmcnt(0)')
        a(f'v_max3_u32 v{V_TMP}, v{ST}, v{ST+1}, v{ST+2}')
        a(f'v_max3_u32 v{V_TMP}, v{V_TMP}, v{ST+3}, v{ST+4}')
        a(f'v_max3_u32 v{V_TMP}, v{V_TMP}, v{ST+5}, v{ST+6}')
        a(f'v_max_u32 v{V_TMP}, v{V_TMP}, v{ST+7}')
        a(f'v_cmp_eq_u32 vcc, -1, v{V_TMP}')
        a('s_add_u32 s64, s64, 1')
        a('s_nop 0')
        a('s_cmp_eq_u64 vcc, 0\ns_cbranch_scc1 L_W_st_done')
        a('s_sleep 16')
        a(f's_cmp_lt_u32 s64, {SPIN_LIMIT}\ns_cbranch_scc1 L_W_st')
        a.label('L_W_st_done')
    MM, TT, LL = V_TMP, V_TMP + 4, V_TMP + 8
    def allred(x, op):
        a.nop(2)
        for k in range(4): a(f'{op}_dpp v{x+k}, v{x+k}, v{x+k} row_ror:8 row_mask:0xf bank_mask:0xf')
        for st in (16, 32):
            for k in range(4): a(f'v_mov_b32 v{TT+k}, v{x+k}')
            a.nop(2)
            for k in range(4): a(f'v_permlane{st}_swap_b32 v{x+k}, v{TT+k}')
            a.nop(1)
            for k in range(4): a(f'{op} v{x+k}, v{x+k}, v{TT+k}')
    for k in range(4): a(f'v_mov_b32 v{MM+k}, v{ST+2*k}')
    allred(MM, 'v_max_f32')
    for k in range(4): a(f'v_sub_f32 v{MM+k}, v{ST+2*k}, v{MM+k}')
    for k in range(4): a(f'v_exp_f32 v{MM+k}, v{MM+k}')
    a('s_nop 0')
    for k in range(4): a(f'v_mul_f32 v{LL+k}, v{ST+2*k+1}, v{MM+k}')
    allred(LL, 'v_add_f32')
    for k in range(4): a(f'v_rcp_f32 v{LL+k}, v{LL+k}')
    a('s_nop 0')
    F = ST
    for k in range(4): a(f'v_mul_f32 v{F+k}, v{MM+k}, v{LL+k}')
    for i in range(4): a(f'v_mov_b32 v{ACC+i}, 0')
    if cfg.wstop == 7: a('s_endpgm'); return
    if cfg.fp:
        a('s_mov_b32 s63, 0x40000000')
        a(f'v_writelane_b32 v{V_OFF1}, s63, 63')
    a('s_mov_b32 s64, 0')
    a(f's_mov_b32 s74, {0x01010101 if cfg.gate == 6 else 0x0101 if cfg.gate == 2 else 1:#x}\ns_mov_b32 s75, {0x0101 if cfg.gate == 6 else 0:#x}')
    a.label('L_W_gate')
    a('s_mov_b64 exec, s[74:75]')
    a(f'buffer_load_dword v{V_TMP}, v{V_OFF1}, s[{SRD_WS}:{SRD_WS+3}], 0 offen {cfg.lpol.replace("+", " ")}')
    a('s_waitcnt vmcnt(0)')
    a(f'v_cmp_ne_u32 vcc, -1, v{V_TMP}')
    a('s_mov_b64 exec, -1')
    a('s_add_u32 s64, s64, 1')
    a('s_cmp_lg_u64 vcc, 0\ns_cbranch_scc1 L_W_gate_done')
    L_GF = R['L_QB'] + 516
    if cfg.fg:
        for i in range(cfg.fg):
            a(f'ds_read_b32 v{V_TMP}, v{R["V_ZERO"]} offset:{L_GF}')
            a('s_waitcnt lgkmcnt(0)')
            a(f'v_readfirstlane_b32 s63, v{V_TMP}')
            a(f's_cmp_eq_u32 s63, s{S_TAG}\ns_cbranch_scc1 L_W_gate_done')
            a(f's_sleep {cfg.gsleep}')
    else: a(f's_sleep {cfg.gsleep}')
    a(f's_cmp_lt_u32 s64, {SPIN_LIMIT}\ns_cbranch_scc1 L_W_gate')
    a.label('L_W_gate_done')
    if cfg.fg:
        a(f'v_mov_b32 v{V_TMP}, s{S_TAG}')
        a(f'ds_write_b32 v{R["V_ZERO"]}, v{V_TMP} offset:{L_GF}')
    stamp(a, cfg, 6)
    if cfg.wstop == 8: a('s_endpgm'); return
    a('s_mov_b32 s64, 0')
    for k in range(1, 4): a(f's_mov_b32 s{76+k}, {k*65536}')
    if cfg.fp and cfg.fth >= 24: a('s_branch L_W_pipe')
    a.label('L_W_sweep')
    for k in range(4):
        a(f's_mov_b64 exec, s[{PEND+2*k}:{PEND+2*k+1}]')
        a(f's_cbranch_execz L_W_sw{k}')
        so = '0' if k == 0 else f's{76+k}'
        a(f'buffer_load_dwordx2 {vr(Y+2*k,2)}, v{V_OFF1}, s[{SRD_WS}:{SRD_WS+3}], {so} offen {cfg.lpol.replace("+", " ")}')
        a.label(f'L_W_sw{k}')
    a('s_waitcnt vmcnt(0)')
    for k in range(4):
        a(f's_mov_b64 exec, s[{PEND+2*k}:{PEND+2*k+1}]')
        a(f's_cbranch_execz L_W_sx{k}')
        a(f'v_max_u32 v{V_TMP}, v{Y+2*k}, v{Y+2*k+1}')
        a(f'v_cmp_ne_u32 vcc, -1, v{V_TMP}')
        for i in range(2):
            a(f'v_lshlrev_b32 v{YF+2*i}, 16, v{Y+2*k+i}')
            a(f'v_and_b32 v{YF+2*i+1}, 0xffff0000, v{Y+2*k+i}')
        a(f's_andn2_b64 s[{PEND+2*k}:{PEND+2*k+1}], exec, vcc')
        a('s_mov_b64 exec, vcc')
        for i in range(4): a(f'v_fma_f32 v{ACC+i}, v{F+k}, v{YF+i}, v{ACC+i}')
        a.label(f'L_W_sx{k}')
    a('s_mov_b64 exec, -1')
    a(f's_or_b64 s[74:75], s[{PEND}:{PEND+1}], s[{PEND+2}:{PEND+3}]')
    a(f's_or_b64 s[80:81], s[{PEND+4}:{PEND+5}], s[{PEND+6}:{PEND+7}]')
    a('s_or_b64 s[74:75], s[74:75], s[80:81]')
    a('s_cbranch_scc0 L_W_sweep_done')
    if cfg.fp:
        for k in range(4): a(f's_bcnt1_i32_b64 s{80+k}, s[{PEND+2*k}:{PEND+2*k+1}]')
        a('s_add_u32 s80, s80, s81\ns_add_u32 s82, s82, s83\ns_add_u32 s80, s80, s82')
        a(f's_cmp_le_u32 s80, {8*cfg.fth}\ns_cbranch_scc1 L_W_pipe')
    if cfg.sw1:
        for k in range(4): a(f's_bcnt1_i32_b64 s{80+k}, s[{PEND+2*k}:{PEND+2*k+1}]')
        a('s_add_u32 s80, s80, s81\ns_add_u32 s82, s82, s83\ns_add_u32 s80, s80, s82')
        a(f's_cmp_le_u32 s80, {8*cfg.sw1}\ns_cbranch_scc1 L_W_nosl')
        a(f's_sleep {cfg.sl1}')
        a(f's_cmp_le_u32 s80, {8*cfg.sw2}\ns_cbranch_scc1 L_W_nosl')
        a(f's_sleep {cfg.sl2}')
        a.label('L_W_nosl')
    a('s_add_u32 s64, s64, 1')
    a(f's_cmp_lt_u32 s64, {SPIN_LIMIT}\ns_cbranch_scc1 L_W_sweep')
    if cfg.fp:
        a('s_branch L_W_sweep_done')
        a.label('L_W_pipe')
        YS = [YF + 16 + 8 * i for i in range(cfg.fp)]
        def issue(y):
            for k in range(4):
                a(f's_mov_b32 exec_lo, s{PEND+2*k}')
                a(f's_or_b32 exec_hi, s{PEND+2*k+1}, 0x80000000')
                so = '0' if k == 0 else f's{76+k}'
                a(f'buffer_load_dwordx2 {vr(y+2*k,2)}, v{V_OFF1}, s[{SRD_WS}:{SRD_WS+3}], {so} offen {cfg.lpol.replace("+", " ")}')
        for i in range(cfg.fp - 1):
            issue(YS[i])
            a(f's_sleep {cfg.fsl}')
        a('.p2align 6')
        a.label('L_W_pipel')
        for i in range(cfg.fp):
            issue(YS[(i + cfg.fp - 1) % cfg.fp])
            a(f's_waitcnt vmcnt({4 * (cfg.fp - 1)})')
            y = YS[i]
            for k in range(4):
                a(f's_mov_b64 exec, s[{PEND+2*k}:{PEND+2*k+1}]')
                a(f's_cbranch_execz L_W_px{i}{k}')
                a(f'v_max_u32 v{V_TMP}, v{y+2*k}, v{y+2*k+1}')
                a(f'v_cmp_ne_u32 vcc, -1, v{V_TMP}')
                for e in range(2):
                    a(f'v_lshlrev_b32 v{YF+2*e}, 16, v{y+2*k+e}')
                    a(f'v_and_b32 v{YF+2*e+1}, 0xffff0000, v{y+2*k+e}')
                a(f's_andn2_b64 s[{PEND+2*k}:{PEND+2*k+1}], exec, vcc')
                a('s_mov_b64 exec, vcc')
                for e in range(4): a(f'v_fma_f32 v{ACC+e}, v{F+k}, v{YF+e}, v{ACC+e}')
                a.label(f'L_W_px{i}{k}')
            a(f's_or_b64 s[74:75], s[{PEND}:{PEND+1}], s[{PEND+2}:{PEND+3}]')
            a(f's_or_b64 s[80:81], s[{PEND+4}:{PEND+5}], s[{PEND+6}:{PEND+7}]')
            a('s_or_b64 s[74:75], s[74:75], s[80:81]')
            a('s_cbranch_scc0 L_W_sweep_done')
        a('s_add_u32 s64, s64, 1')
        a(f's_cmp_lt_u32 s64, {SPIN_LIMIT}\ns_cbranch_scc1 L_W_pipel')
    a.label('L_W_sweep_done')
    if cfg.fp: a('s_mov_b64 exec, -1')
    stamp(a, cfg, 7)
    if cfg.cf: col_fast(a, cfg, ACC, R['V_CFL'], R['V_CFO'], V_TMP + 12)
    else: col_finish(a, ACC, V_TMP + 12, 0, 8, 0, 'Wa', perm=cfg.smf)
    if cfg.tag:
        a(f's_or_b32 s62, s{S_H}, s{S_W}\ns_cbranch_scc1 L_W_nonext')
        a(f'v_mov_b32 v{V_TMP}, {WS_NONCE:#x}\nv_mov_b32 v{V_TMP+1}, s{S_TAG}')
        a('s_mov_b64 exec, 1')
        a(f'buffer_store_dword v{V_TMP+1}, v{V_TMP}, s[{SRD_WS}:{SRD_WS+3}], 0 offen {cfg.opol.replace("+", " ")}')
        a('s_mov_b64 exec, -1')
        a.label('L_W_nonext')
    if not cfg.aend: span_mark(a, cfg, True)
    lite_end(a, cfg, 0, 7)
    a('s_endpgm')

def q_for_A(a, cfg, SRD_WS, L_QP):
    SRD_0, SRD_X = 52, 56
    V_OFF, V_X, V_A, V_Y, V_W, V_TMP = 10, 12, 28, 44, 64, 192
    a(f's_lshl_b32 s60, s{S_HP}, 8')
    a(f's_sub_u32 s61, {512*8192:#x}, s60')
    srd(a, SRD_0, P_AWQ, off_s=60, nrec_s=61)
    srd(a, SRD_X, P_AX, nrec=2048)
    a(f'v_lshrrev_b32 v{V_TMP}, 3, v{V_C}')
    a(f'v_lshlrev_b32 v{V_TMP}, 10, v{V_TMP}')
    a(f'v_lshl_add_u32 v{V_TMP}, v{V_G}, 5, v{V_TMP}')
    a(f's_lshl_b32 s62, s{S_W}, 7')
    a(f'v_add_u32 v{V_TMP}, s62, v{V_TMP}')
    a(f'buffer_load_dwordx4 {vr(V_X,4)}, v{V_TMP}, s[{SRD_X}:{SRD_X+3}], 0 offen')
    a(f'buffer_load_dwordx4 {vr(V_X+4,4)}, v{V_TMP}, s[{SRD_X}:{SRD_X+3}], 0 offen offset:16')
    rows_voff(a, V_OFF)
    Lq = cfg.cq
    def load(s_):
        a(f's_mov_b32 s62, {s_*8192}')
        a(f'buffer_load_dwordx4 {vr(V_W+4*s_,4)}, v{V_OFF}, s[{SRD_0}:{SRD_0+3}], s62 offen {cfg.bpol}')
    for s_ in range(Lq): load(s_)
    a(f'v_lshrrev_b32 v{V_TMP}, 1, v{V_G}')
    a(f'v_lshlrev_b32 v{V_TMP}, 9, v{V_TMP}')
    a(f'v_lshl_add_u32 v{V_TMP}, v{V_C}, 5, v{V_TMP}')
    a(f'v_and_b32 v{V_TMP+1}, 1, v{V_G}')
    a(f'v_lshl_add_u32 v{V_TMP}, v{V_TMP+1}, 4, v{V_TMP}')
    a(f's_lshl_b32 s63, s{S_W}, 10\ns_add_u32 s63, s63, {L_QP}')
    a(f'v_add_u32 v{V_TMP}, s63, v{V_TMP}')
    a(f'v_lshlrev_b32 v{V_TMP+1}, 4, v{V_LANE}')
    a(f's_lshl_b32 s63, s{S_H}, 10\ns_add_u32 s63, s63, {WS_QA:#x}')
    a(f'v_add_u32 v{V_TMP+2}, s63, v{V_TMP+1}')
    a(f'v_add_u32 v{V_TMP+1}, {L_QP}, v{V_TMP+1}')
    a('s_mov_b32 s66, 0x01000100\ns_mov_b32 s67, 0x03020302')
    for s_ in range(16):
        A = V_A + 4 * (s_ & 1)
        a(f's_waitcnt vmcnt({min(Lq - 1, 15 - s_)})')
        if s_ + Lq < 16: load(s_ + Lq)
        a(f'v_perm_b32 v{V_TMP+3}, v{V_X + s_//2}, v{V_X + s_//2}, s{66 + (s_ & 1)}')
        for i in range(4): a(f'v_and_b32 v{A+i}, v{V_TMP+3}, v{V_MASK+i}')
        a('s_nop 1')
        c = '0' if s_ == 0 else vr(V_Y, 4)
        a(f'v_mfma_f32_16x16x32_bf16 {vr(V_Y,4)}, {vr(A,4)}, {vr(V_W+4*s_,4)}, {c}')
    a.nop(8)
    a(f'ds_write_b128 v{V_TMP}, {vr(V_Y,4)}')
    get_tag(a)
    a('s_barrier')
    a(f's_cmp_lg_u32 s{S_W}, 0\ns_cbranch_scc1 L_C_qdone')
    for w in range(8): a(f'ds_read_b128 {vr(V_W+4*w,4)}, v{V_TMP+1} offset:{1024*w}')
    for w in range(1, 8):
        a(f's_waitcnt lgkmcnt({7-w})')
        for k in range(4): a(f'v_add_f32 v{V_W+k}, v{V_W+k}, v{V_W+4*w+k}')
    a(f'v_cvt_pk_bf16_f32 v{V_W}, v{V_W}, v{V_W+1}')
    a(f'v_cvt_pk_bf16_f32 v{V_W+2}, v{V_W+2}, v{V_W+3}')
    a(f'v_mov_b32 v{V_W+1}, s{S_TAG}\nv_mov_b32 v{V_W+3}, s{S_TAG}')
    a(f'buffer_store_dwordx4 {vr(V_W,4)}, v{V_TMP+2}, s[{SRD_WS}:{SRD_WS+3}], 0 offen sc1')
    a.label('L_C_qdone')
    if cfg.cqbar: a('s_barrier')
    stamp(a, cfg, 4)

def role_C(a, cfg):
    TS = 1056
    BUF = 64 * TS
    L_TMAX, L_P = 0, 512
    PS = 144
    L_T0 = 5120
    L_T1 = L_T0 + BUF
    assert L_P + 32*PS <= L_T0 and L_T1 + BUF <= LDS_BYTES
    SRD_C, SRD_WS = 40, 44
    S_B, S_KB, S_HB, S_LB, S_IT, S_BUF = 35, 36, 37, 38, 39, 48
    V_ZERO, V_COFF, V_SA, V_TA, V_PW, V_PR, V_TW, V_TRS, V_TRP = 8, 9, 10, 11, 12, 13, 14, 15, 16
    V_SC, V_MS, V_MP, V_LS, V_AL = 17, 18, 19, 20, 21
    V_T = 24
    V_SD = 28
    V_Q = 32
    V_ACC = 96
    V_SF = 128
    V_PB = 192
    V_TF = 128
    V_STG = 208
    V_TMP = 240
    V_STA, V_STW = 22, 23
    a.label('L_roleC')
    late_entry(a, cfg)
    stamp(a, cfg, 0)
    if cfg.tag: load_tag(a)
    a(f'v_mov_b32 v{V_ZERO}, 0')
    a(f's_lshr_b32 s{S_B}, s{S_H}, 4')
    a(f's_lshr_b32 s{S_KB}, s{S_W}, 1\ns_and_b32 s{S_HB}, s{S_W}, 1')
    a(f's_lshl_b32 s60, s{S_H}, 19')
    a(f's_mov_b32 s61, {512*1024:#x}')
    srd(a, SRD_C, P_BC, off_s=60, nrec_s=61)
    srd(a, SRD_WS, P_WS, nrec=0x4000000)
    if cfg.dyn:
        a(f's_cmp_lg_u32 s{S_W}, 0\ns_cbranch_scc1 L_C_noz')
        a(f's_lshl_b32 s62, s{S_H}, 7\ns_add_u32 s62, s62, {WS_CTR:#x}')
        a(f'v_lshl_add_u32 v{V_TMP}, v{V_LANE}, 12, s62')
        a(f'v_mov_b32 v{V_TMP+1}, 1')
        a('s_mov_b64 exec, 3')
        a(f'buffer_store_dword v{V_ZERO}, v{V_TMP}, s[{SRD_WS}:{SRD_WS+3}], 0 offen sc1')
        a('s_waitcnt vmcnt(0)')
        a('s_mov_b64 exec, 1')
        a(f'global_atomic_add v{V_ZERO}, v{V_TMP+1}, s[{P_DBG}:{P_DBG+1}] offset:{CNT_Z} sc1')
        a('s_mov_b64 exec, -1')
        a.label('L_C_noz')
    if cfg.cpf:
        a(f's_cmp_lg_u32 s{S_W}, 7\ns_cbranch_scc1 L_C_nopf')
        code_prefetch(a, 'C', V_TMP, V_SF, f'{NAME}_kernel', cfg.cpf_kb)
        a.label('L_C_nopf')
    if '0' in cfg.ct: code_touch(a, 'C0', 7, 244)
    def q_part(n):
        if n != cfg.cfirst: return
        if cfg.tag and cfg.qc: q_for_A(a, cfg, SRD_WS, L_T1 + BUF)
        elif cfg.tag: get_tag(a)
    q_part(0)
    a(f'v_lshlrev_b32 v{V_COFF}, 4, v{V_LANE}')
    a(f's_lshl_b32 s62, s{S_W}, 13')
    a(f'v_add_u32 v{V_COFF}, s62, v{V_COFF}')
    S_RO, S_TB, S_TN = 68, 76, 77
    if cfg.cperm:
        a(f's_lshl_b32 s62, s{S_W}, 16')
        a(f'v_lshl_add_u32 v{V_COFF}, v{V_LANE}, 4, s62')
        a(f's_lshr_b32 s62, s{S_W}, 1' if cfg.cperm < 3 else 's_mov_b32 s62, 0')
        a(f's_and_b32 s{S_TB}, s{S_W}, {1 if cfg.cperm == 1 else 0}\ns_lshl_b32 s{S_TB}, s{S_TB}, 15')
        for i in range(8): a(f's_xor_b32 s{S_RO+i}, s62, {i}\ns_lshl_b32 s{S_RO+i}, s{S_RO+i}, 10')
        a(f'v_add_u32 v{V_COFF}, s{S_TB}, v{V_COFF}')
        a(f's_mov_b32 s{S_TN}, 0')
    def caddr(i):
        if cfg.cperm: return f's{S_RO+i} offen'
        return f'{"0" if i < 4 else "s51"} offen offset:{(i%4)*1024}'
    def next_tile():
        if not cfg.cperm:
            a(f'v_add_u32 v{V_COFF}, 0x10000, v{V_COFF}')
            return
        a(f's_add_u32 s62, s{S_TB}, 0x2000\ns_and_b32 s62, s62, 0xffff')
        a(f's_add_u32 s{S_TN}, s{S_TN}, 1\ns_cmp_eq_u32 s{S_TN}, 8\ns_cselect_b32 s62, 0x40000000, s62')
        a(f's_sub_u32 s63, s62, s{S_TB}\ns_mov_b32 s{S_TB}, s62')
        a(f'v_add_u32 v{V_COFF}, s63, v{V_COFF}')
    a(f's_mul_i32 s{S_LB}, s{S_W}, {8*TS}')
    def dma(bufreg_or_imm):
        for i in range(8):
            hi, lo = i // 4, i % 4
            if bufreg_or_imm == 'thr' and cfg.cthr: a(f's_waitcnt vmcnt({cfg.cthr-1})')
            a(f's_add_u32 m0, s50, {i*TS if cfg.cperm else hi*4*TS + lo*(TS-1024)}')
            a('s_nop 0')
            a(f'buffer_load_dwordx4 v{V_COFF}, s[{SRD_C}:{SRD_C+3}], {caddr(i)} {cfg.cpol} lds')
        next_tile()
    a('s_mov_b32 s51, 4096')
    if cfg.cfast:
        for t in range(cfg.cfast):
            for i in range(8):
                a(f's_waitcnt vmcnt({cfg.cthr - 1})')
                a(f'buffer_load_dwordx4 {vr(V_STG+4*i,4)}, v{V_COFF}, s[{SRD_C}:{SRD_C+3}], {caddr(i)} {cfg.cpol}')
            next_tile()
        a('s_waitcnt vmcnt(0)')
        stamp(a, cfg, 2)
        a('s_endpgm')
        return
    a(f's_add_u32 s50, s{S_LB}, {L_T0}'); dma('thr')
    q_part(1)
    a(f's_add_u32 s50, s{S_LB}, {L_T1}'); dma('thr')
    q_part(2)
    def stage_load(i):
        a(f'buffer_load_dwordx4 {vr(V_STG+4*i,4)}, v{V_COFF}, s[{SRD_C}:{SRD_C+3}], {caddr(i)} {cfg.cpol}')
    if not cfg.clate:
        for i in range(8):
            if cfg.cthr: a(f's_waitcnt vmcnt({cfg.cthr-1})')
            stage_load(i)
        next_tile()
    q_part(3)
    a(f's_add_u32 s62, s{S_LB}, {L_T0}')
    a(f'v_lshl_add_u32 v{V_STA}, v{V_LANE}, 4, s62')
    a(f's_lshl_b32 s62, s{S_KB}, 4')
    a(f'v_add_u32 v{V_TMP}, s62, v{V_C}')
    a(f'v_mul_u32_u24 v{V_SA}, {TS}, v{V_TMP}')
    a(f'v_lshl_add_u32 v{V_SA}, v{V_G}, 4, v{V_SA}')
    a(f'v_add_u32 v{V_SA}, {L_T0}, v{V_SA}')
    a(f'v_lshrrev_b32 v{V_TMP}, 1, v{V_G}')
    a(f'v_lshlrev_b32 v{V_TMP}, 3, v{V_TMP}')
    a(f'v_lshrrev_b32 v{V_TMP+1}, 2, v{V_C}')
    a(f'v_add_u32 v{V_TMP}, v{V_TMP}, v{V_TMP+1}')
    a(f'v_mul_u32_u24 v{V_TA}, {TS}, v{V_TMP}')
    a(f'v_and_b32 v{V_TMP}, 1, v{V_G}')
    a(f'v_lshl_add_u32 v{V_TA}, v{V_TMP}, 5, v{V_TA}')
    a(f'v_and_b32 v{V_TMP}, 3, v{V_C}')
    a(f'v_lshl_add_u32 v{V_TA}, v{V_TMP}, 3, v{V_TA}')
    a(f's_lshl_b32 s62, s{S_W}, 7\ns_add_u32 s62, s62, {L_T0}')
    a(f'v_add_u32 v{V_TA}, s62, v{V_TA}')
    a(f's_lshl_b32 s62, s{S_HB}, 4')
    a(f'v_add_u32 v{V_TMP}, s62, v{V_C}')
    a(f'v_mul_u32_u24 v{V_PW}, {PS}, v{V_TMP}')
    a(f'v_lshl_add_u32 v{V_PW}, v{V_G}, 3, v{V_PW}')
    a(f's_lshl_b32 s62, s{S_KB}, 5')
    a(f'v_add_u32 v{V_PW}, s62, v{V_PW}')
    a(f'v_lshlrev_b32 v{V_TRS}, 4, v{V_TMP}')
    a(f's_lshl_b32 s62, s{S_KB}, 2')
    a(f'v_add_u32 v{V_TW}, s62, v{V_TRS}')
    a(f'v_and_b32 v{V_TMP}, 31, v{V_LANE}')
    a(f'v_mul_u32_u24 v{V_PR}, {PS}, v{V_TMP}')
    a(f'v_lshrrev_b32 v{V_TMP+1}, 5, v{V_LANE}')
    a(f'v_lshl_add_u32 v{V_PR}, v{V_TMP+1}, 4, v{V_PR}')
    a(f'v_lshlrev_b32 v{V_TRP}, 4, v{V_TMP}')
    a(f'v_mov_b32 v{V_SC}, {f2u(SCALE):#x}')
    a(f'v_mov_b32 v{V_MS}, 0xff800000\nv_mov_b32 v{V_MP}, 0xff800000\nv_mov_b32 v{V_LS}, 0')
    for k in range(32): a(f'v_mov_b32 v{V_ACC+k}, 0')
    if cfg.tag:
        a(f's_cmp_lg_u32 s{S_W}, 0\ns_cbranch_scc1 L_wc_Cq')
        if 'q' in cfg.fl:
            a(f's_mov_b32 s62, {WS_MBOX:#x}')
            a(f'v_lshl_add_u32 v{V_TMP}, v{V_LANE}, 8, s62')
            a(f's_lshl_b64 exec, 1, s{S_H}')
            tag_poll(a, 'Cq0', V_TMP + 1, V_TMP, SRD_WS, cfg.tsleep, 1)
            a('s_mov_b32 exec_lo, -1\ns_mov_b32 exec_hi, 0')
            tag_poll(a, 'Cq', V_TMP + 1, V_TMP, SRD_WS, cfg.tsl2, 1, shrink=True)
        else:
            a(f's_lshl_b32 s62, s{S_H}, 8\ns_add_u32 s62, s62, {WS_MBOX:#x}')
            a(f'v_lshl_add_u32 v{V_TMP}, v{V_LANE}, 2, s62')
            a('s_mov_b32 exec_hi, 0')
            if not cfg.nowait: tag_poll(a, 'Cq', V_TMP + 1, V_TMP, SRD_WS, cfg.tsleep, 1)
        a('s_mov_b64 exec, -1')
        a.label('L_wc_Cq')
        a('s_barrier')
    else: wait_counter(a, CNT_Q, 0 if cfg.nowait else 32, V_TMP, V_ZERO, 'Cq', acquire=cfg.qacq)
    stamp(a, cfg, 1)
    if cfg.cstop == 2:
        a('s_waitcnt vmcnt(0)'); a('s_endpgm'); return
    a(f's_lshl_b32 s62, s{S_B}, 5\ns_lshl_b32 s63, s{S_HB}, 4\ns_add_u32 s62, s62, s63')
    a(f'v_add_u32 v{V_TMP}, s62, v{V_C}')
    a(f'v_lshlrev_b32 v{V_TMP}, 10, v{V_TMP}')
    a(f'v_lshl_add_u32 v{V_TMP}, v{V_G}, 4, v{V_TMP}')
    a(f'v_add_u32 v{V_TMP}, {WS_QABS:#x}, v{V_TMP}')
    for s_ in range(16):
        a(f'buffer_load_dwordx4 {vr(V_Q+4*s_,4)}, v{V_TMP}, s[{SRD_WS}:{SRD_WS+3}], 0 offen offset:{64*s_} {"" if cfg.qacq else "sc1"}')
    if cfg.cpre != '-':
        a(f's_lshl_b32 s62, s{S_B}, 5\ns_lshl_b32 s63, s{S_W}, 2\ns_add_u32 s62, s62, s63')
        a(f's_lshl_b32 s62, s62, 4\ns_and_b32 s63, s{S_H}, 15\ns_add_u32 s62, s62, s63')
        a(f's_lshl_b32 s62, s62, 10\ns_add_u32 s62, s62, {WS_CPART:#x}')
        a(f'v_lshl_add_u32 v{V_TMP+1}, v{V_G}, 14, s62')
        a(f'v_lshl_add_u32 v{V_TMP+1}, v{V_C}, 6, v{V_TMP+1}')
        a(f'buffer_load_dword v{V_TMP+9}, v{V_TMP+1}, s[{SRD_WS}:{SRD_WS+3}], 0 offen {cfg.cpre.replace("+", " ")}')
    if cfg.cstop == 3:
        a('s_waitcnt vmcnt(0)'); a('s_endpgm'); return
    if cfg.clate:
        for i in range(8): stage_load(i)
        a(f'v_add_u32 v{V_COFF}, 0x10000, v{V_COFF}')
    a(f's_mov_b32 s{S_IT}, 0\ns_mov_b32 s{S_BUF}, 0')
    a('.p2align 6')
    a.label('L_C_loop')
    a(f's_cmp_lg_u32 s{S_IT}, 0\ns_cbranch_scc1 L_C_top')
    a('s_waitcnt vmcnt(8)' if cfg.clate else 's_waitcnt vmcnt(0)')
    a.label('L_C_top')
    a('s_waitcnt lgkmcnt(0)\ns_barrier')
    S_STG = 52
    a(f's_mov_b32 s{S_STG}, 1')
    a(f's_cmp_eq_u32 s{S_IT}, 0\ns_cselect_b32 s{S_STG}, 0, s{S_STG}')
    a(f's_cmp_ge_u32 s{S_IT}, 7\ns_cselect_b32 s{S_STG}, 0, s{S_STG}')
    a(f's_sub_u32 s50, {BUF}, s{S_BUF}')
    a(f'v_add_u32 v{V_STW}, s50, v{V_STA}')
    nstage = [0]
    def stage(rows):
        lab = f'L_C_st{nstage[0]}'; nstage[0] += 1
        a(f's_cmp_eq_u32 s{S_STG}, 0\ns_cbranch_scc1 {lab}')
        for i in rows:
            a('s_waitcnt vmcnt(7)')
            a(f'ds_write_b128 v{V_STW}, {vr(V_STG+4*i,4)} offset:{i*TS}')
            stage_load(i)
        if rows[-1] == 7: next_tile()
        a.label(lab)
    groups = [[0, 1], [2, 3], [4, 5], [6, 7]] if cfg.cspread else [list(range(8)), [], [], []]
    stage(groups[0])
    a(f'v_add_u32 v{V_TMP}, s{S_BUF}, v{V_SA}')
    a(f'v_add_u32 v{V_TMP+1}, s{S_BUF}, v{V_TA}')
    for s_ in range(16):
        a(f'ds_read_b128 {vr(V_SF+4*s_,4)}, v{V_TMP} offset:{64*s_}')
    for s_ in range(16):
        a(f's_waitcnt lgkmcnt({15-s_})')
        c = '0' if s_ == 0 else vr(V_SD, 4)
        a(f'v_mfma_f32_16x16x32_bf16 {vr(V_SD,4)}, {vr(V_SF+4*s_,4)}, {vr(V_Q+4*s_,4)}, {c}')
    if groups[1]: stage(groups[1])
    a.nop(8)
    for i in range(4): a(f'v_mul_f32 v{V_T+i}, v{V_SD+i}, v{V_SC}')
    a(f'v_max3_f32 v{V_TMP+2}, v{V_T}, v{V_T+1}, v{V_T+2}')
    a(f'v_max_f32 v{V_TMP+2}, v{V_TMP+2}, v{V_T+3}')
    xrow_allreduce(a, 'v_max_f32', V_TMP+2, V_TMP+3)
    a('s_mov_b64 exec, 0xffff')
    a(f'ds_write_b32 v{V_TW}, v{V_TMP+2} offset:{L_TMAX}')
    a('s_mov_b64 exec, -1')
    a('s_waitcnt lgkmcnt(0)\ns_barrier')
    a(f'ds_read_b128 {vr(V_PB,4)}, v{V_TRS} offset:{L_TMAX}')
    a(f'ds_read_b128 {vr(V_PB+4,4)}, v{V_TRP} offset:{L_TMAX}')
    a('s_waitcnt lgkmcnt(1)')
    a(f'v_max3_f32 v{V_TMP+2}, v{V_PB}, v{V_PB+1}, v{V_PB+2}')
    a(f'v_max3_f32 v{V_TMP+2}, v{V_TMP+2}, v{V_PB+3}, v{V_MS}')
    a(f'v_sub_f32 v{V_AL}, v{V_MS}, v{V_TMP+2}')
    for i in range(4): a(f'v_sub_f32 v{V_T+i}, v{V_T+i}, v{V_TMP+2}')
    a(f'v_exp_f32 v{V_AL}, v{V_AL}')
    for i in range(4): a(f'v_exp_f32 v{V_T+i}, v{V_T+i}')
    a(f'v_mov_b32 v{V_MS}, v{V_TMP+2}')
    a(f'v_cvt_pk_bf16_f32 v{V_TMP+4}, v{V_T}, v{V_T+1}')
    a(f'v_cvt_pk_bf16_f32 v{V_TMP+5}, v{V_T+2}, v{V_T+3}')
    a(f'ds_write_b64 v{V_PW}, {vr(V_TMP+4,2)} offset:{L_P}')
    a(f'v_add_f32 v{V_T}, v{V_T}, v{V_T+1}')
    a(f'v_add_f32 v{V_T+2}, v{V_T+2}, v{V_T+3}')
    a(f'v_fma_f32 v{V_LS}, v{V_LS}, v{V_AL}, v{V_T}')
    a(f'v_add_f32 v{V_LS}, v{V_LS}, v{V_T+2}')
    a('s_waitcnt lgkmcnt(1)')
    a(f'v_max3_f32 v{V_TMP+2}, v{V_PB+4}, v{V_PB+5}, v{V_PB+6}')
    a(f'v_max3_f32 v{V_TMP+2}, v{V_TMP+2}, v{V_PB+7}, v{V_MP}')
    a(f'v_sub_f32 v{V_AL}, v{V_MP}, v{V_TMP+2}')
    a(f'v_exp_f32 v{V_AL}, v{V_AL}')
    a(f'v_mov_b32 v{V_MP}, v{V_TMP+2}')
    for k in range(32): a(f'v_mul_f32 v{V_ACC+k}, v{V_ACC+k}, v{V_AL}')
    if groups[2]: stage(groups[2])
    a('s_waitcnt lgkmcnt(0)\ns_barrier')
    for t in range(4):
        a(f'ds_read_b128 {vr(V_PB+4*t,4)}, v{V_PR} offset:{L_P + 32*t}')
    for t in range(4):
        for cb in range(2):
            f = V_TF + 8*t + 4*cb
            off = t*16*TS + cb*64
            a(f'ds_read_b64_tr_b16 {vr(f,2)}, v{V_TMP+1} offset:{off}')
            a(f'ds_read_b64_tr_b16 {vr(f+2,2)}, v{V_TMP+1} offset:{off + 4*TS}')
    for t in range(4):
        a(f's_waitcnt lgkmcnt({12 - 4*t})')
        for cb in range(2):
            f = V_TF + 8*t + 4*cb
            a(f'v_mfma_f32_32x32x16_bf16 {vr(V_ACC+16*cb,16)}, {vr(f,4)}, {vr(V_PB+4*t,4)}, {vr(V_ACC+16*cb,16)}')
    if groups[3]: stage(groups[3])
    a(f's_sub_u32 s{S_BUF}, {BUF}, s{S_BUF}')
    a(f's_add_u32 s{S_IT}, s{S_IT}, 1')
    a(f's_cmp_lt_u32 s{S_IT}, 8\ns_cbranch_scc1 L_C_loop')
    stamp(a, cfg, 2)
    if cfg.cstop == 1: a('s_endpgm'); return
    xrow_allreduce(a, 'v_add_f32', V_LS, V_TMP+3)
    a('s_barrier')
    a('s_mov_b64 exec, 0xffff')
    a(f'ds_write_b32 v{V_TW}, v{V_LS} offset:{L_TMAX}')
    a('s_mov_b64 exec, -1')
    RS = 2064
    a(f'v_and_b32 v{V_TMP}, 31, v{V_LANE}')
    a(f'v_mul_u32_u24 v{V_TMP}, {RS}, v{V_TMP}')
    a(f'v_lshrrev_b32 v{V_TMP+1}, 5, v{V_LANE}')
    a(f'v_lshl_add_u32 v{V_TMP}, v{V_TMP+1}, 4, v{V_TMP}')
    a(f's_lshl_b32 s62, s{S_W}, 8\ns_add_u32 s62, s62, {L_T0}')
    a(f'v_add_u32 v{V_TMP}, s62, v{V_TMP}')
    a.nop(6)
    for cb in range(2):
        for k in range(4):
            a(f'ds_write_b128 v{V_TMP}, {vr(V_ACC+16*cb+4*k,4)} offset:{128*cb + 32*k}')
    a('s_waitcnt lgkmcnt(0)\ns_barrier')
    a(f's_mul_i32 s62, s{S_W}, {4*RS}\ns_add_u32 s62, s62, {L_T0}')
    a(f'v_lshl_add_u32 v{V_TMP}, v{V_LANE}, 5, s62')
    for r_ in range(4):
        for hf in range(2):
            a(f'ds_read_b128 {vr(V_SF+8*r_+4*hf,4)}, v{V_TMP} offset:{r_*RS + hf*16}')
    if cfg.cswz:
        K0 = {1: 0x83, 2: 0x02, 3: 0x00}[cfg.cswz]; K1 = 0x04 if cfg.cswz < 3 else 0; K2 = 0x08 if cfg.cswz < 3 else 0
        a(f'v_and_b32 v{V_TMP+2}, 1, v{V_G}')
        a(f'v_mul_u32_u24 v{V_TMP+1}, {(K0 << 8) | 0x10000:#x}, v{V_TMP+2}')
        a(f'v_lshrrev_b32 v{V_TMP+2}, 1, v{V_G}')
        a(f'v_mul_u32_u24 v{V_TMP+2}, {(K1 << 8) | 0x20000:#x}, v{V_TMP+2}')
        a(f'v_xor_b32 v{V_TMP+1}, v{V_TMP+1}, v{V_TMP+2}')
        a(f'v_lshl_add_u32 v{V_TMP+1}, v{V_C}, 4, v{V_TMP+1}')
        a(f's_and_b32 s62, s{S_H}, 15\ns_lshl_b32 s62, s62, 12\ns_lshl_b32 s63, s{S_W}, 9\ns_add_u32 s62, s62, s63')
        a(f's_lshl_b32 s63, s{S_B}, 19\ns_add_u32 s62, s62, s63')
        a(f'v_xor_b32 v{V_TMP+1}, s62, v{V_TMP+1}')
    else:
        a(f's_lshl_b32 s62, s{S_B}, 5\ns_lshl_b32 s63, s{S_W}, 2\ns_add_u32 s62, s62, s63')
        a(f's_lshl_b32 s62, s62, 4\ns_and_b32 s63, s{S_H}, 15\ns_add_u32 s62, s62, s63')
        a(f's_lshl_b32 s62, s62, 10\ns_add_u32 s62, s62, {WS_CPART:#x}')
        spread(a, 'c', 62, S_H, 63)
        a(f'v_lshl_add_u32 v{V_TMP+1}, v{V_LANE}, 4, s62')
    for r_ in range(4):
        a(f's_waitcnt lgkmcnt({6 - 2*r_})')
        for k in range(4):
            a(f'v_cvt_pk_bf16_f32 v{V_SF+32+4*r_+k}, v{V_SF+8*r_+2*k}, v{V_SF+8*r_+2*k+1}')
        if cfg.cswz:
            a(f'v_xor_b32 v{V_TMP+2}, {((r_ & 1) * ((K2 << 8) | 0x40000)) ^ ((r_ >> 1) << 8):#x}, v{V_TMP+1}')
            a(f's_mov_b32 s63, {WS_CPART:#x}')
            a(f'buffer_store_dwordx4 {vr(V_SF+32+4*r_,4)}, v{V_TMP+2}, s[{SRD_WS}:{SRD_WS+3}], s63 offen {cfg.cppol.replace("+", " ")}')
            continue
        a(f's_mov_b32 s63, {r_*16384}')
        if 's' in cfg.xs and r_: a('s_waitcnt vmcnt(0)')
        if cfg.emu and r_:
            if cfg.emu >= 2: a(f'buffer_store_dwordx4 {vr(V_SF+32+4*r_,4)}, v{V_TMP+1}, s[{SRD_WS}:{SRD_WS+3}], s63 offen')
            if cfg.emu >= 3 and r_ == 3:
                a('s_waitcnt vmcnt(0)')
                a(f'v_xor_b32 v{V_TMP+2}, 0x2000, v{V_TMP+1}')
                for r2 in range(1, 4):
                    a(f's_mov_b32 s63, {r2*16384}')
                    a(f'buffer_load_dwordx4 {vr(V_SF+4*r2,4)}, v{V_TMP+2}, s[{SRD_WS}:{SRD_WS+3}], s63 offen {"nt" if cfg.emu == 3 else ""}')
            continue
        if cfg.cstop != 4: a(f'buffer_store_dwordx4 {vr(V_SF+32+4*r_,4)}, v{V_TMP+1}, s[{SRD_WS}:{SRD_WS+3}], s63 offen {cfg.cppol.replace("+", " ")}')
    if cfg.tag:
        a(f'ds_read_b128 {vr(V_PB,4)}, v{V_TRP} offset:{L_TMAX}')
        a(f'v_and_b32 v{V_TMP}, 31, v{V_LANE}')
        a(f's_lshl_b32 s63, s{S_H}, {9 if "c" in cfg.fl else 4}\ns_add_u32 s63, s63, {WS_CSTAT:#x}')
        a(f'v_lshl_add_u32 v{V_TMP}, v{V_TMP}, {4 if "c" in cfg.fl else 9}, s63')
        a('s_waitcnt lgkmcnt(0)')
        a(f'v_add_f32 v{V_PB}, v{V_PB}, v{V_PB+1}')
        a(f'v_add_f32 v{V_PB+2}, v{V_PB+2}, v{V_PB+3}')
        a(f'v_add_f32 v{V_PB+2}, v{V_PB}, v{V_PB+2}')
        a(f'v_mov_b32 v{V_PB}, v{V_MP}')
        a(f'v_mov_b32 v{V_PB+1}, s{S_TAG}\nv_mov_b32 v{V_PB+3}, s{S_TAG}')
        a('s_waitcnt vmcnt(0)\ns_barrier')
        if 'C' in cfg.asst:
            a(f's_cmp_lg_u32 s{S_W}, 1\ns_cbranch_scc1 L_C_noas')
            role_a4.assist(a, cfg, 'C', V_SF, V_ZERO, None)
            a.label('L_C_noas')
        a(f's_cmp_lg_u32 s{S_W}, 0\ns_cbranch_scc1 L_C_done')
        a('s_mov_b32 exec_hi, 0')
        a(f'buffer_store_dwordx4 {vr(V_PB,4)}, v{V_TMP}, s[{SRD_WS}:{SRD_WS+3}], 0 offen sc1' + snt('c'))
        a('s_mov_b64 exec, -1')
        if cfg.mon > 1 and 'C' in cfg.ghost:
            a(f's_cmp_ge_u32 s{S_H}, 8\ns_cbranch_scc1 L_C_done')
            role_a4.exchange(a, cfg, 'C', V_SF, V_ZERO, None)
        a.label('L_C_done')
        if '2' in cfg.ct:
            code_touch(a, 'C2', 2, 244)
            a('s_waitcnt vmcnt(0)')
        stamp(a, cfg, 3)
        if cfg.pfx:
            a(f's_lshl_b32 s62, s{S_HP}, 21')
            a(f's_sub_u32 s63, {128 << 20:#x}, s62')
            srd(a, SRD_C, P_AV, off_s=62, nrec_s=63)
            a(f's_lshr_b32 s62, s{S_W}, 2\ns_lshl_b32 s62, s62, 26\ns_and_b32 s63, s{S_W}, 3\ns_lshl_b32 s63, s63, 12\ns_add_u32 s62, s62, s63')
            a(f'v_lshl_add_u32 v{V_TMP}, v{V_LANE}, 4, s62')
            rng = range(cfg.pf1, cfg.pf0 - 1, -1) if cfg.pfx == 1 else range(cfg.pf0, cfg.pf1 + 1)
            for t in rng:
                a(f's_mov_b32 s62, {t * 24 * 4096:#x}')
                for k in range(4):
                    a(f's_waitcnt vmcnt({cfg.pfl - 1})')
                    a(f'buffer_load_dwordx4 {vr(V_SF+4*k,4)}, v{V_TMP}, s[{SRD_C}:{SRD_C+3}], s62 offen offset:{1024*k} {cfg.pfpol}')
            a('s_waitcnt vmcnt(0)')
            stamp(a, cfg, 5)
        a('s_endpgm')
        return
    a(f's_cmp_lg_u32 s{S_W}, 0\ns_cbranch_scc1 L_C_nostat')
    a(f'ds_read_b128 {vr(V_PB,4)}, v{V_TRP} offset:{L_TMAX}')
    a(f's_lshl_b32 s62, s{S_B}, 5')
    a(f'v_and_b32 v{V_TMP}, 31, v{V_LANE}')
    a(f'v_add_u32 v{V_TMP}, s62, v{V_TMP}')
    a(f'v_lshlrev_b32 v{V_TMP}, 7, v{V_TMP}')
    a(f's_and_b32 s63, s{S_H}, 15\ns_lshl_b32 s63, s63, 3\ns_add_u32 s63, s63, {WS_CSTAT:#x}')
    a(f'v_add_u32 v{V_TMP}, s63, v{V_TMP}')
    a('s_waitcnt lgkmcnt(0)')
    a(f'v_add_f32 v{V_PB}, v{V_PB}, v{V_PB+1}')
    a(f'v_add_f32 v{V_PB+2}, v{V_PB+2}, v{V_PB+3}')
    a(f'v_add_f32 v{V_TMP+3}, v{V_PB}, v{V_PB+2}')
    a(f'v_mov_b32 v{V_TMP+2}, v{V_MP}')
    a('s_mov_b32 exec_hi, 0')
    a(f'buffer_store_dwordx2 {vr(V_TMP+2,2)}, v{V_TMP}, s[{SRD_WS}:{SRD_WS+3}], 0 offen sc1')
    a('s_mov_b64 exec, -1')
    a.label('L_C_nostat')
    signal(a, CNT_C, V_ZERO, V_TMP+4, 'Cc')
    stamp(a, cfg, 3)
    a('s_endpgm')
```
